```python
import torch

def _softmax(x, axis=-1):
    return torch.softmax(x, dim=axis)
def _gelu(x):
    return torch.nn.functional.gelu(x, approximate="tanh")
def _silu(x):
    return torch.nn.functional.silu(x)
def _sigmoid(x):
    return torch.sigmoid(x)
def _layernorm(x, axis=-1, eps=1e-5):
    m = x.mean(dim=axis, keepdim=True)
    v = x.var(dim=axis, keepdim=True, unbiased=False)
    return (x - m) / torch.sqrt(v + eps)
def _scatter_add(tgt, idx, src, axis=0):
    return tgt.clone().index_add_(axis, idx, src)
def _segment_sum(src, seg, n):
    out = torch.zeros((n,) + src.shape[1:], dtype=src.dtype)
    return out.index_add_(0, seg, src)
def _pad(x, pw):
    flat = tuple(v for pair in reversed(pw) for v in pair)
    return torch.nn.functional.pad(x, flat)

kernel_name = 'parallel_sum__ssm_conv_h3__swiglu_ffn__prompt'

def setup_inputs():

    _w = (lambda a: (lambda t: t.to(torch.bfloat16) if t.is_floating_point() else t)(torch.as_tensor(a)))
    def _A_setup():
        B, S, D = 1, 2048, 640
        ks = 4
        return {
            "q": _w((lambda *s: torch.randn(*s, dtype=torch.bfloat16) * 0.05)(B, S, D)),
            "k": _w((lambda *s: torch.randn(*s, dtype=torch.bfloat16) * 0.8)(B, S, D)),
            "v": _w((lambda *s: torch.randn(*s, dtype=torch.bfloat16) * 0.4)(B, S, D)),
            "shift_k": _w((lambda *s: torch.randn(*s, dtype=torch.bfloat16) * 0.8)(D, ks) * 0.5),
            "ssm_k": _w((lambda *s: torch.randn(*s, dtype=torch.bfloat16) * 0.8)(D, S) * (1.0 / S ** 0.5)),
            "ssm_D": _w((lambda *s: torch.randn(*s, dtype=torch.bfloat16) * 0.4)(D)),
        }
    _A_in = _A_setup()

    def _B_setup():
        B, S, D, F = 1, 2048, 640, 1536
        return {
            "x": _w((lambda *s: torch.randn(*s, dtype=torch.bfloat16) * 0.05)(B, S, D)),
            "w_gate": _w((lambda *s: torch.randn(*s, dtype=torch.bfloat16) * 0.05)(D, F)),
            "w_up": _w((lambda *s: torch.randn(*s, dtype=torch.bfloat16) * 0.05)(D, F)),
            "w_down": _w((lambda *s: torch.randn(*s, dtype=torch.bfloat16) * 0.05)(F, D)),
        }
    _B_in = _B_setup()

    return {
        "A_q": _A_in["q"],
        "A_k": _A_in["k"],
        "A_v": _A_in["v"],
        "A_shift_k": _A_in["shift_k"],
        "A_ssm_k": _A_in["ssm_k"],
        "A_ssm_D": _A_in["ssm_D"],
        "B_x": _B_in["x"],
        "B_w_gate": _B_in["w_gate"],
        "B_w_up": _B_in["w_up"],
        "B_w_down": _B_in["w_down"],
    }

def reference(A_q, A_k, A_v, A_shift_k, A_ssm_k, A_ssm_D, B_x, B_w_gate, B_w_up, B_w_down):
    def _A_ref(q, k, v, shift_k, ssm_k, ssm_D):
        B, S, D = q.shape
        ks = shift_k.shape[-1]
        k_pad = _pad(k, ((0, 0), (ks - 1, 0), (0, 0)))
        k_shift = torch.zeros_like(k)
        for t in range(ks):
            k_shift = k_shift + k_pad[:, t:t + S, :] * shift_k[:, ks - 1 - t][None, None, :]
        kv = k_shift * v
        L = 2 * S
        kv_pad = _pad(kv, ((0, 0), (0, S), (0, 0)))
        kf_pad = _pad(ssm_k, ((0, 0), (0, S)))
        kv_f = (lambda x, axes=(-2,-1): torch.fft.rfft2(x.float(), dim=axes))(kv_pad[:, None, :, :], axes=(1, 2))
        kf_f = (lambda x, axes=(-2,-1): torch.fft.rfft2(x.float(), dim=axes))(kf_pad[:, None, :], axes=(1, 2))
        kf_f = (lambda x, *d: x.permute(*d))(kf_f, 1, 2, 0)
        y_f = kv_f * kf_f[None, :, :, :]
        y = (lambda x, s, axes=(-2,-1): torch.fft.irfft2(x, s=s, dim=axes).to(torch.bfloat16))(y_f, (1, L), axes=(1, 2))[:, 0, :S, :]
        y = y + kv * ssm_D[None, None, :]
        return q * y

    def _B_ref(x, w_gate, w_up, w_down):
        g = _silu(x @ w_gate)
        u = x @ w_up
        return (g * u) @ w_down

    x = A_q
    xn = _layernorm(x, axis=-1)
    return x + _A_ref(xn, A_k, A_v, A_shift_k, A_ssm_k, A_ssm_D) + _B_ref(xn, B_w_gate, B_w_up, B_w_down)
```

```python
import re

TRANS = ("v_exp_f32", "v_log_f32", "v_rcp_f32", "v_rsq_f32", "v_sqrt_f32", "v_sin_f32", "v_cos_f32")
NODST_S = ("s_cmp", "s_waitcnt", "s_barrier", "s_branch", "s_cbranch", "s_nop", "s_setprio", "s_sleep",
           "s_endpgm", "s_bitcmp")


def vr(a, n=1):
    return f"v{a}" if n == 1 else f"v[{a}:{a+n-1}]"


def sr(a, n=1):
    return f"s{a}" if n == 1 else f"s[{a}:{a+n-1}]"


def regs_of(op):
    op = op.strip()
    op = op.lstrip("-")
    if op.startswith("abs(") and op.endswith(")"):
        op = op[4:-1]
    op = op.strip("|")
    m = re.fullmatch(r"([vsa])(\d+)", op)
    if m:
        return {(m.group(1), int(m.group(2)))}
    m = re.fullmatch(r"([vsa])\[(\d+):(\d+)\]", op)
    if m:
        return {(m.group(1), i) for i in range(int(m.group(2)), int(m.group(3)) + 1)}
    if op in ("vcc", "vcc_lo", "vcc_hi"):
        return {("s", "vcc")}
    if op in ("exec", "exec_lo", "exec_hi"):
        return {("s", "exec")}
    if op == "m0":
        return {("s", "m0")}
    return set()


class Ins:
    def __init__(self, text):
        self.text = text
        t = text.split(";")[0].strip()
        self.label = t.endswith(":")
        self.directive = t.startswith(".")
        self.mn = "" if (self.label or self.directive or not t) else t.split()[0]
        self.dst, self.src = set(), set()
        self.a = self.b = self.c = set()
        self.kind = "none"
        self.passes = 0
        self.states = 0 if not self.mn else 1
        if not self.mn:
            return
        rest = t[len(self.mn):].strip()
        ops = [o.strip() for o in rest.split(",")] if rest else []
        mods = []
        if ops:
            parts = ops[-1].split()
            ops[-1] = parts[0] if parts else ""
            mods = parts[1:]
        self.mods = mods
        mn = self.mn
        R = [regs_of(o) for o in ops]
        U = lambda l: set().union(*l) if l else set()
        if mn == "s_nop":
            self.kind = "salu"; self.states = int(ops[0], 0) + 1
        elif mn.startswith("v_mfma"):
            self.kind = "mfma"
            self.dst, self.a, self.b, self.c = R[0], R[1], R[2], R[3]
            self.src = self.a | self.b | self.c
            self.passes = 8 if "32x32" in mn else 4
        elif mn.startswith("v_"):
            self.kind = "valu"
            self.dpp = "_dpp" in mn or any(m.startswith(("wave_", "row_", "quad_perm")) for m in mods)
            if "permlane" in mn and "swap" in mn:
                self.dst = R[0] | R[1]; self.src = R[0] | R[1]
            else:
                self.dst = R[0]; self.src = U(R[1:])
                if mn.startswith(("v_fmac", "v_dot2c")) or self.dpp:
                    self.src = self.src | R[0]
                if mn.startswith("v_cndmask") and len(ops) == 3:
                    self.src = self.src | {("s", "vcc")}
        elif mn.startswith("ds_"):
            self.kind = "ds"
            if mn.startswith("ds_read") or "_rtn" in mn or mn.startswith(("ds_bpermute", "ds_swizzle")):
                self.dst = R[0]; self.src = U(R[1:])
                if "d16" in mn:
                    self.src = self.src | R[0]
            else:
                self.src = U(R)
        elif mn.startswith(("buffer_", "global_")):
            self.kind = "vmem"
            self.lds = "lds" in mods or "load_lds" in mn
            if "load" in mn and not self.lds:
                self.dst = R[0]; self.src = U(R[1:])
            else:
                self.src = U(R)
                if "atomic" in mn and "sc0" in mods:
                    self.dst = R[0]
            if self.lds:
                self.src = self.src | {("s", "m0")}
            self.wide_store = ("store" in mn) and mn.endswith(("x3", "x4"))
            self.data = R[0] if "store" in mn else set()
        elif mn.startswith(("s_load", "s_memtime", "s_memrealtime", "s_atomic")):
            self.kind = "smem"; self.dst = R[0]; self.src = U(R[1:])
        elif mn.startswith("s_"):
            self.kind = "salu"
            if mn.startswith(NODST_S):
                self.src = U(R)
            else:
                self.dst = R[0]; self.src = U(R[1:])
                if "saveexec" in mn:
                    self.dst = self.dst | {("s", "exec")}
        else:
            raise ValueError("unknown instruction: " + text)


def V(s):
    return {r for r in s if r[0] in "va"}


def S(s):
    return {r for r in s if r[0] == "s"}


def need(p, c):
    n = 0
    if p.kind == "valu":
        vw = V(p.dst); sw = S(p.dst)
        if c.kind == "mfma" and vw & c.src: n = max(n, 2)
        if c.kind == "valu":
            if c.mn.startswith(("v_readfirstlane", "v_readlane")) and vw & c.src: n = max(n, 1)
            if (c.dpp or "permlane" in c.mn) and vw & c.src: n = max(n, 2)
            if p.mn.startswith(TRANS) and not c.mn.startswith(TRANS) and vw & c.src: n = max(n, 1)
            if sw & c.src: n = max(n, 4 if c.mn.startswith(("v_readlane", "v_writelane")) else 2)
            if p.mn.startswith("v_dot2") and vw & (c.src | c.dst):
                same_c = c.mn == p.mn and vw == V(c.dst)
                if not same_c: n = max(n, 3)
        if p.mn.startswith("v_dot2") and c.kind in ("vmem", "ds", "mfma") and vw & c.src: n = max(n, 3)
        if p.mn.startswith(TRANS) and c.kind in ("vmem", "ds") and vw & c.src: n = max(n, 1)
        if c.kind == "vmem" and sw & c.src: n = max(n, 5)
        if c.kind in ("salu", "smem") and sw & c.src: n = max(n, 1)
    if p.kind == "mfma":
        big = 12 if p.passes == 8 else 8
        if c.kind == "mfma":
            if p.dst & (c.a | c.b): n = max(n, big)
            if p.dst & c.c and not (p.dst == c.c and p.passes == c.passes): n = max(n, big - 2)
            if p.dst & c.dst and not (p.dst == c.c and p.passes == c.passes): n = max(n, big - 2)
        elif c.kind in ("valu", "vmem", "ds"):
            if p.dst & (c.src | c.dst): n = max(n, big)
            if c.kind == "valu" and p.c & c.dst: n = max(n, 7 if p.passes == 8 else 3)
    if p.kind == "salu" and ("s", "m0") in p.dst and c.kind == "vmem" and c.lds: n = max(n, 1)
    if p.kind == "vmem" and p.wide_store and p.data & c.dst:
        n = max(n, 2 if c.kind in ("valu", "mfma") else 1)
    return n


def fix_hazards(lines):
    out = []
    for text in lines:
        c = Ins(text)
        if c.mn:
            dist = 0; worst = 0
            for p in reversed(out):
                if p.mn:
                    worst = max(worst, need(p, c) - dist)
                    dist += p.states
                    if dist > 20 or p.mn in ("s_branch", "s_endpgm"):
                        break
            while worst > 0:
                k = min(worst, 16)
                out.append(Ins(f"s_nop {k-1}")); worst -= k
        out.append(c)
    return [i.text for i in out]


class Counter:
    def __init__(self, emit, name, maxv):
        self.emit, self.name, self.maxv = emit, name, maxv
        self.q = []

    def issue(self, tag):
        self.q.append(tag)

    def wait(self, *tags):
        idx = [i for i, t in enumerate(self.q) if t in tags]
        if not idx:
            return
        n = len(self.q) - 1 - max(idx)
        self.emit(f"s_waitcnt {self.name}({min(n, self.maxv)})")
        self.q = self.q[len(self.q) - min(n, self.maxv):] if n else []

    def drain(self):
        self.emit(f"s_waitcnt {self.name}(0)")
        self.q = []

    def copy_from(self, other):
        self.q = list(other.q)


class Asm:
    def __init__(self):
        self.lines = []
        self.vm = Counter(self, "vmcnt", 63)
        self.lg = Counter(self, "lgkmcnt", 15)
        self.nlabel = 0

    def __call__(self, text):
        for l in text.split("\n"):
            l = l.strip()
            if l:
                self.lines.append(l)

    def vmem(self, text, tag):
        self(text); self.vm.issue(tag)

    def ds(self, text, tag):
        self(text); self.lg.issue(tag)

    def label(self, base):
        self.nlabel += 1
        return f"L_{base}_{self.nlabel}"

    def text(self):
        return "\n".join(fix_hazards(self.lines)) + "\n"
```

```python
import sys
from asmlib import Asm, vr, sr

KNAME = "parallel_sum__ssm_conv_h3__swiglu_ffn__prompt_kernel"

CNT, ST, CS, UT, YY, WDT, HH, PROF, WS_SIZE = (0, 0x8000, 0xC000, 0x40000, 0x2C0000, 0x540000, 0x720000,
                                               0xD20000, 0xE00000)
cH, cS, cC, cU, cW, cY = 0, 128, 144, 160, 170, 172
XS, WS_, AUX = 0, 49152, 122880
KST, VST, BNC = AUX, AUX + 16896, AUX
CVR = 8448
STL, CSF, ZERO, BCNT = AUX + 33792, AUX + 34816, AUX + 36352, AUX + 36368
PART, XT, YT = 0, 81920, 92160
LDS_BYTES = 163840
SQ, SWG, SWU, SWS, SK, SV, SSH, SSK, SSD, SOUT, SDBG, SWD = 4, 8, 12, 16, 20, 24, 28, 32, 36, 40, 44, 48
sW, sB, sXCD, sI, sRB1, sCB1, sKS, sRB2, sCB2, sWS, sC = 52, 53, 54, 55, 56, 57, 58, 59, 60, 61, 62
sT0, sT1, sT2, sT3, sCNT = 63, 64, 65, 66, 67
sTM = 68
sPR = 70
sA = 86
POLL_LIMIT = 1 << 17
LOG2E = 1.4426950408889634


def f2u(x):
    import struct
    return struct.unpack("<I", struct.pack("<f", x))[0]


class Gen:
    def __init__(self, opt):
        self.o = opt
        self.a = Asm()
        self.nstamp = 0

    def stamp(self, k):
        if not self.o.get("profile"):
            return
        a = self.a
        a(f"s_memrealtime {sr(sTM, 2)}")
        a.lg.drain()
        a(f"s_mov_b32 s{sPR+k}, s{sTM}")

    def dump_stamps(self):
        if not self.o.get("profile"):
            return
        a = self.a
        a("s_mov_b64 exec, -1")
        a("v_mov_b32 v1, 0")
        for k in range(16):
            a(f"v_writelane_b32 v1, s{sPR+k}, {k}")
        a(f"s_lshl_b32 s{sT0}, s2, 3\ns_add_u32 s{sT0}, s{sT0}, s{sW}\ns_lshl_b32 s{sT0}, s{sT0}, 6\ns_add_u32 s{sT0}, s{sT0}, {PROF}")
        a("v_mbcnt_lo_u32_b32 v2, -1, 0\nv_mbcnt_hi_u32_b32 v2, -1, v2\nv_lshlrev_b32 v2, 2, v2")
        a("s_mov_b64 exec, 0xffff")
        a(f"buffer_store_dword v1, v2, {sr(SWS,4)}, s{sT0} offen")

    def poll_issue(self, vret, vaddr, mask, tag):
        a = self.a
        a(f"s_mov_b64 exec, {mask}")
        a(f"v_mov_b32 v{vret}, 0")
        a.vmem(f"buffer_atomic_add v{vret}, v{vaddr}, {sr(SWS,4)}, 0 offen sc0 sc1", tag)
        a("s_mov_b64 exec, -1")

    def poll_check(self, vret, vaddr, mask, target, tag):
        a = self.a
        lo, ok = a.label("poll"), a.label("pollok")
        a.vm.wait(tag)
        a(f"s_mov_b64 exec, {mask}")
        a(f"s_mov_b32 s{sCNT}, 0")
        a(f"{lo}:")
        a(f"v_cmp_le_u32 vcc, {target}, v{vret}")
        a("s_cmp_eq_u64 vcc, exec")
        a(f"s_cbranch_scc1 {ok}")
        a(f"v_mov_b32 v{vret}, 0")
        a(f"buffer_atomic_add v{vret}, v{vaddr}, {sr(SWS,4)}, 0 offen sc0 sc1")
        a(f"s_add_u32 s{sCNT}, s{sCNT}, 1")
        a(f"s_cmp_lt_u32 s{sCNT}, {POLL_LIMIT}")
        a("s_waitcnt vmcnt(0)")
        a(f"s_cbranch_scc1 {lo}")
        a(f"{ok}:")
        a("s_mov_b64 exec, -1")

    def signal(self, vaddr, vtmp, mask, only_wave0=False):
        a = self.a
        skip = a.label("sig")
        if only_wave0:
            a(f"s_cmp_lg_u32 s{sB}, 0\ns_cbranch_scc1 {skip}")
        a(f"s_mov_b64 exec, {mask}")
        a(f"v_mov_b32 v{vtmp}, 1")
        a(f"buffer_atomic_add v{vtmp}, v{vaddr}, {sr(SWS,4)}, 0 offen sc1")
        a("s_mov_b64 exec, -1")
        if only_wave0:
            a(f"{skip}:")

    def cnt_addr(self, vaddr, lane, base, sidx):
        a = self.a
        a(f"s_add_u32 s{sT3}, s{sidx}, {base}\ns_lshl_b32 s{sT3}, s{sT3}, 7")
        a(f"v_writelane_b32 v{vaddr}, s{sT3}, {lane}")

    def prologue(self):
        a = self.a
        a("s_cmp_ge_u32 s2, 256\ns_cbranch_scc1 L_end")
        for srd, off in ((SQ, 0), (SWG, 56), (SWU, 64), (SWS, 96), (SK, 8), (SV, 16), (SSH, 24), (SSK, 32),
                         (SSD, 40), (SOUT, 80), (SDBG, 88), (SWD, 72)):
            a(f"s_load_dwordx2 {sr(srd,2)}, s[0:1], {off}")
        a("v_lshrrev_b32 v1, 6, v0\nv_and_b32 v0, 63, v0")
        a(f"v_readfirstlane_b32 s{sW}, v1")
        for srd, size in ((SQ, 2621440), (SWG, 1966080), (SWU, 1966080), (SWS, WS_SIZE), (SK, 2621440),
                          (SV, 2621440), (SSH, 5120), (SSK, 2621440), (SSD, 1280), (SOUT, 2621440),
                          (SDBG, 256), (SWD, 1966080)):
            a(f"s_mov_b32 s{srd+2}, {size}\ns_mov_b32 s{srd+3}, 0x20000")
        a(f"""
        s_and_b32 s{sB}, s{sW}, 3
        s_and_b32 s{sXCD}, s2, 7
        s_lshr_b32 s{sI}, s2, 3
        s_and_b32 s{sT0}, s{sXCD}, 1
        s_lshr_b32 s{sT1}, s{sXCD}, 1
        s_and_b32 s{sT2}, s{sI}, 7
        s_lshl3_add_u32 s{sRB1}, s{sT0}, s{sT2}
        s_lshr_b32 s{sT2}, s{sI}, 3
        s_lshl2_add_u32 s{sCB1}, s{sT1}, s{sT2}
        s_lshl2_add_u32 s{sT3}, s{sT0}, s{sT1}
        s_and_b32 s{sT2}, s{sI}, 3
        s_lshl2_add_u32 s{sRB2}, s{sT3}, s{sT2}
        s_lshr_b32 s{sCB2}, s{sI}, 2
        s_lshl_b32 s{sWS}, s{sT3}, 5
        s_add_u32 s{sWS}, s{sWS}, s{sI}
        s_mul_i32 s{sT0}, s{sCB1}, 3
        s_add_u32 s{sT0}, s{sT0}, s{sRB1}
        s_mul_i32 s{sT1}, s{sT0}, 26
        s_lshr_b32 s{sT1}, s{sT1}, 8
        s_mul_i32 s{sT1}, s{sT1}, 10
        s_sub_u32 s{sKS}, s{sT0}, s{sT1}
        """)
        if self.o.get("profile"):
            for k in range(16):
                a(f"s_mov_b32 s{sPR+k}, 0")
        a(f"s_cmp_ge_u32 s{sW}, 4\ns_cbranch_scc1 L_roleB")

    def role_a(self):
        a = self.a
        XA, WA, VH = 1, 5, 11
        FR, ACC = 120, 160
        T = 112
        sWM, sWN = sA, sA + 1
        sH = sA + 2
        xf = lambda p, i: FR + 20 * p + 4 * i
        wf = lambda p, j: FR + 20 * p + 8 + 4 * j
        acc = lambda i, j: ACC + (i * 3 + j) * 16
        a(f"""
        s_and_b32 s{sWM}, s{sB}, 1
        s_lshr_b32 s{sWN}, s{sB}, 1
        v_and_b32 v{T}, 31, v0
        v_lshrrev_b32 v{T+1}, 5, v0
        v_bfe_u32 v{T+2}, v0, 1, 3
        v_xor_b32 v{T+2}, v{T+2}, v{T+1}
        s_lshl_b32 s{sT0}, s{sWM}, 13
        v_lshl_add_u32 v{T}, v{T}, 7, s{sT0}
        """)
        for t in range(4):
            a(f"v_xor_b32 v{T+3}, {2*t}, v{T+2}\nv_lshl_add_u32 v{XA+t}, v{T+3}, 4, v{T}")
        a(f"""
        v_bfe_u32 v{T+2}, v0, 4, 1
        v_mul_u32_u24 v{T+3}, 3072, v{T+2}
        v_mul_u32_u24 v{T+4}, 1536, v{T+1}
        v_bfe_u32 v{T+5}, v0, 2, 2
        v_lshl_add_u32 v{T+3}, v{T+5}, 6, v{T+3}
        v_and_b32 v{T+5}, 1, v0
        v_lshl_add_u32 v{T+3}, v{T+5}, 4, v{T+3}
        v_bfe_u32 v{T+5}, v0, 1, 1
        v_lshl_add_u32 v{T+3}, v{T+5}, 3, v{T+3}
        v_add_u32 v{T+3}, v{T+3}, v{T+4}
        v_lshlrev_b32 v{T+2}, 5, v{T+2}
        s_mul_i32 s{sT0}, s{sWN}, 3
        s_lshl_b32 s{sT3}, s{sRB1}, 1
        s_add_u32 s{sT3}, s{sT3}, s{sWM}
        s_mul_i32 s{sT3}, s{sT3}, 48
        s_mul_i32 s{sT2}, s{sCB1}, 3
        s_add_u32 s{sT3}, s{sT3}, s{sT2}
        """)
        for j in range(3):
            a(f"""
            s_add_u32 s{sT1}, s{sT0}, {j}
            s_lshr_b32 s{sT2}, s{sT1}, 1
            s_and_b32 s{sT1}, s{sT1}, 1
            s_add_u32 s{sH+j}, s{sT3}, s{sT2}
            s_lshl_b32 s{sH+j}, s{sH+j}, 3
            s_add_u32 s{sH+j}, s{sH+j}, s{sT1}
            s_lshl_b32 s{sH+j}, s{sH+j}, 9
            s_add_u32 s{sH+j}, s{sH+j}, {HH}
            s_lshl_b32 s{sT1}, s{sT1}, 5
            v_xor_b32 v{T+4}, s{sT1}, v{T+2}
            s_lshl_b32 s{sT2}, s{sT2}, 8
            s_add_u32 s{sT2}, s{sT2}, {WS_}
            v_add3_u32 v{WA+j}, v{T+3}, v{T+4}, s{sT2}
            v_add_u32 v{WA+3+j}, 49152, v{WA+j}
            """)
        a(f"""
        v_and_b32 v{T+4}, 15, v0
        v_lshlrev_b32 v{T+4}, 4, v{T+4}
        v_lshl_add_u32 v{T+4}, v{T+1}, 8, v{T+4}
        v_bfe_u32 v{T+5}, v0, 4, 1
        v_lshl_add_u32 v{VH}, v{T+5}, 10, v{T+4}
        s_waitcnt lgkmcnt(0)
        """)
        a(f"s_or_b32 s{sT0}, s2, s{sB}\ns_cmp_lg_u32 s{sT0}, 0\ns_cbranch_scc1 L_noclear")
        a(f"v_lshlrev_b32 v{T}, 7, v0\nv_mov_b32 v{T+1}, 0")
        for p in range(3):
            a(f"s_mov_b32 s{sT0}, {p*8192}\nbuffer_store_dword v{T+1}, v{T}, {sr(SWS,4)}, s{sT0} offen sc1")
        a(f"s_waitcnt vmcnt(0)\nv_mov_b32 v{T+2}, 1\ns_mov_b64 exec, 1")
        a(f"buffer_store_dword v{T+2}, v{T+1}, {sr(SDBG,4)}, 0 offen sc1\ns_mov_b64 exec, -1")
        a("L_noclear:")
        self.stamp(0)

        def reads(g):
            s, t, p = g >> 2, g & 3, g & 1
            sl = s % 3
            wa = WA + (3 if sl == 2 else 0)
            wo = (sl % 2) * 24576 + t * 6144
            r = [f"ds_read_b128 {vr(xf(p,0),4)}, v{XA+t} offset:{sl*16384}"]
            r += [f"ds_read_b64_tr_b16 {vr(wf(p,0)+2*q,2)}, v{wa} offset:{wo+q*768}" for q in range(2)]
            r += [f"ds_read_b128 {vr(xf(p,1),4)}, v{XA+t} offset:{sl*16384+4096}"]
            for j in (1, 2):
                r += [f"ds_read_b64_tr_b16 {vr(wf(p,j)+2*q,2)}, v{wa+j} offset:{wo+q*768}" for q in range(2)]
            return r

        a("s_barrier")
        self.stamp(1)
        for r in reads(0):
            a.ds(r, "f")
        CF, SF = T, T + 6
        for g in range(40):
            p = g & 1
            a.lg.drain()
            nxt = []
            if g + 1 < 40:
                if (g + 1) & 3 == 0:
                    a("s_barrier")
                nxt = reads(g + 1)
            else:
                a("s_barrier")
                q0 = FR + 20 * (1 - p)
                nxt = [f"ds_read_b64 {vr(CF+2*j,2)}, v{T+6} offset:{j*256}" for j in range(3)]
                nxt += [f"ds_read_b64 {vr(q0+2*i,2)}, v{T+7} offset:{i*256}" for i in range(2)]
            if g == 38:
                a(f"""
                v_and_b32 v{T}, 31, v0
                s_mul_i32 s{sT0}, s{sWN}, 768
                s_add_u32 s{sT0}, s{sT0}, {CSF}
                v_lshl_add_u32 v{T+6}, v{T}, 3, s{sT0}
                s_lshl_b32 s{sT0}, s{sWM}, 9
                s_add_u32 s{sT0}, s{sT0}, {STL}
                v_lshl_add_u32 v{T+7}, v{T}, 3, s{sT0}
                """)
            k = 0
            for j in range(3):
                for i in range(2):
                    c = "0" if g == 0 else vr(acc(i, j), 16)
                    a(f"v_mfma_f32_32x32x16_bf16 {vr(acc(i,j),16)}, {vr(wf(p,j),4)}, {vr(xf(p,i),4)}, {c}")
                    for _ in range(3):
                        if k < len(nxt):
                            a.ds(nxt[k], "f"); k += 1
        self.stamp(2)
        q0 = FR + 0
        M2, C1, KK = FR + 4, FR + 8, FR + 10
        a.lg.drain()
        a("s_mov_b32 exec_lo, 0")
        for j in range(6):
            a(f"v_mov_b32 v{CF+j}, 0")
        a("s_mov_b32 exec_lo, -1")
        for i in range(2):
            a(f"v_cvt_pk_bf16_f32 v{M2+2*i}, -v{q0+2*i}, -v{q0+2*i}")
            a(f"v_cvt_pk_bf16_f32 v{M2+2*i+1}, -v{q0+2*i}, -v{q0+2*i}")
            a(f"v_rcp_f32 v{C1+i}, v{q0+2*i+1}")
            a(f"v_mul_f32 v{KK+i}, v{q0+2*i+1}, v{q0+2*i+1}")
        for j in range(3):
            for i in range(2):
                a(f"v_mfma_f32_32x32x8_bf16 {vr(acc(i,j),16)}, {vr(CF+2*j,2)}, {vr(M2+2*i,2)}, {vr(acc(i,j),16)}")
        for i in range(2):
            a(f"v_mul_f32 v{C1+i}, {hex(f2u(-LOG2E))}, v{C1+i}")
        NW, NH = 5, 4
        WR, HR, ACC2 = 12, 112, 176
        V16, V16B = XA, XA + 1
        sRot, sWb, sHb, sWo, sHo, sKw, sKh = sA + 5, sA + 6, sA + 7, sA + 8, sA + 9, sA + 10, sA + 11
        a(f"""
        v_lshlrev_b32 v{V16}, 4, v0
        v_add_u32 v{V16B}, 1024, v{V16}
        s_mul_i32 s{sT0}, s{sCB2}, 3
        s_lshr_b32 s{sT0}, s{sT0}, 1
        s_and_b32 s{sT1}, s{sI}, 3
        s_mul_i32 s{sT1}, s{sT1}, 3
        s_add_u32 s{sT0}, s{sT0}, s{sT1}
        s_sub_u32 s{sT1}, s{sT0}, 12
        s_cmp_ge_u32 s{sT0}, 12
        s_cselect_b32 s{sRot}, s{sT1}, s{sT0}
        s_mul_i32 s{sT0}, s{sB}, 12
        s_mul_i32 s{sT1}, s{sCB2}, 48
        s_add_u32 s{sT1}, s{sT1}, s{sT0}
        s_mul_i32 s{sWb}, s{sT1}, 5120
        s_add_u32 s{sWb}, s{sWb}, {WDT}
        s_mul_i32 s{sT1}, s{sRB2}, 48
        s_add_u32 s{sT1}, s{sT1}, s{sT0}
        s_lshl_b32 s{sHb}, s{sT1}, 12
        s_add_u32 s{sHb}, s{sHb}, {HH}
        s_mov_b32 s{sKw}, s{sRot}
        s_mov_b32 s{sKh}, s{sRot}
        """)

        def step_off(sk, so, sb, mul):
            return [f"s_mul_i32 s{so}, s{sk}, {mul}", f"s_add_u32 s{so}, s{so}, s{sb}",
                    f"s_add_u32 s{sk}, s{sk}, 1", f"s_cmp_eq_u32 s{sk}, 12", f"s_cselect_b32 s{sk}, 0, s{sk}"]

        def wload(i, j):
            r = WR + (i % NW) * 20 + 4 * j
            v, off = (V16, 0) if j == 0 else (V16B, (j - 1) * 1024)
            return f"buffer_load_dwordx4 {vr(r,4)}, v{v}, {sr(SWS,4)}, s{sWo} offen offset:{off} sc1"

        def hload(i, tt):
            r = HR + (i % NH) * 16 + 4 * tt
            return f"buffer_load_dwordx4 {vr(r,4)}, v{V16}, {sr(SWS,4)}, s{sHo} offen offset:{tt*1024} sc1"

        E = FR + 12
        HP = FR + 24
        tile = 0
        for j in range(3):
            for i in range(2):
                b = acc(i, j)
                hp = HP + 4 * (tile % 3)
                if tile < NW:
                    a("\n".join(step_off(sKw, sWo, sWb, 5120)))
                for r in range(8):
                    a(f"v_mul_f32 v{E+r}, v{b+r}, v{C1+i}")
                for r in range(8):
                    a(f"v_exp_f32 v{E+r}, v{E+r}")
                    a(f"v_mul_f32 v{b+r}, v{b+r}, v{b+8+r}")
                for r in range(8):
                    a(f"v_fma_f32 v{E+r}, v{E+r}, v{KK+i}, v{KK+i}")
                    if tile < NW and r < 5:
                        a.vmem(wload(tile, r), f"w{tile}")
                for r in range(8):
                    a(f"v_rcp_f32 v{E+r}, v{E+r}")
                for r in range(8):
                    a(f"v_mul_f32 v{b+r}, v{b+r}, v{E+r}")
                for r in range(4):
                    a(f"v_cvt_pk_bf16_f32 v{hp+r}, v{b+2*r}, v{b+2*r+1}")
                a.vmem(f"buffer_store_dwordx4 {vr(hp,4)}, v{VH}, {sr(SWS,4)}, s{sH+j} offen offset:{i*2048} sc1", "hst")
                tile += 1
        self.stamp(3)
        PA, PR = XA + 2, XA + 3
        a(f"""
        s_lshl_b32 s{sT0}, s{sRB1}, 1
        s_add_u32 s{sT0}, s{sT0}, s{sWM}
        s_lshr_b32 s{sT1}, s{sCB1}, 2
        s_lshl2_add_u32 s{sT0}, s{sT0}, s{sT1}
        """)
        self.cnt_addr(PA, 0, cH, sT0)
        a.vm.drain()
        self.signal(PA, PR, 1)
        self.stamp(4)
        a(f"s_lshl2_add_u32 s{sT0}, s{sRB2}, s{sB}")
        self.cnt_addr(PA, 0, cH, sT0)
        self.poll_issue(PR, PA, 1, "poll")
        self.poll_check(PR, PA, 1, 8, "poll")
        self.stamp(5)
        for i in range(NH):
            a("\n".join(step_off(sKh, sHo, sHb, 4096)))
            for tt in range(4):
                a.vmem(hload(i, tt), f"h{i}_{tt}")
        acc2 = lambda tt, j: ACC2 + (tt * 5 + j) * 4
        for i in range(12):
            if i + NH < 12:
                a("\n".join(step_off(sKh, sHo, sHb, 4096)))
            if i + NW < 12:
                a("\n".join(step_off(sKw, sWo, sWb, 5120)))
            for tt in range(4):
                a.vm.wait(f"w{i}", f"h{i}_{tt}")
                for j in range(5):
                    c = "0" if i == 0 else vr(acc2(tt, j), 4)
                    a(f"v_mfma_f32_16x16x32_bf16 {vr(acc2(tt,j),4)}, {vr(WR+(i%NW)*20+4*j,4)}, {vr(HR+(i%NH)*16+4*tt,4)}, {c}")
                    if tt == 3 and i + NW < 12:
                        a.vmem(wload(i + NW, j), f"w{i+NW}")
                if i + NH < 12:
                    a.vmem(hload(i + NH, tt), f"h{i+NH}_{tt}")
        self.stamp(6)
        a(f"s_mul_i32 s{sT0}, s{sB}, 20480\nv_add_u32 v{V16}, s{sT0}, v{V16}")
        for t in range(20):
            a.ds(f"ds_write_b128 v{V16}, {vr(ACC2+4*t,4)} offset:{PART+t*1024}", "p")
        a.lg.drain()
        a("s_barrier")
        self.stamp(7)
        self.dump_stamps()
        a("s_endpgm")

    def b_common_setup(self):
        a = self.a
        VX, VG, VU, T = 1, 5, 8, 20
        self.VX, self.VG, self.VU = VX, VG, VU
        self.sXL, self.sWL, self.sXO, self.sWO = sA, sA + 1, sA + 2, sA + 3
        a("L_roleB:")
        a(f"""
        v_lshrrev_b32 v{T}, 3, v0
        v_mul_u32_u24 v{T}, 1280, v{T}
        s_lshl2_add_u32 s{sT0}, s{sRB1}, s{sB}
        s_mul_i32 s{sT0}, s{sT0}, 40960
        v_add_u32 v{T}, s{sT0}, v{T}
        v_and_b32 v{T+1}, 7, v0
        v_lshrrev_b32 v{T+2}, 4, v0
        v_xor_b32 v{T+1}, v{T+1}, v{T+2}
        v_lshl_add_u32 v{VX}, v{T+1}, 4, v{T}
        v_xor_b32 v{VX+1}, 64, v{VX}
        v_add_u32 v{VX+1}, 10240, v{VX+1}
        v_add_u32 v{VX+2}, 20480, v{VX}
        v_add_u32 v{VX+3}, 20480, v{VX+1}
        v_bfe_u32 v{T}, v0, 2, 2
        v_mul_u32_u24 v{T}, 3072, v{T}
        v_and_b32 v{T+1}, 3, v0
        v_lshl_add_u32 v{T}, v{T+1}, 4, v{T}
        s_mul_i32 s{sT0}, s{sB}, 49152
        s_mul_i32 s{sT1}, s{sCB1}, 192
        s_add_u32 s{sT0}, s{sT0}, s{sT1}
        v_add_u32 v{T}, s{sT0}, v{T}
        """)
        for i in range(3):
            a(f"""
            v_add_u32 v{T+1}, {4*i}, v{T+2}
            v_mul_u32_u24 v{T+3}, 11, v{T+1}
            v_lshrrev_b32 v{T+3}, 5, v{T+3}
            v_mul_u32_u24 v{T+4}, {12288-192}, v{T+3}
            v_lshl_add_u32 v{T+4}, v{T+1}, 6, v{T+4}
            v_add_u32 v{VG+i}, v{T+4}, v{T}
            v_xor_b32 v{VU+i}, 32, v{VG+i}
            """)
        a(f"""
        s_lshl_b32 s{self.sXL}, s{sB}, 12
        s_mul_i32 s{self.sWL}, s{sB}, 6144
        s_add_u32 s{self.sWL}, s{self.sWL}, {WS_}
        s_waitcnt lgkmcnt(0)
        """)

    def stage_issue(self, s):
        a = self.a
        sl = s % 3
        fl = self.o.get("g1flags", "")
        a(f"""
        s_lshl_b32 s{self.sXO}, s{sKS}, 7
        s_mul_i32 s{self.sWO}, s{sKS}, 196608
        s_add_u32 s{sKS}, s{sKS}, 1
        s_cmp_eq_u32 s{sKS}, 10
        s_cselect_b32 s{sKS}, 0, s{sKS}
        """)
        for i in range(4):
            a(f"s_add_u32 m0, s{self.sXL}, {XS+sl*16384+i*1024}")
            a.vmem(f"buffer_load_dwordx4 v{self.VX+i}, {sr(SQ,4)}, s{self.sXO} offen {fl} lds", f"S{s}")
        for up in range(2):
            for i in range(3):
                a(f"s_add_u32 m0, s{self.sWL}, {sl*24576+up*3072+i*1024}")
                a.vmem(f"buffer_load_dwordx4 v{(self.VU if up else self.VG)+i}, {sr(SWU if up else SWG,4)}, s{self.sWO} offen {fl} lds", f"S{s}")

    def stats_load(self):
        a = self.a
        T, X = 20, 24
        a(f"""
        v_lshrrev_b32 v{T}, 5, v0
        s_lshl2_add_u32 s{sT0}, s{sWS}, s{sB}
        s_lshl_b32 s{sT0}, s{sT0}, 1
        v_add_u32 v{T}, s{sT0}, v{T}
        v_lshlrev_b32 v11, 3, v{T}
        v_mul_u32_u24 v{T}, 1280, v{T}
        v_and_b32 v{T+1}, 31, v0
        v_lshl_add_u32 v{T}, v{T+1}, 3, v{T}
        """)
        for j in range(5):
            a.vmem(f"buffer_load_dwordx2 {vr(X+2*j,2)}, v{T}, {sr(SQ,4)}, 0 offen offset:{j*256}", "stat")

    def reduce32(self, v, t):
        a = self.a
        for n in (8, 4, 2, 1):
            a(f"v_add_f32_dpp v{v}, v{v}, v{v} row_ror:{n} row_mask:0xf bank_mask:0xf")
        a(f"v_mov_b32 v{t}, v{v}\nv_permlane16_swap_b32 v{v}, v{t}\nv_add_f32 v{v}, v{v}, v{t}")

    def stats_compute(self):
        a = self.a
        X, U, T = 24, 34, 20
        a.vm.wait("stat")
        for j in range(10):
            a(f"v_lshlrev_b32 v{U+2*j}, 16, v{X+j}\nv_and_b32 v{U+2*j+1}, 0xffff0000, v{X+j}")
        a(f"v_add_f32 v{T}, v{U}, v{U+1}\nv_add_f32 v{T+1}, v{U+2}, v{U+3}")
        for j in range(4, 20):
            a(f"v_add_f32 v{T+(j&1)}, v{T+(j&1)}, v{U+j}")
        a(f"v_add_f32 v{T}, v{T}, v{T+1}")
        self.reduce32(T, T + 1)
        a(f"v_mul_f32 v{T}, {hex(f2u(1.0/640))}, v{T}")
        for j in range(20):
            a(f"v_sub_f32 v{U+j}, v{U+j}, v{T}")
        a(f"v_mul_f32 v{T+1}, v{U}, v{U}\nv_mul_f32 v{T+2}, v{U+1}, v{U+1}")
        for j in range(2, 20):
            a(f"v_fmac_f32 v{T+1+(j&1)}, v{U+j}, v{U+j}")
        a(f"v_add_f32 v{T+1}, v{T+1}, v{T+2}")
        self.reduce32(T + 1, T + 2)
        a(f"""
        v_mul_f32 v{T+1}, {hex(f2u(1.0/640))}, v{T+1}
        v_cvt_pk_bf16_f32 v{T+2}, v{T}, v{T+1}
        v_lshlrev_b32 v{T}, 16, v{T+2}
        v_and_b32 v{T+1}, 0xffff0000, v{T+2}
        v_add_f32 v{T+1}, {hex(f2u(1e-5))}, v{T+1}
        v_cvt_pk_bf16_f32 v{T+1}, v{T+1}, v{T+1}
        v_and_b32 v{T+1}, 0xffff0000, v{T+1}
        v_sqrt_f32 v{T+1}, v{T+1}
        v_cvt_pk_bf16_f32 v{T+1}, v{T+1}, v{T+1}
        v_and_b32 v{T+1}, 0xffff0000, v{T+1}
        s_mov_b32 s{sT0}, {ST}
        s_mov_b32 exec_lo, 1
        s_mov_b32 exec_hi, 1
        """)
        a.vmem(f"buffer_store_dwordx2 {vr(T,2)}, v11, {sr(SWS,4)}, s{sT0} offen sc1", "stst")
        a("s_mov_b64 exec, -1")

    def colsum_partial(self):
        a = self.a
        T, F = 12, 60
        a(f"""
        v_bfe_u32 v{T+2}, v0, 4, 1
        v_mul_u32_u24 v{T+3}, 3072, v{T+2}
        v_lshrrev_b32 v{T+4}, 5, v0
        v_mul_u32_u24 v{T+4}, 1536, v{T+4}
        v_bfe_u32 v{T+5}, v0, 2, 2
        v_lshl_add_u32 v{T+3}, v{T+5}, 6, v{T+3}
        v_and_b32 v{T+5}, 1, v0
        v_lshl_add_u32 v{T+3}, v{T+5}, 4, v{T+3}
        v_bfe_u32 v{T+5}, v0, 1, 1
        v_lshl_add_u32 v{T+3}, v{T+5}, 3, v{T+3}
        v_lshl_add_u32 v{T+3}, v{T+2}, 5, v{T+3}
        s_min_u32 s{sT1}, s{sB}, 2
        s_lshl_b32 s{sT1}, s{sT1}, 8
        s_add_u32 s{sT0}, s{sT1}, {WS_}
        v_add3_u32 v{T}, v{T+3}, v{T+4}, s{sT0}
        v_xor_b32 v{T+1}, 32, v{T}
        s_lshl4_add_u32 s{sT0}, s{sCB1}, s{sRB1}
        s_mul_i32 s{sT0}, s{sT0}, 768
        s_add_u32 s{sT0}, s{sT0}, s{sT1}
        s_add_u32 s{sT0}, s{sT0}, {CS}
        s_mov_b32 s{sT1}, 0x3f803f80
        v_lshlrev_b32 v{T+6}, 2, v0
        """)
        for h in range(2):
            for n in range(8):
                a.ds(f"ds_read_b64_tr_b16 {vr(F+16*h+2*n,2)}, v{T+h} offset:{(n>>1)*6144+(n&1)*768}", f"cs{h}")
        for r in range(4):
            a(f"v_mov_b32 v{T+2+r}, 0")
        for h in range(2):
            a.lg.wait(f"cs{h}")
            for n in range(16):
                a(f"v_dot2c_f32_bf16 v{T+2+2*h+(n&1)}, s{sT1}, v{F+16*h+n}")
        a(f"v_add_f32 v{T+2}, v{T+2}, v{T+3}\nv_add_f32 v{T+4}, v{T+4}, v{T+5}")
        a(f"v_permlane32_swap_b32 v{T+2}, v{T+4}\nv_add_f32 v{T+2}, v{T+2}, v{T+4}")
        a.vmem(f"buffer_store_dword v{T+2}, v{T+6}, {sr(SWS,4)}, s{sT0} offen sc1", "csst")

    def gather_issue(self):
        a = self.a
        T, G = 12, 24
        a(f"""
        v_and_b32 v{T}, 31, v0
        s_lshl2_add_u32 s{sT0}, s{sRB1}, s{sB}
        s_lshl_b32 s{sT0}, s{sT0}, 8
        s_add_u32 s{sT0}, s{sT0}, {ST}
        v_lshlrev_b32 v{T}, 3, v{T}
        s_mul_i32 s{sT1}, s{sCB1}, 12288
        s_mul_i32 s{sT2}, s{sB}, 192
        s_add_u32 s{sT1}, s{sT1}, s{sT2}
        s_add_u32 s{sT1}, s{sT1}, {CS}
        s_add_u32 s{sT2}, s{sT1}, 3840
        v_lshlrev_b32 v{T+1}, 2, v0
        """)
        a.vmem(f"buffer_load_dwordx2 {vr(G,2)}, v{T}, {sr(SWS,4)}, s{sT0} offen sc1", "gat")
        for p in range(10):
            a.vmem(f"buffer_load_dword v{G+2+p}, v{T+1}, {sr(SWS,4)}, s{sT1 if p < 5 else sT2} offen offset:{(p%5)*768} sc1", "gat")

    def gather_finish(self):
        a = self.a
        T, G = 12, 24
        a.vm.wait("gat")
        a(f"s_lshl_b32 s{sT0}, s{sB}, 8\ns_add_u32 s{sT0}, s{sT0}, {STL}\nv_add_u32 v{T}, s{sT0}, v{T}")
        a.ds(f"ds_write_b64 v{T}, {vr(G,2)}", "gw")
        c = G + 2
        for p in range(5):
            a(f"v_add_f32 v{c+p}, v{c+p}, v{c+5+p}")
        a(f"""
        v_add_f32 v{c}, v{c}, v{c+1}
        v_add_f32 v{c+2}, v{c+2}, v{c+3}
        v_add_f32 v{c}, v{c}, v{c+4}
        v_add_f32 v{c}, v{c}, v{c+2}
        v_cvt_pk_bf16_f32 v{c+1}, v{c}, v{c}
        v_and_b32 v{c+1}, 0xffff0000, v{c+1}
        v_sub_f32 v{c+1}, v{c}, v{c+1}
        v_cvt_pk_bf16_f32 v{c+2}, v{c}, v{c+1}
        v_and_b32 v{c+4}, 0xffff0000, v{c+2}
        v_sub_f32 v{c+1}, v{c+1}, v{c+4}
        v_cvt_pk_bf16_f32 v{c+3}, v{c+1}, 0
        s_mul_i32 s{sT0}, s{sB}, 384
        s_add_u32 s{sT0}, s{sT0}, {CSF}
        v_lshl_add_u32 v{T+1}, v0, 3, s{sT0}
        s_mov_b32 exec_hi, 0xffff
        """)
        a.ds(f"ds_write_b64 v{T+1}, {vr(c+2,2)}", "gw")
        a("s_mov_b32 exec_hi, -1")
        a.lg.drain()

    def kv_issue(self):
        a = self.a
        T = 20
        fl = self.o.get("p0flags", "")
        self.sT0K, self.sCG = sA + 4, sA + 5
        a(f"""
        s_and_b32 s{self.sT0K}, s{sC}, 15
        s_lshl_b32 s{self.sT0K}, s{self.sT0K}, 7
        s_lshr_b32 s{self.sCG}, s{sC}, 4
        s_lshl2_add_u32 s{sT0}, s{self.sCG}, s{sB}
        s_lshl_b32 s{sT0}, s{sT0}, 7
        v_and_b32 v{T+1}, 15, v0
        v_lshl_add_u32 v{T+1}, v{T+1}, 3, s{sT0}
        """)
        a.vmem(f"buffer_load_dwordx2 v[54:55], v{T+1}, {sr(SSH,4)}, 0 offen", "kv")
        a(f"""
        v_lshrrev_b32 v{T+2}, 3, v0
        v_mul_u32_u24 v{T+2}, 1280, v{T+2}
        v_and_b32 v{T+3}, 7, v0
        v_lshl_add_u32 v{T+2}, v{T+3}, 4, v{T+2}
        s_lshl_b32 s{sT1}, s{sB}, 5
        s_add_u32 s{sT1}, s{sT1}, s{self.sT0K}
        s_mul_i32 s{sT1}, s{sT1}, 1280
        s_lshl_b32 s{sT2}, s{self.sCG}, 7
        s_add_u32 s{sT1}, s{sT1}, s{sT2}
        v_add_u32 v{T+2}, s{sT1}, v{T+2}
        s_add_u32 s{sT1}, s{self.sT0K}, s{sB}
        s_sub_u32 s{sT1}, s{sT1}, 4
        s_mul_i32 s{sT1}, s{sT1}, 1280
        s_add_u32 s{sT1}, s{sT1}, s{sT2}
        v_lshl_add_u32 v{T+3}, v0, 4, s{sT1}
        """)
        for srd, base in ((SK, KST + 512), (SV, VST)):
            for i in range(4):
                a(f"s_mov_b32 s{sT1}, {i*10240}\ns_add_u32 m0, s{self.sXL}, {base+i*1024}")
                a.vmem(f"buffer_load_dwordx4 v{T+2}, {sr(srd,4)}, s{sT1} offen {fl} lds", "kv")
        a(f"s_lshl_b32 s{sT1}, s{sB}, 7\ns_add_u32 m0, s{sT1}, {KST}\ns_mov_b64 exec, 0xff")
        a.vmem(f"buffer_load_dwordx4 v{T+3}, {sr(SK,4)}, 0 offen {fl} lds", "kv")
        a("s_mov_b64 exec, -1")

    def kv_reads(self):
        a = self.a
        T, K, Vv, W = 20, 60, 78, 14
        a(f"""
        v_lshrrev_b32 v{T}, 4, v0
        v_lshlrev_b32 v{T}, 5, v{T}
        v_bfe_u32 v{T+1}, v0, 2, 2
        v_add_u32 v{T}, v{T}, v{T+1}
        v_and_b32 v{T+1}, 3, v0
        v_lshlrev_b32 v{T+1}, 3, v{T+1}
        v_lshl_add_u32 v{T}, v{T}, 7, v{T+1}
        s_lshl_b32 s{sT0}, s{sB}, 5
        s_add_u32 s{sT0}, s{sT0}, {KST}
        v_add_u32 v{T}, s{sT0}, v{T}
        """)
        for i in range(9):
            a.ds(f"ds_read_b64_tr_b16 {vr(K+2*i,2)}, v{T} offset:{i*512}", "kvr")
        for i in range(8):
            a.ds(f"ds_read_b64_tr_b16 {vr(Vv+2*i,2)}, v{T} offset:{16896+i*512}", "kvr")
        a(f"""
        v_lshlrev_b32 v{W}, 16, v54
        v_and_b32 v{W+1}, 0xffff0000, v54
        v_lshlrev_b32 v{W+2}, 16, v55
        v_and_b32 v{W+3}, 0xffff0000, v55
        """)
        a.lg.drain()

    def kv_compute(self, lo, hi):
        a = self.a
        K, Vv, W, KF, O, T = 60, 78, 14, 96, 132, 20
        first = 0 if lo == 0 else lo + 2
        for p in range(first, hi + 2):
            a(f"v_lshlrev_b32 v{KF+2*p}, 16, v{K+p}\nv_and_b32 v{KF+2*p+1}, 0xffff0000, v{K+p}")
        for p in range(lo, hi):
            for e in range(2):
                t = 2 * p + e
                a(f"v_mul_f32 v{T+e}, v{W+3}, v{KF+t+1}")
            for d in (2, 1, 0):
                for e in range(2):
                    t = 2 * p + e
                    a(f"v_fmac_f32 v{T+e}, v{W+d}, v{KF+t+4-d}")
            a(f"v_lshlrev_b32 v{T+2}, 16, v{Vv+p}\nv_and_b32 v{T+3}, 0xffff0000, v{Vv+p}")
            a(f"v_mul_f32 v{T}, v{T}, v{T+2}\nv_mul_f32 v{T+1}, v{T+1}, v{T+3}")
            a(f"v_cvt_pk_bf16_f32 v{O+p}, v{T}, v{T+1}")

    def kv_store(self):
        a = self.a
        O, T = 132, 20
        a(f"""
        v_and_b32 v{T}, 15, v0
        v_lshrrev_b32 v{T+1}, 4, v0
        s_mul_i32 s{sT0}, s{sB}, 4352
        s_add_u32 s{sT0}, s{sT0}, {BNC}
        v_mul_u32_u24 v{T+2}, 272, v{T}
        v_lshl_add_u32 v{T+2}, v{T+1}, 6, v{T+2}
        v_add_u32 v{T+2}, s{sT0}, v{T+2}
        v_mul_u32_u24 v{T+3}, 272, v{T+1}
        v_lshl_add_u32 v{T+3}, v{T}, 4, v{T+3}
        v_add_u32 v{T+3}, s{sT0}, v{T+3}
        """)
        for j in range(4):
            a.ds(f"ds_write_b128 v{T+2}, {vr(O+4*j,4)} offset:{j*16}", "bw")
        a(f"""
        v_lshlrev_b32 v{T+1}, 12, v{T+1}
        v_lshl_add_u32 v{T}, v{T}, 4, v{T+1}
        s_lshl2_add_u32 s{sT0}, s{self.sCG}, s{sB}
        s_lshl_b32 s{sT0}, s{sT0}, 16
        s_lshl_b32 s{sT1}, s{self.sT0K}, 1
        s_add_u32 s{sT0}, s{sT0}, s{sT1}
        s_add_u32 s{sT0}, s{sT0}, {UT}
        """)
        a.lg.drain()
        for j in range(4):
            a.ds(f"ds_read_b128 {vr(96+4*j,4)}, v{T+3} offset:{j*1088}", f"br{j}")
        for j in range(4):
            a.lg.wait(f"br{j}")
            a.vmem(f"buffer_store_dwordx4 {vr(96+4*j,4)}, v{T}, {sr(SWS,4)}, s{sT0} offen sc1", "utst")
            if j < 3:
                a(f"s_add_u32 s{sT0}, s{sT0}, 16384")

    def wd_issue(self):
        a = self.a
        T = 20
        fl = self.o.get("p0flags", "")
        a(f"""
        s_lshr_b32 s{sT0}, s{sC}, 1
        s_lshl2_add_u32 s{sT0}, s{sT0}, s{sB}
        s_mul_i32 s{sT0}, s{sT0}, 10240
        s_and_b32 s{sT1}, s{sC}, 1
        s_mul_i32 s{sT1}, s{sT1}, 640
        s_add_u32 s{sT0}, s{sT0}, s{sT1}
        s_mul_i32 s{sT2}, s{sB}, 5120
        """)
        for i in range(5):
            a(f"""
            v_add_u32 v{T+1}, {64*i}, v0
            v_mul_u32_u24 v{T+2}, 1639, v{T+1}
            v_lshrrev_b32 v{T+2}, 16, v{T+2}
            v_mul_u32_u24 v{T+2}, 640, v{T+2}
            v_lshl_add_u32 v{T+2}, v{T+1}, 4, v{T+2}
            s_add_u32 m0, s{sT2}, {AUX+i*1024}
            """)
            a.vmem(f"buffer_load_dwordx4 v{T+2}, {sr(SWD,4)}, s{sT0} offen {fl} lds", "kv")

    def wd_transpose(self):
        a = self.a
        T, F = 20, 60
        a(f"""
        v_lshrrev_b32 v{T}, 4, v0
        v_bfe_u32 v{T+1}, v0, 2, 2
        v_lshl_add_u32 v{T}, v{T}, 3, v{T+1}
        v_mul_u32_u24 v{T}, 640, v{T}
        v_and_b32 v{T+1}, 3, v0
        v_lshl_add_u32 v{T}, v{T+1}, 3, v{T}
        s_mul_i32 s{sT0}, s{sB}, 160
        s_add_u32 s{sT0}, s{sT0}, {AUX}
        v_add_u32 v{T}, s{sT0}, v{T}
        """)
        for j in range(5):
            for q in range(2):
                a.ds(f"ds_read_b64_tr_b16 {vr(F+4*j+2*q,2)}, v{T} offset:{q*2560+j*32}", f"wt{j}")
        a(f"""
        s_and_b32 s{sT0}, s{sC}, 1
        s_lshl2_add_u32 s{sT0}, s{sT0}, s{sB}
        s_mul_i32 s{sT0}, s{sT0}, 48
        s_lshr_b32 s{sT1}, s{sC}, 1
        s_add_u32 s{sT0}, s{sT0}, s{sT1}
        s_mul_i32 s{sT0}, s{sT0}, 5120
        s_add_u32 s{sT0}, s{sT0}, {WDT}
        v_lshlrev_b32 v{T+1}, 4, v0
        """)
        for j in range(5):
            a.lg.wait(f"wt{j}")
            a.vmem(f"buffer_store_dwordx4 {vr(F+4*j,4)}, v{T+1}, {sr(SWS,4)}, s{sT0} offen sc1", "utst")
            if j < 4:
                a(f"s_add_u32 s{sT0}, s{sT0}, 1024")

    def conv_h_issue(self):
        a = self.a
        self.sR, self.sCH, self.sD = sA + 6, sA + 7, sA + 8
        fl = self.o.get("p0flags", "")
        a(f"""
        s_mul_i32 s{self.sR}, s{sB}, {CVR}
        s_add_u32 s{self.sR}, s{self.sR}, {AUX}
        s_lshl2_add_u32 s{self.sCH}, s{sC}, s{sB}
        s_lshl_b32 s{sT0}, s{self.sCH}, 12
        s_add_u32 m0, s{self.sR}, 96
        v_lshlrev_b32 v18, 4, v0
        s_lshl_b32 s{sT1}, s{self.sCH}, 1
        """)
        for i in range(4):
            a.vmem(f"buffer_load_dwordx4 v18, {sr(SSK,4)}, s{sT0} offen offset:{i*1024} {fl} lds", "hk")
        a.vmem(f"buffer_load_ushort v19, off, {sr(SSD,4)}, s{sT1}", "hk")

    def conv_prepare(self):
        a = self.a
        self.AF, self.BF, self.CA = 24, 88, 216
        T = 4
        a(f"""
        v_lshlrev_b32 v{T}, 2, v0
        v_add_u32 v{T}, s{self.sR}, v{T}
        v_mov_b32 v{T+1}, 0
        s_mov_b32 exec_hi, 0
        s_mov_b32 exec_lo, 0xffffff
        """)
        a.ds(f"ds_write_b32 v{T}, v{T+1}", "z")
        a("s_mov_b32 exec_lo, -1\ns_mov_b32 exec_hi, 0xff")
        a.ds(f"ds_write_b32 v{T}, v{T+1} offset:4192", "z")
        a("s_mov_b64 exec, -1")
        a(f"""
        v_and_b32 v{T}, 3, v0
        v_lshrrev_b32 v{T+1}, 4, v0
        v_bfe_u32 v{T+2}, v0, 2, 2
        v_lshlrev_b32 v{T+3}, 6, v{T+1}
        v_lshl_add_u32 v{T+3}, v{T+2}, 3, v{T+3}
        v_lshl_add_u32 v1, v{T}, 5, v{T+3}
        v_add_u32 v1, s{self.sR}, v1
        v_lshlrev_b32 v{T}, 3, v{T}
        v_sub_u32 v2, v{T}, v{T+3}
        s_add_u32 s{sT0}, s{self.sR}, {4352+64}
        v_add_u32 v2, s{sT0}, v2
        v_lshl_add_u32 v3, v0, 1, s{self.sR}
        """)
        a.vm.wait("hk")
        a(f"v_lshlrev_b32 v19, 16, v19")
        a(f"v_readfirstlane_b32 s{self.sD}, v19")
        a.lg.drain()
        for m in range(16):
            for q in range(2):
                a.ds(f"ds_read_b64_tr_b16 {vr(self.AF+4*m+2*q,2)}, v1 offset:{256*m+32*q}", "af")

    def conv_u_issue(self):
        a = self.a
        a(f"s_lshl_b32 s{sT0}, s{self.sCH}, 12\ns_add_u32 s{sT0}, s{sT0}, {UT}\ns_add_u32 m0, s{self.sR}, 4352")
        for i in range(4):
            a.vmem(f"buffer_load_dwordx4 v18, {sr(SWS,4)}, s{sT0} offen offset:{i*1024} sc1 lds", f"u{i}")

    def conv_main(self):
        a = self.a
        AF, BF, CA = self.AF, self.BF, self.CA
        NACC = 8
        Z2, Z1, YV, UR, RB = 4, 6, 8, 10, 248
        ca = lambda n: CA + 4 * (n % NACC)
        a(f"""
        v_mov_b32 v{UR}, 0
        v_mov_b32 v{UR+1}, 0
        v_lshl_add_u32 v12, v0, 4, s{self.sR}
        s_lshl_b32 s{sT0}, s{self.sCH}, 12
        s_add_u32 s{sT0}, s{sT0}, {YY}
        """)
        dpp = "row_mask:0xf bank_mask:0xf"

        def bread(i):
            return [("vm", f"u{min(3, i >> 3)}")] + [
                ("ds", f"ds_read_b64_tr_b16 {vr(BF+4*i+2*q,2)}, v2 offset:{128*i+32*(1-q)}", f"b{i}") for q in range(2)]

        def epi(n):
            c, pc = ca(n), ca(n - 1)
            z2, pz2, z1, pz1 = Z2 + (n & 1), Z2 + 1 - (n & 1), Z1 + (n & 1), Z1 + 1 - (n & 1)
            y, u = YV + (n & 1), UR + (n & 1)
            o = [("ds", f"ds_read_u16_d16_hi v{u}, v3 offset:{4352+128*n}", f"ur{n}")]
            for dst, cur, prev, add in ((z2, c + 3, pc + 3, c + 2), (z1, z2, pz2, c + 1), (y, z1, pz1, c)):
                if n == 0:
                    o.append(("v", f"v_add_f32_dpp v{dst}, v{cur}, v{add} wave_shr:1 {dpp} bound_ctrl:0"))
                else:
                    o.append(("v", f"v_add_f32_dpp v{dst}, v{prev}, v{add} wave_ror:1 {dpp}"))
                    o.append(("v", f"v_add_f32_dpp v{dst}, v{cur}, v{add} wave_shr:1 {dpp}"))
            o.append(("lg", f"ur{n}"))
            o.append(("v", f"v_fmac_f32 v{y}, s{self.sD}, v{u}"))
            o.append(("v", f"v_cvt_pk_bf16_f32 v{y}, v{y}, v{y}"))
            o.append(("ds", f"ds_write_b16 v3, v{y} offset:{128*n}", f"yw{n}"))
            if n & 7 == 7:
                k = n >> 3
                rb = RB + 4 * (k & 1)
                o.append(("ds", f"ds_read_b128 {vr(rb,4)}, v12 offset:{1024*k}", f"yr{k}"))
                o.append(("lg", f"yr{k}"))
                o.append(("vmem", f"buffer_store_dwordx4 {vr(rb,4)}, v18, {sr(SWS,4)}, s{sT0} offen offset:{1024*k} sc1", "yst"))
            return o

        def emit(op):
            if op[0] == "v":
                a(op[1])
            elif op[0] == "ds":
                a.ds(op[1], op[2])
            elif op[0] == "vmem":
                a.vmem(op[1], op[2])
            elif op[0] == "lg":
                a.lg.wait(op[1])
            elif op[0] == "vm":
                a.vm.wait(op[1])
            return op[0] in ("v", "ds", "vmem")

        for i in range(4):
            for op in bread(i):
                emit(op)
        a.lg.wait("af")
        nb = 4
        fill = []
        mi = 0
        for n in range(32):
            while fill and any(f[1] is not None and f[1] <= n - NACC + 1 for f in fill):
                emit(fill.pop(0)[2])
            pend = []
            while nb < 32 and nb <= n + 4:
                pend += bread(nb); nb += 1
            fill = [(0, None, op) for op in pend] + fill
            ms = list(range(n // 2, -1, -1))
            for k, m in enumerate(ms):
                i = n - 2 * m
                assert not any(f[2][0] == "ds" and f[2][2] == f"b{i}" for f in fill)
                a.lg.wait(f"b{i}")
                c = "0" if k == 0 else vr(ca(n), 4)
                a(f"v_mfma_f32_16x16x32_bf16 {vr(ca(n),4)}, {vr(AF+4*m,4)}, {vr(BF+4*i,4)}, {c}")
                mi += 1
                slots = 2
                while slots and fill and fill[0][0] <= mi:
                    if emit(fill.pop(0)[2]):
                        slots -= 1
            fill += [(mi + 3, n, op) for op in epi(n)]
        while fill:
            emit(fill.pop(0)[2])

    def final_prepare(self):
        a = self.a
        self.VO, T = 13, 20
        a(f"""
        s_lshl2_add_u32 s{sT0}, s{sRB2}, s{sB}
        s_mul_i32 s{sT1}, s{sT0}, 20480
        s_mul_i32 s{sT2}, s{sCB2}, 160
        s_add_u32 s{sT1}, s{sT1}, s{sT2}
        s_mul_i32 s{sT2}, s{sB}, 2560
        """)
        for p in range(3):
            a(f"""
            v_add_u32 v{T}, {64*p}, v0
            v_mul_u32_u24 v{T+1}, 205, v{T}
            v_lshrrev_b32 v{T+1}, 11, v{T+1}
            v_mul_u32_u24 v{T+1}, 1120, v{T+1}
            v_lshl_add_u32 v{T+1}, v{T}, 4, v{T+1}
            v_add_u32 v{self.VO+p}, s{sT1}, v{T+1}
            s_add_u32 m0, s{sT2}, {XT+p*1024}
            """)
            if p == 2:
                a("s_mov_b32 exec_hi, 0")
            a.vmem(f"buffer_load_dwordx4 v{self.VO+p}, {sr(SQ,4)}, 0 offen lds", "xt")
        a(f"""
        s_mov_b32 exec_hi, -1
        s_lshl_b32 s{sT0}, s{sT0}, 7
        s_add_u32 s{sT0}, s{sT0}, {ST}
        v_and_b32 v{T}, 15, v0
        v_lshlrev_b32 v{T}, 3, v{T}
        """)
        a.vmem(f"buffer_load_dwordx2 v[16:17], v{T}, {sr(SWS,4)}, s{sT0} offen sc1", "xt")

    def final_xn(self):
        a = self.a
        T, X, XF, XN = 20, 24, 40, 60
        a(f"""
        v_and_b32 v{T}, 15, v0
        v_mul_u32_u24 v{T}, 160, v{T}
        v_lshrrev_b32 v{T+1}, 4, v0
        v_lshl_add_u32 v{T}, v{T+1}, 3, v{T}
        s_mul_i32 s{sT0}, s{sB}, 2560
        s_add_u32 s{sT0}, s{sT0}, {XT}
        v_add_u32 v1, s{sT0}, v{T}
        v_lshl_add_u32 v2, v0, 4, s{sT0}
        """)
        a.vm.wait("xt")
        for j in range(5):
            a.ds(f"ds_read_b64 {vr(X+2*j,2)}, v1 offset:{j*32}", "xr")
        a("v_rcp_f32 v17, v17")
        a.lg.drain()
        for p in range(10):
            x, n = XF + 2 * p, XN + 2 * p
            a(f"""
            v_lshlrev_b32 v{x}, 16, v{X+p}
            v_and_b32 v{x+1}, 0xffff0000, v{X+p}
            v_sub_f32 v{n}, v{x}, v16
            v_sub_f32 v{n+1}, v{x+1}, v16
            v_cvt_pk_bf16_f32 v{n+1}, v{n}, v{n+1}
            v_lshlrev_b32 v{n}, 16, v{n+1}
            v_and_b32 v{n+1}, 0xffff0000, v{n+1}
            v_mul_f32 v{n}, v{n}, v17
            v_mul_f32 v{n+1}, v{n+1}, v17
            v_cvt_pk_bf16_f32 v{n+1}, v{n}, v{n+1}
            v_lshlrev_b32 v{n}, 16, v{n+1}
            v_and_b32 v{n+1}, 0xffff0000, v{n+1}
            """)

    def final_rest(self):
        a = self.a
        T, Y, XF, XN, P = 20, 24, 40, 60, 80
        self.cnt_addr(T, 0, cY, sCB2)
        self.poll_issue(T + 1, T, 1, "poll")
        a(f"""
        v_lshrrev_b32 v{T+2}, 3, v0
        v_and_b32 v{T+3}, 7, v0
        v_lshlrev_b32 v{T+2}, 12, v{T+2}
        v_lshl_add_u32 v{T+2}, v{T+3}, 4, v{T+2}
        s_lshl2_add_u32 s{sT0}, s{sCB2}, s{sB}
        s_mul_i32 s{sT0}, s{sT0}, 81920
        s_lshl_b32 s{sT1}, s{sRB2}, 7
        s_add_u32 s{sT0}, s{sT0}, s{sT1}
        s_add_u32 s{sT0}, s{sT0}, {YY}
        s_mul_i32 s{sT2}, s{sB}, 2560
        """)
        self.poll_check(T + 1, T, 1, 80, "poll")
        self.stamp(11)
        for p in range(3):
            a(f"s_add_u32 m0, s{sT2}, {YT+p*1024}")
            if p == 2:
                a("s_mov_b32 exec_hi, 0")
            a.vmem(f"buffer_load_dwordx4 v{T+2}, {sr(SWS,4)}, s{sT0} offen sc1 lds", "yt")
            a(f"s_add_u32 s{sT0}, s{sT0}, 32768")
        a(f"""
        s_mov_b32 exec_hi, -1
        v_lshrrev_b32 v{T}, 2, v0
        v_and_b32 v{T+1}, 3, v0
        v_lshlrev_b32 v{T+1}, 3, v{T+1}
        v_lshl_add_u32 v{T}, v{T}, 7, v{T+1}
        s_lshl_b32 s{sT0}, s{sB}, 5
        s_add_u32 s{sT0}, s{sT0}, {YT}
        v_add_u32 v{T}, s{sT0}, v{T}
        v_mov_b32 v{T+1}, {BCNT}
        v_mov_b32 v{T+2}, 1
        """)
        a.vm.drain()
        lo, ok = a.label("bb"), a.label("bbok")
        a(f"""
        s_mov_b64 exec, 1
        ds_add_u32 v{T+1}, v{T+2}
        s_mov_b32 s{sCNT}, 0
        {lo}:
        ds_read_b32 v{T+3}, v{T+1}
        s_add_u32 s{sCNT}, s{sCNT}, 1
        s_waitcnt lgkmcnt(0)
        v_cmp_le_u32 vcc, 4, v{T+3}
        s_cmp_eq_u64 vcc, exec
        s_cbranch_scc1 {ok}
        s_cmp_lt_u32 s{sCNT}, {POLL_LIMIT*16}
        s_cbranch_scc1 {lo}
        {ok}:
        s_mov_b64 exec, -1
        """)
        for j in range(5):
            a.ds(f"ds_read_b64_tr_b16 {vr(Y+2*j,2)}, v{T} offset:{j*2048}", "yr")
        a(f"s_mul_i32 s{sT0}, s{sB}, 5120\nv_lshl_add_u32 v3, v0, 4, s{sT0}\nv_add_u32 v4, {2*20480}, v3")
        a.lg.drain()
        for p in range(10):
            a(f"""
            v_lshlrev_b32 v{T}, 16, v{Y+p}
            v_and_b32 v{T+1}, 0xffff0000, v{Y+p}
            v_fmac_f32 v{XF+2*p}, v{XN+2*p}, v{T}
            v_fmac_f32 v{XF+2*p+1}, v{XN+2*p+1}, v{T+1}
            """)
        self.stamp(12)
        a("s_barrier")
        self.stamp(13)
        for j in range(5):
            for q in range(4):
                a.ds(f"ds_read_b128 {vr(P+16*j+4*q,4)}, v{3+(q>>1)} offset:{PART+(q&1)*20480+j*1024}", f"p{j}")
        for j in range(5):
            a.lg.wait(f"p{j}")
            p = P + 16 * j
            for r in range(4):
                a(f"v_add_f32 v{p+r}, v{p+r}, v{p+4+r}")
            for r in range(4):
                a(f"v_add_f32 v{p+8+r}, v{p+8+r}, v{p+12+r}")
            for r in range(4):
                a(f"v_add_f32 v{p+r}, v{p+r}, v{XF+4*j+r}")
            for r in range(4):
                a(f"v_add_f32 v{p+r}, v{p+r}, v{p+8+r}")
            a(f"v_cvt_pk_bf16_f32 v{p}, v{p}, v{p+1}\nv_cvt_pk_bf16_f32 v{p+1}, v{p+2}, v{p+3}")
            a.ds(f"ds_write_b64 v1, {vr(p,2)} offset:{j*32}", "ow")
        a.lg.drain()
        for p in range(3):
            a.ds(f"ds_read_b128 {vr(24+4*p,4)}, v2 offset:{p*1024}", f"or{p}")
        for p in range(3):
            a.lg.wait(f"or{p}")
            if p == 2:
                a("s_mov_b32 exec_hi, 0")
            a.vmem(f"buffer_store_dwordx4 {vr(24+4*p,4)}, v{self.VO+p}, {sr(SOUT,4)}, 0 offen", "out")
        self.stamp(14)
        self.dump_stamps()
        a("s_endpgm")

    def role_b(self, typ):
        a = self.a
        a.vm.q = []; a.lg.q = []
        PA, PR = 56, 57
        if typ == "C":
            a(f"s_mul_i32 s{sC}, s{sXCD}, 20\ns_add_u32 s{sC}, s{sC}, s{sI}")
        else:
            a(f"s_mul_i32 s{sC}, s{sXCD}, 12\ns_add_u32 s{sC}, s{sC}, s{sI}\ns_sub_u32 s{sC}, s{sC}, 20")
        self.stamp(0)
        for s in range(3):
            self.stage_issue(s)
        self.stats_load()
        (self.kv_issue if typ == "C" else self.wd_issue)()
        a(f"v_mov_b32 v{PA}, {BCNT}\nv_mov_b32 v{PR}, 0")
        a.ds(f"ds_write_b32 v{PA}, v{PR}", "z")
        a.lg.drain()

        def bar(s, *extra):
            a.vm.wait(f"S{s}", *extra)
            a("s_barrier")

        bar(0)
        self.stamp(1)
        self.colsum_partial()
        bar(1)
        a.vmem(f"buffer_load_dword v58, off, {sr(SDBG,4)}, 0 sc1", "dbg")
        self.stage_issue(3)
        bar(2)
        self.stage_issue(4)
        self.stats_compute()
        a.vm.wait("S3", "dbg", "kv")
        lo, ok = a.label("dbg"), a.label("dbgok")
        a(f"""
        s_mov_b32 s{sCNT}, 0
        {lo}:
        v_cmp_eq_u32 vcc, 1, v58
        s_cmp_eq_u64 vcc, exec
        s_cbranch_scc1 {ok}
        buffer_load_dword v58, off, {sr(SDBG,4)}, 0 sc1
        s_add_u32 s{sCNT}, s{sCNT}, 1
        s_cmp_lt_u32 s{sCNT}, {POLL_LIMIT}
        s_waitcnt vmcnt(0)
        s_cbranch_scc1 {lo}
        {ok}:
        """)
        bar(3)
        self.stamp(2)
        self.stage_issue(5)
        if typ == "C":
            self.kv_reads()
            self.kv_compute(0, 7)
        else:
            self.wd_transpose()
        a(f"s_lshr_b32 s{sT0}, s{sWS}, 4")
        self.cnt_addr(PA, 0, cS, sT0)
        self.cnt_addr(PA, 1, cC, sCB1)
        bar(4, "stst", "csst")
        self.signal(PA, PR, 3, only_wave0=True)
        self.stage_issue(6)
        if typ == "C":
            self.kv_compute(7, 16)
            bar(5)
        else:
            a(f"s_and_b32 s{sT0}, s{sC}, 1")
            self.cnt_addr(PA, 0, cW, sT0)
            bar(5, "utst")
            self.signal(PA, PR, 1, only_wave0=True)
        self.stage_issue(7)
        if typ == "C":
            self.kv_store()
        self.cnt_addr(PA, 0, cS, sRB1)
        self.cnt_addr(PA, 1, cC, sCB1)
        a(f"s_lshr_b32 s{sT0}, s{sRB2}, 1")
        self.cnt_addr(PA, 2, cS, sT0)
        bar(6)
        self.stamp(3)
        self.poll_issue(PR, PA, 7, "poll")
        self.stage_issue(8)
        self.poll_check(PR, PA, 7, 16, "poll")
        self.stamp(4)
        if typ == "C":
            self.cnt_addr(PA, 0, cU, self.sCG)
        bar(7, "utst")
        if typ == "C":
            self.signal(PA, PR, 1, only_wave0=True)
        self.gather_issue()
        a(f"s_lshr_b32 s{sT0}, s{sCB2}, 2")
        self.cnt_addr(PA, 1, cW, sT0)
        self.poll_issue(PR + 1, PA, 2, "poll")
        self.stage_issue(9)
        if typ == "C":
            self.conv_h_issue()
        self.gather_finish()
        self.poll_check(PR + 1, PA, 2, 48, "poll")
        self.stamp(5)
        bar(8)
        bar(9)
        self.stamp(6)
        if typ == "C":
            self.poll_issue(PR, PA, 1, "poll")
        self.final_prepare()
        if typ == "C":
            a(f"v_mov_b32 v22, v{PA}\n")
            a.vm.wait("poll")
            a(f"v_mov_b32 v23, v{PR}")
            self.conv_prepare()
        a("s_barrier")
        if typ == "C":
            self.poll_check(23, 22, 1, 16, "none")
            self.stamp(7)
            self.conv_u_issue()
            self.conv_main()
            self.stamp(8)
            a(f"s_mul_i32 s{sT0}, s{sC}, 205\ns_lshr_b32 s{sT0}, s{sT0}, 12")
            self.cnt_addr(20, 0, cY, sT0)
            a.vm.drain()
            self.signal(20, 21, 1)
            self.stamp(9)
        self.final_xn()
        self.stamp(10)
        self.final_rest()

    def build(self):
        a = self.a
        self.prologue()
        self.role_a()
        self.b_common_setup()
        a(f"s_cmp_ge_u32 s{sI}, 20\ns_cbranch_scc1 L_typeW")
        self.role_b("C")
        a("L_typeW:")
        self.role_b("W")
        a("L_end:\ns_endpgm")
        return a.text()


def kernel_file(opt):
    ref = open("parallel_sum__ssm_conv_h3__swiglu_ffn__prompt.s.ref").read()
    head = [l for l in ref.split("\n") if l.startswith(";") and "@launch" not in l]
    head = head[:head.index([l for l in head if "d_ws" in l][0]) + 1]
    body = Gen(opt).build()
    return "\n".join(head) + f"""
; @launch grid=(256,1,1) block=(512,1,1) lds={LDS_BYTES}
.amdgcn_target "amdgcn-amd-amdhsa--gfx950"
.text
.globl {KNAME}
.p2align 8
.type {KNAME},@function
{KNAME}:
{body}.section .rodata,"a"
.p2align 6
.amdhsa_kernel {KNAME}
  .amdhsa_next_free_vgpr 256
  .amdhsa_next_free_sgpr 102
  .amdhsa_accum_offset 256
  .amdhsa_group_segment_fixed_size 0
  .amdhsa_kernarg_size 104
  .amdhsa_user_sgpr_count 2
  .amdhsa_user_sgpr_kernarg_segment_ptr 1
  .amdhsa_system_sgpr_workgroup_id_x 1
  .amdhsa_float_denorm_mode_32 3
.end_amdhsa_kernel
"""


if __name__ == "__main__":
    out = sys.argv[1]
    opt = {}
    for kv in sys.argv[2:]:
        k, _, v = kv.partition("=")
        opt[k] = v if v else True
    open(out, "w").write(kernel_file(opt))
```

```python
import re

TRANS = ("v_exp_f32", "v_log_f32", "v_rcp_f32", "v_rsq_f32", "v_sqrt_f32", "v_sin_f32", "v_cos_f32")
NODST_S = ("s_cmp", "s_waitcnt", "s_barrier", "s_branch", "s_cbranch", "s_nop", "s_setprio", "s_sleep",
           "s_endpgm", "s_bitcmp")


def vr(a, n=1):
    return f"v{a}" if n == 1 else f"v[{a}:{a+n-1}]"


def sr(a, n=1):
    return f"s{a}" if n == 1 else f"s[{a}:{a+n-1}]"


def regs_of(op):
    op = op.strip()
    op = op.lstrip("-")
    if op.startswith("abs(") and op.endswith(")"):
        op = op[4:-1]
    op = op.strip("|")
    m = re.fullmatch(r"([vsa])(\d+)", op)
    if m:
        return {(m.group(1), int(m.group(2)))}
    m = re.fullmatch(r"([vsa])\[(\d+):(\d+)\]", op)
    if m:
        return {(m.group(1), i) for i in range(int(m.group(2)), int(m.group(3)) + 1)}
    if op in ("vcc", "vcc_lo", "vcc_hi"):
        return {("s", "vcc")}
    if op in ("exec", "exec_lo", "exec_hi"):
        return {("s", "exec")}
    if op == "m0":
        return {("s", "m0")}
    return set()


class Ins:
    def __init__(self, text):
        self.text = text
        t = text.split(";")[0].strip()
        self.label = t.endswith(":")
        self.directive = t.startswith(".")
        self.mn = "" if (self.label or self.directive or not t) else t.split()[0]
        self.dst, self.src = set(), set()
        self.a = self.b = self.c = set()
        self.kind = "none"
        self.passes = 0
        self.states = 0 if not self.mn else 1
        if not self.mn:
            return
        rest = t[len(self.mn):].strip()
        ops = [o.strip() for o in rest.split(",")] if rest else []
        mods = []
        if ops:
            parts = ops[-1].split()
            ops[-1] = parts[0] if parts else ""
            mods = parts[1:]
        self.mods = mods
        mn = self.mn
        R = [regs_of(o) for o in ops]
        U = lambda l: set().union(*l) if l else set()
        if mn == "s_nop":
            self.kind = "salu"; self.states = int(ops[0], 0) + 1
        elif mn.startswith("v_mfma"):
            self.kind = "mfma"
            self.dst, self.a, self.b, self.c = R[0], R[1], R[2], R[3]
            self.src = self.a | self.b | self.c
            self.passes = 8 if "32x32" in mn else 4
        elif mn.startswith("v_"):
            self.kind = "valu"
            self.dpp = "_dpp" in mn or any(m.startswith(("wave_", "row_", "quad_perm")) for m in mods)
            if "permlane" in mn and "swap" in mn:
                self.dst = R[0] | R[1]; self.src = R[0] | R[1]
            else:
                self.dst = R[0]; self.src = U(R[1:])
                self.src0 = R[1] if len(R) > 1 else set()
                if mn.startswith(("v_fmac", "v_dot2c")) or self.dpp:
                    self.src = self.src | R[0]
                if mn.startswith("v_cndmask") and len(ops) == 3:
                    self.src = self.src | {("s", "vcc")}
        elif mn.startswith("ds_"):
            self.kind = "ds"
            if mn.startswith("ds_read") or "_rtn" in mn or mn.startswith(("ds_bpermute", "ds_swizzle")):
                self.dst = R[0]; self.src = U(R[1:])
                if "d16" in mn:
                    self.src = self.src | R[0]
            else:
                self.src = U(R)
        elif mn.startswith(("buffer_", "global_")):
            self.kind = "vmem"
            self.lds = "lds" in mods or "load_lds" in mn
            if "load" in mn and not self.lds:
                self.dst = R[0]; self.src = U(R[1:])
            else:
                self.src = U(R)
                if "atomic" in mn and "sc0" in mods:
                    self.dst = R[0]
            if self.lds:
                self.src = self.src | {("s", "m0")}
            self.wide_store = ("store" in mn) and mn.endswith(("x3", "x4"))
            self.data = R[0] if "store" in mn else set()
        elif mn.startswith(("s_load", "s_memtime", "s_memrealtime", "s_atomic")):
            self.kind = "smem"; self.dst = R[0]; self.src = U(R[1:])
        elif mn.startswith("s_"):
            self.kind = "salu"
            if mn.startswith(NODST_S):
                self.src = U(R)
            else:
                self.dst = R[0]; self.src = U(R[1:])
                if "saveexec" in mn:
                    self.dst = self.dst | {("s", "exec")}
        else:
            raise ValueError("unknown instruction: " + text)


def V(s):
    return {r for r in s if r[0] in "va"}


def S(s):
    return {r for r in s if r[0] == "s"}


def need(p, c):
    n = 0
    if p.kind == "valu":
        vw = V(p.dst); sw = S(p.dst)
        if c.kind == "mfma" and vw & c.src: n = max(n, 2)
        if c.kind == "valu":
            if c.mn.startswith(("v_readfirstlane", "v_readlane")) and vw & c.src: n = max(n, 1)
            if "permlane" in c.mn and vw & c.src: n = max(n, 2)
            if c.dpp and vw & c.src0: n = max(n, 2)
            if p.mn.startswith(TRANS) and not c.mn.startswith(TRANS) and vw & c.src: n = max(n, 1)
            if sw & c.src: n = max(n, 4 if c.mn.startswith(("v_readlane", "v_writelane")) else 2)
            if p.mn.startswith("v_dot2") and vw & (c.src | c.dst):
                same_c = c.mn == p.mn and vw == V(c.dst)
                if not same_c: n = max(n, 3)
        if p.mn.startswith("v_dot2") and c.kind in ("vmem", "ds", "mfma") and vw & c.src: n = max(n, 3)
        if p.mn.startswith(TRANS) and c.kind in ("vmem", "ds") and vw & c.src: n = max(n, 1)
        if c.kind == "vmem" and sw & c.src: n = max(n, 5)
        if c.kind in ("salu", "smem") and sw & c.src: n = max(n, 1)
    if p.kind == "mfma":
        big = 12 if p.passes == 8 else 8
        if c.kind == "mfma":
            if p.dst & (c.a | c.b): n = max(n, big)
            if p.dst & c.c and not (p.dst == c.c and p.passes == c.passes): n = max(n, big - 2)
            if p.dst & c.dst and not (p.dst == c.c and p.passes == c.passes): n = max(n, big - 2)
        elif c.kind in ("valu", "vmem", "ds"):
            if p.dst & (c.src | c.dst): n = max(n, big)
            if c.kind == "valu" and p.c & c.dst: n = max(n, 7 if p.passes == 8 else 3)
    if p.kind == "salu" and ("s", "m0") in p.dst and c.kind == "vmem" and c.lds: n = max(n, 1)
    if p.kind == "vmem" and p.wide_store and p.data & c.dst:
        n = max(n, 2 if c.kind in ("valu", "mfma") else 1)
    return n


def fix_hazards(lines):
    out = []
    for text in lines:
        c = Ins(text)
        if c.mn:
            dist = 0; worst = 0
            for p in reversed(out):
                if p.mn:
                    worst = max(worst, need(p, c) - dist)
                    dist += p.states
                    if dist > 20 or p.mn in ("s_branch", "s_endpgm"):
                        break
            while worst > 0:
                k = min(worst, 16)
                out.append(Ins(f"s_nop {k-1}")); worst -= k
        out.append(c)
    return [i.text for i in out]


class Counter:
    def __init__(self, emit, name, maxv):
        self.emit, self.name, self.maxv = emit, name, maxv
        self.q = []

    def issue(self, tag):
        self.q.append(tag)

    def wait(self, *tags):
        idx = [i for i, t in enumerate(self.q) if t in tags]
        if not idx:
            return
        n = len(self.q) - 1 - max(idx)
        self.emit(f"s_waitcnt {self.name}({min(n, self.maxv)})")
        self.q = self.q[len(self.q) - min(n, self.maxv):] if n else []

    def drain(self):
        self.emit(f"s_waitcnt {self.name}(0)")
        self.q = []

    def copy_from(self, other):
        self.q = list(other.q)


class Asm:
    def __init__(self):
        self.lines = []
        self.vm = Counter(self, "vmcnt", 63)
        self.lg = Counter(self, "lgkmcnt", 15)
        self.nlabel = 0

    def __call__(self, text):
        for l in text.split("\n"):
            l = l.strip()
            if l:
                self.lines.append(l)

    def vmem(self, text, tag):
        self(text); self.vm.issue(tag)

    def ds(self, text, tag):
        self(text); self.lg.issue(tag)

    def label(self, base):
        self.nlabel += 1
        return f"L_{base}_{self.nlabel}"

    def begin(self):
        pass

    def end(self):
        pass

    def text(self):
        return "\n".join(fix_hazards(self.lines)) + "\n"


class _RecCounter:
    def __init__(self, rec, which):
        self.rec, self.which = rec, which

    def wait(self, *tags):
        self.rec.add((self.which + "wait", tags))

    def drain(self):
        self.rec.add((self.which + "drain",))


class Rec:
    def __init__(self, asm):
        self.asm = asm
        self.groups = []
        self.depth = 0
        self.vm = _RecCounter(self, "vm")
        self.lg = _RecCounter(self, "lg")

    def add(self, op):
        if self.depth:
            self.groups[-1].append(op)
        else:
            self.groups.append([op])

    def __call__(self, text):
        for l in text.split("\n"):
            l = l.strip()
            if l:
                self.add(("i", l))

    def vmem(self, text, tag):
        self.add(("vmem", text, tag))

    def ds(self, text, tag):
        self.add(("ds", text, tag))

    def label(self, base):
        return self.asm.label(base)

    def begin(self):
        if self.depth == 0:
            self.groups.append([])
        self.depth += 1

    def end(self):
        self.depth -= 1


def play(asm, group):
    for op in group:
        k = op[0]
        if k == "i": asm(op[1])
        elif k == "vmem": asm.vmem(op[1], op[2])
        elif k == "ds": asm.ds(op[1], op[2])
        elif k == "vmwait": asm.vm.wait(*op[1])
        elif k == "lgwait": asm.lg.wait(*op[1])
        elif k == "vmdrain": asm.vm.drain()
        elif k == "lgdrain": asm.lg.drain()


def interleave(asm, main, fill):
    total = sum(len(g) for g in fill)
    done = 0
    fi = 0
    for k, g in enumerate(main):
        play(asm, g)
        want = total * (k + 1) / max(1, len(main))
        while fi < len(fill) and done < want:
            play(asm, fill[fi]); done += len(fill[fi]); fi += 1
    while fi < len(fill):
        play(asm, fill[fi]); fi += 1
```

```python
import sys
from asmlib import Asm, Rec, play, interleave, vr, sr

KNAME = "parallel_sum__ssm_conv_h3__swiglu_ffn__prompt_kernel"

CNT, ST, CS, UT, YY, WDT, HH, PROF, WS_SIZE = (0, 0x8000, 0xC000, 0x40000, 0x2C0000, 0x540000, 0x720000,
                                               0xD20000, 0xE00000)
cH, cS, cC, cU, cW, cY = 0, 128, 144, 160, 170, 192
XS, WS_, AUX = 0, 49152, 122880
KST, VST, BNC = AUX, AUX + 16896, AUX
CVR = 8448
STL, CSF, BCNT = AUX + 33792, AUX + 34816, AUX + 36352
PART, XT, YT, WDL = 0, 81920, 92160, 102400
LDS_BYTES = 163840
SQ, SWG, SWU, SWS, SK, SV, SSH, SSK, SSD, SOUT, SDBG, SWD = 4, 8, 12, 16, 20, 24, 28, 32, 36, 40, 44, 48
sW, sB, sXCD, sI, sRB1, sCB1, sKS, sRB2, sCB2, sWS, sC = 52, 53, 54, 55, 56, 57, 58, 59, 60, 61, 62
sT0, sT1, sT2, sT3, sCNT = 63, 64, 65, 66, 67
sTM = 68
sPR = 70
sA = 86
POLL_LIMIT = 1 << 17
LOG2E = 1.4426950408889634


def f2u(x):
    import struct
    return struct.unpack("<I", struct.pack("<f", x))[0]


class Gen:
    def __init__(self, opt):
        self.o = opt
        self.a = Asm()
        self.nstamp = 0

    def stamp(self, k, kind="1"):
        if self.o.get("profile") != kind and not (k == 0 and self.o.get("profile")):
            return
        a = self.a
        a(f"s_memrealtime {sr(sTM, 2)}")
        a.lg.drain()
        a(f"s_mov_b32 s{sPR+k}, s{sTM}")

    def dump_stamps(self):
        if not self.o.get("profile"):
            return
        a = self.a
        a("s_mov_b64 exec, -1")
        a("v_mov_b32 v1, 0")
        for k in range(16):
            a(f"v_writelane_b32 v1, s{sPR+k}, {k}")
        a(f"s_lshl_b32 s{sT0}, s2, 3\ns_add_u32 s{sT0}, s{sT0}, s{sW}\ns_lshl_b32 s{sT0}, s{sT0}, 6\ns_add_u32 s{sT0}, s{sT0}, {PROF}")
        a("v_mbcnt_lo_u32_b32 v2, -1, 0\nv_mbcnt_hi_u32_b32 v2, -1, v2\nv_lshlrev_b32 v2, 2, v2")
        a("s_mov_b64 exec, 0xffff")
        a(f"buffer_store_dword v1, v2, {sr(SWS,4)}, s{sT0} offen")

    def rec(self, fn, *args):
        real = self.a
        self.a = Rec(real)
        fn(*args)
        groups = self.a.groups
        self.a = real
        return groups

    def cnt_off(self, sdst, base, sidx):
        self.a(f"s_add_u32 s{sdst}, s{sidx}, {base}\ns_lshl_b32 s{sdst}, s{sdst}, 7")

    def signal(self, soffs, stmp, only_wave0=False):
        a = self.a
        skip = a.label("sig")
        a.begin()
        if only_wave0:
            a(f"s_cmp_lg_u32 s{sB}, 0\ns_cbranch_scc1 {skip}")
        a(f"s_mov_b32 s{stmp}, 1")
        for so in soffs:
            a(f"s_atomic_add s{stmp}, {sr(SWS,2)}, s{so}")
        if only_wave0:
            a(f"{skip}:")
        a.end()

    def poll_ops(self, items, atomic):
        o = []
        for val, off, _ in items:
            base = sr(SDBG, 2) if off is None else sr(SWS, 2)
            offs = "0" if off is None else f"s{off}"
            if atomic:
                o += [f"s_mov_b32 s{val}, 0", f"s_atomic_add s{val}, {base}, {offs} glc"]
            else:
                o += [f"s_load_dword s{val}, {base}, {offs} glc"]
        return "\n".join(o)

    def poll_issue(self, items, atomic=False, only_wave0=False):
        a = self.a
        skip = a.label("pi")
        a.begin()
        if only_wave0:
            a(f"s_cmp_lg_u32 s{sB}, 0\ns_cbranch_scc1 {skip}")
        a(self.poll_ops(items, atomic))
        if only_wave0:
            a(f"{skip}:")
        a.end()

    def poll_check(self, items, atomic=False, only_wave0=False, sleep=2):
        a = self.a
        lo, again, ok = a.label("poll"), a.label("again"), a.label("pollok")
        a.begin()
        a.lg.drain()
        if only_wave0:
            a(f"s_cmp_lg_u32 s{sB}, 0\ns_cbranch_scc1 {ok}")
        a(f"s_mov_b32 s{sCNT}, 0")
        a(f"{lo}:")
        for k, (val, _, target) in enumerate(items):
            a(f"s_cmp_ge_u32 s{val}, {target}")
            a(f"s_cbranch_scc1 {ok}" if k == len(items) - 1 else f"s_cbranch_scc0 {again}")
        a(f"{again}:")
        if sleep:
            a(f"s_sleep {sleep}")
        a(self.poll_ops(items, atomic))
        a(f"s_add_u32 s{sCNT}, s{sCNT}, 1")
        a(f"s_cmp_lt_u32 s{sCNT}, {POLL_LIMIT}")
        a("s_waitcnt lgkmcnt(0)")
        a(f"s_cbranch_scc1 {lo}")
        a(f"{ok}:")
        a.end()

    def vcheck_issue(self, vret, vaddr, srd, mask):
        a = self.a
        skip = a.label("vi")
        a.begin()
        a(f"s_cmp_lg_u32 s{sB}, 0\ns_cbranch_scc1 {skip}")
        a(f"s_mov_b64 exec, {mask}")
        a(f"buffer_load_dword v{vret}, v{vaddr}, {sr(srd,4)}, 0 offen sc1")
        a("s_mov_b64 exec, -1")
        a(f"{skip}:")
        a.end()

    def vcheck(self, vret, vaddr, vtarget, srd, mask):
        a = self.a
        lo, ok, skip = a.label("vc"), a.label("vcok"), a.label("vcskip")
        a.begin()
        a(f"""
        s_cmp_lg_u32 s{sB}, 0
        s_cbranch_scc1 {skip}
        s_mov_b64 exec, {mask}
        s_mov_b32 s{sCNT}, 0
        {lo}:
        v_cmp_le_u32 vcc, {vtarget}, v{vret}
        s_cmp_eq_u64 vcc, exec
        s_cbranch_scc1 {ok}
        s_sleep 8
        buffer_load_dword v{vret}, v{vaddr}, {sr(srd,4)}, 0 offen sc1
        s_add_u32 s{sCNT}, s{sCNT}, 1
        s_cmp_lt_u32 s{sCNT}, {POLL_LIMIT}
        s_waitcnt vmcnt(0)
        s_cbranch_scc1 {lo}
        {ok}:
        s_mov_b64 exec, -1
        {skip}:
        """)
        a.end()

    def lds_flag_wait(self, vaddr, vtmp, go):
        a = self.a
        lo = a.label("lf")
        a(f"""
        s_mov_b32 s{sCNT}, 0
        {lo}:
        ds_read_b32 v{vtmp}, v{vaddr}
        s_add_u32 s{sCNT}, s{sCNT}, 1
        s_waitcnt lgkmcnt(0)
        v_readfirstlane_b32 s{sT0}, v{vtmp}
        s_cmp_eq_u32 s{sT0}, 1
        s_cbranch_scc1 {go}
        s_sleep 1
        s_cmp_lt_u32 s{sCNT}, {POLL_LIMIT*16}
        s_cbranch_scc1 {lo}
        """)

    def prologue(self):
        a = self.a
        a("s_cmp_ge_u32 s2, 256\ns_cbranch_scc1 L_end")
        for srd, off in ((SQ, 0), (SWG, 56), (SWU, 64), (SWS, 96), (SK, 8), (SV, 16), (SSH, 24), (SSK, 32),
                         (SSD, 40), (SOUT, 80), (SDBG, 88), (SWD, 72)):
            a(f"s_load_dwordx2 {sr(srd,2)}, s[0:1], {off}")
        a("v_lshrrev_b32 v1, 6, v0\nv_and_b32 v0, 63, v0")
        a(f"v_readfirstlane_b32 s{sW}, v1")
        for srd, size in ((SQ, 2621440), (SWG, 1966080), (SWU, 1966080), (SWS, WS_SIZE), (SK, 2621440),
                          (SV, 2621440), (SSH, 5120), (SSK, 2621440), (SSD, 1280), (SOUT, 2621440),
                          (SDBG, 256), (SWD, 1966080)):
            a(f"s_mov_b32 s{srd+2}, {size}\ns_mov_b32 s{srd+3}, 0x20000")
        a(f"""
        s_and_b32 s{sB}, s{sW}, 3
        s_and_b32 s{sXCD}, s2, 7
        s_lshr_b32 s{sI}, s2, 3
        s_and_b32 s{sT0}, s{sXCD}, 1
        s_lshr_b32 s{sT1}, s{sXCD}, 1
        s_and_b32 s{sT2}, s{sI}, 7
        s_lshl3_add_u32 s{sRB1}, s{sT0}, s{sT2}
        s_lshr_b32 s{sT2}, s{sI}, 3
        s_lshl2_add_u32 s{sCB1}, s{sT1}, s{sT2}
        s_lshl2_add_u32 s{sT3}, s{sT0}, s{sT1}
        s_and_b32 s{sT2}, s{sI}, 3
        s_lshl2_add_u32 s{sRB2}, s{sT3}, s{sT2}
        s_lshr_b32 s{sCB2}, s{sI}, 2
        s_lshl_b32 s{sWS}, s{sT3}, 5
        s_add_u32 s{sWS}, s{sWS}, s{sI}
        s_mul_i32 s{sT0}, s{sCB1}, 3
        s_add_u32 s{sT0}, s{sT0}, s{sRB1}
        s_mul_i32 s{sT1}, s{sT0}, 26
        s_lshr_b32 s{sT1}, s{sT1}, 8
        s_mul_i32 s{sT1}, s{sT1}, 10
        s_sub_u32 s{sKS}, s{sT0}, s{sT1}
        """)
        if self.o.get("profile"):
            for k in range(16):
                a(f"s_mov_b32 s{sPR+k}, 0")
        a(f"s_cmp_ge_u32 s{sW}, 4\ns_cbranch_scc1 L_roleB")

    def role_a(self):
        a = self.a
        XA, WA, VH = 1, 5, 11
        FR, ACC = 120, 160
        T = 112
        sWM, sWN = sA, sA + 1
        sH = sA + 2
        xf = lambda p, i: FR + 20 * p + 4 * i
        wf = lambda p, j: FR + 20 * p + 8 + 4 * j
        acc = lambda i, j: ACC + (i * 3 + j) * 16
        a(f"""
        s_and_b32 s{sWM}, s{sB}, 1
        s_lshr_b32 s{sWN}, s{sB}, 1
        v_and_b32 v{T}, 31, v0
        v_lshrrev_b32 v{T+1}, 5, v0
        v_bfe_u32 v{T+2}, v0, 1, 3
        v_xor_b32 v{T+2}, v{T+2}, v{T+1}
        s_lshl_b32 s{sT0}, s{sWM}, 13
        v_lshl_add_u32 v{T}, v{T}, 7, s{sT0}
        """)
        for t in range(4):
            a(f"v_xor_b32 v{T+3}, {2*t}, v{T+2}\nv_lshl_add_u32 v{XA+t}, v{T+3}, 4, v{T}")
        a(f"""
        v_bfe_u32 v{T+2}, v0, 4, 1
        v_mul_u32_u24 v{T+3}, 3072, v{T+2}
        v_mul_u32_u24 v{T+4}, 1536, v{T+1}
        v_bfe_u32 v{T+5}, v0, 2, 2
        v_lshl_add_u32 v{T+3}, v{T+5}, 6, v{T+3}
        v_and_b32 v{T+5}, 1, v0
        v_lshl_add_u32 v{T+3}, v{T+5}, 4, v{T+3}
        v_bfe_u32 v{T+5}, v0, 1, 1
        v_lshl_add_u32 v{T+3}, v{T+5}, 3, v{T+3}
        v_add_u32 v{T+3}, v{T+3}, v{T+4}
        v_lshlrev_b32 v{T+2}, 5, v{T+2}
        s_mul_i32 s{sT0}, s{sWN}, 3
        s_lshl_b32 s{sT3}, s{sRB1}, 1
        s_add_u32 s{sT3}, s{sT3}, s{sWM}
        s_mul_i32 s{sT3}, s{sT3}, 48
        s_mul_i32 s{sT2}, s{sCB1}, 3
        s_add_u32 s{sT3}, s{sT3}, s{sT2}
        """)
        for j in range(3):
            a(f"""
            s_add_u32 s{sT1}, s{sT0}, {j}
            s_lshr_b32 s{sT2}, s{sT1}, 1
            s_and_b32 s{sT1}, s{sT1}, 1
            s_add_u32 s{sH+j}, s{sT3}, s{sT2}
            s_lshl_b32 s{sH+j}, s{sH+j}, 3
            s_add_u32 s{sH+j}, s{sH+j}, s{sT1}
            s_lshl_b32 s{sH+j}, s{sH+j}, 9
            s_add_u32 s{sH+j}, s{sH+j}, {HH}
            s_lshl_b32 s{sT1}, s{sT1}, 5
            v_xor_b32 v{T+4}, s{sT1}, v{T+2}
            s_lshl_b32 s{sT2}, s{sT2}, 8
            s_add_u32 s{sT2}, s{sT2}, {WS_}
            v_add3_u32 v{WA+j}, v{T+3}, v{T+4}, s{sT2}
            v_add_u32 v{WA+3+j}, 49152, v{WA+j}
            """)
        a(f"""
        v_and_b32 v{T+4}, 15, v0
        v_lshlrev_b32 v{T+4}, 4, v{T+4}
        v_lshl_add_u32 v{T+4}, v{T+1}, 8, v{T+4}
        v_bfe_u32 v{T+5}, v0, 4, 1
        v_lshl_add_u32 v{VH}, v{T+5}, 10, v{T+4}
        s_waitcnt lgkmcnt(0)
        """)
        a(f"s_or_b32 s{sT0}, s2, s{sB}\ns_cmp_lg_u32 s{sT0}, 0\ns_cbranch_scc1 L_noclear")
        a(f"v_lshlrev_b32 v{T}, 7, v0\nv_mov_b32 v{T+1}, 0")
        for p in range(4):
            a(f"s_mov_b32 s{sT0}, {p*8192}\nbuffer_store_dword v{T+1}, v{T}, {sr(SWS,4)}, s{sT0} offen sc1")
        a(f"s_waitcnt vmcnt(0)\nv_mov_b32 v{T+2}, 1\ns_mov_b64 exec, 1")
        a(f"buffer_store_dword v{T+2}, v{T+1}, {sr(SDBG,4)}, 0 offen sc1\ns_mov_b64 exec, -1")
        a("L_noclear:")
        self.stamp(0)

        def reads(g):
            s, t, p = g >> 2, g & 3, g & 1
            sl = s % 3
            wa = WA + (3 if sl == 2 else 0)
            wo = (sl % 2) * 24576 + t * 6144
            r = [f"ds_read_b128 {vr(xf(p,0),4)}, v{XA+t} offset:{sl*16384}"]
            r += [f"ds_read_b64_tr_b16 {vr(wf(p,0)+2*q,2)}, v{wa} offset:{wo+q*768}" for q in range(2)]
            r += [f"ds_read_b128 {vr(xf(p,1),4)}, v{XA+t} offset:{sl*16384+4096}"]
            for j in (1, 2):
                r += [f"ds_read_b64_tr_b16 {vr(wf(p,j)+2*q,2)}, v{wa+j} offset:{wo+q*768}" for q in range(2)]
            return r

        a("s_barrier")
        self.stamp(1)
        for r in reads(0):
            a.ds(r, "f")
        CF, SF = T, T + 6
        for g in range(40):
            p = g & 1
            a.lg.drain()
            nxt = []
            if g + 1 < 40:
                if (g + 1) & 3 == 0:
                    self.stamp(((g + 1) >> 2) + 1, "2")
                    a("s_barrier")
                nxt = reads(g + 1)
            else:
                a("s_barrier")
                q0 = FR + 20 * (1 - p)
                nxt = [f"ds_read_b64 {vr(CF+2*j,2)}, v{T+6} offset:{j*256}" for j in range(3)]
                nxt += [f"ds_read_b64 {vr(q0+2*i,2)}, v{T+7} offset:{i*256}" for i in range(2)]
            if g == 38:
                a(f"""
                v_and_b32 v{T}, 31, v0
                s_mul_i32 s{sT0}, s{sWN}, 768
                s_add_u32 s{sT0}, s{sT0}, {CSF}
                v_lshl_add_u32 v{T+6}, v{T}, 3, s{sT0}
                s_lshl_b32 s{sT0}, s{sWM}, 9
                s_add_u32 s{sT0}, s{sT0}, {STL}
                v_lshl_add_u32 v{T+7}, v{T}, 3, s{sT0}
                """)
            k = 0
            for j in range(3):
                for i in range(2):
                    c = "0" if g == 0 else vr(acc(i, j), 16)
                    a(f"v_mfma_f32_32x32x16_bf16 {vr(acc(i,j),16)}, {vr(wf(p,j),4)}, {vr(xf(p,i),4)}, {c}")
                    for _ in range(3):
                        if k < len(nxt):
                            a.ds(nxt[k], "f"); k += 1
        self.stamp(2)
        q0 = FR + 0
        M2, C1, KK = FR + 4, FR + 8, FR + 10
        a.lg.drain()
        a("s_mov_b32 exec_lo, 0")
        for j in range(6):
            a(f"v_mov_b32 v{CF+j}, 0")
        a("s_mov_b32 exec_lo, -1")
        for i in range(2):
            a(f"v_cvt_pk_bf16_f32 v{M2+2*i}, -v{q0+2*i}, -v{q0+2*i}")
            a(f"v_cvt_pk_bf16_f32 v{M2+2*i+1}, -v{q0+2*i}, -v{q0+2*i}")
            a(f"v_rcp_f32 v{C1+i}, v{q0+2*i+1}")
            a(f"v_mul_f32 v{KK+i}, v{q0+2*i+1}, v{q0+2*i+1}")
        for j in range(3):
            for i in range(2):
                a(f"v_mfma_f32_32x32x8_bf16 {vr(acc(i,j),16)}, {vr(CF+2*j,2)}, {vr(M2+2*i,2)}, {vr(acc(i,j),16)}")
        for i in range(2):
            a(f"v_mul_f32 v{C1+i}, {hex(f2u(-LOG2E))}, v{C1+i}")
        NW, NH = 5, 4
        NE = int(self.o.get("ne", 2))
        NL = int(self.o.get("nl", 5))
        WR, HR, ACC2 = 12, 112, 176
        V16, V16B, VL, VL2 = XA, XA + 1, XA + 2, XA + 3
        sRot, sWb, sHb, sWo, sHo, sLb, sLb2, sPo, sPv = [sA + 5 + k for k in range(9)]
        a(f"""
        v_lshlrev_b32 v{V16}, 4, v0
        v_add_u32 v{V16B}, 1024, v{V16}
        s_mul_i32 s{sLb}, s{sB}, 20480
        s_mul_i32 s{sLb2}, s{sB}, 5120
        s_add_u32 s{sLb2}, s{sLb2}, {WDL}
        v_add_u32 v{VL}, s{sLb}, v{V16}
        v_add_u32 v{VL2}, s{sLb2}, v{V16}
        s_mul_i32 s{sT0}, s{sCB2}, 3
        s_lshr_b32 s{sT0}, s{sT0}, 1
        s_and_b32 s{sT1}, s{sI}, 3
        s_mul_i32 s{sT1}, s{sT1}, 3
        s_add_u32 s{sT0}, s{sT0}, s{sT1}
        s_sub_u32 s{sT1}, s{sT0}, 12
        s_cmp_ge_u32 s{sT0}, 12
        s_cselect_b32 s{sRot}, s{sT1}, s{sT0}
        s_mul_i32 s{sT0}, s{sB}, 12
        s_mul_i32 s{sT1}, s{sCB2}, 48
        s_add_u32 s{sT1}, s{sT1}, s{sT0}
        s_mul_i32 s{sWb}, s{sT1}, 5120
        s_add_u32 s{sWb}, s{sWb}, {WDT}
        s_mul_i32 s{sT1}, s{sRB2}, 48
        s_add_u32 s{sT1}, s{sT1}, s{sT0}
        s_lshl_b32 s{sHb}, s{sT1}, 12
        s_add_u32 s{sHb}, s{sHb}, {HH}
        """)

        def step_off(i, so, sb, mul):
            a(f"""
            s_add_u32 s{so}, s{sRot}, {i}
            s_sub_u32 s{sT0}, s{so}, 12
            s_cmp_ge_u32 s{so}, 12
            s_cselect_b32 s{so}, s{sT0}, s{so}
            s_mul_i32 s{so}, s{so}, {mul}
            s_add_u32 s{so}, s{so}, s{sb}
            """)

        def wload(i, j):
            r = WR + (i % NW) * 20 + 4 * j
            v, off = (V16, 0) if j == 0 else (V16B, (j - 1) * 1024)
            a.vmem(f"buffer_load_dwordx4 {vr(r,4)}, v{v}, {sr(SWS,4)}, s{sWo} offen offset:{off} sc1", f"w{i}")

        def hload(i, tt):
            r = HR + (i % NH) * 16 + 4 * tt
            a.vmem(f"buffer_load_dwordx4 {vr(r,4)}, v{V16}, {sr(SWS,4)}, s{sHo} offen offset:{tt*1024} sc1", f"h{i}_{tt}")

        lds_steps = list(range(12 - NL, 12))

        def lds_base(i):
            n = lds_steps.index(i)
            return (sLb, VL, PART + n * 5120) if n < 4 else (sLb2, VL2, 0)

        def wdma(i):
            sb, _, off = lds_base(i)
            step_off(i, sWo, sWb, 5120)
            a(f"s_add_u32 m0, s{sb}, {off}")
            for j in range(4):
                a.vmem(f"buffer_load_dwordx4 v{V16}, {sr(SWS,4)}, s{sWo} offen offset:{j*1024} sc1 lds", f"wl{i}")
            a(f"s_add_u32 m0, s{sb}, {off+1024}")
            a.vmem(f"buffer_load_dwordx4 v{V16B}, {sr(SWS,4)}, s{sWo} offen offset:3072 sc1 lds", f"wl{i}")

        E = FR + 12
        HP = FR + 24
        early = [(i, j) for i in range(NE) for j in range(5)]
        nslots = 6 * 5
        tile = 0
        slot = 0
        issued = 0

        def maybe_load():
            nonlocal slot, issued
            slot += 1
            while issued < len(early) and issued < len(early) * slot / nslots:
                i, j = early[issued]
                if j == 0:
                    step_off(i, sWo, sWb, 5120)
                wload(i, j); issued += 1

        for j in range(3):
            for i in range(2):
                b = acc(i, j)
                hp = HP + 4 * (tile % 3)
                for r in range(8):
                    a(f"v_mul_f32 v{E+r}, v{b+r}, v{C1+i}")
                maybe_load()
                for r in range(8):
                    a(f"v_exp_f32 v{E+r}, v{E+r}")
                    a(f"v_mul_f32 v{b+r}, v{b+r}, v{b+8+r}")
                    if r == 3:
                        maybe_load()
                maybe_load()
                for r in range(8):
                    a(f"v_fma_f32 v{E+r}, v{E+r}, v{KK+i}, v{KK+i}")
                for r in range(8):
                    a(f"v_rcp_f32 v{E+r}, v{E+r}")
                    if r == 3:
                        maybe_load()
                for r in range(8):
                    a(f"v_mul_f32 v{b+r}, v{b+r}, v{E+r}")
                for r in range(4):
                    a(f"v_cvt_pk_bf16_f32 v{hp+r}, v{b+2*r}, v{b+2*r+1}")
                a.vmem(f"buffer_store_dwordx4 {vr(hp,4)}, v{VH}, {sr(SWS,4)}, s{sH+j} offen offset:{i*2048} sc1", "hst")
                maybe_load()
                tile += 1
        self.stamp(3)
        a(f"""
        s_lshl_b32 s{sT0}, s{sRB1}, 1
        s_add_u32 s{sT0}, s{sT0}, s{sWM}
        s_lshr_b32 s{sT1}, s{sCB1}, 2
        s_lshl2_add_u32 s{sT0}, s{sT0}, s{sT1}
        """)
        self.cnt_off(sPo, cH, sT0)
        nxt = NE
        if nxt < NW:
            step_off(nxt, sWo, sWb, 5120)
            for j in range(5):
                wload(nxt, j)
            nxt += 1
        a.vm.wait("hst")
        self.signal([sPo], sPv)
        self.stamp(4)
        for i in range(nxt, NW):
            step_off(i, sWo, sWb, 5120)
            for j in range(5):
                wload(i, j)
        for i in lds_steps:
            wdma(i)
        a(f"s_lshl2_add_u32 s{sT0}, s{sRB2}, s{sB}")
        a.lg.drain()
        self.cnt_off(sPo, cH, sT0)
        self.stamp(8)
        items = [(sPv, sPo, 8)]
        self.poll_issue(items, atomic=True)
        self.poll_check(items, atomic=True)
        self.stamp(5)
        for i in range(NH):
            step_off(i, sHo, sHb, 4096)
            for tt in range(4):
                hload(i, tt)
        acc2 = lambda tt, j: ACC2 + (tt * 5 + j) * 4
        for i in range(12):
            gl = i + NW < 12 and (i + NW) not in lds_steps
            if i + NH < 12:
                step_off(i + NH, sHo, sHb, 4096)
            if gl:
                step_off(i + NW, sWo, sWb, 5120)
            if i in lds_steps:
                a.lg.wait(f"wr{i}")
            for tt in range(4):
                a.vm.wait(f"w{i}", f"h{i}_{tt}")
                for j in range(5):
                    c = "0" if i == 0 else vr(acc2(tt, j), 4)
                    a(f"v_mfma_f32_16x16x32_bf16 {vr(acc2(tt,j),4)}, {vr(WR+(i%NW)*20+4*j,4)}, {vr(HR+(i%NH)*16+4*tt,4)}, {c}")
                    if tt == 3 and gl:
                        wload(i + NW, j)
                    if tt == 0 and (i + 1) in lds_steps:
                        _, v, off = lds_base(i + 1)
                        if j == 0:
                            a.vm.wait(f"wl{i+1}")
                        a.ds(f"ds_read_b128 {vr(WR+((i+1)%NW)*20+4*j,4)}, v{v} offset:{off+j*1024}", f"wr{i+1}")
                if i + NH < 12:
                    hload(i + NH, tt)
        self.stamp(6)
        for t in range(20):
            a.ds(f"ds_write_b128 v{VL}, {vr(ACC2+4*t,4)} offset:{PART+t*1024}", "p")
        a.lg.drain()
        a("s_barrier")
        self.stamp(7)
        self.dump_stamps()
        a("s_endpgm")

    def b_common_setup(self):
        a = self.a
        VX, VG, VU, T = 1, 5, 8, 20
        self.VX, self.VG, self.VU = VX, VG, VU
        self.sXL, self.sWL, self.sXO, self.sWO = sA, sA + 1, sA + 2, sA + 3
        a("L_roleB:")
        a(f"""
        v_lshrrev_b32 v{T}, 3, v0
        v_mul_u32_u24 v{T}, 1280, v{T}
        s_lshl2_add_u32 s{sT0}, s{sRB1}, s{sB}
        s_mul_i32 s{sT0}, s{sT0}, 40960
        v_add_u32 v{T}, s{sT0}, v{T}
        v_and_b32 v{T+1}, 7, v0
        v_lshrrev_b32 v{T+2}, 4, v0
        v_xor_b32 v{T+1}, v{T+1}, v{T+2}
        v_lshl_add_u32 v{VX}, v{T+1}, 4, v{T}
        v_xor_b32 v{VX+1}, 64, v{VX}
        v_add_u32 v{VX+1}, 10240, v{VX+1}
        v_add_u32 v{VX+2}, 20480, v{VX}
        v_add_u32 v{VX+3}, 20480, v{VX+1}
        v_bfe_u32 v{T}, v0, 2, 2
        v_mul_u32_u24 v{T}, 3072, v{T}
        v_and_b32 v{T+1}, 3, v0
        v_lshl_add_u32 v{T}, v{T+1}, 4, v{T}
        s_mul_i32 s{sT0}, s{sB}, 49152
        s_mul_i32 s{sT1}, s{sCB1}, 192
        s_add_u32 s{sT0}, s{sT0}, s{sT1}
        v_add_u32 v{T}, s{sT0}, v{T}
        """)
        for i in range(3):
            a(f"""
            v_add_u32 v{T+1}, {4*i}, v{T+2}
            v_mul_u32_u24 v{T+3}, 11, v{T+1}
            v_lshrrev_b32 v{T+3}, 5, v{T+3}
            v_mul_u32_u24 v{T+4}, {12288-192}, v{T+3}
            v_lshl_add_u32 v{T+4}, v{T+1}, 6, v{T+4}
            v_add_u32 v{VG+i}, v{T+4}, v{T}
            v_xor_b32 v{VU+i}, 32, v{VG+i}
            """)
        a(f"""
        s_lshl_b32 s{self.sXL}, s{sB}, 12
        s_mul_i32 s{self.sWL}, s{sB}, 6144
        s_add_u32 s{self.sWL}, s{self.sWL}, {WS_}
        s_waitcnt lgkmcnt(0)
        """)

    def stage_issue(self, s):
        a = self.a
        sl = s % 3
        fl = self.o.get("g1flags", "")
        for i in range(4):
            a.begin()
            if i == 0:
                a(f"""
                s_lshl_b32 s{self.sXO}, s{sKS}, 7
                s_mul_i32 s{self.sWO}, s{sKS}, 196608
                s_add_u32 s{sKS}, s{sKS}, 1
                s_cmp_eq_u32 s{sKS}, 10
                s_cselect_b32 s{sKS}, 0, s{sKS}
                """)
            a(f"s_add_u32 m0, s{self.sXL}, {XS+sl*16384+i*1024}")
            a.vmem(f"buffer_load_dwordx4 v{self.VX+i}, {sr(SQ,4)}, s{self.sXO} offen {fl} lds", f"S{s}")
            a.end()
        for up in range(2):
            for i in range(3):
                a.begin()
                a(f"s_add_u32 m0, s{self.sWL}, {sl*24576+up*3072+i*1024}")
                a.vmem(f"buffer_load_dwordx4 v{(self.VU if up else self.VG)+i}, {sr(SWU if up else SWG,4)}, s{self.sWO} offen {fl} lds", f"S{s}")
                a.end()

    def stats_load(self):
        a = self.a
        T, X = 150, 24
        a(f"""
        v_lshrrev_b32 v{T}, 5, v0
        s_lshl2_add_u32 s{sA+9}, s{sWS}, s{sB}
        s_lshl_b32 s{sA+9}, s{sA+9}, 1
        v_add_u32 v{T}, s{sA+9}, v{T}
        v_lshlrev_b32 v11, 3, v{T}
        v_mul_u32_u24 v{T}, 1280, v{T}
        v_and_b32 v{T+1}, 31, v0
        v_lshl_add_u32 v{T}, v{T+1}, 3, v{T}
        """)
        for j in range(5):
            a.vmem(f"buffer_load_dwordx2 {vr(X+2*j,2)}, v{T}, {sr(SQ,4)}, 0 offen offset:{j*256}", "stat")

    def reduce32(self, v, t):
        a = self.a
        for n in (8, 4, 2, 1):
            a(f"v_add_f32_dpp v{v}, v{v}, v{v} row_ror:{n} row_mask:0xf bank_mask:0xf")
        a(f"v_mov_b32 v{t}, v{v}\nv_permlane16_swap_b32 v{v}, v{t}\nv_add_f32 v{v}, v{v}, v{t}")

    def stats_compute(self):
        a = self.a
        X, U, T = 24, 34, 20
        a.vm.wait("stat")
        for j in range(10):
            a(f"v_lshlrev_b32 v{U+2*j}, 16, v{X+j}\nv_and_b32 v{U+2*j+1}, 0xffff0000, v{X+j}")
        a(f"v_add_f32 v{T}, v{U}, v{U+1}\nv_add_f32 v{T+1}, v{U+2}, v{U+3}")
        for j in range(4, 20):
            a(f"v_add_f32 v{T+(j&1)}, v{T+(j&1)}, v{U+j}")
        a(f"v_add_f32 v{T}, v{T}, v{T+1}")
        self.reduce32(T, T + 1)
        a(f"v_mul_f32 v{T}, {hex(f2u(1.0/640))}, v{T}")
        for j in range(20):
            a(f"v_sub_f32 v{U+j}, v{U+j}, v{T}")
        a(f"v_mul_f32 v{T+1}, v{U}, v{U}\nv_mul_f32 v{T+2}, v{U+1}, v{U+1}")
        for j in range(2, 20):
            a(f"v_fmac_f32 v{T+1+(j&1)}, v{U+j}, v{U+j}")
        a(f"v_add_f32 v{T+1}, v{T+1}, v{T+2}")
        self.reduce32(T + 1, T + 2)
        a(f"""
        v_mul_f32 v{T+1}, {hex(f2u(1.0/640))}, v{T+1}
        v_cvt_pk_bf16_f32 v{T+2}, v{T}, v{T+1}
        v_lshlrev_b32 v{T}, 16, v{T+2}
        v_and_b32 v{T+1}, 0xffff0000, v{T+2}
        v_add_f32 v{T+1}, {hex(f2u(1e-5))}, v{T+1}
        v_cvt_pk_bf16_f32 v{T+1}, v{T+1}, v{T+1}
        v_and_b32 v{T+1}, 0xffff0000, v{T+1}
        v_sqrt_f32 v{T+1}, v{T+1}
        v_cvt_pk_bf16_f32 v{T+1}, v{T+1}, v{T+1}
        v_and_b32 v{T+1}, 0xffff0000, v{T+1}
        s_mov_b32 s{sT0}, {ST}
        """)
        a.begin()
        a("s_mov_b32 exec_lo, 1\ns_mov_b32 exec_hi, 1")
        a.vmem(f"buffer_store_dwordx2 {vr(T,2)}, v11, {sr(SWS,4)}, s{sT0} offen sc1", "stst")
        a("s_mov_b64 exec, -1")
        a.end()

    def colsum_partial(self):
        a = self.a
        T, F = 12, 60
        a(f"""
        v_bfe_u32 v{T+2}, v0, 4, 1
        v_mul_u32_u24 v{T+3}, 3072, v{T+2}
        v_lshrrev_b32 v{T+4}, 5, v0
        v_mul_u32_u24 v{T+4}, 1536, v{T+4}
        v_bfe_u32 v{T+5}, v0, 2, 2
        v_lshl_add_u32 v{T+3}, v{T+5}, 6, v{T+3}
        v_and_b32 v{T+5}, 1, v0
        v_lshl_add_u32 v{T+3}, v{T+5}, 4, v{T+3}
        v_bfe_u32 v{T+5}, v0, 1, 1
        v_lshl_add_u32 v{T+3}, v{T+5}, 3, v{T+3}
        v_lshl_add_u32 v{T+3}, v{T+2}, 5, v{T+3}
        s_min_u32 s{sT1}, s{sB}, 2
        s_lshl_b32 s{sT1}, s{sT1}, 8
        s_add_u32 s{sT0}, s{sT1}, {WS_}
        v_add3_u32 v{T}, v{T+3}, v{T+4}, s{sT0}
        v_xor_b32 v{T+1}, 32, v{T}
        s_lshl4_add_u32 s{sT0}, s{sCB1}, s{sRB1}
        s_mul_i32 s{sT0}, s{sT0}, 768
        s_add_u32 s{sT0}, s{sT0}, s{sT1}
        s_add_u32 s{sT0}, s{sT0}, {CS}
        s_mov_b32 s{sT1}, 0x3f803f80
        v_lshlrev_b32 v{T+6}, 2, v0
        """)
        for h in range(2):
            for n in range(8):
                a.ds(f"ds_read_b64_tr_b16 {vr(F+16*h+2*n,2)}, v{T+h} offset:{(n>>1)*6144+(n&1)*768}", f"cs{h}")
        for r in range(4):
            a(f"v_mov_b32 v{T+2+r}, 0")
        for h in range(2):
            a.lg.wait(f"cs{h}")
            for n in range(16):
                a(f"v_dot2c_f32_bf16 v{T+2+2*h+(n&1)}, s{sT1}, v{F+16*h+n}")
        a(f"v_add_f32 v{T+2}, v{T+2}, v{T+3}\nv_add_f32 v{T+4}, v{T+4}, v{T+5}")
        a(f"v_permlane32_swap_b32 v{T+2}, v{T+4}\nv_add_f32 v{T+2}, v{T+2}, v{T+4}")
        a.vmem(f"buffer_store_dword v{T+2}, v{T+6}, {sr(SWS,4)}, s{sT0} offen sc1", "csst")

    def gather_issue(self):
        a = self.a
        T, G = 12, 24
        a(f"""
        v_and_b32 v{T}, 31, v0
        s_lshl2_add_u32 s{sT0}, s{sRB1}, s{sB}
        s_lshl_b32 s{sT0}, s{sT0}, 8
        s_add_u32 s{sT0}, s{sT0}, {ST}
        v_lshlrev_b32 v{T}, 3, v{T}
        s_mul_i32 s{sT1}, s{sCB1}, 12288
        s_mul_i32 s{sT2}, s{sB}, 192
        s_add_u32 s{sT1}, s{sT1}, s{sT2}
        s_add_u32 s{sT1}, s{sT1}, {CS}
        s_add_u32 s{sT2}, s{sT1}, 3840
        v_lshlrev_b32 v{T+1}, 2, v0
        """)
        a.vmem(f"buffer_load_dwordx2 {vr(G,2)}, v{T}, {sr(SWS,4)}, s{sT0} offen sc1", "gat")
        for p in range(10):
            a.vmem(f"buffer_load_dword v{G+2+p}, v{T+1}, {sr(SWS,4)}, s{sT1 if p < 5 else sT2} offen offset:{(p%5)*768} sc1", "gat")

    def gather_finish(self):
        a = self.a
        T, G = 12, 24
        a.vm.wait("gat")
        a(f"s_lshl_b32 s{sT0}, s{sB}, 8\ns_add_u32 s{sT0}, s{sT0}, {STL}\nv_add_u32 v{T}, s{sT0}, v{T}")
        a.ds(f"ds_write_b64 v{T}, {vr(G,2)}", "gw")
        c = G + 2
        for p in range(5):
            a(f"v_add_f32 v{c+p}, v{c+p}, v{c+5+p}")
        a(f"""
        v_add_f32 v{c}, v{c}, v{c+1}
        v_add_f32 v{c+2}, v{c+2}, v{c+3}
        v_add_f32 v{c}, v{c}, v{c+4}
        v_add_f32 v{c}, v{c}, v{c+2}
        v_cvt_pk_bf16_f32 v{c+1}, v{c}, v{c}
        v_and_b32 v{c+1}, 0xffff0000, v{c+1}
        v_sub_f32 v{c+1}, v{c}, v{c+1}
        v_cvt_pk_bf16_f32 v{c+2}, v{c}, v{c+1}
        v_and_b32 v{c+4}, 0xffff0000, v{c+2}
        v_sub_f32 v{c+1}, v{c+1}, v{c+4}
        v_cvt_pk_bf16_f32 v{c+3}, v{c+1}, 0
        s_mul_i32 s{sT0}, s{sB}, 384
        s_add_u32 s{sT0}, s{sT0}, {CSF}
        v_lshl_add_u32 v{T+1}, v0, 3, s{sT0}
        """)
        a.begin()
        a("s_mov_b32 exec_hi, 0xffff")
        a.ds(f"ds_write_b64 v{T+1}, {vr(c+2,2)}", "gw")
        a("s_mov_b32 exec_hi, -1")
        a.end()
        a.lg.drain()

    def kv_issue(self):
        a = self.a
        T = 150
        fl = self.o.get("p0flags", "")
        self.sT0K, self.sCG = sA + 4, sA + 5
        a(f"""
        s_and_b32 s{self.sT0K}, s{sC}, 15
        s_lshl_b32 s{self.sT0K}, s{self.sT0K}, 7
        s_lshr_b32 s{self.sCG}, s{sC}, 4
        s_lshl2_add_u32 s{sA+9}, s{self.sCG}, s{sB}
        s_lshl_b32 s{sA+9}, s{sA+9}, 7
        v_and_b32 v{T+1}, 15, v0
        v_lshl_add_u32 v{T+1}, v{T+1}, 3, s{sA+9}
        """)
        a.vmem(f"buffer_load_dwordx2 v[54:55], v{T+1}, {sr(SSH,4)}, 0 offen", "kv")
        a(f"""
        v_lshrrev_b32 v{T+2}, 3, v0
        v_mul_u32_u24 v{T+2}, 1280, v{T+2}
        v_and_b32 v{T+3}, 7, v0
        v_lshl_add_u32 v{T+2}, v{T+3}, 4, v{T+2}
        s_lshl_b32 s{sA+10}, s{sB}, 5
        s_add_u32 s{sA+10}, s{sA+10}, s{self.sT0K}
        s_mul_i32 s{sA+10}, s{sA+10}, 1280
        s_lshl_b32 s{sA+11}, s{self.sCG}, 7
        s_add_u32 s{sA+10}, s{sA+10}, s{sA+11}
        v_add_u32 v{T+2}, s{sA+10}, v{T+2}
        s_add_u32 s{sA+10}, s{self.sT0K}, s{sB}
        s_sub_u32 s{sA+10}, s{sA+10}, 4
        s_mul_i32 s{sA+10}, s{sA+10}, 1280
        s_add_u32 s{sA+10}, s{sA+10}, s{sA+11}
        v_lshl_add_u32 v{T+3}, v0, 4, s{sA+10}
        """)
        for srd, base in ((SK, KST + 512), (SV, VST)):
            for i in range(4):
                a(f"s_mov_b32 s{sA+12}, {i*10240}\ns_add_u32 m0, s{self.sXL}, {base+i*1024}")
                a.vmem(f"buffer_load_dwordx4 v{T+2}, {sr(srd,4)}, s{sA+12} offen {fl} lds", "kv")
        a(f"s_lshl_b32 s{sA+10}, s{sB}, 7\ns_add_u32 m0, s{sA+10}, {KST}\ns_mov_b64 exec, 0xff")
        a.vmem(f"buffer_load_dwordx4 v{T+3}, {sr(SK,4)}, 0 offen {fl} lds", "kv")
        a("s_mov_b64 exec, -1")

    def kv_reads(self):
        a = self.a
        T, K, Vv, W = 20, 60, 78, 14
        a(f"""
        v_lshrrev_b32 v{T}, 4, v0
        v_lshlrev_b32 v{T}, 5, v{T}
        v_bfe_u32 v{T+1}, v0, 2, 2
        v_add_u32 v{T}, v{T}, v{T+1}
        v_and_b32 v{T+1}, 3, v0
        v_lshlrev_b32 v{T+1}, 3, v{T+1}
        v_lshl_add_u32 v{T}, v{T}, 7, v{T+1}
        s_lshl_b32 s{sT0}, s{sB}, 5
        s_add_u32 s{sT0}, s{sT0}, {KST}
        v_add_u32 v{T}, s{sT0}, v{T}
        """)
        for i in range(9):
            a.ds(f"ds_read_b64_tr_b16 {vr(K+2*i,2)}, v{T} offset:{i*512}", "kvr")
        for i in range(8):
            a.ds(f"ds_read_b64_tr_b16 {vr(Vv+2*i,2)}, v{T} offset:{16896+i*512}", "kvr")
        a(f"""
        v_lshlrev_b32 v{W}, 16, v54
        v_and_b32 v{W+1}, 0xffff0000, v54
        v_lshlrev_b32 v{W+2}, 16, v55
        v_and_b32 v{W+3}, 0xffff0000, v55
        """)
        a.lg.drain()

    def kv_compute(self, lo, hi):
        a = self.a
        K, Vv, W, KF, O, T = 60, 78, 14, 96, 132, 20
        first = 0 if lo == 0 else lo + 2
        for p in range(first, hi + 2):
            a(f"v_lshlrev_b32 v{KF+2*p}, 16, v{K+p}\nv_and_b32 v{KF+2*p+1}, 0xffff0000, v{K+p}")
        for p in range(lo, hi):
            for e in range(2):
                t = 2 * p + e
                a(f"v_mul_f32 v{T+e}, v{W+3}, v{KF+t+1}")
            for d in (2, 1, 0):
                for e in range(2):
                    t = 2 * p + e
                    a(f"v_fmac_f32 v{T+e}, v{W+d}, v{KF+t+4-d}")
            a(f"v_lshlrev_b32 v{T+2}, 16, v{Vv+p}\nv_and_b32 v{T+3}, 0xffff0000, v{Vv+p}")
            a(f"v_mul_f32 v{T}, v{T}, v{T+2}\nv_mul_f32 v{T+1}, v{T+1}, v{T+3}")
            a(f"v_cvt_pk_bf16_f32 v{O+p}, v{T}, v{T+1}")

    def kv_store(self):
        a = self.a
        O, T = 132, 20
        a(f"""
        v_and_b32 v{T}, 15, v0
        v_lshrrev_b32 v{T+1}, 4, v0
        s_mul_i32 s{sT0}, s{sB}, 4352
        s_add_u32 s{sT0}, s{sT0}, {BNC}
        v_mul_u32_u24 v{T+2}, 272, v{T}
        v_lshl_add_u32 v{T+2}, v{T+1}, 6, v{T+2}
        v_add_u32 v{T+2}, s{sT0}, v{T+2}
        v_mul_u32_u24 v{T+3}, 272, v{T+1}
        v_lshl_add_u32 v{T+3}, v{T}, 4, v{T+3}
        v_add_u32 v{T+3}, s{sT0}, v{T+3}
        """)
        for j in range(4):
            a.ds(f"ds_write_b128 v{T+2}, {vr(O+4*j,4)} offset:{j*16}", "bw")
        a(f"""
        v_lshlrev_b32 v{T+1}, 12, v{T+1}
        v_lshl_add_u32 v{T}, v{T}, 4, v{T+1}
        s_lshl2_add_u32 s{sT0}, s{self.sCG}, s{sB}
        s_lshl_b32 s{sT0}, s{sT0}, 16
        s_lshl_b32 s{sT1}, s{self.sT0K}, 1
        s_add_u32 s{sT0}, s{sT0}, s{sT1}
        s_add_u32 s{sT0}, s{sT0}, {UT}
        """)
        a.lg.drain()
        for j in range(4):
            a.ds(f"ds_read_b128 {vr(96+4*j,4)}, v{T+3} offset:{j*1088}", f"br{j}")
        for j in range(4):
            a.lg.wait(f"br{j}")
            a.vmem(f"buffer_store_dwordx4 {vr(96+4*j,4)}, v{T}, {sr(SWS,4)}, s{sT0} offen sc1", "utst")
            if j < 3:
                a(f"s_add_u32 s{sT0}, s{sT0}, 16384")

    def wd_issue(self):
        a = self.a
        T = 150
        fl = self.o.get("p0flags", "")
        a(f"""
        s_lshr_b32 s{sA+9}, s{sC}, 1
        s_lshl2_add_u32 s{sA+9}, s{sA+9}, s{sB}
        s_mul_i32 s{sA+9}, s{sA+9}, 10240
        s_and_b32 s{sA+10}, s{sC}, 1
        s_mul_i32 s{sA+10}, s{sA+10}, 640
        s_add_u32 s{sA+9}, s{sA+9}, s{sA+10}
        s_mul_i32 s{sA+11}, s{sB}, 5120
        """)
        for i in range(5):
            a(f"""
            v_add_u32 v{T+1}, {64*i}, v0
            v_mul_u32_u24 v{T+2}, 1639, v{T+1}
            v_lshrrev_b32 v{T+2}, 16, v{T+2}
            v_mul_u32_u24 v{T+2}, 640, v{T+2}
            v_lshl_add_u32 v{T+2}, v{T+1}, 4, v{T+2}
            s_add_u32 m0, s{sA+11}, {AUX+i*1024}
            """)
            a.vmem(f"buffer_load_dwordx4 v{T+2}, {sr(SWD,4)}, s{sA+9} offen {fl} lds", "kv")

    def wd_transpose(self):
        a = self.a
        T, F = 20, 60
        a(f"""
        v_lshrrev_b32 v{T}, 4, v0
        v_bfe_u32 v{T+1}, v0, 2, 2
        v_lshl_add_u32 v{T}, v{T}, 3, v{T+1}
        v_mul_u32_u24 v{T}, 640, v{T}
        v_and_b32 v{T+1}, 3, v0
        v_lshl_add_u32 v{T}, v{T+1}, 3, v{T}
        s_mul_i32 s{sT0}, s{sB}, 160
        s_add_u32 s{sT0}, s{sT0}, {AUX}
        v_add_u32 v{T}, s{sT0}, v{T}
        """)
        for j in range(5):
            for q in range(2):
                a.ds(f"ds_read_b64_tr_b16 {vr(F+4*j+2*q,2)}, v{T} offset:{q*2560+j*32}", f"wt{j}")
        a(f"""
        s_and_b32 s{sT0}, s{sC}, 1
        s_lshl2_add_u32 s{sT0}, s{sT0}, s{sB}
        s_mul_i32 s{sT0}, s{sT0}, 48
        s_lshr_b32 s{sT1}, s{sC}, 1
        s_add_u32 s{sT0}, s{sT0}, s{sT1}
        s_mul_i32 s{sT0}, s{sT0}, 5120
        s_add_u32 s{sT0}, s{sT0}, {WDT}
        v_lshlrev_b32 v{T+1}, 4, v0
        """)
        for j in range(5):
            a.lg.wait(f"wt{j}")
            a.vmem(f"buffer_store_dwordx4 {vr(F+4*j,4)}, v{T+1}, {sr(SWS,4)}, s{sT0} offen sc1", "utst")
            if j < 4:
                a(f"s_add_u32 s{sT0}, s{sT0}, 1024")

    def conv_h_issue(self):
        a = self.a
        self.sR, self.sCH, self.sD = sA + 6, sA + 7, sA + 8
        fl = self.o.get("p0flags", "")
        a(f"""
        s_mul_i32 s{self.sR}, s{sB}, {CVR}
        s_add_u32 s{self.sR}, s{self.sR}, {AUX}
        s_lshl2_add_u32 s{self.sCH}, s{sC}, s{sB}
        s_lshl_b32 s{sT0}, s{self.sCH}, 12
        s_add_u32 m0, s{self.sR}, 96
        v_lshlrev_b32 v18, 4, v0
        s_lshl_b32 s{sT1}, s{self.sCH}, 1
        """)
        for i in range(4):
            a.vmem(f"buffer_load_dwordx4 v18, {sr(SSK,4)}, s{sT0} offen offset:{i*1024} {fl} lds", "hk")
        a.vmem(f"buffer_load_ushort v19, off, {sr(SSD,4)}, s{sT1}", "hk")

    def conv_prepare(self):
        a = self.a
        self.AF, self.BF, self.CA = 24, 88, 216
        T = 4
        a(f"""
        v_lshlrev_b32 v{T}, 2, v0
        v_add_u32 v{T}, s{self.sR}, v{T}
        v_mov_b32 v{T+1}, 0
        s_mov_b32 exec_hi, 0
        s_mov_b32 exec_lo, 0xffffff
        """)
        a.ds(f"ds_write_b32 v{T}, v{T+1}", "z")
        a("s_mov_b32 exec_lo, -1\ns_mov_b32 exec_hi, 0xff")
        a.ds(f"ds_write_b32 v{T}, v{T+1} offset:4192", "z")
        a("s_mov_b64 exec, -1")
        a(f"""
        v_and_b32 v{T}, 3, v0
        v_lshrrev_b32 v{T+1}, 4, v0
        v_bfe_u32 v{T+2}, v0, 2, 2
        v_lshlrev_b32 v{T+3}, 6, v{T+1}
        v_lshl_add_u32 v{T+3}, v{T+2}, 3, v{T+3}
        v_lshl_add_u32 v1, v{T}, 5, v{T+3}
        v_add_u32 v1, s{self.sR}, v1
        v_lshlrev_b32 v{T}, 3, v{T}
        v_sub_u32 v2, v{T}, v{T+3}
        s_add_u32 s{sT0}, s{self.sR}, {4352+64}
        v_add_u32 v2, s{sT0}, v2
        v_lshl_add_u32 v3, v0, 1, s{self.sR}
        """)
        a.vm.wait("hk")
        a(f"v_lshlrev_b32 v19, 16, v19")
        a(f"v_readfirstlane_b32 s{self.sD}, v19")
        a.lg.drain()
        for m in range(16):
            for q in range(2):
                a.ds(f"ds_read_b64_tr_b16 {vr(self.AF+4*m+2*q,2)}, v1 offset:{256*m+32*q}", "af")

    def conv_u_issue(self):
        a = self.a
        a(f"s_lshl_b32 s{sT0}, s{self.sCH}, 12\ns_add_u32 s{sT0}, s{sT0}, {UT}\ns_add_u32 m0, s{self.sR}, 4352")
        for i in range(4):
            a.vmem(f"buffer_load_dwordx4 v18, {sr(SWS,4)}, s{sT0} offen offset:{i*1024} sc1 lds", f"u{i}")

    def conv_main(self):
        a = self.a
        AF, BF, CA = self.AF, self.BF, self.CA
        NACC = 8
        Z2, Z1, YV, UR, RB = 4, 6, 8, 10, 248
        ca = lambda n: CA + 4 * (n % NACC)
        a(f"""
        v_mov_b32 v{UR}, 0
        v_mov_b32 v{UR+1}, 0
        v_lshl_add_u32 v12, v0, 4, s{self.sR}
        s_lshl_b32 s{sT0}, s{self.sCH}, 12
        s_add_u32 s{sT0}, s{sT0}, {YY}
        """)
        dpp = "row_mask:0xf bank_mask:0xf"

        def bread(i):
            return [("vm", f"u{min(3, i >> 3)}")] + [
                ("ds", f"ds_read_b64_tr_b16 {vr(BF+4*i+2*q,2)}, v2 offset:{128*i+32*(1-q)}", f"b{i}") for q in range(2)]

        def epi(n):
            c, pc = ca(n), ca(n - 1)
            z2, pz2, z1, pz1 = Z2 + (n & 1), Z2 + 1 - (n & 1), Z1 + (n & 1), Z1 + 1 - (n & 1)
            y, u = YV + (n & 1), UR + (n & 1)
            o = [("ds", f"ds_read_u16_d16_hi v{u}, v3 offset:{4352+128*n}", f"ur{n}")]
            for dst, cur, prev, add in ((z2, c + 3, pc + 3, c + 2), (z1, z2, pz2, c + 1), (y, z1, pz1, c)):
                if n == 0:
                    o.append(("v", f"v_add_f32_dpp v{dst}, v{cur}, v{add} wave_shr:1 {dpp} bound_ctrl:0"))
                else:
                    o.append(("v", f"v_add_f32_dpp v{dst}, v{prev}, v{add} wave_ror:1 {dpp}"))
                    o.append(("v", f"v_add_f32_dpp v{dst}, v{cur}, v{add} wave_shr:1 {dpp}"))
            o.append(("lg", f"ur{n}"))
            o.append(("v", f"v_fmac_f32 v{y}, s{self.sD}, v{u}"))
            o.append(("v", f"v_cvt_pk_bf16_f32 v{y}, v{y}, v{y}"))
            o.append(("ds", f"ds_write_b16 v3, v{y} offset:{128*n}", f"yw{n}"))
            if n & 7 == 7:
                k = n >> 3
                rb = RB + 4 * (k & 1)
                o.append(("ds", f"ds_read_b128 {vr(rb,4)}, v12 offset:{1024*k}", f"yr{k}"))
                o.append(("lg", f"yr{k}"))
                o.append(("vmem", f"buffer_store_dwordx4 {vr(rb,4)}, v18, {sr(SWS,4)}, s{sT0} offen offset:{1024*k} sc1", "yst"))
            return o

        def emit(op):
            if op[0] == "v":
                a(op[1])
            elif op[0] == "ds":
                a.ds(op[1], op[2])
            elif op[0] == "vmem":
                a.vmem(op[1], op[2])
            elif op[0] == "lg":
                a.lg.wait(op[1])
            elif op[0] == "vm":
                a.vm.wait(op[1])
            return op[0] in ("v", "ds", "vmem")

        for i in range(4):
            for op in bread(i):
                emit(op)
        a.lg.wait("af")
        nb = 4
        fill = []
        mi = 0
        for n in range(32):
            while fill and any(f[1] is not None and f[1] <= n - NACC + 1 for f in fill):
                emit(fill.pop(0)[2])
            pend = []
            while nb < 32 and nb <= n + 4:
                pend += bread(nb); nb += 1
            fill = [(0, None, op) for op in pend] + fill
            ms = list(range(n // 2, -1, -1))
            for k, m in enumerate(ms):
                i = n - 2 * m
                assert not any(f[2][0] == "ds" and f[2][2] == f"b{i}" for f in fill)
                a.lg.wait(f"b{i}")
                c = "0" if k == 0 else vr(ca(n), 4)
                a(f"v_mfma_f32_16x16x32_bf16 {vr(ca(n),4)}, {vr(AF+4*m,4)}, {vr(BF+4*i,4)}, {c}")
                mi += 1
                slots = 2
                while slots and fill and fill[0][0] <= mi:
                    if emit(fill.pop(0)[2]):
                        slots -= 1
            fill += [(mi + 3, n, op) for op in epi(n)]
        while fill:
            emit(fill.pop(0)[2])

    def final_prepare(self):
        a = self.a
        self.VO, T = 13, 20
        a(f"""
        s_lshl2_add_u32 s{sT0}, s{sRB2}, s{sB}
        s_mul_i32 s{sT1}, s{sT0}, 20480
        s_mul_i32 s{sT2}, s{sCB2}, 160
        s_add_u32 s{sT1}, s{sT1}, s{sT2}
        s_mul_i32 s{sT2}, s{sB}, 2560
        """)
        for p in range(3):
            a(f"""
            v_add_u32 v{T}, {64*p}, v0
            v_mul_u32_u24 v{T+1}, 205, v{T}
            v_lshrrev_b32 v{T+1}, 11, v{T+1}
            v_mul_u32_u24 v{T+1}, 1120, v{T+1}
            v_lshl_add_u32 v{T+1}, v{T}, 4, v{T+1}
            v_add_u32 v{self.VO+p}, s{sT1}, v{T+1}
            s_add_u32 m0, s{sT2}, {XT+p*1024}
            """)
            if p == 2:
                a("s_mov_b32 exec_hi, 0")
            a.vmem(f"buffer_load_dwordx4 v{self.VO+p}, {sr(SQ,4)}, 0 offen lds", "xt")
        a(f"""
        s_mov_b32 exec_hi, -1
        s_lshl_b32 s{sT0}, s{sT0}, 7
        s_add_u32 s{sT0}, s{sT0}, {ST}
        v_and_b32 v{T}, 15, v0
        v_lshlrev_b32 v{T}, 3, v{T}
        """)
        a.vmem(f"buffer_load_dwordx2 v[16:17], v{T}, {sr(SWS,4)}, s{sT0} offen sc1", "xt")

    def final_xn(self):
        a = self.a
        T, X, XF, XN = 20, 24, 40, 60
        a(f"""
        v_and_b32 v{T}, 15, v0
        v_mul_u32_u24 v{T}, 160, v{T}
        v_lshrrev_b32 v{T+1}, 4, v0
        v_lshl_add_u32 v{T}, v{T+1}, 3, v{T}
        s_mul_i32 s{sT0}, s{sB}, 2560
        s_add_u32 s{sT0}, s{sT0}, {XT}
        v_add_u32 v1, s{sT0}, v{T}
        v_lshl_add_u32 v2, v0, 4, s{sT0}
        """)
        a.vm.wait("xt")
        for j in range(5):
            a.ds(f"ds_read_b64 {vr(X+2*j,2)}, v1 offset:{j*32}", "xr")
        a("v_rcp_f32 v17, v17")
        a.lg.drain()
        for p in range(10):
            x, n = XF + 2 * p, XN + 2 * p
            a(f"""
            v_lshlrev_b32 v{x}, 16, v{X+p}
            v_and_b32 v{x+1}, 0xffff0000, v{X+p}
            v_sub_f32 v{n}, v{x}, v16
            v_sub_f32 v{n+1}, v{x+1}, v16
            v_cvt_pk_bf16_f32 v{n+1}, v{n}, v{n+1}
            v_lshlrev_b32 v{n}, 16, v{n+1}
            v_and_b32 v{n+1}, 0xffff0000, v{n+1}
            v_mul_f32 v{n}, v{n}, v17
            v_mul_f32 v{n+1}, v{n+1}, v17
            v_cvt_pk_bf16_f32 v{n+1}, v{n}, v{n+1}
            v_lshlrev_b32 v{n}, 16, v{n+1}
            v_and_b32 v{n+1}, 0xffff0000, v{n+1}
            """)

    def final_rest(self):
        a = self.a
        T, Y, XF, XN, P = 20, 24, 40, 60, 80
        sPo, sPv = sA + 9, sA + 13
        other, go = a.label("ywait"), a.label("ygo")
        a(f"""
        v_lshrrev_b32 v{T}, 2, v0
        v_and_b32 v{T+1}, 3, v0
        v_lshlrev_b32 v{T+1}, 3, v{T+1}
        v_lshl_add_u32 v{T}, v{T}, 7, v{T+1}
        s_lshl_b32 s{sT0}, s{sB}, 5
        s_add_u32 s{sT0}, s{sT0}, {YT}
        v_add_u32 v{T}, s{sT0}, v{T}
        v_mov_b32 v{T+1}, {BCNT}
        s_cmp_lg_u32 s{sB}, 0
        s_cbranch_scc1 {other}
        """)
        a(f"s_lshl3_add_u32 s{sT0}, s{sCB2}, s{sXCD}")
        self.cnt_off(sPo, cY, sT0)
        items = [(sPv, sPo, 20)]
        self.poll_issue(items, atomic=True)
        a(f"""
        v_lshrrev_b32 v{T+2}, 3, v0
        v_and_b32 v{T+3}, 7, v0
        v_lshlrev_b32 v{T+2}, 12, v{T+2}
        v_lshl_add_u32 v{T+2}, v{T+3}, 4, v{T+2}
        s_mul_i32 s{sT0}, s{sCB2}, 327680
        s_lshl_b32 s{sT1}, s{sRB2}, 7
        s_add_u32 s{sT0}, s{sT0}, s{sT1}
        s_add_u32 s{sT0}, s{sT0}, {YY}
        """)
        self.poll_check(items, atomic=True, sleep=4)
        self.stamp(11)
        for p in range(10):
            a(f"s_mov_b32 m0, {YT+p*1024}")
            a(f"buffer_load_dwordx4 v{T+2}, {sr(SWS,4)}, s{sT0} offen sc1 lds")
            a(f"s_add_u32 s{sT0}, s{sT0}, 32768")
        a(f"""
        v_mov_b32 v{T+2}, 1
        s_waitcnt vmcnt(0)
        ds_write_b32 v{T+1}, v{T+2}
        s_branch {go}
        {other}:
        """)
        self.lds_flag_wait(T + 1, T + 3, go)
        a(f"{go}:")
        for j in range(5):
            a.ds(f"ds_read_b64_tr_b16 {vr(Y+2*j,2)}, v{T} offset:{j*2048}", "yr")
        a(f"s_mul_i32 s{sT0}, s{sB}, 5120\nv_lshl_add_u32 v3, v0, 4, s{sT0}\nv_add_u32 v4, {2*20480}, v3")
        a.lg.drain()
        for p in range(10):
            a(f"""
            v_lshlrev_b32 v{T}, 16, v{Y+p}
            v_and_b32 v{T+1}, 0xffff0000, v{Y+p}
            v_fmac_f32 v{XF+2*p}, v{XN+2*p}, v{T}
            v_fmac_f32 v{XF+2*p+1}, v{XN+2*p+1}, v{T+1}
            """)
        self.stamp(12)
        a("s_barrier")
        self.stamp(13)
        for j in range(5):
            for q in range(4):
                a.ds(f"ds_read_b128 {vr(P+16*j+4*q,4)}, v{3+(q>>1)} offset:{PART+(q&1)*20480+j*1024}", f"p{j}")
        for j in range(5):
            a.lg.wait(f"p{j}")
            p = P + 16 * j
            for r in range(4):
                a(f"v_add_f32 v{p+r}, v{p+r}, v{p+4+r}")
            for r in range(4):
                a(f"v_add_f32 v{p+8+r}, v{p+8+r}, v{p+12+r}")
            for r in range(4):
                a(f"v_add_f32 v{p+r}, v{p+r}, v{XF+4*j+r}")
            for r in range(4):
                a(f"v_add_f32 v{p+r}, v{p+r}, v{p+8+r}")
            a(f"v_cvt_pk_bf16_f32 v{p}, v{p}, v{p+1}\nv_cvt_pk_bf16_f32 v{p+1}, v{p+2}, v{p+3}")
            a.ds(f"ds_write_b64 v1, {vr(p,2)} offset:{j*32}", "ow")
        a.lg.drain()
        for p in range(3):
            a.ds(f"ds_read_b128 {vr(24+4*p,4)}, v2 offset:{p*1024}", f"or{p}")
        for p in range(3):
            a.lg.wait(f"or{p}")
            if p == 2:
                a("s_mov_b32 exec_hi, 0")
            a.vmem(f"buffer_store_dwordx4 {vr(24+4*p,4)}, v{self.VO+p}, {sr(SOUT,4)}, 0 offen", "out")
        self.stamp(14)
        self.dump_stamps()
        a("s_endpgm")

    def role_b(self, typ):
        a = self.a
        a.vm.q = []; a.lg.q = []
        C = typ == "C"
        sPo = [sA + 9, sA + 13, sA + 10, sA + 11]
        sPv = [sA + 12, sA + 14, sA + 15, 3]
        if C:
            a(f"s_mul_i32 s{sC}, s{sXCD}, 20\ns_add_u32 s{sC}, s{sC}, s{sI}")
        else:
            a(f"s_mul_i32 s{sC}, s{sXCD}, 12\ns_add_u32 s{sC}, s{sC}, s{sI}\ns_sub_u32 s{sC}, s{sC}, 20")
        self.stamp(0)
        LAG = int(self.o.get("lag", 7))
        P0 = int(self.o.get("p0pos", 2))

        def vm_groups(groups):
            out, cur = [], []
            for g in groups:
                cur = cur + g
                if any(op[0] == "vmem" for op in g):
                    out.append(cur); cur = []
            if cur:
                out[-1] = out[-1] + cur
            return out

        p0 = vm_groups(self.rec(self.stats_load) + self.rec(self.kv_issue if C else self.wd_issue))
        seq, last = [], {}
        for s_ in range(10):
            seq += [(s_, g) for g in self.rec(self.stage_issue, s_)]
            last[s_] = len(seq)
            if s_ == P0:
                seq += [(None, g) for g in p0]
        cut = []
        for s_ in range(10):
            c = min(last[s_] + LAG, len(seq))
            while any(k is not None and k >= s_ + 2 + (1 if s_ == 0 else 0) for k, _ in seq[:c]) and s_ < 9:
                c -= 1
            cut.append(c)

        def zero_lds():
            b = self.a
            b(f"v_mov_b32 v56, {BCNT}\nv_mov_b32 v58, 0\nv_mov_b32 v59, 0")
            b.ds("ds_write_b64 v56, v[58:59]", "z")
            b.ds("ds_write_b64 v56, v[58:59] offset:8", "z")
            b.lg.drain()

        def sig_stats():
            self.a(f"s_lshr_b32 s{sT0}, s{sWS}, 4")
            self.cnt_off(sPo[0], cS, sT0)
            self.cnt_off(sPo[1], cC, sCB1)
            self.signal(sPo[:2], sPv[0], only_wave0=True)

        def sig_p0():
            if C:
                self.cnt_off(sPo[2], cU, self.sCG)
            else:
                self.a(f"s_and_b32 s{sT0}, s{sC}, 1")
                self.cnt_off(sPo[2], cW, sT0)
            self.signal([sPo[2]], sPv[1], only_wave0=True)

        def poll_early():
            b = self.a
            b(f"v_mov_b32 v57, 16\nv_writelane_b32 v57, 48, 3")
            for lane, (base, src, sh) in enumerate(((cS, sRB1, 0), (cC, sCB1, 0), (cS, sRB2, 1), (cW, sCB2, 2))):
                b(f"s_lshr_b32 s{sT0}, s{src}, {sh}")
                self.cnt_off(sT0, base, sT0)
                b(f"v_writelane_b32 v56, s{sT0}, {lane}")
            self.vcheck_issue(58, 56, SWS, 15)

        R = self.rec
        tasks = {k: [] for k in range(10)}
        heads = {k: [] for k in range(10)}
        tails = {k: [] for k in range(10)}
        extra = {k: [] for k in range(10)}
        after = {k: [] for k in range(10)}
        tasks[0] += R(zero_lds)
        tasks[1] += R(self.colsum_partial)
        b0 = P0 + 1
        heads[b0] += R(self.vcheck_issue, 58, 59, SDBG, 1)
        tasks[b0] += R(self.stats_compute)
        after[b0] += R(self.vcheck, 58, 59, "1", SDBG, 1)
        extra[b0] += ["kv"]
        extra[b0 + 1] += ["stst", "csst"]
        heads[b0 + 2] += R(sig_stats)
        if C:
            tasks[b0 + 1] += R(self.kv_reads) + R(self.kv_compute, 0, 8)
            tasks[b0 + 2] += R(self.kv_compute, 8, 16) + R(self.kv_store)
            extra[b0 + 3] += ["utst"]
            heads[b0 + 4] += R(sig_p0)
        else:
            tasks[b0 + 1] += R(self.wd_transpose)
            extra[b0 + 2] += ["utst"]
            heads[b0 + 3] += R(sig_p0)
        heads[8] += R(poll_early)
        after[8] += R(self.vcheck, 58, 56, "v57", SWS, 15)
        heads[9] += R(self.gather_issue)
        if C:
            tails[9] += R(self.conv_h_issue)
        pos = 0
        for s_ in range(10):
            for g in heads[s_]:
                play(a, g)
            interleave(a, [g for _, g in seq[pos:cut[s_]]], tasks[s_])
            pos = cut[s_]
            if s_ in (3, 8):
                self.stamp(11 if s_ == 3 else 13, "2")
            for g in tails[s_]:
                play(a, g)
            if s_ in (3, 8):
                self.stamp(12 if s_ == 3 else 14, "2")
            a.vm.wait(f"S{s_}", *extra[s_])
            for g in after[s_]:
                play(a, g)
            a("s_barrier")
            if s_ in (0, 3, 6, 8, 9):
                self.stamp({0: 1, 3: 2, 6: 3, 8: 5, 9: 6}[s_])
            self.stamp(s_ + 1, "2")
        assert pos == len(seq)
        cu = [(sPv[0], sPo[0], 16)]
        self.gather_finish()
        if C:
            self.cnt_off(sPo[0], cU, self.sCG)
            self.poll_issue(cu, atomic=True, only_wave0=True)
        a("s_barrier")
        self.final_prepare()
        if C:
            self.conv_prepare()
        if C:
            other, go = a.label("uwait"), a.label("ugo")
            a(f"v_mov_b32 v20, {BCNT+8}\nv_mov_b32 v21, 1\ns_cmp_lg_u32 s{sB}, 0\ns_cbranch_scc1 {other}")
            q = list(a.lg.q)
            self.poll_check(cu, atomic=True, sleep=4)
            a(f"ds_write_b32 v20, v21\ns_branch {go}\n{other}:")
            self.lds_flag_wait(20, 21, go)
            a(f"{go}:")
            a.lg.q = q
            if self.o.get("prio", "1") == "1":
                a("s_setprio 1")
            self.stamp(7)
            self.conv_u_issue()
            self.conv_main()
            self.stamp(8)
            skip = a.label("ysig")
            a(f"v_mov_b32 v20, {BCNT+4}\nv_mov_b32 v21, 1")
            a(f"s_lshl_b32 s{sT0}, s{sXCD}, 3")
            self.cnt_off(sPo[0], cY, sT0)
            a.vm.drain()
            a("s_mov_b64 exec, 1")
            a.ds("ds_add_rtn_u32 v21, v20, v21", "yc")
            a.lg.drain()
            a(f"v_readfirstlane_b32 s{sT0}, v21\ns_mov_b64 exec, -1\ns_cmp_lg_u32 s{sT0}, 3\ns_cbranch_scc1 {skip}")
            a(f"s_mov_b32 s{sPv[0]}, 1")
            a(f"s_add_u32 s{sPo[2]}, s{SWS}, s{sPo[0]}\ns_addc_u32 s{sPo[3]}, s{SWS+1}, 0")
            for k in range(8):
                a(f"s_atomic_add s{sPv[0]}, s[{sPo[2]}:{sPo[3]}], {k*128}")
            a(f"{skip}:")
            self.stamp(9)
        self.final_xn()
        self.stamp(10)
        self.final_rest()

    def build(self):
        a = self.a
        self.prologue()
        self.role_a()
        self.b_common_setup()
        a(f"s_cmp_ge_u32 s{sI}, 20\ns_cbranch_scc1 L_typeW")
        self.role_b("C")
        a("L_typeW:")
        self.role_b("W")
        a("L_end:\ns_endpgm")
        return a.text()


def kernel_file(opt):
    ref = open("parallel_sum__ssm_conv_h3__swiglu_ffn__prompt.s.ref").read()
    head = [l for l in ref.split("\n") if l.startswith(";") and "@launch" not in l]
    head = head[:head.index([l for l in head if "d_ws" in l][0]) + 1]
    body = Gen(opt).build()
    return "\n".join(head) + f"""
; @launch grid=(256,1,1) block=(512,1,1) lds={LDS_BYTES}
.amdgcn_target "amdgcn-amd-amdhsa--gfx950"
.text
.globl {KNAME}
.p2align 8
.type {KNAME},@function
{KNAME}:
{body}.section .rodata,"a"
.p2align 6
.amdhsa_kernel {KNAME}
  .amdhsa_next_free_vgpr 256
  .amdhsa_next_free_sgpr 102
  .amdhsa_accum_offset 256
  .amdhsa_group_segment_fixed_size 0
  .amdhsa_kernarg_size 104
  .amdhsa_user_sgpr_count 2
  .amdhsa_user_sgpr_kernarg_segment_ptr 1
  .amdhsa_system_sgpr_workgroup_id_x 1
  .amdhsa_float_denorm_mode_32 3
.end_amdhsa_kernel
"""


if __name__ == "__main__":
    out = sys.argv[1]
    opt = {}
    for kv in sys.argv[2:]:
        k, _, v = kv.partition("=")
        opt[k] = v if v else True
    open(out, "w").write(kernel_file(opt))
```

```python
import sys
from asmlib import Asm, Rec, play, interleave, vr, sr

KNAME = "parallel_sum__ssm_conv_h3__swiglu_ffn__prompt_kernel"

CNT, ST, CS, UT, YY, WDT, HH, PROF, WS_SIZE = (0, 0x8000, 0xC000, 0x40000, 0x2C0000, 0x540000, 0x720000,
                                               0xD20000, 0xE00000)
cH, cS, cC, cU, cW, cY = 0, 128, 144, 160, 170, 192
XS, WS_, AUX = 0, 49152, 122880
KST, VST, BNC = AUX, AUX + 16896, AUX
CVR = 8448
STL, CSF, BCNT = AUX + 33792, AUX + 34816, AUX + 36352
PART, XT, YT, WDL = 0, 81920, 92160, 102400
LDS_BYTES = 163840
SQ, SWG, SWU, SWS, SK, SV, SSH, SSK, SSD, SOUT, SDBG, SWD = 4, 8, 12, 16, 20, 24, 28, 32, 36, 40, 44, 48
sW, sB, sXCD, sI, sRB1, sCB1, sKS, sRB2, sCB2, sWS, sC = 52, 53, 54, 55, 56, 57, 58, 59, 60, 61, 62
sT0, sT1, sT2, sT3, sCNT = 63, 64, 65, 66, 67
sTM = 68
sPR = 70
sA = 86
POLL_LIMIT = 1 << 17
LOG2E = 1.4426950408889634


def f2u(x):
    import struct
    return struct.unpack("<I", struct.pack("<f", x))[0]


class Gen:
    def __init__(self, opt):
        self.o = opt
        self.a = Asm()
        self.nstamp = 0

    def stamp(self, k, kind="1"):
        if self.o.get("profile") != kind and not (k == 0 and self.o.get("profile")):
            return
        a = self.a
        a(f"s_memrealtime {sr(sTM, 2)}")
        a.lg.drain()
        a(f"s_mov_b32 s{sPR+k}, s{sTM}")

    def dump_stamps(self, role):
        if not self.o.get("profile"):
            return
        a = self.a
        a("s_mov_b64 exec, -1")
        a("v_mov_b32 v1, 0")
        for k in range(16):
            a(f"v_writelane_b32 v1, s{sPR+k}, {k}")
        a(f"s_lshl_b32 s{sT0}, s2, 3\ns_add_u32 s{sT0}, s{sT0}, s{sW}\ns_lshl_b32 s{sT0}, s{sT0}, 6\ns_add_u32 s{sT0}, s{sT0}, {PROF}")
        a("v_mbcnt_lo_u32_b32 v2, -1, 0\nv_mbcnt_hi_u32_b32 v2, -1, v2\nv_lshlrev_b32 v2, 2, v2")
        a("s_mov_b64 exec, 0xffff")
        a(f"buffer_store_dword v1, v2, {sr(SWS,4)}, s{sT0} offen")
        if self.o.get("dbgout"):
            wg = int(self.o["dbgout"])
            skip = a.label("dbgout")
            sel = [1, 2, 3, 4, 8, 5, 6, 7] if role == "A" else [1, 2, 3, 6, 7, 8, 14]
            a(f"s_cmp_lg_u32 s2, {wg}\ns_cbranch_scc1 {skip}\ns_cmp_lg_u32 s{sB}, 1\ns_cbranch_scc1 {skip}")
            for n, k in enumerate(sel):
                a(f"s_sub_u32 s{sT0}, s{sPR+k}, s{sPR}\nv_writelane_b32 v1, s{sT0}, {n}")
            a(f"s_mov_b64 exec, {(1 << len(sel)) - 1}")
            a(f"buffer_store_dword v1, v2, {sr(SDBG,4)}, 0 offen offset:{4 if role == 'A' else 36}")
            a(f"{skip}:")

    def rec(self, fn, *args):
        real = self.a
        self.a = Rec(real)
        fn(*args)
        groups = self.a.groups
        self.a = real
        return groups

    def cnt_off(self, sdst, base, sidx):
        self.a(f"s_add_u32 s{sdst}, s{sidx}, {base}\ns_lshl_b32 s{sdst}, s{sdst}, 7")

    def signal(self, soffs, stmp, only_wave0=False):
        a = self.a
        skip = a.label("sig")
        a.begin()
        if only_wave0:
            a(f"s_cmp_lg_u32 s{sB}, 0\ns_cbranch_scc1 {skip}")
        a(f"s_mov_b32 s{stmp}, 1")
        for so in soffs:
            a(f"s_atomic_add s{stmp}, {sr(SWS,2)}, s{so}")
        if only_wave0:
            a(f"{skip}:")
        a.end()

    def poll_ops(self, items, atomic):
        o = []
        for val, off, _ in items:
            base = sr(SDBG, 2) if off is None else sr(SWS, 2)
            offs = "0" if off is None else f"s{off}"
            if atomic:
                o += [f"s_mov_b32 s{val}, 0", f"s_atomic_add s{val}, {base}, {offs} glc"]
            else:
                o += [f"s_load_dword s{val}, {base}, {offs} glc"]
        return "\n".join(o)

    def poll_issue(self, items, atomic=False, only_wave0=False):
        a = self.a
        skip = a.label("pi")
        a.begin()
        if only_wave0:
            a(f"s_cmp_lg_u32 s{sB}, 0\ns_cbranch_scc1 {skip}")
        a(self.poll_ops(items, atomic))
        if only_wave0:
            a(f"{skip}:")
        a.end()

    def poll_check(self, items, atomic=False, only_wave0=False, sleep=2):
        a = self.a
        lo, again, ok = a.label("poll"), a.label("again"), a.label("pollok")
        a.begin()
        a.lg.drain()
        if only_wave0:
            a(f"s_cmp_lg_u32 s{sB}, 0\ns_cbranch_scc1 {ok}")
        a(f"s_mov_b32 s{sCNT}, 0")
        a(f"{lo}:")
        for k, (val, _, target) in enumerate(items):
            a(f"s_cmp_ge_u32 s{val}, {target}")
            a(f"s_cbranch_scc1 {ok}" if k == len(items) - 1 else f"s_cbranch_scc0 {again}")
        a(f"{again}:")
        if sleep:
            a(f"s_sleep {sleep}")
        a(self.poll_ops(items, atomic))
        a(f"s_add_u32 s{sCNT}, s{sCNT}, 1")
        a(f"s_cmp_lt_u32 s{sCNT}, {POLL_LIMIT}")
        a("s_waitcnt lgkmcnt(0)")
        a(f"s_cbranch_scc1 {lo}")
        a(f"{ok}:")
        a.end()

    def vcheck_issue(self, vret, vaddr, srd, mask):
        a = self.a
        skip = a.label("vi")
        a.begin()
        a(f"s_cmp_lg_u32 s{sB}, 0\ns_cbranch_scc1 {skip}")
        a(f"s_mov_b64 exec, {mask}")
        a(f"buffer_load_dword v{vret}, v{vaddr}, {sr(srd,4)}, 0 offen sc1")
        a("s_mov_b64 exec, -1")
        a(f"{skip}:")
        a.end()

    def vcheck(self, vret, vaddr, vtarget, srd, mask):
        a = self.a
        lo, ok, skip = a.label("vc"), a.label("vcok"), a.label("vcskip")
        a.begin()
        a(f"""
        s_cmp_lg_u32 s{sB}, 0
        s_cbranch_scc1 {skip}
        s_mov_b64 exec, {mask}
        s_mov_b32 s{sCNT}, 0
        {lo}:
        v_cmp_le_u32 vcc, {vtarget}, v{vret}
        s_cmp_eq_u64 vcc, exec
        s_cbranch_scc1 {ok}
        s_sleep 8
        buffer_load_dword v{vret}, v{vaddr}, {sr(srd,4)}, 0 offen sc1
        s_add_u32 s{sCNT}, s{sCNT}, 1
        s_cmp_lt_u32 s{sCNT}, {POLL_LIMIT}
        s_waitcnt vmcnt(0)
        s_cbranch_scc1 {lo}
        {ok}:
        s_mov_b64 exec, -1
        {skip}:
        """)
        a.end()

    def lds_flag_wait(self, vaddr, vtmp, go):
        a = self.a
        lo = a.label("lf")
        a(f"""
        s_mov_b32 s{sCNT}, 0
        {lo}:
        ds_read_b32 v{vtmp}, v{vaddr}
        s_add_u32 s{sCNT}, s{sCNT}, 1
        s_waitcnt lgkmcnt(0)
        v_readfirstlane_b32 s{sT0}, v{vtmp}
        s_cmp_eq_u32 s{sT0}, 1
        s_cbranch_scc1 {go}
        s_sleep 1
        s_cmp_lt_u32 s{sCNT}, {POLL_LIMIT*16}
        s_cbranch_scc1 {lo}
        """)

    def prologue(self):
        a = self.a
        a("s_cmp_ge_u32 s2, 256\ns_cbranch_scc1 L_end")
        for srd, off in ((SQ, 0), (SWG, 56), (SWU, 64), (SWS, 96), (SK, 8), (SV, 16), (SSH, 24), (SSK, 32),
                         (SSD, 40), (SOUT, 80), (SDBG, 88), (SWD, 72)):
            a(f"s_load_dwordx2 {sr(srd,2)}, s[0:1], {off}")
        a("v_lshrrev_b32 v1, 6, v0\nv_and_b32 v0, 63, v0")
        a(f"v_readfirstlane_b32 s{sW}, v1")
        for srd, size in ((SQ, 2621440), (SWG, 1966080), (SWU, 1966080), (SWS, WS_SIZE), (SK, 2621440),
                          (SV, 2621440), (SSH, 5120), (SSK, 2621440), (SSD, 1280), (SOUT, 2621440),
                          (SDBG, 256), (SWD, 1966080)):
            a(f"s_mov_b32 s{srd+2}, {size}\ns_mov_b32 s{srd+3}, 0x20000")
        a(f"""
        s_and_b32 s{sB}, s{sW}, 3
        s_and_b32 s{sXCD}, s2, 7
        s_lshr_b32 s{sI}, s2, 3
        s_and_b32 s{sT0}, s{sXCD}, 1
        s_lshr_b32 s{sT1}, s{sXCD}, 1
        s_and_b32 s{sT2}, s{sI}, 7
        s_lshl3_add_u32 s{sRB1}, s{sT0}, s{sT2}
        s_lshr_b32 s{sT2}, s{sI}, 3
        s_lshl2_add_u32 s{sCB1}, s{sT1}, s{sT2}
        s_lshl2_add_u32 s{sT3}, s{sT0}, s{sT1}
        s_and_b32 s{sT2}, s{sI}, 3
        s_lshl2_add_u32 s{sRB2}, s{sT3}, s{sT2}
        s_lshr_b32 s{sCB2}, s{sI}, 2
        s_lshl_b32 s{sWS}, s{sT3}, 5
        s_add_u32 s{sWS}, s{sWS}, s{sI}
        s_mul_i32 s{sT0}, s{sCB1}, 3
        s_add_u32 s{sT0}, s{sT0}, s{sRB1}
        s_mul_i32 s{sT1}, s{sT0}, 26
        s_lshr_b32 s{sT1}, s{sT1}, 8
        s_mul_i32 s{sT1}, s{sT1}, 10
        s_sub_u32 s{sKS}, s{sT0}, s{sT1}
        """)
        if self.o.get("profile"):
            for k in range(16):
                a(f"s_mov_b32 s{sPR+k}, 0")
        a(f"s_cmp_ge_u32 s{sW}, 4\ns_cbranch_scc1 L_roleB")

    def role_a(self):
        a = self.a
        XA, WA, VH = 1, 5, 11
        FR, ACC = 120, 160
        T = 112
        sWM, sWN = sA, sA + 1
        sH = sA + 2
        xf = lambda p, i: FR + 20 * p + 4 * i
        wf = lambda p, j: FR + 20 * p + 8 + 4 * j
        acc = lambda i, j: ACC + (i * 3 + j) * 16
        a(f"""
        s_and_b32 s{sWM}, s{sB}, 1
        s_lshr_b32 s{sWN}, s{sB}, 1
        v_and_b32 v{T}, 31, v0
        v_lshrrev_b32 v{T+1}, 5, v0
        v_bfe_u32 v{T+2}, v0, 1, 3
        v_xor_b32 v{T+2}, v{T+2}, v{T+1}
        s_lshl_b32 s{sT0}, s{sWM}, 13
        v_lshl_add_u32 v{T}, v{T}, 7, s{sT0}
        """)
        for t in range(4):
            a(f"v_xor_b32 v{T+3}, {2*t}, v{T+2}\nv_lshl_add_u32 v{XA+t}, v{T+3}, 4, v{T}")
        a(f"""
        v_bfe_u32 v{T+2}, v0, 4, 1
        v_mul_u32_u24 v{T+3}, 3072, v{T+2}
        v_mul_u32_u24 v{T+4}, 1536, v{T+1}
        v_bfe_u32 v{T+5}, v0, 2, 2
        v_lshl_add_u32 v{T+3}, v{T+5}, 6, v{T+3}
        v_and_b32 v{T+5}, 1, v0
        v_lshl_add_u32 v{T+3}, v{T+5}, 4, v{T+3}
        v_bfe_u32 v{T+5}, v0, 1, 1
        v_lshl_add_u32 v{T+3}, v{T+5}, 3, v{T+3}
        v_add_u32 v{T+3}, v{T+3}, v{T+4}
        v_lshlrev_b32 v{T+2}, 5, v{T+2}
        s_mul_i32 s{sT0}, s{sWN}, 3
        s_lshl_b32 s{sT3}, s{sRB1}, 1
        s_add_u32 s{sT3}, s{sT3}, s{sWM}
        s_mul_i32 s{sT3}, s{sT3}, 48
        s_mul_i32 s{sT2}, s{sCB1}, 3
        s_add_u32 s{sT3}, s{sT3}, s{sT2}
        """)
        for j in range(3):
            a(f"""
            s_add_u32 s{sT1}, s{sT0}, {j}
            s_lshr_b32 s{sT2}, s{sT1}, 1
            s_and_b32 s{sT1}, s{sT1}, 1
            s_add_u32 s{sH+j}, s{sT3}, s{sT2}
            s_lshl_b32 s{sH+j}, s{sH+j}, 3
            s_add_u32 s{sH+j}, s{sH+j}, s{sT1}
            s_lshl_b32 s{sH+j}, s{sH+j}, 9
            s_add_u32 s{sH+j}, s{sH+j}, {HH}
            s_lshl_b32 s{sT1}, s{sT1}, 5
            v_xor_b32 v{T+4}, s{sT1}, v{T+2}
            s_lshl_b32 s{sT2}, s{sT2}, 8
            s_add_u32 s{sT2}, s{sT2}, {WS_}
            v_add3_u32 v{WA+j}, v{T+3}, v{T+4}, s{sT2}
            v_add_u32 v{WA+3+j}, 49152, v{WA+j}
            """)
        a(f"""
        v_and_b32 v{T+4}, 15, v0
        v_lshlrev_b32 v{T+4}, 4, v{T+4}
        v_lshl_add_u32 v{T+4}, v{T+1}, 8, v{T+4}
        v_bfe_u32 v{T+5}, v0, 4, 1
        v_lshl_add_u32 v{VH}, v{T+5}, 10, v{T+4}
        s_waitcnt lgkmcnt(0)
        """)
        a(f"s_or_b32 s{sT0}, s2, s{sB}\ns_cmp_lg_u32 s{sT0}, 0\ns_cbranch_scc1 L_noclear")
        a(f"v_lshlrev_b32 v{T}, 7, v0\nv_mov_b32 v{T+1}, 0")
        for p in range(4):
            a(f"s_mov_b32 s{sT0}, {p*8192}\nbuffer_store_dword v{T+1}, v{T}, {sr(SWS,4)}, s{sT0} offen sc1")
        a(f"s_waitcnt vmcnt(0)\nv_mov_b32 v{T+2}, 1\ns_mov_b64 exec, 1")
        a(f"buffer_store_dword v{T+2}, v{T+1}, {sr(SDBG,4)}, 0 offen sc1\ns_mov_b64 exec, -1")
        a("L_noclear:")
        self.stamp(0)

        def reads(g):
            s, t, p = g >> 2, g & 3, g & 1
            sl = s % 3
            wa = WA + (3 if sl == 2 else 0)
            wo = (sl % 2) * 24576 + t * 6144
            r = [f"ds_read_b128 {vr(xf(p,0),4)}, v{XA+t} offset:{sl*16384}"]
            r += [f"ds_read_b64_tr_b16 {vr(wf(p,0)+2*q,2)}, v{wa} offset:{wo+q*768}" for q in range(2)]
            r += [f"ds_read_b128 {vr(xf(p,1),4)}, v{XA+t} offset:{sl*16384+4096}"]
            for j in (1, 2):
                r += [f"ds_read_b64_tr_b16 {vr(wf(p,j)+2*q,2)}, v{wa+j} offset:{wo+q*768}" for q in range(2)]
            return r

        a("s_barrier")
        self.stamp(1)
        for r in reads(0):
            a.ds(r, "f")
        CF, SF = T, T + 6
        for g in range(40):
            p = g & 1
            a.lg.drain()
            nxt = []
            if g + 1 < 40:
                if (g + 1) & 3 == 0:
                    self.stamp(((g + 1) >> 2) + 1, "2")
                    a("s_barrier")
                nxt = reads(g + 1)
            else:
                a("s_barrier")
                q0 = FR + 20 * (1 - p)
                nxt = [f"ds_read_b64 {vr(CF+2*j,2)}, v{T+6} offset:{j*256}" for j in range(3)]
                nxt += [f"ds_read_b64 {vr(q0+2*i,2)}, v{T+7} offset:{i*256}" for i in range(2)]
            if g == 38:
                a(f"""
                v_and_b32 v{T}, 31, v0
                s_mul_i32 s{sT0}, s{sWN}, 768
                s_add_u32 s{sT0}, s{sT0}, {CSF}
                v_lshl_add_u32 v{T+6}, v{T}, 3, s{sT0}
                s_lshl_b32 s{sT0}, s{sWM}, 9
                s_add_u32 s{sT0}, s{sT0}, {STL}
                v_lshl_add_u32 v{T+7}, v{T}, 3, s{sT0}
                """)
            k = 0
            for j in range(3):
                for i in range(2):
                    c = "0" if g == 0 else vr(acc(i, j), 16)
                    a(f"v_mfma_f32_32x32x16_bf16 {vr(acc(i,j),16)}, {vr(wf(p,j),4)}, {vr(xf(p,i),4)}, {c}")
                    for _ in range(3):
                        if k < len(nxt):
                            a.ds(nxt[k], "f"); k += 1
        self.stamp(2)
        q0 = FR + 0
        M2, C1, KK = FR + 4, FR + 8, FR + 10
        a.lg.drain()
        a("s_mov_b32 exec_lo, 0")
        for j in range(6):
            a(f"v_mov_b32 v{CF+j}, 0")
        a("s_mov_b32 exec_lo, -1")
        for i in range(2):
            a(f"v_cvt_pk_bf16_f32 v{M2+2*i}, -v{q0+2*i}, -v{q0+2*i}")
            a(f"v_cvt_pk_bf16_f32 v{M2+2*i+1}, -v{q0+2*i}, -v{q0+2*i}")
            a(f"v_rcp_f32 v{C1+i}, v{q0+2*i+1}")
            a(f"v_mul_f32 v{KK+i}, v{q0+2*i+1}, v{q0+2*i+1}")
        for j in range(3):
            for i in range(2):
                a(f"v_mfma_f32_32x32x8_bf16 {vr(acc(i,j),16)}, {vr(CF+2*j,2)}, {vr(M2+2*i,2)}, {vr(acc(i,j),16)}")
        for i in range(2):
            a(f"v_mul_f32 v{C1+i}, {hex(f2u(-LOG2E))}, v{C1+i}")
        NW, NH = 5, 4
        NE = int(self.o.get("ne", 2))
        NL = int(self.o.get("nl", 5))
        WR, HR, ACC2 = 12, 112, 176
        V16, V16B, VL, VL2 = XA, XA + 1, XA + 2, XA + 3
        sRot, sWb, sHb, sWo, sHo, sLb, sLb2, sPo, sPv = [sA + 5 + k for k in range(9)]
        a(f"""
        v_lshlrev_b32 v{V16}, 4, v0
        v_add_u32 v{V16B}, 1024, v{V16}
        s_mul_i32 s{sLb}, s{sB}, 20480
        s_mul_i32 s{sLb2}, s{sB}, 5120
        s_add_u32 s{sLb2}, s{sLb2}, {WDL}
        v_add_u32 v{VL}, s{sLb}, v{V16}
        v_add_u32 v{VL2}, s{sLb2}, v{V16}
        s_mul_i32 s{sT0}, s{sCB2}, 3
        s_lshr_b32 s{sT0}, s{sT0}, 1
        s_and_b32 s{sT1}, s{sI}, 3
        s_mul_i32 s{sT1}, s{sT1}, 3
        s_add_u32 s{sT0}, s{sT0}, s{sT1}
        s_sub_u32 s{sT1}, s{sT0}, 12
        s_cmp_ge_u32 s{sT0}, 12
        s_cselect_b32 s{sRot}, s{sT1}, s{sT0}
        s_mul_i32 s{sT0}, s{sB}, 12
        s_mul_i32 s{sT1}, s{sCB2}, 48
        s_add_u32 s{sT1}, s{sT1}, s{sT0}
        s_mul_i32 s{sWb}, s{sT1}, 5120
        s_add_u32 s{sWb}, s{sWb}, {WDT}
        s_mul_i32 s{sT1}, s{sRB2}, 48
        s_add_u32 s{sT1}, s{sT1}, s{sT0}
        s_lshl_b32 s{sHb}, s{sT1}, 12
        s_add_u32 s{sHb}, s{sHb}, {HH}
        """)

        def step_off(i, so, sb, mul):
            a(f"""
            s_add_u32 s{so}, s{sRot}, {i}
            s_sub_u32 s{sT0}, s{so}, 12
            s_cmp_ge_u32 s{so}, 12
            s_cselect_b32 s{so}, s{sT0}, s{so}
            s_mul_i32 s{so}, s{so}, {mul}
            s_add_u32 s{so}, s{so}, s{sb}
            """)

        def wload(i, j):
            r = WR + (i % NW) * 20 + 4 * j
            v, off = (V16, 0) if j == 0 else (V16B, (j - 1) * 1024)
            a.vmem(f"buffer_load_dwordx4 {vr(r,4)}, v{v}, {sr(SWS,4)}, s{sWo} offen offset:{off} sc1", f"w{i}")

        def hload(i, tt):
            r = HR + (i % NH) * 16 + 4 * tt
            a.vmem(f"buffer_load_dwordx4 {vr(r,4)}, v{V16}, {sr(SWS,4)}, s{sHo} offen offset:{tt*1024} sc1", f"h{i}_{tt}")

        lds_steps = list(range(12 - NL, 12))

        def lds_base(i):
            n = lds_steps.index(i)
            return (sLb, VL, PART + n * 5120) if n < 4 else (sLb2, VL2, 0)

        def wdma(i):
            sb, _, off = lds_base(i)
            step_off(i, sWo, sWb, 5120)
            a(f"s_add_u32 m0, s{sb}, {off}")
            for j in range(4):
                a.vmem(f"buffer_load_dwordx4 v{V16}, {sr(SWS,4)}, s{sWo} offen offset:{j*1024} sc1 lds", f"wl{i}")
            a(f"s_add_u32 m0, s{sb}, {off+1024}")
            a.vmem(f"buffer_load_dwordx4 v{V16B}, {sr(SWS,4)}, s{sWo} offen offset:3072 sc1 lds", f"wl{i}")

        E = FR + 12
        HP = FR + 24
        early = [(i, j) for i in range(NE) for j in range(5)]
        nslots = 6 * 5
        tile = 0
        slot = 0
        issued = 0

        def maybe_load():
            nonlocal slot, issued
            slot += 1
            while issued < len(early) and issued < len(early) * slot / nslots:
                i, j = early[issued]
                if j == 0:
                    step_off(i, sWo, sWb, 5120)
                wload(i, j); issued += 1

        for j in range(3):
            for i in range(2):
                b = acc(i, j)
                hp = HP + 4 * (tile % 3)
                for r in range(8):
                    a(f"v_mul_f32 v{E+r}, v{b+r}, v{C1+i}")
                maybe_load()
                for r in range(8):
                    a(f"v_exp_f32 v{E+r}, v{E+r}")
                    a(f"v_mul_f32 v{b+r}, v{b+r}, v{b+8+r}")
                    if r == 3:
                        maybe_load()
                maybe_load()
                for r in range(8):
                    a(f"v_fma_f32 v{E+r}, v{E+r}, v{KK+i}, v{KK+i}")
                for r in range(8):
                    a(f"v_rcp_f32 v{E+r}, v{E+r}")
                    if r == 3:
                        maybe_load()
                for r in range(8):
                    a(f"v_mul_f32 v{b+r}, v{b+r}, v{E+r}")
                for r in range(4):
                    a(f"v_cvt_pk_bf16_f32 v{hp+r}, v{b+2*r}, v{b+2*r+1}")
                a.vmem(f"buffer_store_dwordx4 {vr(hp,4)}, v{VH}, {sr(SWS,4)}, s{sH+j} offen offset:{i*2048} sc1", "hst")
                maybe_load()
                tile += 1
        self.stamp(3)
        a(f"""
        s_lshl_b32 s{sT0}, s{sRB1}, 1
        s_add_u32 s{sT0}, s{sT0}, s{sWM}
        s_lshr_b32 s{sT1}, s{sCB1}, 2
        s_lshl2_add_u32 s{sT0}, s{sT0}, s{sT1}
        """)
        self.cnt_off(sPo, cH, sT0)
        nxt = NE
        if nxt < NW:
            step_off(nxt, sWo, sWb, 5120)
            for j in range(5):
                wload(nxt, j)
            nxt += 1
        a.vm.wait("hst")
        self.signal([sPo], sPv)
        self.stamp(4)
        for i in range(nxt, NW):
            step_off(i, sWo, sWb, 5120)
            for j in range(5):
                wload(i, j)
        for i in lds_steps:
            wdma(i)
        a(f"s_lshl2_add_u32 s{sT0}, s{sRB2}, s{sB}")
        a.lg.drain()
        self.cnt_off(sPo, cH, sT0)
        self.stamp(8)
        items = [(sPv, sPo, 8)]
        self.poll_issue(items, atomic=True)
        self.poll_check(items, atomic=True)
        self.stamp(5)
        for i in range(NH):
            step_off(i, sHo, sHb, 4096)
            for tt in range(4):
                hload(i, tt)
        acc2 = lambda tt, j: ACC2 + (tt * 5 + j) * 4
        for i in range(12):
            gl = i + NW < 12 and (i + NW) not in lds_steps
            if i + NH < 12:
                step_off(i + NH, sHo, sHb, 4096)
            if gl:
                step_off(i + NW, sWo, sWb, 5120)
            if i in lds_steps:
                a.lg.wait(f"wr{i}")
            for tt in range(4):
                a.vm.wait(f"w{i}", f"h{i}_{tt}")
                for j in range(5):
                    c = "0" if i == 0 else vr(acc2(tt, j), 4)
                    a(f"v_mfma_f32_16x16x32_bf16 {vr(acc2(tt,j),4)}, {vr(WR+(i%NW)*20+4*j,4)}, {vr(HR+(i%NH)*16+4*tt,4)}, {c}")
                    if tt == 3 and gl:
                        wload(i + NW, j)
                    if tt == 0 and (i + 1) in lds_steps:
                        _, v, off = lds_base(i + 1)
                        if j == 0:
                            a.vm.wait(f"wl{i+1}")
                        a.ds(f"ds_read_b128 {vr(WR+((i+1)%NW)*20+4*j,4)}, v{v} offset:{off+j*1024}", f"wr{i+1}")
                if i + NH < 12:
                    hload(i + NH, tt)
        self.stamp(6)
        for t in range(20):
            a.ds(f"ds_write_b128 v{VL}, {vr(ACC2+4*t,4)} offset:{PART+t*1024}", "p")
        a.lg.drain()
        a("s_barrier")
        self.stamp(7)
        self.dump_stamps("A")
        a("s_endpgm")

    def b_common_setup(self):
        a = self.a
        VX, VG, VU, T = 1, 5, 8, 20
        self.VX, self.VG, self.VU = VX, VG, VU
        self.sXL, self.sWL, self.sXO, self.sWO = sA, sA + 1, sA + 2, sA + 3
        a("L_roleB:")
        a(f"""
        v_lshrrev_b32 v{T}, 3, v0
        v_mul_u32_u24 v{T}, 1280, v{T}
        s_lshl2_add_u32 s{sT0}, s{sRB1}, s{sB}
        s_mul_i32 s{sT0}, s{sT0}, 40960
        v_add_u32 v{T}, s{sT0}, v{T}
        v_and_b32 v{T+1}, 7, v0
        v_lshrrev_b32 v{T+2}, 4, v0
        v_xor_b32 v{T+1}, v{T+1}, v{T+2}
        v_lshl_add_u32 v{VX}, v{T+1}, 4, v{T}
        v_xor_b32 v{VX+1}, 64, v{VX}
        v_add_u32 v{VX+1}, 10240, v{VX+1}
        v_add_u32 v{VX+2}, 20480, v{VX}
        v_add_u32 v{VX+3}, 20480, v{VX+1}
        v_bfe_u32 v{T}, v0, 2, 2
        v_mul_u32_u24 v{T}, 3072, v{T}
        v_and_b32 v{T+1}, 3, v0
        v_lshl_add_u32 v{T}, v{T+1}, 4, v{T}
        s_mul_i32 s{sT0}, s{sB}, 49152
        s_mul_i32 s{sT1}, s{sCB1}, 192
        s_add_u32 s{sT0}, s{sT0}, s{sT1}
        v_add_u32 v{T}, s{sT0}, v{T}
        """)
        for i in range(3):
            a(f"""
            v_add_u32 v{T+1}, {4*i}, v{T+2}
            v_mul_u32_u24 v{T+3}, 11, v{T+1}
            v_lshrrev_b32 v{T+3}, 5, v{T+3}
            v_mul_u32_u24 v{T+4}, {12288-192}, v{T+3}
            v_lshl_add_u32 v{T+4}, v{T+1}, 6, v{T+4}
            v_add_u32 v{VG+i}, v{T+4}, v{T}
            v_xor_b32 v{VU+i}, 32, v{VG+i}
            """)
        a(f"""
        s_lshl_b32 s{self.sXL}, s{sB}, 12
        s_mul_i32 s{self.sWL}, s{sB}, 6144
        s_add_u32 s{self.sWL}, s{self.sWL}, {WS_}
        s_waitcnt lgkmcnt(0)
        """)

    def stage_issue(self, s):
        a = self.a
        sl = s % 3
        fl = self.o.get("g1flags", "")
        for i in range(4):
            a.begin()
            if i == 0:
                a(f"""
                s_lshl_b32 s{self.sXO}, s{sKS}, 7
                s_mul_i32 s{self.sWO}, s{sKS}, 196608
                s_add_u32 s{sKS}, s{sKS}, 1
                s_cmp_eq_u32 s{sKS}, 10
                s_cselect_b32 s{sKS}, 0, s{sKS}
                """)
            a(f"s_add_u32 m0, s{self.sXL}, {XS+sl*16384+i*1024}")
            a.vmem(f"buffer_load_dwordx4 v{self.VX+i}, {sr(SQ,4)}, s{self.sXO} offen {fl} lds", f"S{s}")
            a.end()
        for up in range(2):
            for i in range(3):
                a.begin()
                a(f"s_add_u32 m0, s{self.sWL}, {sl*24576+up*3072+i*1024}")
                a.vmem(f"buffer_load_dwordx4 v{(self.VU if up else self.VG)+i}, {sr(SWU if up else SWG,4)}, s{self.sWO} offen {fl} lds", f"S{s}")
                a.end()

    def stats_load(self):
        a = self.a
        T, X = 150, 24
        a(f"""
        v_lshrrev_b32 v{T}, 5, v0
        s_lshl2_add_u32 s{sA+9}, s{sWS}, s{sB}
        s_lshl_b32 s{sA+9}, s{sA+9}, 1
        v_add_u32 v{T}, s{sA+9}, v{T}
        v_lshlrev_b32 v11, 3, v{T}
        v_mul_u32_u24 v{T}, 1280, v{T}
        v_and_b32 v{T+1}, 31, v0
        v_lshl_add_u32 v{T}, v{T+1}, 3, v{T}
        """)
        for j in range(5):
            a.vmem(f"buffer_load_dwordx2 {vr(X+2*j,2)}, v{T}, {sr(SQ,4)}, 0 offen offset:{j*256}", "stat")

    def reduce32(self, v, t):
        a = self.a
        for n in (8, 4, 2, 1):
            a(f"v_add_f32_dpp v{v}, v{v}, v{v} row_ror:{n} row_mask:0xf bank_mask:0xf")
        a(f"v_mov_b32 v{t}, v{v}\nv_permlane16_swap_b32 v{v}, v{t}\nv_add_f32 v{v}, v{v}, v{t}")

    def stats_compute(self):
        a = self.a
        X, U, T = 24, 34, 20
        a.vm.wait("stat")
        for j in range(10):
            a(f"v_lshlrev_b32 v{U+2*j}, 16, v{X+j}\nv_and_b32 v{U+2*j+1}, 0xffff0000, v{X+j}")
        a(f"v_add_f32 v{T}, v{U}, v{U+1}\nv_add_f32 v{T+1}, v{U+2}, v{U+3}")
        for j in range(4, 20):
            a(f"v_add_f32 v{T+(j&1)}, v{T+(j&1)}, v{U+j}")
        a(f"v_add_f32 v{T}, v{T}, v{T+1}")
        self.reduce32(T, T + 1)
        a(f"v_mul_f32 v{T}, {hex(f2u(1.0/640))}, v{T}")
        for j in range(20):
            a(f"v_sub_f32 v{U+j}, v{U+j}, v{T}")
        a(f"v_mul_f32 v{T+1}, v{U}, v{U}\nv_mul_f32 v{T+2}, v{U+1}, v{U+1}")
        for j in range(2, 20):
            a(f"v_fmac_f32 v{T+1+(j&1)}, v{U+j}, v{U+j}")
        a(f"v_add_f32 v{T+1}, v{T+1}, v{T+2}")
        self.reduce32(T + 1, T + 2)
        a(f"""
        v_mul_f32 v{T+1}, {hex(f2u(1.0/640))}, v{T+1}
        v_cvt_pk_bf16_f32 v{T+2}, v{T}, v{T+1}
        v_lshlrev_b32 v{T}, 16, v{T+2}
        v_and_b32 v{T+1}, 0xffff0000, v{T+2}
        v_add_f32 v{T+1}, {hex(f2u(1e-5))}, v{T+1}
        v_cvt_pk_bf16_f32 v{T+1}, v{T+1}, v{T+1}
        v_and_b32 v{T+1}, 0xffff0000, v{T+1}
        v_sqrt_f32 v{T+1}, v{T+1}
        v_cvt_pk_bf16_f32 v{T+1}, v{T+1}, v{T+1}
        v_and_b32 v{T+1}, 0xffff0000, v{T+1}
        s_mov_b32 s{sT0}, {ST}
        """)
        a.begin()
        a("s_mov_b32 exec_lo, 1\ns_mov_b32 exec_hi, 1")
        a.vmem(f"buffer_store_dwordx2 {vr(T,2)}, v11, {sr(SWS,4)}, s{sT0} offen sc1", "stst")
        a("s_mov_b64 exec, -1")
        a.end()

    def colsum_partial(self):
        a = self.a
        T, F = 12, 60
        a(f"""
        v_bfe_u32 v{T+2}, v0, 4, 1
        v_mul_u32_u24 v{T+3}, 3072, v{T+2}
        v_lshrrev_b32 v{T+4}, 5, v0
        v_mul_u32_u24 v{T+4}, 1536, v{T+4}
        v_bfe_u32 v{T+5}, v0, 2, 2
        v_lshl_add_u32 v{T+3}, v{T+5}, 6, v{T+3}
        v_and_b32 v{T+5}, 1, v0
        v_lshl_add_u32 v{T+3}, v{T+5}, 4, v{T+3}
        v_bfe_u32 v{T+5}, v0, 1, 1
        v_lshl_add_u32 v{T+3}, v{T+5}, 3, v{T+3}
        v_lshl_add_u32 v{T+3}, v{T+2}, 5, v{T+3}
        s_min_u32 s{sT1}, s{sB}, 2
        s_lshl_b32 s{sT1}, s{sT1}, 8
        s_add_u32 s{sT0}, s{sT1}, {WS_}
        v_add3_u32 v{T}, v{T+3}, v{T+4}, s{sT0}
        v_xor_b32 v{T+1}, 32, v{T}
        s_lshl4_add_u32 s{sT0}, s{sCB1}, s{sRB1}
        s_mul_i32 s{sT0}, s{sT0}, 768
        s_add_u32 s{sT0}, s{sT0}, s{sT1}
        s_add_u32 s{sT0}, s{sT0}, {CS}
        s_mov_b32 s{sT1}, 0x3f803f80
        v_lshlrev_b32 v{T+6}, 2, v0
        """)
        for h in range(2):
            for n in range(8):
                a.ds(f"ds_read_b64_tr_b16 {vr(F+16*h+2*n,2)}, v{T+h} offset:{(n>>1)*6144+(n&1)*768}", f"cs{h}")
        for r in range(4):
            a(f"v_mov_b32 v{T+2+r}, 0")
        for h in range(2):
            a.lg.wait(f"cs{h}")
            for n in range(16):
                a(f"v_dot2c_f32_bf16 v{T+2+2*h+(n&1)}, s{sT1}, v{F+16*h+n}")
        a(f"v_add_f32 v{T+2}, v{T+2}, v{T+3}\nv_add_f32 v{T+4}, v{T+4}, v{T+5}")
        a(f"v_permlane32_swap_b32 v{T+2}, v{T+4}\nv_add_f32 v{T+2}, v{T+2}, v{T+4}")
        a.vmem(f"buffer_store_dword v{T+2}, v{T+6}, {sr(SWS,4)}, s{sT0} offen sc1", "csst")

    def gather_issue(self):
        a = self.a
        T, G = 12, 24
        a(f"""
        v_and_b32 v{T}, 31, v0
        s_lshl2_add_u32 s{sT0}, s{sRB1}, s{sB}
        s_lshl_b32 s{sT0}, s{sT0}, 8
        s_add_u32 s{sT0}, s{sT0}, {ST}
        v_lshlrev_b32 v{T}, 3, v{T}
        s_mul_i32 s{sT1}, s{sCB1}, 12288
        s_mul_i32 s{sT2}, s{sB}, 192
        s_add_u32 s{sT1}, s{sT1}, s{sT2}
        s_add_u32 s{sT1}, s{sT1}, {CS}
        s_add_u32 s{sT2}, s{sT1}, 3840
        v_lshlrev_b32 v{T+1}, 2, v0
        """)
        a.vmem(f"buffer_load_dwordx2 {vr(G,2)}, v{T}, {sr(SWS,4)}, s{sT0} offen sc1", "gat")
        for p in range(10):
            a.vmem(f"buffer_load_dword v{G+2+p}, v{T+1}, {sr(SWS,4)}, s{sT1 if p < 5 else sT2} offen offset:{(p%5)*768} sc1", "gat")

    def gather_finish(self):
        a = self.a
        T, G = 12, 24
        a.vm.wait("gat")
        a(f"s_lshl_b32 s{sT0}, s{sB}, 8\ns_add_u32 s{sT0}, s{sT0}, {STL}\nv_add_u32 v{T}, s{sT0}, v{T}")
        a.ds(f"ds_write_b64 v{T}, {vr(G,2)}", "gw")
        c = G + 2
        for p in range(5):
            a(f"v_add_f32 v{c+p}, v{c+p}, v{c+5+p}")
        a(f"""
        v_add_f32 v{c}, v{c}, v{c+1}
        v_add_f32 v{c+2}, v{c+2}, v{c+3}
        v_add_f32 v{c}, v{c}, v{c+4}
        v_add_f32 v{c}, v{c}, v{c+2}
        v_cvt_pk_bf16_f32 v{c+1}, v{c}, v{c}
        v_and_b32 v{c+1}, 0xffff0000, v{c+1}
        v_sub_f32 v{c+1}, v{c}, v{c+1}
        v_cvt_pk_bf16_f32 v{c+2}, v{c}, v{c+1}
        v_and_b32 v{c+4}, 0xffff0000, v{c+2}
        v_sub_f32 v{c+1}, v{c+1}, v{c+4}
        v_cvt_pk_bf16_f32 v{c+3}, v{c+1}, 0
        s_mul_i32 s{sT0}, s{sB}, 384
        s_add_u32 s{sT0}, s{sT0}, {CSF}
        v_lshl_add_u32 v{T+1}, v0, 3, s{sT0}
        """)
        a.begin()
        a("s_mov_b32 exec_hi, 0xffff")
        a.ds(f"ds_write_b64 v{T+1}, {vr(c+2,2)}", "gw")
        a("s_mov_b32 exec_hi, -1")
        a.end()
        a.lg.drain()

    def kv_issue(self):
        a = self.a
        T = 150
        fl = self.o.get("p0flags", "")
        self.sT0K, self.sCG = sA + 4, sA + 5
        a(f"""
        s_and_b32 s{self.sT0K}, s{sC}, 15
        s_lshl_b32 s{self.sT0K}, s{self.sT0K}, 7
        s_lshr_b32 s{self.sCG}, s{sC}, 4
        s_lshl2_add_u32 s{sA+9}, s{self.sCG}, s{sB}
        s_lshl_b32 s{sA+9}, s{sA+9}, 7
        v_and_b32 v{T+1}, 15, v0
        v_lshl_add_u32 v{T+1}, v{T+1}, 3, s{sA+9}
        """)
        a.vmem(f"buffer_load_dwordx2 v[54:55], v{T+1}, {sr(SSH,4)}, 0 offen", "kv")
        a(f"""
        v_lshrrev_b32 v{T+2}, 3, v0
        v_mul_u32_u24 v{T+2}, 1280, v{T+2}
        v_and_b32 v{T+3}, 7, v0
        v_lshl_add_u32 v{T+2}, v{T+3}, 4, v{T+2}
        s_lshl_b32 s{sA+10}, s{sB}, 5
        s_add_u32 s{sA+10}, s{sA+10}, s{self.sT0K}
        s_mul_i32 s{sA+10}, s{sA+10}, 1280
        s_lshl_b32 s{sA+11}, s{self.sCG}, 7
        s_add_u32 s{sA+10}, s{sA+10}, s{sA+11}
        v_add_u32 v{T+2}, s{sA+10}, v{T+2}
        s_add_u32 s{sA+10}, s{self.sT0K}, s{sB}
        s_sub_u32 s{sA+10}, s{sA+10}, 4
        s_mul_i32 s{sA+10}, s{sA+10}, 1280
        s_add_u32 s{sA+10}, s{sA+10}, s{sA+11}
        v_lshl_add_u32 v{T+3}, v0, 4, s{sA+10}
        """)
        for srd, base in ((SK, KST + 512), (SV, VST)):
            for i in range(4):
                a(f"s_mov_b32 s{sA+12}, {i*10240}\ns_add_u32 m0, s{self.sXL}, {base+i*1024}")
                a.vmem(f"buffer_load_dwordx4 v{T+2}, {sr(srd,4)}, s{sA+12} offen {fl} lds", "kv")
        a(f"s_lshl_b32 s{sA+10}, s{sB}, 7\ns_add_u32 m0, s{sA+10}, {KST}\ns_mov_b64 exec, 0xff")
        a.vmem(f"buffer_load_dwordx4 v{T+3}, {sr(SK,4)}, 0 offen {fl} lds", "kv")
        a("s_mov_b64 exec, -1")

    def kv_reads(self):
        a = self.a
        T, K, Vv, W = 20, 60, 78, 14
        a(f"""
        v_lshrrev_b32 v{T}, 4, v0
        v_lshlrev_b32 v{T}, 5, v{T}
        v_bfe_u32 v{T+1}, v0, 2, 2
        v_add_u32 v{T}, v{T}, v{T+1}
        v_and_b32 v{T+1}, 3, v0
        v_lshlrev_b32 v{T+1}, 3, v{T+1}
        v_lshl_add_u32 v{T}, v{T}, 7, v{T+1}
        s_lshl_b32 s{sT0}, s{sB}, 5
        s_add_u32 s{sT0}, s{sT0}, {KST}
        v_add_u32 v{T}, s{sT0}, v{T}
        """)
        for i in range(9):
            a.ds(f"ds_read_b64_tr_b16 {vr(K+2*i,2)}, v{T} offset:{i*512}", "kvr")
        for i in range(8):
            a.ds(f"ds_read_b64_tr_b16 {vr(Vv+2*i,2)}, v{T} offset:{16896+i*512}", "kvr")
        a(f"""
        v_lshlrev_b32 v{W}, 16, v54
        v_and_b32 v{W+1}, 0xffff0000, v54
        v_lshlrev_b32 v{W+2}, 16, v55
        v_and_b32 v{W+3}, 0xffff0000, v55
        """)
        a.lg.drain()

    def kv_compute(self, lo, hi):
        a = self.a
        K, Vv, W, KF, O, T = 60, 78, 14, 96, 132, 20
        first = 0 if lo == 0 else lo + 2
        for p in range(first, hi + 2):
            a(f"v_lshlrev_b32 v{KF+2*p}, 16, v{K+p}\nv_and_b32 v{KF+2*p+1}, 0xffff0000, v{K+p}")
        for p in range(lo, hi):
            for e in range(2):
                t = 2 * p + e
                a(f"v_mul_f32 v{T+e}, v{W+3}, v{KF+t+1}")
            for d in (2, 1, 0):
                for e in range(2):
                    t = 2 * p + e
                    a(f"v_fmac_f32 v{T+e}, v{W+d}, v{KF+t+4-d}")
            a(f"v_lshlrev_b32 v{T+2}, 16, v{Vv+p}\nv_and_b32 v{T+3}, 0xffff0000, v{Vv+p}")
            a(f"v_mul_f32 v{T}, v{T}, v{T+2}\nv_mul_f32 v{T+1}, v{T+1}, v{T+3}")
            a(f"v_cvt_pk_bf16_f32 v{O+p}, v{T}, v{T+1}")

    def kv_store(self):
        a = self.a
        O, T = 132, 20
        a(f"""
        v_and_b32 v{T}, 15, v0
        v_lshrrev_b32 v{T+1}, 4, v0
        s_mul_i32 s{sT0}, s{sB}, 4352
        s_add_u32 s{sT0}, s{sT0}, {BNC}
        v_mul_u32_u24 v{T+2}, 272, v{T}
        v_lshl_add_u32 v{T+2}, v{T+1}, 6, v{T+2}
        v_add_u32 v{T+2}, s{sT0}, v{T+2}
        v_mul_u32_u24 v{T+3}, 272, v{T+1}
        v_lshl_add_u32 v{T+3}, v{T}, 4, v{T+3}
        v_add_u32 v{T+3}, s{sT0}, v{T+3}
        """)
        for j in range(4):
            a.ds(f"ds_write_b128 v{T+2}, {vr(O+4*j,4)} offset:{j*16}", "bw")
        a(f"""
        v_lshlrev_b32 v{T+1}, 12, v{T+1}
        v_lshl_add_u32 v{T}, v{T}, 4, v{T+1}
        s_lshl2_add_u32 s{sT0}, s{self.sCG}, s{sB}
        s_lshl_b32 s{sT0}, s{sT0}, 16
        s_lshl_b32 s{sT1}, s{self.sT0K}, 1
        s_add_u32 s{sT0}, s{sT0}, s{sT1}
        s_add_u32 s{sT0}, s{sT0}, {UT}
        """)
        a.lg.drain()
        for j in range(4):
            a.ds(f"ds_read_b128 {vr(96+4*j,4)}, v{T+3} offset:{j*1088}", f"br{j}")
        for j in range(4):
            a.lg.wait(f"br{j}")
            a.vmem(f"buffer_store_dwordx4 {vr(96+4*j,4)}, v{T}, {sr(SWS,4)}, s{sT0} offen sc1", "utst")
            if j < 3:
                a(f"s_add_u32 s{sT0}, s{sT0}, 16384")

    def wd_issue(self):
        a = self.a
        T = 150
        fl = self.o.get("p0flags", "")
        a(f"""
        s_lshr_b32 s{sA+9}, s{sC}, 1
        s_lshl2_add_u32 s{sA+9}, s{sA+9}, s{sB}
        s_mul_i32 s{sA+9}, s{sA+9}, 10240
        s_and_b32 s{sA+10}, s{sC}, 1
        s_mul_i32 s{sA+10}, s{sA+10}, 640
        s_add_u32 s{sA+9}, s{sA+9}, s{sA+10}
        s_mul_i32 s{sA+11}, s{sB}, 5120
        """)
        for i in range(5):
            a(f"""
            v_add_u32 v{T+1}, {64*i}, v0
            v_mul_u32_u24 v{T+2}, 1639, v{T+1}
            v_lshrrev_b32 v{T+2}, 16, v{T+2}
            v_mul_u32_u24 v{T+2}, 640, v{T+2}
            v_lshl_add_u32 v{T+2}, v{T+1}, 4, v{T+2}
            s_add_u32 m0, s{sA+11}, {AUX+i*1024}
            """)
            a.vmem(f"buffer_load_dwordx4 v{T+2}, {sr(SWD,4)}, s{sA+9} offen {fl} lds", "kv")

    def wd_transpose(self):
        a = self.a
        T, F = 20, 60
        a(f"""
        v_lshrrev_b32 v{T}, 4, v0
        v_bfe_u32 v{T+1}, v0, 2, 2
        v_lshl_add_u32 v{T}, v{T}, 3, v{T+1}
        v_mul_u32_u24 v{T}, 640, v{T}
        v_and_b32 v{T+1}, 3, v0
        v_lshl_add_u32 v{T}, v{T+1}, 3, v{T}
        s_mul_i32 s{sT0}, s{sB}, 160
        s_add_u32 s{sT0}, s{sT0}, {AUX}
        v_add_u32 v{T}, s{sT0}, v{T}
        """)
        for j in range(5):
            for q in range(2):
                a.ds(f"ds_read_b64_tr_b16 {vr(F+4*j+2*q,2)}, v{T} offset:{q*2560+j*32}", f"wt{j}")
        a(f"""
        s_and_b32 s{sT0}, s{sC}, 1
        s_lshl2_add_u32 s{sT0}, s{sT0}, s{sB}
        s_mul_i32 s{sT0}, s{sT0}, 48
        s_lshr_b32 s{sT1}, s{sC}, 1
        s_add_u32 s{sT0}, s{sT0}, s{sT1}
        s_mul_i32 s{sT0}, s{sT0}, 5120
        s_add_u32 s{sT0}, s{sT0}, {WDT}
        v_lshlrev_b32 v{T+1}, 4, v0
        """)
        for j in range(5):
            a.lg.wait(f"wt{j}")
            a.vmem(f"buffer_store_dwordx4 {vr(F+4*j,4)}, v{T+1}, {sr(SWS,4)}, s{sT0} offen sc1", "utst")
            if j < 4:
                a(f"s_add_u32 s{sT0}, s{sT0}, 1024")

    def conv_h_issue(self):
        a = self.a
        self.sR, self.sCH, self.sD = sA + 6, sA + 7, sA + 8
        fl = self.o.get("p0flags", "")
        a(f"""
        s_mul_i32 s{self.sR}, s{sB}, {CVR}
        s_add_u32 s{self.sR}, s{self.sR}, {AUX}
        s_lshl2_add_u32 s{self.sCH}, s{sC}, s{sB}
        s_lshl_b32 s{sT0}, s{self.sCH}, 12
        s_add_u32 m0, s{self.sR}, 96
        v_lshlrev_b32 v18, 4, v0
        s_lshl_b32 s{sT1}, s{self.sCH}, 1
        """)
        for i in range(4):
            a.vmem(f"buffer_load_dwordx4 v18, {sr(SSK,4)}, s{sT0} offen offset:{i*1024} {fl} lds", "hk")
        a.vmem(f"buffer_load_ushort v19, off, {sr(SSD,4)}, s{sT1}", "hk")

    def conv_prepare(self):
        a = self.a
        self.AF, self.BF, self.CA = 24, 88, 216
        T = 4
        a(f"""
        v_lshlrev_b32 v{T}, 2, v0
        v_add_u32 v{T}, s{self.sR}, v{T}
        v_mov_b32 v{T+1}, 0
        s_mov_b32 exec_hi, 0
        s_mov_b32 exec_lo, 0xffffff
        """)
        a.ds(f"ds_write_b32 v{T}, v{T+1}", "z")
        a("s_mov_b32 exec_lo, -1\ns_mov_b32 exec_hi, 0xff")
        a.ds(f"ds_write_b32 v{T}, v{T+1} offset:4192", "z")
        a("s_mov_b64 exec, -1")
        a(f"""
        v_and_b32 v{T}, 3, v0
        v_lshrrev_b32 v{T+1}, 4, v0
        v_bfe_u32 v{T+2}, v0, 2, 2
        v_lshlrev_b32 v{T+3}, 6, v{T+1}
        v_lshl_add_u32 v{T+3}, v{T+2}, 3, v{T+3}
        v_lshl_add_u32 v1, v{T}, 5, v{T+3}
        v_add_u32 v1, s{self.sR}, v1
        v_lshlrev_b32 v{T}, 3, v{T}
        v_sub_u32 v2, v{T}, v{T+3}
        s_add_u32 s{sT0}, s{self.sR}, {4352+64}
        v_add_u32 v2, s{sT0}, v2
        v_lshl_add_u32 v3, v0, 1, s{self.sR}
        """)
        a.vm.wait("hk")
        a(f"v_lshlrev_b32 v19, 16, v19")
        a(f"v_readfirstlane_b32 s{self.sD}, v19")
        a.lg.drain()
        for m in range(16):
            for q in range(2):
                a.ds(f"ds_read_b64_tr_b16 {vr(self.AF+4*m+2*q,2)}, v1 offset:{256*m+32*q}", "af")

    def conv_u_issue(self):
        a = self.a
        a(f"s_lshl_b32 s{sT0}, s{self.sCH}, 12\ns_add_u32 s{sT0}, s{sT0}, {UT}\ns_add_u32 m0, s{self.sR}, 4352")
        for i in range(4):
            a.vmem(f"buffer_load_dwordx4 v18, {sr(SWS,4)}, s{sT0} offen offset:{i*1024} sc1 lds", f"u{i}")

    def conv_main(self):
        a = self.a
        AF, BF, CA = self.AF, self.BF, self.CA
        NACC = 8
        Z2, Z1, YV, UR, RB = 4, 6, 8, 10, 248
        ca = lambda n: CA + 4 * (n % NACC)
        a(f"""
        v_mov_b32 v{UR}, 0
        v_mov_b32 v{UR+1}, 0
        v_lshl_add_u32 v12, v0, 4, s{self.sR}
        s_lshl_b32 s{sT0}, s{self.sCH}, 12
        s_add_u32 s{sT0}, s{sT0}, {YY}
        """)
        dpp = "row_mask:0xf bank_mask:0xf"

        def bread(i):
            return [("vm", f"u{min(3, i >> 3)}")] + [
                ("ds", f"ds_read_b64_tr_b16 {vr(BF+4*i+2*q,2)}, v2 offset:{128*i+32*(1-q)}", f"b{i}") for q in range(2)]

        def epi(n):
            c, pc = ca(n), ca(n - 1)
            z2, pz2, z1, pz1 = Z2 + (n & 1), Z2 + 1 - (n & 1), Z1 + (n & 1), Z1 + 1 - (n & 1)
            y, u = YV + (n & 1), UR + (n & 1)
            o = [("ds", f"ds_read_u16_d16_hi v{u}, v3 offset:{4352+128*n}", f"ur{n}")]
            for dst, cur, prev, add in ((z2, c + 3, pc + 3, c + 2), (z1, z2, pz2, c + 1), (y, z1, pz1, c)):
                if n == 0:
                    o.append(("v", f"v_add_f32_dpp v{dst}, v{cur}, v{add} wave_shr:1 {dpp} bound_ctrl:0"))
                else:
                    o.append(("v", f"v_add_f32_dpp v{dst}, v{prev}, v{add} wave_ror:1 {dpp}"))
                    o.append(("v", f"v_add_f32_dpp v{dst}, v{cur}, v{add} wave_shr:1 {dpp}"))
            o.append(("lg", f"ur{n}"))
            o.append(("v", f"v_fmac_f32 v{y}, s{self.sD}, v{u}"))
            o.append(("v", f"v_cvt_pk_bf16_f32 v{y}, v{y}, v{y}"))
            o.append(("ds", f"ds_write_b16 v3, v{y} offset:{128*n}", f"yw{n}"))
            if n & 7 == 7:
                k = n >> 3
                rb = RB + 4 * (k & 1)
                o.append(("ds", f"ds_read_b128 {vr(rb,4)}, v12 offset:{1024*k}", f"yr{k}"))
                o.append(("lg", f"yr{k}"))
                o.append(("vmem", f"buffer_store_dwordx4 {vr(rb,4)}, v18, {sr(SWS,4)}, s{sT0} offen offset:{1024*k} sc1", "yst"))
            return o

        def emit(op):
            if op[0] == "v":
                a(op[1])
            elif op[0] == "ds":
                a.ds(op[1], op[2])
            elif op[0] == "vmem":
                a.vmem(op[1], op[2])
            elif op[0] == "lg":
                a.lg.wait(op[1])
            elif op[0] == "vm":
                a.vm.wait(op[1])
            return op[0] in ("v", "ds", "vmem")

        for i in range(4):
            for op in bread(i):
                emit(op)
        a.lg.wait("af")
        nb = 4
        fill = []
        mi = 0
        for n in range(32):
            while fill and any(f[1] is not None and f[1] <= n - NACC + 1 for f in fill):
                emit(fill.pop(0)[2])
            pend = []
            while nb < 32 and nb <= n + 4:
                pend += bread(nb); nb += 1
            fill = [(0, None, op) for op in pend] + fill
            ms = list(range(n // 2, -1, -1))
            for k, m in enumerate(ms):
                i = n - 2 * m
                assert not any(f[2][0] == "ds" and f[2][2] == f"b{i}" for f in fill)
                a.lg.wait(f"b{i}")
                c = "0" if k == 0 else vr(ca(n), 4)
                a(f"v_mfma_f32_16x16x32_bf16 {vr(ca(n),4)}, {vr(AF+4*m,4)}, {vr(BF+4*i,4)}, {c}")
                mi += 1
                slots = 2
                while slots and fill and fill[0][0] <= mi:
                    if emit(fill.pop(0)[2]):
                        slots -= 1
            fill += [(mi + 3, n, op) for op in epi(n)]
        while fill:
            emit(fill.pop(0)[2])

    def final_prepare(self):
        a = self.a
        self.VO, T = 13, 20
        a(f"""
        s_lshl2_add_u32 s{sT0}, s{sRB2}, s{sB}
        s_mul_i32 s{sT1}, s{sT0}, 20480
        s_mul_i32 s{sT2}, s{sCB2}, 160
        s_add_u32 s{sT1}, s{sT1}, s{sT2}
        s_mul_i32 s{sT2}, s{sB}, 2560
        """)
        for p in range(3):
            a(f"""
            v_add_u32 v{T}, {64*p}, v0
            v_mul_u32_u24 v{T+1}, 205, v{T}
            v_lshrrev_b32 v{T+1}, 11, v{T+1}
            v_mul_u32_u24 v{T+1}, 1120, v{T+1}
            v_lshl_add_u32 v{T+1}, v{T}, 4, v{T+1}
            v_add_u32 v{self.VO+p}, s{sT1}, v{T+1}
            s_add_u32 m0, s{sT2}, {XT+p*1024}
            """)
            if p == 2:
                a("s_mov_b32 exec_hi, 0")
            a.vmem(f"buffer_load_dwordx4 v{self.VO+p}, {sr(SQ,4)}, 0 offen lds", "xt")
        a(f"""
        s_mov_b32 exec_hi, -1
        s_lshl_b32 s{sT0}, s{sT0}, 7
        s_add_u32 s{sT0}, s{sT0}, {ST}
        v_and_b32 v{T}, 15, v0
        v_lshlrev_b32 v{T}, 3, v{T}
        """)
        a.vmem(f"buffer_load_dwordx2 v[16:17], v{T}, {sr(SWS,4)}, s{sT0} offen sc1", "xt")

    def final_xn(self):
        a = self.a
        T, X, XF, XN = 20, 24, 40, 60
        a(f"""
        v_and_b32 v{T}, 15, v0
        v_mul_u32_u24 v{T}, 160, v{T}
        v_lshrrev_b32 v{T+1}, 4, v0
        v_lshl_add_u32 v{T}, v{T+1}, 3, v{T}
        s_mul_i32 s{sT0}, s{sB}, 2560
        s_add_u32 s{sT0}, s{sT0}, {XT}
        v_add_u32 v1, s{sT0}, v{T}
        v_lshl_add_u32 v2, v0, 4, s{sT0}
        """)
        a.vm.wait("xt")
        for j in range(5):
            a.ds(f"ds_read_b64 {vr(X+2*j,2)}, v1 offset:{j*32}", "xr")
        a("v_rcp_f32 v17, v17")
        a.lg.drain()
        for p in range(10):
            x, n = XF + 2 * p, XN + 2 * p
            a(f"""
            v_lshlrev_b32 v{x}, 16, v{X+p}
            v_and_b32 v{x+1}, 0xffff0000, v{X+p}
            v_sub_f32 v{n}, v{x}, v16
            v_sub_f32 v{n+1}, v{x+1}, v16
            v_cvt_pk_bf16_f32 v{n+1}, v{n}, v{n+1}
            v_lshlrev_b32 v{n}, 16, v{n+1}
            v_and_b32 v{n+1}, 0xffff0000, v{n+1}
            v_mul_f32 v{n}, v{n}, v17
            v_mul_f32 v{n+1}, v{n+1}, v17
            v_cvt_pk_bf16_f32 v{n+1}, v{n}, v{n+1}
            v_lshlrev_b32 v{n}, 16, v{n+1}
            v_and_b32 v{n+1}, 0xffff0000, v{n+1}
            """)

    def final_rest(self):
        a = self.a
        T, Y, XF, XN, P = 20, 24, 40, 60, 80
        sPo, sPv = sA + 9, sA + 13
        other, go = a.label("ywait"), a.label("ygo")
        a(f"""
        v_lshrrev_b32 v{T}, 2, v0
        v_and_b32 v{T+1}, 3, v0
        v_lshlrev_b32 v{T+1}, 3, v{T+1}
        v_lshl_add_u32 v{T}, v{T}, 7, v{T+1}
        s_lshl_b32 s{sT0}, s{sB}, 5
        s_add_u32 s{sT0}, s{sT0}, {YT}
        v_add_u32 v{T}, s{sT0}, v{T}
        v_mov_b32 v{T+1}, {BCNT}
        s_cmp_lg_u32 s{sB}, 0
        s_cbranch_scc1 {other}
        """)
        a(f"s_lshl3_add_u32 s{sT0}, s{sCB2}, s{sXCD}")
        self.cnt_off(sPo, cY, sT0)
        items = [(sPv, sPo, 20)]
        self.poll_issue(items, atomic=True)
        a(f"""
        v_lshrrev_b32 v{T+2}, 3, v0
        v_and_b32 v{T+3}, 7, v0
        v_lshlrev_b32 v{T+2}, 12, v{T+2}
        v_lshl_add_u32 v{T+2}, v{T+3}, 4, v{T+2}
        s_mul_i32 s{sT0}, s{sCB2}, 327680
        s_lshl_b32 s{sT1}, s{sRB2}, 7
        s_add_u32 s{sT0}, s{sT0}, s{sT1}
        s_add_u32 s{sT0}, s{sT0}, {YY}
        """)
        self.poll_check(items, atomic=True, sleep=4)
        self.stamp(11)
        for p in range(10):
            a(f"s_mov_b32 m0, {YT+p*1024}")
            a(f"buffer_load_dwordx4 v{T+2}, {sr(SWS,4)}, s{sT0} offen sc1 lds")
            a(f"s_add_u32 s{sT0}, s{sT0}, 32768")
        a(f"""
        v_mov_b32 v{T+2}, 1
        s_waitcnt vmcnt(0)
        ds_write_b32 v{T+1}, v{T+2}
        s_branch {go}
        {other}:
        """)
        self.lds_flag_wait(T + 1, T + 3, go)
        a(f"{go}:")
        for j in range(5):
            a.ds(f"ds_read_b64_tr_b16 {vr(Y+2*j,2)}, v{T} offset:{j*2048}", "yr")
        a(f"s_mul_i32 s{sT0}, s{sB}, 5120\nv_lshl_add_u32 v3, v0, 4, s{sT0}\nv_add_u32 v4, {2*20480}, v3")
        a.lg.drain()
        for p in range(10):
            a(f"""
            v_lshlrev_b32 v{T}, 16, v{Y+p}
            v_and_b32 v{T+1}, 0xffff0000, v{Y+p}
            v_fmac_f32 v{XF+2*p}, v{XN+2*p}, v{T}
            v_fmac_f32 v{XF+2*p+1}, v{XN+2*p+1}, v{T+1}
            """)
        self.stamp(12)
        a("s_barrier")
        self.stamp(13)
        for j in range(5):
            for q in range(4):
                a.ds(f"ds_read_b128 {vr(P+16*j+4*q,4)}, v{3+(q>>1)} offset:{PART+(q&1)*20480+j*1024}", f"p{j}")
        for j in range(5):
            a.lg.wait(f"p{j}")
            p = P + 16 * j
            for r in range(4):
                a(f"v_add_f32 v{p+r}, v{p+r}, v{p+4+r}")
            for r in range(4):
                a(f"v_add_f32 v{p+8+r}, v{p+8+r}, v{p+12+r}")
            for r in range(4):
                a(f"v_add_f32 v{p+r}, v{p+r}, v{XF+4*j+r}")
            for r in range(4):
                a(f"v_add_f32 v{p+r}, v{p+r}, v{p+8+r}")
            a(f"v_cvt_pk_bf16_f32 v{p}, v{p}, v{p+1}\nv_cvt_pk_bf16_f32 v{p+1}, v{p+2}, v{p+3}")
            a.ds(f"ds_write_b64 v1, {vr(p,2)} offset:{j*32}", "ow")
        a.lg.drain()
        for p in range(3):
            a.ds(f"ds_read_b128 {vr(24+4*p,4)}, v2 offset:{p*1024}", f"or{p}")
        for p in range(3):
            a.lg.wait(f"or{p}")
            if p == 2:
                a("s_mov_b32 exec_hi, 0")
            a.vmem(f"buffer_store_dwordx4 {vr(24+4*p,4)}, v{self.VO+p}, {sr(SOUT,4)}, 0 offen", "out")
        self.stamp(14)
        self.dump_stamps("B")
        a("s_endpgm")

    def role_b(self, typ):
        a = self.a
        a.vm.q = []; a.lg.q = []
        C = typ == "C"
        sPo = [sA + 9, sA + 13, sA + 10, sA + 11]
        sPv = [sA + 12, sA + 14, sA + 15, 3]
        if C:
            a(f"s_mul_i32 s{sC}, s{sXCD}, 20\ns_add_u32 s{sC}, s{sC}, s{sI}")
        else:
            a(f"s_mul_i32 s{sC}, s{sXCD}, 12\ns_add_u32 s{sC}, s{sC}, s{sI}\ns_sub_u32 s{sC}, s{sC}, 20")
        self.stamp(0)
        LAG = int(self.o.get("lag", 7))
        P0 = int(self.o.get("p0pos", 2))

        def vm_groups(groups):
            out, cur = [], []
            for g in groups:
                cur = cur + g
                if any(op[0] == "vmem" for op in g):
                    out.append(cur); cur = []
            if cur:
                out[-1] = out[-1] + cur
            return out

        p0 = vm_groups(self.rec(self.stats_load) + self.rec(self.kv_issue if C else self.wd_issue))
        seq, last = [], {}
        for s_ in range(10):
            seq += [(s_, g) for g in self.rec(self.stage_issue, s_)]
            last[s_] = len(seq)
            if s_ == P0:
                seq += [(None, g) for g in p0]
        cut = []
        for s_ in range(10):
            c = min(last[s_] + LAG, len(seq))
            while any(k is not None and k >= s_ + 2 + (1 if s_ == 0 else 0) for k, _ in seq[:c]) and s_ < 9:
                c -= 1
            cut.append(c)

        def zero_lds():
            b = self.a
            b(f"v_mov_b32 v56, {BCNT}\nv_mov_b32 v58, 0\nv_mov_b32 v59, 0")
            b.ds("ds_write_b64 v56, v[58:59]", "z")
            b.ds("ds_write_b64 v56, v[58:59] offset:8", "z")
            b.lg.drain()

        def sig_stats():
            self.a(f"s_lshr_b32 s{sT0}, s{sWS}, 4")
            self.cnt_off(sPo[0], cS, sT0)
            self.cnt_off(sPo[1], cC, sCB1)
            self.signal(sPo[:2], sPv[0], only_wave0=True)

        def sig_p0():
            if C:
                self.cnt_off(sPo[2], cU, self.sCG)
            else:
                self.a(f"s_and_b32 s{sT0}, s{sC}, 1")
                self.cnt_off(sPo[2], cW, sT0)
            self.signal([sPo[2]], sPv[1], only_wave0=True)

        def poll_early():
            b = self.a
            b(f"v_mov_b32 v57, 16\nv_writelane_b32 v57, 48, 3")
            for lane, (base, src, sh) in enumerate(((cS, sRB1, 0), (cC, sCB1, 0), (cS, sRB2, 1), (cW, sCB2, 2))):
                b(f"s_lshr_b32 s{sT0}, s{src}, {sh}")
                self.cnt_off(sT0, base, sT0)
                b(f"v_writelane_b32 v56, s{sT0}, {lane}")
            self.vcheck_issue(58, 56, SWS, 15)

        R = self.rec
        tasks = {k: [] for k in range(10)}
        heads = {k: [] for k in range(10)}
        tails = {k: [] for k in range(10)}
        extra = {k: [] for k in range(10)}
        after = {k: [] for k in range(10)}
        tasks[0] += R(zero_lds)
        tasks[1] += R(self.colsum_partial)
        b0 = P0 + 1
        heads[b0] += R(self.vcheck_issue, 58, 59, SDBG, 1)
        tasks[b0] += R(self.stats_compute)
        after[b0] += R(self.vcheck, 58, 59, "1", SDBG, 1)
        extra[b0] += ["kv"]
        extra[b0 + 1] += ["stst", "csst"]
        heads[b0 + 2] += R(sig_stats)
        if C:
            tasks[b0 + 1] += R(self.kv_reads) + R(self.kv_compute, 0, 8)
            tasks[b0 + 2] += R(self.kv_compute, 8, 16) + R(self.kv_store)
            extra[b0 + 3] += ["utst"]
            heads[b0 + 4] += R(sig_p0)
        else:
            tasks[b0 + 1] += R(self.wd_transpose)
            extra[b0 + 2] += ["utst"]
            heads[b0 + 3] += R(sig_p0)
        heads[8] += R(poll_early)
        after[8] += R(self.vcheck, 58, 56, "v57", SWS, 15)
        heads[9] += R(self.gather_issue)
        if C:
            tails[9] += R(self.conv_h_issue)
        pos = 0
        for s_ in range(10):
            for g in heads[s_]:
                play(a, g)
            interleave(a, [g for _, g in seq[pos:cut[s_]]], tasks[s_])
            pos = cut[s_]
            if s_ in (3, 8):
                self.stamp(11 if s_ == 3 else 13, "2")
            for g in tails[s_]:
                play(a, g)
            if s_ in (3, 8):
                self.stamp(12 if s_ == 3 else 14, "2")
            a.vm.wait(f"S{s_}", *extra[s_])
            for g in after[s_]:
                play(a, g)
            a("s_barrier")
            if s_ in (0, 3, 6, 8, 9):
                self.stamp({0: 1, 3: 2, 6: 3, 8: 5, 9: 6}[s_])
            self.stamp(s_ + 1, "2")
        assert pos == len(seq)
        cu = [(sPv[0], sPo[0], 16)]
        self.gather_finish()
        if C:
            self.cnt_off(sPo[0], cU, self.sCG)
            self.poll_issue(cu, atomic=True, only_wave0=True)
        a("s_barrier")
        self.final_prepare()
        if C:
            self.conv_prepare()
        if C:
            other, go = a.label("uwait"), a.label("ugo")
            a(f"v_mov_b32 v20, {BCNT+8}\nv_mov_b32 v21, 1\ns_cmp_lg_u32 s{sB}, 0\ns_cbranch_scc1 {other}")
            q = list(a.lg.q)
            self.poll_check(cu, atomic=True, sleep=4)
            a(f"ds_write_b32 v20, v21\ns_branch {go}\n{other}:")
            self.lds_flag_wait(20, 21, go)
            a(f"{go}:")
            a.lg.q = q
            if self.o.get("prio", "1") == "1":
                a("s_setprio 1")
            self.stamp(7)
            self.conv_u_issue()
            self.conv_main()
            self.stamp(8)
            skip = a.label("ysig")
            a(f"v_mov_b32 v20, {BCNT+4}\nv_mov_b32 v21, 1")
            a(f"s_lshl_b32 s{sT0}, s{sXCD}, 3")
            self.cnt_off(sPo[0], cY, sT0)
            a.vm.drain()
            a("s_mov_b64 exec, 1")
            a.ds("ds_add_rtn_u32 v21, v20, v21", "yc")
            a.lg.drain()
            a(f"v_readfirstlane_b32 s{sT0}, v21\ns_mov_b64 exec, -1\ns_cmp_lg_u32 s{sT0}, 3\ns_cbranch_scc1 {skip}")
            a(f"s_mov_b32 s{sPv[0]}, 1")
            a(f"s_add_u32 s{sPo[2]}, s{SWS}, s{sPo[0]}\ns_addc_u32 s{sPo[3]}, s{SWS+1}, 0")
            for k in range(8):
                a(f"s_atomic_add s{sPv[0]}, s[{sPo[2]}:{sPo[3]}], {k*128}")
            a(f"{skip}:")
            self.stamp(9)
        self.final_xn()
        self.stamp(10)
        self.final_rest()

    def build(self):
        a = self.a
        self.prologue()
        self.role_a()
        self.b_common_setup()
        a(f"s_cmp_ge_u32 s{sI}, 20\ns_cbranch_scc1 L_typeW")
        self.role_b("C")
        a("L_typeW:")
        self.role_b("W")
        a("L_end:\ns_endpgm")
        return a.text()


def kernel_file(opt):
    ref = open("parallel_sum__ssm_conv_h3__swiglu_ffn__prompt.s.ref").read()
    head = [l for l in ref.split("\n") if l.startswith(";") and "@launch" not in l]
    head = head[:head.index([l for l in head if "d_ws" in l][0]) + 1]
    body = Gen(opt).build()
    return "\n".join(head) + f"""
; @launch grid=(256,1,1) block=(512,1,1) lds={LDS_BYTES}
.amdgcn_target "amdgcn-amd-amdhsa--gfx950"
.text
.globl {KNAME}
.p2align 8
.type {KNAME},@function
{KNAME}:
{body}.section .rodata,"a"
.p2align 6
.amdhsa_kernel {KNAME}
  .amdhsa_next_free_vgpr 256
  .amdhsa_next_free_sgpr 102
  .amdhsa_accum_offset 256
  .amdhsa_group_segment_fixed_size 0
  .amdhsa_kernarg_size 104
  .amdhsa_user_sgpr_count 2
  .amdhsa_user_sgpr_kernarg_segment_ptr 1
  .amdhsa_system_sgpr_workgroup_id_x 1
  .amdhsa_float_denorm_mode_32 3
.end_amdhsa_kernel
"""


if __name__ == "__main__":
    out = sys.argv[1]
    opt = {}
    for kv in sys.argv[2:]:
        k, _, v = kv.partition("=")
        opt[k] = v if v else True
    open(out, "w").write(kernel_file(opt))
```

```python
import sys
from asmlib import Asm, Rec, play, interleave, vr, sr

KNAME = "parallel_sum__ssm_conv_h3__swiglu_ffn__prompt_kernel"

CNT, ST, CS, UT, YY, WDT, HH, PROF, WS_SIZE = (0, 0x8000, 0xC000, 0x40000, 0x2C0000, 0x540000, 0x720000,
                                               0xD20000, 0xE00000)
cH, cS, cC, cU, cW, cY = 0, 128, 144, 160, 176, 192
XS, WS_, AUX = 0, 49152, 122880
CVR = 8704
XT = AUX + 3 * CVR
STL, CSF, BCNT = AUX + 36352, AUX + 37376, AUX + 38912
YFLG, YCNT, ACNT, WFLG, XFLG, GCNT, CWFLG = [BCNT + 4 * k for k in range(7)]
LDS_BYTES = 163840
SQ, SWG, SWU, SWS, SK, SV, SSH, SSK, SSD, SOUT, SDBG, SWD = 4, 8, 12, 16, 20, 24, 28, 32, 36, 40, 44, 48
sW, sB, sXCD, sI, sRB1, sCB1, sKS, sRB2, sCB2, sWS, sC = 52, 53, 54, 55, 56, 57, 58, 59, 60, 61, 62
sT0, sT1, sT2, sT3, sCNT = 63, 64, 65, 66, 67
sTM = 68
sPR = 70
sA = 86
POLL_LIMIT = 1 << 17
LOG2E = 1.4426950408889634


def f2u(x):
    import struct
    return struct.unpack("<I", struct.pack("<f", x))[0]


class Gen:
    def __init__(self, opt):
        self.o = opt
        self.a = Asm()
        self.nstamp = 0

    def stamp(self, k, kind="1"):
        if self.o.get("profile") != kind and not (k == 0 and self.o.get("profile")):
            return
        a = self.a
        a(f"{'s_memtime' if self.o.get('clk') else 's_memrealtime'} {sr(sTM, 2)}")
        a.lg.drain()
        a(f"s_mov_b32 s{sPR+k}, s{sTM}")

    def dump_stamps(self, role):
        if not self.o.get("profile"):
            return
        a = self.a
        a("s_mov_b64 exec, -1")
        a("v_mov_b32 v1, 0")
        for k in range(16):
            a(f"v_writelane_b32 v1, s{sPR+k}, {k}")
        a(f"s_lshl_b32 s{sT0}, s2, 3\ns_add_u32 s{sT0}, s{sT0}, s{sW}\ns_lshl_b32 s{sT0}, s{sT0}, 6\ns_add_u32 s{sT0}, s{sT0}, {PROF}")
        a("v_mbcnt_lo_u32_b32 v2, -1, 0\nv_mbcnt_hi_u32_b32 v2, -1, v2\nv_lshlrev_b32 v2, 2, v2")
        a("s_mov_b64 exec, 0xffff")
        a(f"buffer_store_dword v1, v2, {sr(SWS,4)}, s{sT0} offen")
        if self.o.get("dbgout"):
            wg = int(self.o["dbgout"])
            skip = a.label("dbgout")
            sel = [1, 2, 3, 4, 8, 5, 6, 7] if role == "A" else [1, 2, 3, 6, 7, 8, 14]
            a(f"s_cmp_lg_u32 s2, {wg}\ns_cbranch_scc1 {skip}\ns_cmp_lg_u32 s{sB}, 1\ns_cbranch_scc1 {skip}")
            for n, k in enumerate(sel):
                a(f"s_sub_u32 s{sT0}, s{sPR+k}, s{sPR}\nv_writelane_b32 v1, s{sT0}, {n}")
            a(f"s_mov_b64 exec, {(1 << len(sel)) - 1}")
            a(f"buffer_store_dword v1, v2, {sr(SDBG,4)}, 0 offen offset:{4 if role == 'A' else 36}")
            a(f"{skip}:")

    def rec(self, fn, *args):
        real = self.a
        self.a = Rec(real)
        fn(*args)
        groups = self.a.groups
        self.a = real
        return groups

    def cnt_off(self, sdst, base, sidx):
        self.a(f"s_add_u32 s{sdst}, s{sidx}, {base}\ns_lshl_b32 s{sdst}, s{sdst}, 7")

    def signal(self, soffs, stmp, only_wave0=False):
        a = self.a
        skip = a.label("sig")
        a.begin()
        if only_wave0:
            a(f"s_cmp_lg_u32 s{sB}, 0\ns_cbranch_scc1 {skip}")
        a(f"s_mov_b32 s{stmp}, 1")
        for so in soffs:
            a(f"s_atomic_add s{stmp}, {sr(SWS,2)}, s{so}")
        if only_wave0:
            a(f"{skip}:")
        a.end()

    def poll_ops(self, items, atomic):
        o = []
        for val, off, _ in items:
            base = sr(SDBG, 2) if off is None else sr(SWS, 2)
            offs = "0" if off is None else f"s{off}"
            if atomic:
                o += [f"s_mov_b32 s{val}, 0", f"s_atomic_add s{val}, {base}, {offs} glc"]
            else:
                o += [f"s_load_dword s{val}, {base}, {offs} glc"]
        return "\n".join(o)

    def poll_issue(self, items, atomic=False, only_wave0=False):
        a = self.a
        skip = a.label("pi")
        a.begin()
        if only_wave0:
            a(f"s_cmp_lg_u32 s{sB}, 0\ns_cbranch_scc1 {skip}")
        a(self.poll_ops(items, atomic))
        if only_wave0:
            a(f"{skip}:")
        a.end()

    def poll_check(self, items, atomic=False, only_wave0=False, sleep=2):
        a = self.a
        lo, again, ok = a.label("poll"), a.label("again"), a.label("pollok")
        a.begin()
        a.lg.drain()
        if only_wave0:
            a(f"s_cmp_lg_u32 s{sB}, 0\ns_cbranch_scc1 {ok}")
        a(f"s_mov_b32 s{sCNT}, 0")
        a(f"{lo}:")
        for k, (val, _, target) in enumerate(items):
            a(f"s_cmp_ge_u32 s{val}, {target}")
            a(f"s_cbranch_scc1 {ok}" if k == len(items) - 1 else f"s_cbranch_scc0 {again}")
        a(f"{again}:")
        if sleep:
            a(f"s_sleep {sleep}")
        a(self.poll_ops(items, atomic))
        a(f"s_add_u32 s{sCNT}, s{sCNT}, 1")
        a(f"s_cmp_lt_u32 s{sCNT}, {POLL_LIMIT}")
        a("s_waitcnt lgkmcnt(0)")
        a(f"s_cbranch_scc1 {lo}")
        a(f"{ok}:")
        a.end()

    def vcheck_issue(self, vret, vaddr, srd, mask, wave=0):
        a = self.a
        skip = a.label("vi")
        a.begin()
        if wave is not None:
            a(f"s_cmp_lg_u32 s{sB}, {wave}\ns_cbranch_scc1 {skip}")
        a(f"s_mov_b64 exec, {mask}")
        a(f"buffer_load_dword v{vret}, v{vaddr}, {sr(srd,4)}, 0 offen sc1")
        a("s_mov_b64 exec, -1")
        a(f"{skip}:")
        a.end()

    def vcheck(self, vret, vaddr, vtarget, srd, mask, wave=0):
        a = self.a
        lo, ok, skip = a.label("vc"), a.label("vcok"), a.label("vcskip")
        a.begin()
        if wave is not None:
            a(f"s_cmp_lg_u32 s{sB}, {wave}\ns_cbranch_scc1 {skip}")
        a(f"""
        s_mov_b64 exec, {mask}
        s_mov_b32 s{sCNT}, 0
        {lo}:
        v_cmp_le_u32 vcc, {vtarget}, v{vret}
        s_cmp_eq_u64 vcc, exec
        s_cbranch_scc1 {ok}
        s_sleep 8
        buffer_load_dword v{vret}, v{vaddr}, {sr(srd,4)}, 0 offen sc1
        s_add_u32 s{sCNT}, s{sCNT}, 1
        s_cmp_lt_u32 s{sCNT}, {POLL_LIMIT}
        s_waitcnt vmcnt(0)
        s_cbranch_scc1 {lo}
        {ok}:
        s_mov_b64 exec, -1
        {skip}:
        """)
        a.end()

    def lds_flag_wait(self, vaddr, vtmp, go, value=1):
        a = self.a
        lo = a.label("lf")
        a(f"""
        s_mov_b32 s{sCNT}, 0
        {lo}:
        ds_read_b32 v{vtmp}, v{vaddr}
        s_add_u32 s{sCNT}, s{sCNT}, 1
        s_waitcnt lgkmcnt(0)
        v_readfirstlane_b32 s{sT0}, v{vtmp}
        s_cmp_eq_u32 s{sT0}, {value}
        s_cbranch_scc1 {go}
        s_sleep 1
        s_cmp_lt_u32 s{sCNT}, {POLL_LIMIT*16}
        s_cbranch_scc1 {lo}
        """)

    def prologue(self):
        a = self.a
        a("s_cmp_ge_u32 s2, 256\ns_cbranch_scc1 L_end")
        if self.o.get("profile"):
            a(f"{'s_memtime' if self.o.get('clk') else 's_memrealtime'} {sr(sTM, 2)}\ns_waitcnt lgkmcnt(0)\ns_mov_b32 s{sPR+15}, s{sTM}")
        if self.o.get("pf", "1") == "1":
            a(f"""
            s_getpc_b64 s[{sT1}:{sT2}]
            L_pc:
            s_lshr_b32 s{sT0}, s2, 3
            s_lshl_b32 s{sT0}, s{sT0}, 11
            v_lshl_add_u32 v1, v0, 2, s{sT0}
            v_cmp_gt_u32 vcc, L_end-L_pc, v1
            s_and_saveexec_b64 s[{sTM}:{sTM+1}], vcc
            s_cbranch_execz L_nopf
            global_load_dword v255, v1, s[{sT1}:{sT2}]
            L_nopf:
            s_mov_b64 exec, -1
            """)
        for srd, off in ((SQ, 0), (SWG, 56), (SWU, 64), (SWS, 96), (SK, 8), (SV, 16), (SSH, 24), (SSK, 32),
                         (SSD, 40), (SOUT, 80), (SDBG, 88), (SWD, 72)):
            a(f"s_load_dwordx2 {sr(srd,2)}, s[0:1], {off}")
        a("v_lshrrev_b32 v1, 6, v0\nv_and_b32 v0, 63, v0")
        a(f"v_readfirstlane_b32 s{sW}, v1")
        for srd, size in ((SQ, 2621440), (SWG, 1966080), (SWU, 1966080), (SWS, WS_SIZE), (SK, 2621440),
                          (SV, 2621440), (SSH, 5120), (SSK, 2621440), (SSD, 1280), (SOUT, 2621440),
                          (SDBG, 256), (SWD, 1966080)):
            a(f"s_mov_b32 s{srd+2}, {size}\ns_mov_b32 s{srd+3}, 0x20000")
        a(f"""
        s_and_b32 s{sB}, s{sW}, 3
        s_and_b32 s{sXCD}, s2, 7
        s_lshr_b32 s{sI}, s2, 3
        s_and_b32 s{sT0}, s{sXCD}, 1
        s_lshr_b32 s{sT1}, s{sXCD}, 1
        s_and_b32 s{sT2}, s{sI}, 7
        s_lshl3_add_u32 s{sRB1}, s{sT0}, s{sT2}
        s_lshr_b32 s{sT2}, s{sI}, 3
        s_lshl2_add_u32 s{sCB1}, s{sT1}, s{sT2}
        s_lshl2_add_u32 s{sT3}, s{sT0}, s{sT1}
        s_and_b32 s{sT2}, s{sI}, 3
        s_lshl2_add_u32 s{sRB2}, s{sT3}, s{sT2}
        s_lshr_b32 s{sCB2}, s{sI}, 2
        s_lshl_b32 s{sWS}, s{sT3}, 5
        s_add_u32 s{sWS}, s{sWS}, s{sI}
        s_mul_i32 s{sT0}, s{sCB1}, 3
        s_add_u32 s{sT0}, s{sT0}, s{sRB1}
        s_mul_i32 s{sT1}, s{sT0}, 26
        s_lshr_b32 s{sT1}, s{sT1}, 8
        s_mul_i32 s{sT1}, s{sT1}, 10
        s_sub_u32 s{sKS}, s{sT0}, s{sT1}
        """)
        if self.o.get("g2map", "48") == "84":
            a(f"""
            s_and_b32 s{sT0}, s{sXCD}, 1
            s_bfe_u32 s{sT1}, s{sXCD}, 0x10001
            s_lshl1_add_u32 s{sT0}, s{sT0}, s{sT1}
            s_and_b32 s{sT1}, s{sI}, 7
            s_lshl3_add_u32 s{sRB2}, s{sT0}, s{sT1}
            s_lshr_b32 s{sT0}, s{sXCD}, 2
            s_lshr_b32 s{sT1}, s{sI}, 3
            s_lshl2_add_u32 s{sCB2}, s{sT0}, s{sT1}
            """)
        if self.o.get("rot") == "0":
            a(f"s_mov_b32 s{sKS}, 0")
        if self.o.get("profile"):
            for k in range(15):
                a(f"s_mov_b32 s{sPR+k}, 0")
        a(f"s_cmp_ge_u32 s{sW}, 4\ns_cbranch_scc1 L_roleB")

    def role_a(self):
        a = self.a
        XA, WA, VH = 1, 5, 11
        FR, ACC = 120, 160
        T = 112
        sWM, sWN = sA, sA + 1
        sH = sA + 2
        xf = lambda p, i: FR + 20 * p + 4 * i
        wf = lambda p, j: FR + 20 * p + 8 + 4 * j
        acc = lambda i, j: ACC + (i * 3 + j) * 16
        def addr_setup():
            a(f"""
            s_and_b32 s{sWM}, s{sB}, 1
            s_lshr_b32 s{sWN}, s{sB}, 1
            v_and_b32 v{T}, 31, v0
            v_lshrrev_b32 v{T+1}, 5, v0
            v_bfe_u32 v{T+2}, v0, 1, 3
            v_xor_b32 v{T+2}, v{T+2}, v{T+1}
            s_lshl_b32 s{sT0}, s{sWM}, 13
            v_lshl_add_u32 v{T}, v{T}, 7, s{sT0}
            """)
            for t in range(4):
                a(f"v_xor_b32 v{T+3}, {2*t}, v{T+2}\nv_lshl_add_u32 v{XA+t}, v{T+3}, 4, v{T}")
            a(f"""
            v_bfe_u32 v{T+2}, v0, 4, 1
            v_mul_u32_u24 v{T+3}, 3072, v{T+2}
            v_mul_u32_u24 v{T+4}, 1536, v{T+1}
            v_bfe_u32 v{T+5}, v0, 2, 2
            v_lshl_add_u32 v{T+3}, v{T+5}, 6, v{T+3}
            v_and_b32 v{T+5}, 1, v0
            v_lshl_add_u32 v{T+3}, v{T+5}, 4, v{T+3}
            v_bfe_u32 v{T+5}, v0, 1, 1
            v_lshl_add_u32 v{T+3}, v{T+5}, 3, v{T+3}
            v_add_u32 v{T+3}, v{T+3}, v{T+4}
            v_lshlrev_b32 v{T+2}, 5, v{T+2}
            s_mul_i32 s{sT0}, s{sWN}, 3
            s_lshl_b32 s{sT3}, s{sRB1}, 1
            s_add_u32 s{sT3}, s{sT3}, s{sWM}
            s_mul_i32 s{sT3}, s{sT3}, 48
            s_mul_i32 s{sT2}, s{sCB1}, 3
            s_add_u32 s{sT3}, s{sT3}, s{sT2}
            """)
            for j in range(3):
                a(f"""
                s_add_u32 s{sT1}, s{sT0}, {j}
                s_lshr_b32 s{sT2}, s{sT1}, 1
                s_and_b32 s{sT1}, s{sT1}, 1
                s_add_u32 s{sH+j}, s{sT3}, s{sT2}
                s_lshl_b32 s{sH+j}, s{sH+j}, 3
                s_add_u32 s{sH+j}, s{sH+j}, s{sT1}
                s_lshl_b32 s{sH+j}, s{sH+j}, 9
                s_add_u32 s{sH+j}, s{sH+j}, {HH}
                s_lshl_b32 s{sT1}, s{sT1}, 5
                v_xor_b32 v{T+4}, s{sT1}, v{T+2}
                s_lshl_b32 s{sT2}, s{sT2}, 8
                s_add_u32 s{sT2}, s{sT2}, {WS_}
                v_add3_u32 v{WA+j}, v{T+3}, v{T+4}, s{sT2}
                v_add_u32 v{WA+3+j}, 49152, v{WA+j}
                """)
            a(f"""
            v_and_b32 v{T+4}, 15, v0
            v_lshlrev_b32 v{T+4}, 4, v{T+4}
            v_lshl_add_u32 v{T+4}, v{T+1}, 8, v{T+4}
            v_bfe_u32 v{T+5}, v0, 4, 1
            v_lshl_add_u32 v{VH}, v{T+5}, 10, v{T+4}
            """)

        a("s_waitcnt lgkmcnt(0)")
        a(f"s_setprio {self.o.get('aprio', 2)}")
        a.vm.issue("pf")
        self.stamp(0)
        a(f"s_or_b32 s{sA+8}, s2, s{sB}\ns_cmp_lg_u32 s{sA+8}, 0\ns_cbranch_scc1 L_noclear")
        a(f"v_lshlrev_b32 v{T}, 7, v0\nv_mov_b32 v{T+1}, 0")
        for p in range(4):
            a(f"s_mov_b32 s{sT0}, {p*8192}\nbuffer_store_dword v{T+1}, v{T}, {sr(SWS,4)}, s{sT0} offen sc1")
        p0a = "s"
        if "s" not in p0a:
            a(f"s_waitcnt vmcnt(0)\nv_mov_b32 v{T}, 1\ns_mov_b64 exec, 1")
            a(f"buffer_store_dword v{T}, off, {sr(SDBG,4)}, 0 sc1\ns_mov_b64 exec, -1")
        a("L_noclear:")
        if "s" in p0a:
            self.stats_load()
        if "k" in p0a:
            q = list(a.vm.q)
            a(f"s_cmp_ge_u32 s{sI}, 20\ns_cbranch_scc1 L_p0W")
            for typ in "CW":
                a.vm.q = list(q)
                if typ == "W":
                    a("L_p0W:")
                (self.kv_issue if typ == "C" else self.wd_issue)()
                addr_setup()
                if "s" in p0a:
                    self.stats_compute(announce=f"L_noann{typ}")
                self.stamp(9)
                (self.kv_work if typ == "C" else self.wd_work)()
                if typ == "C":
                    a("s_branch L_p0done")
            a("L_p0done:")
        else:
            addr_setup()
            if "s" in p0a:
                self.stats_compute(announce="L_noann")
        self.stamp(10)

        def reads(g):
            s, t, p = g >> 2, g & 3, g & 1
            sl = s % 3
            wa = WA + (3 if sl == 2 else 0)
            wo = (sl % 2) * 24576 + t * 6144
            r = [f"ds_read_b128 {vr(xf(p,0),4)}, v{XA+t} offset:{sl*16384}"]
            r += [f"ds_read_b64_tr_b16 {vr(wf(p,0)+2*q,2)}, v{wa} offset:{wo+q*768}" for q in range(2)]
            r += [f"ds_read_b128 {vr(xf(p,1),4)}, v{XA+t} offset:{sl*16384+4096}"]
            for j in (1, 2):
                r += [f"ds_read_b64_tr_b16 {vr(wf(p,j)+2*q,2)}, v{wa+j} offset:{wo+q*768}" for q in range(2)]
            return r

        a("s_setprio 0")
        a.vm.wait("pf")
        a("s_barrier")
        self.stamp(1)
        CF, SF, M2, C1, KK, AD, E, HP = 12, 18, 22, 26, 28, 52, 32, 40
        NW, NH = 6, 3
        WR, HR, ACC2 = 8, 128, 176
        sRot, sWb, sHb, sWo, sHo, sPo, sPv = [sA + 5 + k for k in range(7)]

        def mf(p, i, j, first=False):
            c = "0" if first else vr(acc(i, j), 16)
            return f"v_mfma_f32_32x32x16_bf16 {vr(acc(i,j),16)}, {vr(wf(p,j),4)}, {vr(xf(p,i),4)}, {c}"

        def run(mfmas, fill, per):
            k = 0
            for m in mfmas:
                a(m)
                for _ in range(per):
                    if k < len(fill):
                        play(a, fill[k]); k += 1
            for g in fill[k:]:
                play(a, g)

        def dsl(lst):
            return [[("ds", r, "f")] for r in lst]

        def corr_addr():
            b = self.a
            b(f"""
            v_and_b32 v{AD}, 31, v0
            s_lshl_b32 s{sT0}, s{sWM}, 9
            s_add_u32 s{sT0}, s{sT0}, {STL}
            v_lshl_add_u32 v{AD+1}, v{AD}, 3, s{sT0}
            s_mul_i32 s{sT0}, s{sWN}, 768
            s_add_u32 s{sT0}, s{sT0}, {CSF}
            v_lshl_add_u32 v{AD}, v{AD}, 3, s{sT0}
            v_mov_b32 v{AD+2}, {GCNT}
            """)
            self.g2_scalars(sRot, sWb)
            b(f"""
            s_mul_i32 s{sT0}, s{sB}, 12
            s_mul_i32 s{sT1}, s{sRB2}, 48
            s_add_u32 s{sT1}, s{sT1}, s{sT0}
            s_lshl_b32 s{sHb}, s{sT1}, 12
            s_add_u32 s{sHb}, s{sHb}, {HH}
            s_lshl_b32 s{sT0}, s{sRB1}, 1
            s_add_u32 s{sT0}, s{sT0}, s{sWM}
            s_lshr_b32 s{sT1}, s{sCB1}, 2
            s_lshl2_add_u32 s{sT0}, s{sT0}, s{sT1}
            """)
            self.cnt_off(sPo, cH, sT0)

        def corr_prepare():
            b = self.a
            b.begin()
            b("s_mov_b32 exec_lo, 0")
            for j in range(6):
                b(f"v_mov_b32 v{CF+j}, 0")
            b("s_mov_b32 exec_lo, -1")
            b.end()
            for i in range(2):
                b(f"v_rcp_f32 v{C1+i}, v{SF+2*i+1}")
                b(f"v_cvt_pk_bf16_f32 v{M2+2*i}, -v{SF+2*i}, -v{SF+2*i}")
                b(f"v_cvt_pk_bf16_f32 v{M2+2*i+1}, -v{SF+2*i}, -v{SF+2*i}")
                b(f"v_mul_f32 v{KK+i}, v{SF+2*i+1}, v{SF+2*i+1}")
                b(f"v_mul_f32 v{C1+i}, {hex(f2u(-LOG2E))}, v{C1+i}")
            b(f"v_mov_b32 v{AD}, {ACNT}\nv_mov_b32 v{AD+1}, 1")

        def swiglu(n, i, j):
            b = self.a
            c, hp = acc(i, j), HP + 4 * (n % 3)
            for r in range(8):
                b(f"v_mul_f32 v{E+r}, v{c+r}, v{C1+i}")
            for r in range(8):
                b(f"v_exp_f32 v{E+r}, v{E+r}")
                b(f"v_mul_f32 v{c+r}, v{c+r}, v{c+8+r}")
            for r in range(8):
                b(f"v_fma_f32 v{E+r}, v{E+r}, v{KK+i}, v{KK+i}")
            for r in range(8):
                b(f"v_rcp_f32 v{E+r}, v{E+r}")
            for r in range(8):
                b(f"v_mul_f32 v{c+r}, v{c+r}, v{E+r}")
            for r in range(4):
                b(f"v_cvt_pk_bf16_f32 v{hp+r}, v{c+2*r}, v{c+2*r+1}")
            b.vmem(f"buffer_store_dwordx4 {vr(hp,4)}, v{VH}, {sr(SWS,4)}, s{sH+j} offen offset:{i*2048} sc1", "hst")

        order = [(i, j) for j in range(3) for i in range(2)]
        for r in reads(0):
            a.ds(r, "f")
        for g in range(39):
            p = g & 1
            a.lg.drain()
            if (g + 1) & 3 == 0:
                if g == 3:
                    a.vm.drain()
                self.stamp(((g + 1) >> 2) + 1, "2")
                a("s_barrier")
            if g == 35:
                a(f"s_setprio {self.o.get('eprio', 2)}")
            fill = dsl(reads(g + 1))
            if g == 33:
                fill += self.rec(corr_addr)
            if g == 37:
                fill += dsl([f"ds_read_b32 v{E}, v{AD+2}"])
                run([mf(p, i, j) for i, j in order], fill, 3)
                continue
            if g == 38:
                go = a.label("ggo")
                a(f"v_readfirstlane_b32 s{sT0}, v{E}\ns_cmp_eq_u32 s{sT0}, 4\ns_cbranch_scc1 {go}")
                self.lds_flag_wait(AD + 2, E, go, 4)
                a(f"{go}:")
                cr = [f"ds_read_b64 {vr(CF+2*j,2)}, v{AD} offset:{j*256}" for j in range(3)]
                cr += [f"ds_read_b64 {vr(SF+2*i,2)}, v{AD+1} offset:{i*256}" for i in range(2)]
                fill = [[("ds", r, "cr")] for r in cr] + fill
                ms = [mf(p, i, j) for i, j in order]
                run(ms[:4], fill, 4)
                run(ms[4:], [[("lgwait", ("cr",))]] + self.rec(corr_prepare), 7)
                continue
            run([mf(p, i, j, g == 0) for i, j in order], fill, 3 if len(fill) <= 16 else 5)
        a.lg.drain()
        a("s_mov_b64 exec, 1")
        a.ds(f"ds_add_u32 v{AD}, v{AD+1}", "ac")
        a("s_mov_b64 exec, -1")
        self.stamp(2)
        self.stamp(1, "3")
        last = []
        for i, j in order:
            last += [mf(1, i, j),
                     f"v_mfma_f32_32x32x8_bf16 {vr(acc(i,j),16)}, {vr(CF+2*j,2)}, {vr(M2+2*i,2)}, {vr(acc(i,j),16)}"]
        for m in last[:4]:
            a(m)
        run(last[4:], self.rec(swiglu, 0, *order[0]), 6)
        for n in range(1, 6):
            self.stamp(1 + n, "3")
            swiglu(n, *order[n])
        self.stamp(3)
        self.stamp(7, "3")
        V16, V16B, VLX, VLW, VF = 1, 2, 3, 4, 5
        a(f"""
        v_lshlrev_b32 v{V16}, 4, v0
        v_add_u32 v{V16B}, 1024, v{V16}
        s_lshl_b32 s{sT0}, s{sB}, 12
        v_add_u32 v{VLX}, s{sT0}, v{V16}
        s_mul_i32 s{sT0}, s{sB}, 6144
        s_add_u32 s{sT0}, s{sT0}, {WS_}
        v_add_u32 v{VLW}, s{sT0}, v{V16}
        v_mov_b32 v{VF}, {WFLG}
        """)

        def wload(i, j):
            if self.o.get("x_nowd"):
                return
            r = WR + (i % NW) * 20 + 4 * j
            v, off = (V16, 0) if j == 0 else (V16B, (j - 1) * 1024)
            a.vmem(f"buffer_load_dwordx4 {vr(r,4)}, v{v}, {sr(SWS,4)}, s{sWo} offen offset:{off} sc1", f"w{i}")

        def hload(i, tt):
            r = HR + (i % NH) * 16 + 4 * tt
            a.vmem(f"buffer_load_dwordx4 {vr(r,4)}, v{V16}, {sr(SWS,4)}, s{sHo} offen offset:{tt*1024} sc1", f"h{i}_{tt}")

        go = a.label("cwgo")
        a(f"v_mov_b32 v{VF+1}, {CWFLG}")
        a.lg.drain()
        self.lds_flag_wait(VF + 1, VF + 2, go)
        a(f"{go}:")
        wseq = [5, 4, 3, 2, 1, 0]
        NPRE = int(self.o.get("npre", 1))
        for i in wseq[:NPRE]:
            self.step_off(i, sWo, sWb, sRot, 5120)
            for j in range(5):
                wload(i, j)
        a.vm.wait("hst")
        self.signal([sPo], sPv)
        a("s_setprio 0")
        self.stamp(4)
        self.stamp(8, "3")
        for i in wseq[NPRE:]:
            self.step_off(i, sWo, sWb, sRot, 5120)
            for j in range(5):
                wload(i, j)
        a(f"s_lshl2_add_u32 s{sT0}, s{sRB2}, s{sB}")
        a.lg.drain()
        self.cnt_off(sPo, cH, sT0)
        self.stamp(8)
        items = [(sPv, sPo, 0 if self.o.get("x_nopoll") else 8)]
        self.poll_issue(items, atomic=True)
        self.poll_check(items, atomic=True)
        self.stamp(5)
        self.stamp(9, "3")
        H0 = int(self.o.get("h0", 2))
        sHend = sWo
        self.step_off(0, sHo, sHb, sRot, 4096)
        a(f"s_add_u32 s{sHend}, s{sHb}, {12*4096}")

        def hadv():
            return [[("i", f"s_add_u32 s{sHo}, s{sHo}, 4096")],
                    [("i", f"s_cmp_eq_u32 s{sHo}, s{sHend}"), ("i", f"s_cselect_b32 s{sHo}, s{sHb}, s{sHo}")]]

        def hl(i, tt):
            r = HR + (i % NH) * 16 + 4 * tt
            return [("vmem", f"buffer_load_dwordx4 {vr(r,4)}, v{V16}, {sr(SWS,4)}, s{sHo} offen offset:{tt*1024} sc1", f"h{i}_{tt}")]

        for i in range(H0):
            for tt in range(4):
                play(a, hl(i, tt))
            for g in hadv():
                play(a, g)
        acc2 = lambda tt, j: ACC2 + (tt * 5 + j) * 4
        fill = []
        for i in range(H0, 12):
            for tt in range(4):
                free = 20 * (i - NH) + 5 * tt + 6 if i >= NH else 0
                fill.append((free, hl(i, tt)))
            fill += [(0, g) for g in hadv()]
        TM = int(self.o.get("tm", 2))
        seq = [(i, tt) for i in range(12 - TM) for tt in range(4)] + [(i, tt) for tt in range(4) for i in range(12 - TM, 12)]
        mi = 0
        lfill = []
        pw = []
        for i, tt in seq:
            if tt == 0 and i in (1, 4, 8):
                self.stamp({1: 10, 4: 11, 8: 12}[i], "3")
            if (i, tt) == (4, 0):
                a.ds(f"ds_read_b32 v{VF+1}, v{VF}", "wf")
            if (i, tt) == (4, 2):
                go = a.label("wgo")
                a.lg.drain()
                a(f"v_readfirstlane_b32 s{sT0}, v{VF+1}\ns_cmp_eq_u32 s{sT0}, 1\ns_cbranch_scc1 {go}")
                self.lds_flag_wait(VF, VF + 1, go)
                a(f"{go}:")
            nx = i + 2 if tt == 0 else None
            if nx is not None and NW <= nx < 12:
                for j in range(5):
                    v, off = self.wl_addr(5 * (nx - NW) + j, VLX, VLW)
                    lfill.append((mi + (11 if nx == NW else 0), [("ds", f"ds_read_b128 {vr(WR+(nx%NW)*20+4*j,4)}, v{v} offset:{off}", f"wr{nx}")]))
            assert not any(op[0] == "vmem" and op[2] == f"h{i}_{tt}" for _, g in fill for op in g)
            assert not any(op[2] == f"wr{i}" for _, g in lfill for op in g)
            a.lg.wait(f"wr{i}")
            a.vm.wait(f"w{i}", f"h{i}_{tt}")
            for j in range(5):
                c = "0" if i == 0 else vr(acc2(tt, j), 4)
                a(f"v_mfma_f32_16x16x32_bf16 {vr(acc2(tt,j),4)}, {vr(WR+(i%NW)*20+4*j,4)}, {vr(HR+(i%NH)*16+4*tt,4)}, {c}")
                mi += 1
                if fill and fill[0][0] <= mi:
                    play(a, fill.pop(0)[1])
                elif lfill and lfill[0][0] <= mi:
                    play(a, lfill.pop(0)[1])
                elif pw and pw[0][0] <= mi:
                    play(a, pw.pop(0)[1])
            if i == 11:
                for j in range(5):
                    t = tt * 5 + j
                    v, off = self.wl_addr(t, VLX, VLW)
                    pw.append((mi + 3, [("ds", f"ds_write_b128 v{v}, {vr(ACC2+4*t,4)} offset:{off}", "p")]))
        assert not fill and not lfill
        self.stamp(6)
        self.stamp(13, "3")
        for _, g in pw:
            play(a, g)
        a.lg.drain()
        a("s_barrier")
        self.stamp(7)
        self.dump_stamps("A")
        a("s_endpgm")

    def wl_addr(self, f, vx, vw):
        sl, n = (1, 2, 0)[f // 10], f % 10
        return (vx, XS + sl * 16384 + n * 1024) if n < 4 else (vw, sl * 24576 + (n - 4) * 1024)

    def g2_scalars(self, sRot, sWb):
        a = self.a
        a(f"""
        s_mul_i32 s{sT0}, s{sCB2}, 3
        s_lshr_b32 s{sT0}, s{sT0}, 1
        s_and_b32 s{sT1}, s{sI}, 3
        s_mul_i32 s{sT1}, s{sT1}, 3
        s_add_u32 s{sT0}, s{sT0}, s{sT1}
        s_sub_u32 s{sT1}, s{sT0}, 12
        """)
        a.begin()
        a(f"s_cmp_ge_u32 s{sT0}, 12\ns_cselect_b32 s{sRot}, s{sT1}, s{sT0}")
        a.end()
        if self.o.get("rot2", "0") == "0":
            a(f"s_mov_b32 s{sRot}, 0")
        a(f"""
        s_mul_i32 s{sT0}, s{sB}, 12
        s_mul_i32 s{sT1}, s{sCB2}, 48
        s_add_u32 s{sT1}, s{sT1}, s{sT0}
        s_mul_i32 s{sWb}, s{sT1}, 5120
        s_add_u32 s{sWb}, s{sWb}, {WDT}
        """)

    def step_off(self, i, so, sb, sRot, mul):
        a = self.a
        a.begin()
        a(f"""
        s_add_u32 s{so}, s{sRot}, {i}
        s_sub_u32 s{sT3}, s{so}, 12
        s_cmp_ge_u32 s{so}, 12
        s_cselect_b32 s{so}, s{sT3}, s{so}
        s_mul_i32 s{so}, s{so}, {mul}
        s_add_u32 s{so}, s{so}, s{sb}
        """)
        a.end()

    def b_common_setup(self):
        a = self.a
        VX, VG, VU, T = 1, 5, 8, 20
        self.VX, self.VG, self.VU = VX, VG, VU
        self.sXL, self.sWL, self.sXO, self.sWO = sA, sA + 1, sA + 2, sA + 3
        a("L_roleB:")
        a(f"""
        v_lshrrev_b32 v{T}, 3, v0
        v_mul_u32_u24 v{T}, 1280, v{T}
        s_lshl2_add_u32 s{sT0}, s{sRB1}, s{sB}
        s_mul_i32 s{sT0}, s{sT0}, 40960
        v_add_u32 v{T}, s{sT0}, v{T}
        v_and_b32 v{T+1}, 7, v0
        v_lshrrev_b32 v{T+2}, 4, v0
        v_xor_b32 v{T+1}, v{T+1}, v{T+2}
        v_lshl_add_u32 v{VX}, v{T+1}, 4, v{T}
        v_xor_b32 v{VX+1}, 64, v{VX}
        v_add_u32 v{VX+1}, 10240, v{VX+1}
        v_add_u32 v{VX+2}, 20480, v{VX}
        v_add_u32 v{VX+3}, 20480, v{VX+1}
        v_bfe_u32 v{T}, v0, 2, 2
        v_mul_u32_u24 v{T}, 3072, v{T}
        v_and_b32 v{T+1}, 3, v0
        v_lshl_add_u32 v{T}, v{T+1}, 4, v{T}
        s_mul_i32 s{sT0}, s{sB}, 49152
        s_mul_i32 s{sT1}, s{sCB1}, 192
        s_add_u32 s{sT0}, s{sT0}, s{sT1}
        v_add_u32 v{T}, s{sT0}, v{T}
        """)
        for i in range(3):
            a(f"""
            v_add_u32 v{T+1}, {4*i}, v{T+2}
            v_mul_u32_u24 v{T+3}, 11, v{T+1}
            v_lshrrev_b32 v{T+3}, 5, v{T+3}
            v_mul_u32_u24 v{T+4}, {12288-192}, v{T+3}
            v_lshl_add_u32 v{T+4}, v{T+1}, 6, v{T+4}
            v_add_u32 v{VG+i}, v{T+4}, v{T}
            v_xor_b32 v{VU+i}, 32, v{VG+i}
            """)
        a(f"""
        s_lshl_b32 s{self.sXL}, s{sB}, 12
        s_mul_i32 s{self.sWL}, s{sB}, 6144
        s_add_u32 s{self.sWL}, s{self.sWL}, {WS_}
        s_waitcnt lgkmcnt(0)
        """)

    def stage_issue(self, s):
        a = self.a
        sl = s % 3
        fl = self.o.get("g1flags", "")
        for i in range(4):
            a.begin()
            if i == 0:
                a(f"""
                s_lshl_b32 s{self.sXO}, s{sKS}, 7
                s_mul_i32 s{self.sWO}, s{sKS}, 196608
                s_add_u32 s{sKS}, s{sKS}, 1
                s_cmp_eq_u32 s{sKS}, 10
                s_cselect_b32 s{sKS}, 0, s{sKS}
                """)
            a(f"s_add_u32 m0, s{self.sXL}, {XS+sl*16384+i*1024}")
            a.vmem(f"buffer_load_dwordx4 v{self.VX+i}, {sr(SQ,4)}, s{self.sXO} offen {fl} lds", f"S{s}")
            a.end()
        for up in range(2):
            for i in range(3):
                a.begin()
                a(f"s_add_u32 m0, s{self.sWL}, {sl*24576+up*3072+i*1024}")
                a.vmem(f"buffer_load_dwordx4 v{(self.VU if up else self.VG)+i}, {sr(SWU if up else SWG,4)}, s{self.sWO} offen {fl} lds", f"S{s}")
                a.end()

    def stats_load(self):
        a = self.a
        T, X = 156, 24
        a(f"""
        v_lshrrev_b32 v{T}, 5, v0
        s_lshl2_add_u32 s{sT0}, s{sWS}, s{sB}
        s_lshl_b32 s{sT0}, s{sT0}, 1
        v_add_u32 v{T}, s{sT0}, v{T}
        v_lshlrev_b32 v19, 3, v{T}
        v_mul_u32_u24 v{T}, 1280, v{T}
        v_and_b32 v{T+1}, 31, v0
        v_lshl_add_u32 v{T}, v{T+1}, 3, v{T}
        """)
        for j in range(5):
            a.vmem(f"buffer_load_dwordx2 {vr(X+2*j,2)}, v{T}, {sr(SQ,4)}, 0 offen offset:{j*256}", "stat")

    def reduce32(self, v, t):
        a = self.a
        for n in (8, 4, 2, 1):
            a(f"v_add_f32_dpp v{v}, v{v}, v{v} row_ror:{n} row_mask:0xf bank_mask:0xf")
        a(f"v_mov_b32 v{t}, v{v}\nv_permlane16_swap_b32 v{v}, v{t}\nv_add_f32 v{v}, v{v}, v{t}")

    def stats_compute(self, announce):
        a = self.a
        X, U, T = 24, 34, 20
        a.vm.wait("stat")
        if announce:
            a(f"""
        s_cmp_lg_u32 s{sA+8}, 0
        s_cbranch_scc1 {announce}
        v_mov_b32 v{T}, 1
        s_mov_b64 exec, 1
        buffer_store_dword v{T}, off, {sr(SDBG,4)}, 0 sc1
        s_mov_b64 exec, -1
        {announce}:
        """)
        for j in range(10):
            a(f"v_lshlrev_b32 v{U+2*j}, 16, v{X+j}\nv_and_b32 v{U+2*j+1}, 0xffff0000, v{X+j}")
        a(f"v_add_f32 v{T}, v{U}, v{U+1}\nv_add_f32 v{T+1}, v{U+2}, v{U+3}")
        for j in range(4, 20):
            a(f"v_add_f32 v{T+(j&1)}, v{T+(j&1)}, v{U+j}")
        a(f"v_add_f32 v{T}, v{T}, v{T+1}")
        self.reduce32(T, T + 1)
        a(f"v_mul_f32 v{T}, {hex(f2u(1.0/640))}, v{T}")
        for j in range(20):
            a(f"v_sub_f32 v{U+j}, v{U+j}, v{T}")
        a(f"v_mul_f32 v{T+1}, v{U}, v{U}\nv_mul_f32 v{T+2}, v{U+1}, v{U+1}")
        for j in range(2, 20):
            a(f"v_fmac_f32 v{T+1+(j&1)}, v{U+j}, v{U+j}")
        a(f"v_add_f32 v{T+1}, v{T+1}, v{T+2}")
        self.reduce32(T + 1, T + 2)
        a(f"""
        v_mul_f32 v{T+1}, {hex(f2u(1.0/640))}, v{T+1}
        v_cvt_pk_bf16_f32 v{T+2}, v{T}, v{T+1}
        v_lshlrev_b32 v{T}, 16, v{T+2}
        v_and_b32 v{T+1}, 0xffff0000, v{T+2}
        v_add_f32 v{T+1}, {hex(f2u(1e-5))}, v{T+1}
        v_cvt_pk_bf16_f32 v{T+1}, v{T+1}, v{T+1}
        v_and_b32 v{T+1}, 0xffff0000, v{T+1}
        v_sqrt_f32 v{T+1}, v{T+1}
        v_cvt_pk_bf16_f32 v{T+1}, v{T+1}, v{T+1}
        v_and_b32 v{T+1}, 0xffff0000, v{T+1}
        s_mov_b32 s{sT0}, {ST}
        """)
        a.begin()
        a("s_mov_b32 exec_lo, 1\ns_mov_b32 exec_hi, 1")
        a.vmem(f"buffer_store_dwordx2 {vr(T,2)}, v19, {sr(SWS,4)}, s{sT0} offen sc1", "stst")
        a("s_mov_b64 exec, -1")
        a.end()

    def colsum_partial(self):
        a = self.a
        T, F = 12, 60
        a(f"""
        v_bfe_u32 v{T+2}, v0, 4, 1
        v_mul_u32_u24 v{T+3}, 3072, v{T+2}
        v_lshrrev_b32 v{T+4}, 5, v0
        v_mul_u32_u24 v{T+4}, 1536, v{T+4}
        v_bfe_u32 v{T+5}, v0, 2, 2
        v_lshl_add_u32 v{T+3}, v{T+5}, 6, v{T+3}
        v_and_b32 v{T+5}, 1, v0
        v_lshl_add_u32 v{T+3}, v{T+5}, 4, v{T+3}
        v_bfe_u32 v{T+5}, v0, 1, 1
        v_lshl_add_u32 v{T+3}, v{T+5}, 3, v{T+3}
        v_lshl_add_u32 v{T+3}, v{T+2}, 5, v{T+3}
        s_min_u32 s{sT1}, s{sB}, 2
        s_lshl_b32 s{sT1}, s{sT1}, 8
        s_add_u32 s{sT0}, s{sT1}, {WS_}
        v_add3_u32 v{T}, v{T+3}, v{T+4}, s{sT0}
        v_xor_b32 v{T+1}, 32, v{T}
        s_lshl4_add_u32 s{sT0}, s{sCB1}, s{sRB1}
        s_mul_i32 s{sT0}, s{sT0}, 768
        s_add_u32 s{sT0}, s{sT0}, s{sT1}
        s_add_u32 s{sT0}, s{sT0}, {CS}
        s_mov_b32 s{sT1}, 0x3f803f80
        v_lshlrev_b32 v{T+6}, 2, v0
        """)
        for h in range(2):
            for n in range(8):
                a.ds(f"ds_read_b64_tr_b16 {vr(F+16*h+2*n,2)}, v{T+h} offset:{(n>>1)*6144+(n&1)*768}", f"cs{h}")
        for r in range(4):
            a(f"v_mov_b32 v{T+2+r}, 0")
        for h in range(2):
            a.lg.wait(f"cs{h}")
            for n in range(16):
                a(f"v_dot2c_f32_bf16 v{T+2+2*h+(n&1)}, s{sT1}, v{F+16*h+n}")
        a(f"v_add_f32 v{T+2}, v{T+2}, v{T+3}\nv_add_f32 v{T+4}, v{T+4}, v{T+5}")
        a(f"v_permlane32_swap_b32 v{T+2}, v{T+4}\nv_add_f32 v{T+2}, v{T+2}, v{T+4}")
        a(f"v_mov_b32 v148, v{T+2}\nv_add_u32 v149, s{sT0}, v{T+6}")

    def colsum_store(self):
        self.a.vmem(f"buffer_store_dword v148, v149, {sr(SWS,4)}, 0 offen sc1", "csst")

    def gather_issue(self):
        a = self.a
        T, G = 14, 24
        a(f"""
        v_and_b32 v{T}, 31, v0
        s_lshl2_add_u32 s{sT0}, s{sRB1}, s{sB}
        s_lshl_b32 s{sT0}, s{sT0}, 8
        s_add_u32 s{sT0}, s{sT0}, {ST}
        v_lshlrev_b32 v{T}, 3, v{T}
        s_mul_i32 s{sT1}, s{sCB1}, 12288
        s_mul_i32 s{sT2}, s{sB}, 192
        s_add_u32 s{sT1}, s{sT1}, s{sT2}
        s_add_u32 s{sT1}, s{sT1}, {CS}
        s_add_u32 s{sT2}, s{sT1}, 3840
        v_lshlrev_b32 v{T+1}, 2, v0
        """)
        a.vmem(f"buffer_load_dwordx2 {vr(G,2)}, v{T}, {sr(SWS,4)}, s{sT0} offen sc1", "gat")
        for p in range(10):
            a.vmem(f"buffer_load_dword v{G+2+p}, v{T+1}, {sr(SWS,4)}, s{sT1 if p < 5 else sT2} offen offset:{(p%5)*768} sc1", "gat")

    def gather_finish(self):
        a = self.a
        T, G = 14, 24
        a.vm.wait("gat")
        a(f"s_lshl_b32 s{sT0}, s{sB}, 8\ns_add_u32 s{sT0}, s{sT0}, {STL}\nv_add_u32 v{T}, s{sT0}, v{T}")
        a.ds(f"ds_write_b64 v{T}, {vr(G,2)}", "gw")
        c = G + 2
        for p in range(5):
            a(f"v_add_f32 v{c+p}, v{c+p}, v{c+5+p}")
        a(f"""
        v_add_f32 v{c}, v{c}, v{c+1}
        v_add_f32 v{c+2}, v{c+2}, v{c+3}
        v_add_f32 v{c}, v{c}, v{c+4}
        v_add_f32 v{c}, v{c}, v{c+2}
        v_cvt_pk_bf16_f32 v{c+1}, v{c}, v{c}
        v_and_b32 v{c+1}, 0xffff0000, v{c+1}
        v_sub_f32 v{c+1}, v{c}, v{c+1}
        v_cvt_pk_bf16_f32 v{c+2}, v{c}, v{c+1}
        v_and_b32 v{c+4}, 0xffff0000, v{c+2}
        v_sub_f32 v{c+1}, v{c+1}, v{c+4}
        v_cvt_pk_bf16_f32 v{c+3}, v{c+1}, 0
        s_mul_i32 s{sT0}, s{sB}, 384
        s_add_u32 s{sT0}, s{sT0}, {CSF}
        v_lshl_add_u32 v{T+1}, v0, 3, s{sT0}
        """)
        a.begin()
        a("s_mov_b32 exec_hi, 0xffff")
        a.ds(f"ds_write_b64 v{T+1}, {vr(c+2,2)}", "gw")
        a("s_mov_b32 exec_hi, -1")
        a.end()
        a(f"v_mov_b32 v{T}, {GCNT}\nv_mov_b32 v{T+1}, 1\ns_mov_b64 exec, 1")
        a.ds(f"ds_add_u32 v{T}, v{T+1}", "gw")
        a("s_mov_b64 exec, -1")

    def kv_issue(self):
        a = self.a
        T = 150
        fl = self.o.get("p0flags", "nt")
        sR, sT0K, sCG = sA + 5, sA + 6, sA + 7
        a(f"""
        s_and_b32 s{sT0K}, s{sC}, 63
        s_lshl_b32 s{sT0K}, s{sT0K}, 5
        s_lshr_b32 s{sCG}, s{sC}, 6
        s_mul_i32 s{sR}, s{sB}, 8704
        s_add_u32 s{sR}, s{sR}, {AUX}
        v_lshrrev_b32 v{T}, 3, v0
        v_mul_u32_u24 v{T}, 1280, v{T}
        v_and_b32 v{T+1}, 7, v0
        v_lshl_add_u32 v{T}, v{T+1}, 4, v{T}
        s_mul_i32 s{sT0}, s{sT0K}, 1280
        s_lshl_b32 s{sT1}, s{sCG}, 7
        s_add_u32 s{sT0}, s{sT0}, s{sT1}
        v_add_u32 v{T+2}, s{sT0}, v{T}
        v_subrev_u32 v{T}, 5120, v{T+2}
        v_add_u32 v{T+1}, 5120, v{T+2}
        s_lshl_b32 s{sT1}, s{sCG}, 9
        v_lshlrev_b32 v{T+3}, 3, v0
        """)
        a.begin()
        a(f"s_mov_b32 m0, s{sR}")
        a.vmem(f"buffer_load_dwordx4 v{T}, {sr(SK,4)}, 0 offen {fl} lds", "kv")
        a.end()
        for i in range(1, 5):
            a.begin()
            a(f"s_add_u32 m0, s{sR}, {i*1024}\ns_mov_b32 s{sT0}, {(i-1)*10240}")
            if i == 4:
                a("s_mov_b32 exec_hi, 0")
            a.vmem(f"buffer_load_dwordx4 v{T+1}, {sr(SK,4)}, s{sT0} offen {fl} lds", "kv")
            if i == 4:
                a("s_mov_b32 exec_hi, -1")
            a.end()
        for i in range(4):
            a.begin()
            a(f"s_add_u32 m0, s{sR}, {4608+i*1024}\ns_mov_b32 s{sT0}, {i*10240}")
            a.vmem(f"buffer_load_dwordx4 v{T+2}, {sr(SV,4)}, s{sT0} offen {fl} lds", "kv")
            a.end()
        a.vmem(f"buffer_load_dwordx2 v[54:55], v{T+3}, {sr(SSH,4)}, s{sT1} offen", "kv")

    def kv_work(self):
        a = self.a
        T, K, Vv, W, KF, O = 20, 60, 78, 14, 96, 132
        sR, sT0K, sCG = sA + 5, sA + 6, sA + 7
        a(f"""
        v_bfe_u32 v{T}, v0, 2, 2
        v_lshrrev_b32 v{T+1}, 4, v0
        v_lshlrev_b32 v{T+1}, 5, v{T+1}
        v_lshl_add_u32 v{T}, v{T}, 7, v{T+1}
        v_and_b32 v{T+1}, 3, v0
        v_lshl_add_u32 v{T}, v{T+1}, 3, v{T}
        v_add_u32 v{T}, s{sR}, v{T}
        v_mul_u32_u24 v150, 80, v0
        v_add_u32 v150, s{sR}, v150
        v_lshrrev_b32 v{T+2}, 2, v0
        v_mul_u32_u24 v151, 80, v{T+2}
        v_lshl_add_u32 v151, v{T+1}, 4, v151
        v_add_u32 v151, s{sR}, v151
        v_lshlrev_b32 v{T+2}, 12, v{T+2}
        v_lshl_add_u32 v152, v{T+1}, 4, v{T+2}
        s_lshl_b32 s{sA+8}, s{sCG}, 18
        s_lshl1_add_u32 s{sA+8}, s{sT0K}, s{sA+8}
        s_add_u32 s{sA+8}, s{sA+8}, {UT}
        """)
        a.vm.wait("kv")
        for i in range(9):
            a.ds(f"ds_read_b64_tr_b16 {vr(K+2*i,2)}, v{T} offset:{i*512}", f"k{i}")
            if i < 8:
                a.ds(f"ds_read_b64_tr_b16 {vr(Vv+2*i,2)}, v{T} offset:{4608+i*512}", f"v{i}")
        a(f"""
        v_lshlrev_b32 v{W}, 16, v54
        v_and_b32 v{W+1}, 0xffff0000, v54
        v_lshlrev_b32 v{W+2}, 16, v55
        v_and_b32 v{W+3}, 0xffff0000, v55
        """)
        nk = 0
        for p in range(16):
            while nk < p + 3:
                a.lg.wait(f"k{nk>>1}")
                a(f"v_lshlrev_b32 v{KF+2*nk}, 16, v{K+nk}\nv_and_b32 v{KF+2*nk+1}, 0xffff0000, v{K+nk}")
                nk += 1
            for e in range(2):
                a(f"v_mul_f32 v{T+e}, v{W+3}, v{KF+2*p+e+1}")
            for d in (2, 1, 0):
                for e in range(2):
                    a(f"v_fmac_f32 v{T+e}, v{W+d}, v{KF+2*p+e+4-d}")
            a.lg.wait(f"v{p>>1}")
            a(f"v_lshlrev_b32 v{T+2}, 16, v{Vv+p}\nv_and_b32 v{T+3}, 0xffff0000, v{Vv+p}")
            a(f"v_mul_f32 v{T}, v{T}, v{T+2}\nv_mul_f32 v{T+1}, v{T+1}, v{T+3}")
            a(f"v_cvt_pk_bf16_f32 v{O+p}, v{T}, v{T+1}")
        for j in range(4):
            a.ds(f"ds_write_b128 v150, {vr(O+4*j,4)} offset:{j*16}", "bw")
        for j in range(4):
            a.ds(f"ds_read_b128 {vr(KF+4*j,4)}, v151 offset:{j*1280}", f"br{j}")
        for j in range(4):
            a.lg.wait(f"br{j}")
            a.vmem(f"buffer_store_dwordx4 {vr(KF+4*j,4)}, v152, {sr(SWS,4)}, s{sA+8} offen sc1", "utst")
            if j < 3:
                a(f"s_add_u32 s{sA+8}, s{sA+8}, 65536")

    def wd_issue(self):
        a = self.a
        T = 150
        fl = self.o.get("p0flags", "nt")
        sR = sA + 5
        a(f"""
        s_lshr_b32 s{sT0}, s{sC}, 3
        s_and_b32 s{sT1}, s{sC}, 3
        s_lshl2_add_u32 s{sT0}, s{sT0}, s{sT1}
        s_mul_i32 s{sT0}, s{sT0}, 10240
        s_bfe_u32 s{sT1}, s{sC}, 0x10002
        s_mul_i32 s{sT1}, s{sT1}, 640
        s_add_u32 s{sT0}, s{sT0}, s{sT1}
        s_mul_i32 s{sR}, s{sB}, 8704
        s_add_u32 s{sR}, s{sR}, {AUX}
        """)
        for i in range(5):
            a(f"""
            v_add_u32 v{T+1}, {64*i}, v0
            v_mul_u32_u24 v{T+2}, 1639, v{T+1}
            v_lshrrev_b32 v{T+2}, 16, v{T+2}
            v_mul_u32_u24 v{T+2}, 640, v{T+2}
            v_lshl_add_u32 v{T+2}, v{T+1}, 4, v{T+2}
            """)
            a.begin()
            a(f"s_add_u32 m0, s{sR}, {i*1024}")
            a.vmem(f"buffer_load_dwordx4 v{T+2}, {sr(SWD,4)}, s{sT0} offen {fl} lds", "kv")
            a.end()

    def wd_work(self):
        a = self.a
        T, F, VA = 20, 60, 150
        sR = sA + 5
        a(f"""
        v_bfe_u32 v{T}, v0, 2, 2
        v_mul_u32_u24 v{T}, 640, v{T}
        v_lshrrev_b32 v{T+2}, 4, v0
        v_lshl_add_u32 v{T}, v{T+2}, 5, v{T}
        v_and_b32 v{T+1}, 3, v0
        v_lshl_add_u32 v{T}, v{T+1}, 3, v{T}
        v_add_u32 v{T}, s{sR}, v{T}
        s_bfe_u32 s{sA+8}, s{sC}, 0x10002
        s_mul_i32 s{sA+8}, s{sA+8}, 192
        s_lshr_b32 s{sT1}, s{sC}, 3
        s_add_u32 s{sA+8}, s{sA+8}, s{sT1}
        s_mul_i32 s{sA+8}, s{sA+8}, 5120
        s_and_b32 s{sT1}, s{sC}, 3
        s_lshl_b32 s{sT1}, s{sT1}, 8
        s_add_u32 s{sA+8}, s{sA+8}, s{sT1}
        s_add_u32 s{sA+8}, s{sA+8}, {WDT}
        v_and_b32 v{T+1}, 15, v0
        v_lshlrev_b32 v{T+1}, 4, v{T+1}
        """)
        for n in range(5):
            a(f"""
            v_add_u32 v{T+3}, {4*n}, v{T+2}
            v_mul_u32_u24 v{VA+n}, 13, v{T+3}
            v_lshrrev_b32 v{VA+n}, 6, v{VA+n}
            v_mul_u32_u24 v{VA+n}, {245760-5120}, v{VA+n}
            v_lshl_add_u32 v{VA+n}, v{T+3}, 10, v{VA+n}
            v_add_u32 v{VA+n}, v{VA+n}, v{T+1}
            """)
        a.vm.wait("kv")
        for n in range(5):
            for q in range(2):
                a.ds(f"ds_read_b64_tr_b16 {vr(F+4*n+2*q,2)}, v{T} offset:{q*2560+n*128}", f"wt{n}")
        for n in range(5):
            a.lg.wait(f"wt{n}")
            a.vmem(f"buffer_store_dwordx4 {vr(F+4*n,4)}, v{VA+n}, {sr(SWS,4)}, s{sA+8} offen sc1", "utst")

    def conv_issue(self):
        a = self.a
        fl = self.o.get("p0flags", "nt")
        a(f"""
        s_lshl_b32 s{sT0}, s{self.sCH}, 12
        s_add_u32 m0, s{self.sR}, 96
        s_lshl_b32 s{sT1}, s{self.sCH}, 1
        """)
        for i in range(4):
            a.vmem(f"buffer_load_dwordx4 v18, {sr(SSK,4)}, s{sT0} offen offset:{i*1024} {fl} lds", "hk")
        a.vmem(f"buffer_load_ushort v19, off, {sr(SSD,4)}, s{sT1}", "hk")

    def conv_u_issue(self):
        a = self.a
        a(f"s_lshl_b32 s{sT0}, s{self.sCH}, 12\ns_add_u32 m0, s{self.sR}, 4352\ns_add_u32 s{sT0}, s{sT0}, {UT}")
        for i in range(4):
            a.vmem(f"buffer_load_dwordx4 v18, {sr(SWS,4)}, s{sT0} offen offset:{i*1024} sc1 lds", f"u{i}")

    def conv_setup(self):
        a = self.a
        T = 4
        a(f"""
        v_lshlrev_b32 v{T}, 2, v0
        v_add_u32 v{T}, s{self.sR}, v{T}
        v_mov_b32 v{T+1}, 0
        s_mov_b32 exec_hi, 0
        s_mov_b32 exec_lo, 0xffffff
        """)
        a.ds(f"ds_write_b32 v{T}, v{T+1}", "z")
        a("s_mov_b32 exec_lo, -1\ns_mov_b32 exec_hi, 0xff")
        a.ds(f"ds_write_b32 v{T}, v{T+1} offset:4192", "z")
        a("s_mov_b64 exec, -1")
        a(f"""
        v_and_b32 v{T}, 3, v0
        v_lshrrev_b32 v{T+1}, 4, v0
        v_bfe_u32 v{T+2}, v0, 2, 2
        v_lshlrev_b32 v{T+3}, 6, v{T+1}
        v_lshl_add_u32 v{T+3}, v{T+2}, 3, v{T+3}
        v_lshl_add_u32 v1, v{T}, 5, v{T+3}
        v_add_u32 v1, s{self.sR}, v1
        v_lshlrev_b32 v{T}, 3, v{T}
        v_sub_u32 v2, v{T}, v{T+3}
        s_add_u32 s{sT0}, s{self.sR}, {4352+64}
        v_add_u32 v2, s{sT0}, v2
        v_lshl_add_u32 v3, v0, 1, s{self.sR}
        v_mov_b32 v10, 0
        v_mov_b32 v11, 0
        v_lshl_add_u32 v12, v0, 4, s{self.sR}
        s_lshl_b32 s{self.sY}, s{self.sCH}, 12
        s_add_u32 s{self.sY}, s{self.sY}, {YY}
        """)

    def xt_issue(self):
        a = self.a
        T = 20
        a(f"""
        s_mul_i32 s{sT1}, s{sRB2}, 81920
        s_mul_i32 s{sT2}, s{sCB2}, 160
        s_add_u32 s{sT1}, s{sT1}, s{sT2}
        """)
        for p in range(10):
            a(f"""
            v_add_u32 v{T}, {64*p}, v0
            v_mul_u32_u24 v{T+1}, 6554, v{T}
            v_lshrrev_b32 v{T+1}, 16, v{T+1}
            v_mul_u32_u24 v{T+1}, 1120, v{T+1}
            v_lshl_add_u32 v{T+1}, v{T}, 4, v{T+1}
            s_mov_b32 m0, {XT+p*1024}
            """)
            a(f"buffer_load_dwordx4 v{T+1}, {sr(SQ,4)}, s{sT1} offen lds")

    def loader(self):
        a = self.a
        T = 20
        sO2 = sA + 10
        depth = int(self.o.get("ldepth", 0))
        for st in range(6):
            if st == 4:
                go = a.label("ringfree")
                a(f"v_mov_b32 v{T}, {ACNT}")
                self.lds_flag_wait(T, T + 1, go, 4)
                a(f"{go}:")
            self.step_off(6 + st, self.sWo, self.sWb, self.sRot, 5120)
            for q in range(0 if self.o.get("x_nowd") else 4):
                for j in range(5):
                    isw, off = self.wl_addr(5 * st + j, 0, 1)
                    a(f"s_mov_b32 m0, {off + (WS_ + q * 6144 if isw else q * 4096)}")
                    a(f"s_add_u32 s{sO2}, s{self.sWo}, {q*61440+j*1024}")
                    a.vmem(f"buffer_load_dwordx4 v18, {sr(SWS,4)}, s{sO2} offen sc1 lds", "wl")
                    if depth:
                        a(f"s_waitcnt vmcnt({depth})")
        a(f"v_mov_b32 v{T}, {WFLG}\nv_mov_b32 v{T+1}, 1")
        a.vm.drain()
        a.ds(f"ds_write_b32 v{T}, v{T+1}", "wf")

    def conv_main(self):
        a = self.a
        AF, BF, CA = 24, 88, 216
        NACC = 8
        Z2, Z1, YV, UR, RB = 4, 6, 8, 10, 248
        ca = lambda n: CA + 4 * (n % NACC)
        dpp = "row_mask:0xf bank_mask:0xf"

        def bread(i):
            g = [[("ds", f"ds_read_b64_tr_b16 {vr(BF+4*i+2*q,2)}, v2 offset:{128*i+32*(1-q)}", f"b{i}")] for q in range(2)]
            g[0].insert(0, ("vmwait", (f"u{i >> 3}",)))
            return g

        def uread(n):
            return [("ds", f"ds_read_u16_d16_hi v{UR+(n&1)}, v3 offset:{4352+128*n}", f"ur{n}")]

        def yread(k):
            return [("ds", f"ds_read_b128 {vr(RB+4*(k&1),4)}, v12 offset:{1024*k}", f"yr{k}")]

        def ystore(k):
            return [("lgwait", (f"yr{k}",)),
                    ("vmem", f"buffer_store_dwordx4 {vr(RB+4*(k&1),4)}, v18, {sr(SWS,4)}, s{self.sY} offen offset:{1024*k} sc1", "yst")]

        def epi(n):
            c, pc = ca(n), ca(n - 1)
            z2, pz2, z1, pz1 = Z2 + (n & 1), Z2 + 1 - (n & 1), Z1 + (n & 1), Z1 + 1 - (n & 1)
            y, u = YV + (n & 1), UR + (n & 1)
            o = []
            if n < 31:
                o.append(uread(n + 1))
            if n & 7 == 0 and n:
                o.append(yread((n >> 3) - 1))
            if n & 7 == 1 and n > 1:
                o.append(ystore((n >> 3) - 1))
            for dst, cur, prev, add in ((z2, c + 3, pc + 3, c + 2), (z1, z2, pz2, c + 1), (y, z1, pz1, c)):
                if n == 0:
                    o.append([("i", f"v_add_f32_dpp v{dst}, v{cur}, v{add} wave_shr:1 {dpp} bound_ctrl:0")])
                else:
                    o.append([("i", f"v_add_f32_dpp v{dst}, v{prev}, v{add} wave_ror:1 {dpp}")])
                    o.append([("i", f"v_add_f32_dpp v{dst}, v{cur}, v{add} wave_shr:1 {dpp}")])
            o.append([("lgwait", (f"ur{n}",)), ("i", f"v_fmac_f32 v{y}, s{self.sD}, v{u}")])
            o.append([("i", f"v_cvt_pk_bf16_f32 v{y}, v{y}, v{y}")])
            o.append([("ds", f"ds_write_b16 v3, v{y} offset:{128*n}", f"yw{n}")])
            return o

        a.vm.wait("hk")
        a(f"v_lshlrev_b32 v19, 16, v19")
        a(f"v_readfirstlane_b32 s{self.sD}, v19")
        for m in range(16):
            for q in range(2):
                a.ds(f"ds_read_b64_tr_b16 {vr(AF+4*m+2*q,2)}, v1 offset:{256*m+32*q}", "af")
        for i in range(4):
            for g in bread(i):
                play(a, g)
        play(a, uread(0))
        a.lg.wait("af")
        nb = 4
        fill = []
        mi = 0
        self.stamp(1, "3")
        for n in range(32):
            if n in (8, 16, 20, 24, 28):
                self.stamp({8: 2, 16: 3, 20: 4, 24: 5, 28: 6}[n], "3")
            while fill and any(f[1] is not None and f[1] <= n - NACC + 1 for f in fill):
                play(a, fill.pop(0)[2])
            pend = []
            while nb < 32 and nb <= n + 4:
                pend += bread(nb); nb += 1
            fill = [(0, None, g) for g in pend] + fill
            ms = list(range(n // 2, -1, -1))
            for k, m in enumerate(ms):
                i = n - 2 * m
                assert not any(op[0] == "ds" and op[2] == f"b{i}" for f in fill for op in f[2])
                a.lg.wait(f"b{i}")
                c = "0" if k == 0 else vr(ca(n), 4)
                a(f"v_mfma_f32_16x16x32_bf16 {vr(ca(n),4)}, {vr(AF+4*m,4)}, {vr(BF+4*i,4)}, {c}")
                mi += 1
                slots = 2
                while slots and fill and fill[0][0] <= mi:
                    play(a, fill.pop(0)[2]); slots -= 1
            fill += [(mi + 3, n, g) for g in epi(n)]
        while fill:
            play(a, fill.pop(0)[2])
        play(a, yread(3))
        play(a, ystore(3))

    def final_prepare(self):
        a = self.a
        self.VO, T = 13, 20
        a(f"""
        s_lshl2_add_u32 s{sT0}, s{sRB2}, s{sB}
        s_mul_i32 s{sT1}, s{sT0}, 20480
        s_mul_i32 s{sT2}, s{sCB2}, 160
        s_add_u32 s{sT1}, s{sT1}, s{sT2}
        """)
        for p in range(3):
            a(f"""
            v_add_u32 v{T}, {64*p}, v0
            v_mul_u32_u24 v{T+1}, 205, v{T}
            v_lshrrev_b32 v{T+1}, 11, v{T+1}
            v_mul_u32_u24 v{T+1}, 1120, v{T+1}
            v_lshl_add_u32 v{T+1}, v{T}, 4, v{T+1}
            v_add_u32 v{self.VO+p}, s{sT1}, v{T+1}
            """)
        a(f"""
        s_lshl_b32 s{sT0}, s{sT0}, 7
        s_add_u32 s{sT0}, s{sT0}, {ST}
        v_and_b32 v{T}, 15, v0
        v_lshlrev_b32 v{T}, 3, v{T}
        """)
        a.vmem(f"buffer_load_dwordx2 v[16:17], v{T}, {sr(SWS,4)}, s{sT0} offen sc1", "xt")

    def final_xn(self):
        a = self.a
        T, X, XF, XN = 20, 24, 40, 60
        a(f"""
        v_and_b32 v{T}, 15, v0
        v_mul_u32_u24 v{T}, 160, v{T}
        v_lshrrev_b32 v{T+1}, 4, v0
        v_lshl_add_u32 v{T}, v{T+1}, 3, v{T}
        s_mul_i32 s{sT1}, s{sB}, 2560
        s_add_u32 s{sT1}, s{sT1}, {XT}
        v_add_u32 v1, s{sT1}, v{T}
        v_lshl_add_u32 v2, v0, 4, s{sT1}
        """)
        a.vm.drain()
        for j in range(5):
            a.ds(f"ds_read_b64 {vr(X+2*j,2)}, v1 offset:{j*32}", "xr")
        a("v_rcp_f32 v17, v17")
        a.lg.drain()
        for p in range(10):
            x, n = XF + 2 * p, XN + 2 * p
            a(f"""
            v_lshlrev_b32 v{x}, 16, v{X+p}
            v_and_b32 v{x+1}, 0xffff0000, v{X+p}
            v_sub_f32 v{n}, v{x}, v16
            v_sub_f32 v{n+1}, v{x+1}, v16
            v_cvt_pk_bf16_f32 v{n+1}, v{n}, v{n+1}
            v_lshlrev_b32 v{n}, 16, v{n+1}
            v_and_b32 v{n+1}, 0xffff0000, v{n+1}
            v_mul_f32 v{n}, v{n}, v17
            v_mul_f32 v{n+1}, v{n+1}, v17
            v_cvt_pk_bf16_f32 v{n+1}, v{n}, v{n+1}
            v_lshlrev_b32 v{n}, 16, v{n+1}
            v_and_b32 v{n+1}, 0xffff0000, v{n+1}
            """)

    def final_rest(self):
        a = self.a
        T, Y, XF, XN, P = 20, 24, 40, 60, 80
        YT = AUX
        sPo, sPv = sA + 9, sA + 13
        other, go = a.label("ywait"), a.label("ygo")
        a("v_lshlrev_b32 v3, 4, v0")
        for j in range(5):
            offs = []
            for b in range(4):
                v, off = self.wl_addr(5 * b + j, 0, 1)
                offs.append((off + (WS_ if v else 0), 6144 if v else 4096))
            a(f"s_mov_b32 s{sT0}, {offs[0][0]}\ns_mov_b32 s{sT1}, {offs[0][1]}")
            for b in range(1, 4):
                a(f"s_cmp_eq_u32 s{sB}, {b}\ns_cselect_b32 s{sT0}, {offs[b][0]}, s{sT0}\ns_cselect_b32 s{sT1}, {offs[b][1]}, s{sT1}")
            a(f"v_add_u32 v{160+4*j}, s{sT0}, v3")
            for q in range(1, 4):
                a(f"v_add_u32 v{160+4*j+q}, s{sT1}, v{160+4*j+q-1}")
        a(f"""
        v_lshrrev_b32 v{T}, 2, v0
        v_and_b32 v{T+1}, 3, v0
        v_lshlrev_b32 v{T+1}, 3, v{T+1}
        v_lshl_add_u32 v{T}, v{T}, 7, v{T+1}
        s_lshl_b32 s{sT0}, s{sB}, 5
        s_add_u32 s{sT0}, s{sT0}, {YT}
        v_add_u32 v{T}, s{sT0}, v{T}
        v_mov_b32 v{T+1}, {YFLG}
        s_cmp_lg_u32 s{sB}, 3
        s_cbranch_scc1 {other}
        """)
        a(f"s_lshl3_add_u32 s{sT0}, s{sCB2}, s{sXCD}")
        self.cnt_off(sPo, cY, sT0)
        items = [(sPv, sPo, 0 if self.o.get("x_noy") else 32)]
        self.poll_issue(items, atomic=True)
        a(f"""
        v_lshrrev_b32 v{T+2}, 3, v0
        v_and_b32 v{T+3}, 7, v0
        v_lshlrev_b32 v{T+2}, 12, v{T+2}
        v_lshl_add_u32 v{T+2}, v{T+3}, 4, v{T+2}
        """)
        self.poll_check(items, atomic=True, sleep=4)
        ok = a.label("convdone")
        a(f"v_mov_b32 v6, {YCNT}")
        self.lds_flag_wait(6, 7, ok, f"s{self.sNC}")
        a(f"{ok}:")
        self.stamp(11)
        a(f"""
        s_mul_i32 s{sT0}, s{sCB2}, 327680
        s_lshl_b32 s{sT1}, s{sRB2}, 7
        s_add_u32 s{sT0}, s{sT0}, s{sT1}
        s_add_u32 s{sT0}, s{sT0}, {YY}
        """)
        for p in range(10):
            a(f"s_mov_b32 m0, {YT + p * 1024}")
            a(f"buffer_load_dwordx4 v{T+2}, {sr(SWS,4)}, s{sT0} offen sc1 lds")
            a(f"s_add_u32 s{sT0}, s{sT0}, 32768")
        a(f"""
        v_mov_b32 v{T+2}, 1
        s_waitcnt vmcnt(0)
        ds_write_b32 v{T+1}, v{T+2}
        s_branch {go}
        {other}:
        """)
        self.lds_flag_wait(T + 1, T + 3, go)
        a(f"{go}:")
        for j in range(5):
            a.ds(f"ds_read_b64_tr_b16 {vr(Y+2*j,2)}, v{T} offset:{j*2048}", "yr")
        a.lg.drain()
        for p in range(10):
            a(f"""
            v_lshlrev_b32 v{T}, 16, v{Y+p}
            v_and_b32 v{T+1}, 0xffff0000, v{Y+p}
            v_fmac_f32 v{XF+2*p}, v{XN+2*p}, v{T}
            v_fmac_f32 v{XF+2*p+1}, v{XN+2*p+1}, v{T+1}
            """)
        self.stamp(12)
        a("s_barrier")
        self.stamp(13)
        for j in range(5):
            for q in range(4):
                a.ds(f"ds_read_b128 {vr(P+16*j+4*q,4)}, v{160+4*j+q}", f"p{j}")
        for j in range(5):
            a.lg.wait(f"p{j}")
            p = P + 16 * j
            for r in range(4):
                a(f"v_add_f32 v{p+r}, v{p+r}, v{p+4+r}")
            for r in range(4):
                a(f"v_add_f32 v{p+8+r}, v{p+8+r}, v{p+12+r}")
            for r in range(4):
                a(f"v_add_f32 v{p+r}, v{p+r}, v{XF+4*j+r}")
            for r in range(4):
                a(f"v_add_f32 v{p+r}, v{p+r}, v{p+8+r}")
            a(f"v_cvt_pk_bf16_f32 v{p}, v{p}, v{p+1}\nv_cvt_pk_bf16_f32 v{p+1}, v{p+2}, v{p+3}")
            a.ds(f"ds_write_b64 v1, {vr(p,2)} offset:{j*32}", "ow")
        for p in range(3):
            a.ds(f"ds_read_b128 {vr(24+4*p,4)}, v2 offset:{p*1024}", f"or{p}")
        of = self.o.get("outflags", "")
        for p in range(3):
            a.lg.wait(f"or{p}")
            if p == 2:
                a("s_mov_b32 exec_hi, 0")
            a.vmem(f"buffer_store_dwordx4 {vr(24+4*p,4)}, v{self.VO+p}, {sr(SOUT,4)}, 0 offen {of}", "out")
        self.stamp(14)
        self.dump_stamps("B")
        a("s_endpgm")

    def role_b(self, K):
        a = self.a
        a.vm.q = []; a.lg.q = []
        sPo = [sA + 9, sA + 13, sA + 10, sA + 11]
        sPv = [sA + 12, sA + 14]
        self.sY, self.sR, self.sCH, self.sD = sA + 5, sA + 6, sC, sA + 8
        self.sRot, self.sWb, self.sWo = sA + 14, sA + 15, 3
        LAG = int(self.o.get("lag", 7))
        LAG0 = int(self.o.get("lag0", 7))
        seq, last = [], {}
        for s_ in range(10):
            seq += [(s_, g) for g in self.rec(self.stage_issue, s_)]
            last[s_] = len(seq)
        cut = []
        for s_ in range(10):
            c = min(last[s_] + (LAG0 if s_ == 0 else LAG), len(seq))
            while any(k is not None and k >= s_ + 2 + (1 if s_ == 0 else 0) for k, _ in seq[:c]) and s_ < 9:
                c -= 1
            cut.append(max(c, cut[-1] if cut else 0))

        def task_index():
            b = self.a
            b(f"s_and_b32 s{sT0}, s{sI}, 1\ns_lshr_b32 s{sT1}, s{sI}, 1")
            if K:
                b(f"""
                s_mul_i32 s{sT0}, s{sT0}, 3
                s_mul_i32 s{sT1}, s{sT1}, 5
                s_mul_i32 s{sT2}, s{sXCD}, 80
                s_add_u32 s{sT0}, s{sT0}, s{sB}
                """)
            else:
                b(f"""
                s_sub_u32 s{sT2}, s{sB}, 1
                s_mul_i32 s{sT0}, s{sT0}, s{sT2}
                s_mul_i32 s{sT1}, s{sT1}, 3
                s_mul_i32 s{sT2}, s{sXCD}, 48
                """)
            b(f"s_add_u32 s{sT0}, s{sT0}, s{sT1}\ns_add_u32 s{sC}, s{sT0}, s{sT2}")

        def zero_lds():
            b = self.a
            b(f"v_mov_b32 v56, {BCNT}\nv_mov_b32 v58, 0\nv_mov_b32 v59, 0")
            for k in range(4):
                b.ds(f"ds_write_b64 v56, v[58:59] offset:{8*k}", "z")
            b.lg.drain()

        def sig_stats():
            b = self.a
            b(f"s_lshr_b32 s{sT0}, s{sWS}, 4")
            self.cnt_off(sPo[0], cS, sT0)
            self.cnt_off(sPo[1], cC, sCB1)
            self.signal(sPo[:2], sPv[0])

        def sig_p0():
            b = self.a
            if K:
                b(f"s_lshr_b32 s{sT0}, s{sC}, 6")
                self.cnt_off(sPo[2], cU, sT0)
            else:
                b(f"""
                s_lshr_b32 s{sT0}, s{sC}, 3
                s_mul_i32 s{sT0}, s{sT0}, 43
                s_lshr_b32 s{sT0}, s{sT0}, 9
                s_and_b32 s{sT1}, s{sC}, 4
                s_add_u32 s{sT0}, s{sT0}, s{sT1}
                """)
                self.cnt_off(sPo[2], cW, sT0)
            self.signal([sPo[2]], sPv[1])

        def b_scalars():
            b = self.a
            b(f"""
            s_mul_i32 s{self.sR}, s{sB}, {CVR}
            s_add_u32 s{self.sR}, s{self.sR}, {AUX}
            v_lshlrev_b32 v18, 4, v0
            """)

        def g2s():
            b = self.a
            b.lg.drain()
            self.g2_scalars(self.sRot, self.sWb)
            b(f"s_mul_i32 s{sT0}, s{sB}, 61440\ns_sub_u32 s{self.sWb}, s{self.sWb}, s{sT0}")

        early = [(sA + 12, sA + 9, 16), (sA + 14, sA + 10, 16), (sA + 15, sA + 11, 16)]

        def poll_early():
            b = self.a
            b.lg.drain()
            for (_, off, _), (base, src, sh) in zip(early, [(cS, sRB1, 0), (cC, sCB1, 0), (cS, sRB2, 1)]):
                b(f"s_lshr_b32 s{sT0}, s{src}, {sh}")
                self.cnt_off(off, base, sT0)
            self.poll_issue(early)

        def wave3(groups):
            lab = a.label("w3")
            return [[("i", f"s_cmp_lg_u32 s{sB}, 3"), ("i", f"s_cbranch_scc1 {lab}")] + sum(groups, []) + [("i", f"{lab}:")]]

        def poll_late():
            b = self.a
            if K:
                b(f"s_lshr_b32 s{sT0}, s{sC}, 6")
                self.cnt_off(sT0, cU, sT0)
                b(f"v_mov_b32 v22, s{sT0}")
            else:
                b(f"s_and_b32 s{sT0}, s{sCB2}, 4")
                self.cnt_off(sT0, cW, sT0)
                b(f"v_lshl_add_u32 v22, v0, 7, s{sT0}")
            b.begin()
            b(f"s_mov_b64 exec, {1 if K else 15}")
            b.vmem(f"buffer_load_dword v23, v22, {sr(SWS,4)}, 0 offen sc1", "late")
            b("s_mov_b64 exec, -1")
            b.end()

        R = self.rec
        tasks = {k: [] for k in range(10)}
        heads = {k: [] for k in range(10)}
        tails = {k: [] for k in range(10)}
        extra = {k: [] for k in range(10)}
        after = {k: [] for k in range(10)}
        tasks[0] += R(task_index) + R(zero_lds)
        tasks[1] += R(self.colsum_partial)
        pk = int(self.o.get("kpos", 1))
        nk = int(self.o.get("kspread", 3))
        if not K:
            heads[pk] += R(self.vcheck_issue, 58, 59, SDBG, 1, 3)
            after[pk] += R(self.vcheck, 58, 59, "1", SDBG, 1, 3)
        heads[pk] += R(self.kv_issue if K else self.wd_issue)
        work = R(self.kv_work if K else self.wd_work)
        nst = min(k for k, g in enumerate(work) if any(op[0] == "vmem" for op in g))
        while work[nst - 1][0][0] == "lgwait":
            nst -= 1
        work, stores = work[:nst], work[nst:]
        first = max(pk + 1, 2)
        for n in range(nk):
            tasks[first + n] += work[len(work) * n // nk:len(work) * (n + 1) // nk]
        ps = first + nk
        heads[ps] += stores + R(b_scalars)
        heads[ps] += R(self.conv_issue) if K else wave3(R(self.xt_issue))
        tails[1] += R(self.colsum_store)
        extra[2] += ["csst"]
        extra[ps + 1] += ["utst"]
        after[ps + 1] += R(sig_p0)
        if not K:
            heads[3] += wave3(R(sig_stats))
            heads[8] += wave3(R(poll_early))
            after[8] += wave3(R(self.poll_check, early))
        if not K:
            tasks[9] += R(g2s)
        tails[9] += R(self.gather_issue) + R(poll_late)
        if K:
            tails[9] += R(self.conv_setup)
        pos = 0
        for s_ in range(10):
            for g in heads[s_]:
                play(a, g)
            interleave(a, [g for _, g in seq[pos:cut[s_]]], tasks[s_])
            pos = cut[s_]
            for g in tails[s_]:
                play(a, g)
            a.vm.wait(f"S{s_}", *extra[s_])
            for g in after[s_]:
                play(a, g)
            a("s_barrier")
            if s_ in (0, 3, 6, 8, 9):
                self.stamp({0: 1, 3: 2, 6: 3, 8: 5, 9: 6}[s_])
            self.stamp(s_ + 1, "2")
        assert pos == len(seq)
        self.gather_finish()
        a.vm.wait("late")
        if K:
            self.vcheck(23, 22, "64", SWS, 1, None)
            self.conv_u_issue()
            self.final_prepare()
            self.stamp(7)
            self.stamp(9, "3")
            if not self.o.get("x_noconv"):
                self.conv_main()
            self.stamp(8)
            self.stamp(7, "3")
            skip = a.label("ysig")
            a(f"v_mov_b32 v20, {YCNT}\nv_mov_b32 v21, 1")
            a(f"s_lshl_b32 s{sT0}, s{sXCD}, 3")
            self.cnt_off(sPo[0], cY, sT0)
            a.vm.drain()
            a("s_mov_b64 exec, 1")
            a.ds("ds_add_rtn_u32 v21, v20, v21", "yc")
            a.lg.drain()
            a(f"""
            v_readfirstlane_b32 s{sT0}, v21
            s_mov_b64 exec, -1
            s_add_u32 s{sT0}, s{sT0}, 1
            s_cmp_lg_u32 s{sT0}, s{self.sNC}
            s_cbranch_scc1 {skip}
            s_mov_b32 s{sPv[0]}, 1
            s_add_u32 s{sPo[2]}, s{SWS}, s{sPo[0]}
            s_addc_u32 s{sPo[3]}, s{SWS+1}, 0
            """)
            for k in range(8):
                a(f"s_atomic_add s{sPv[0]}, s[{sPo[2]}:{sPo[3]}], {k*128}")
            a(f"{skip}:")
            self.stamp(9)
            a("s_branch L_bjoin")
        else:
            self.final_prepare()
            a(f"s_setprio {self.o.get('lprio', 0)}\ns_cmp_lg_u32 s{sB}, 3\ns_cbranch_scc1 L_bjoin")
            self.vcheck(23, 22, "48", SWS, 15, None)
            a(f"v_mov_b32 v20, {CWFLG}\nv_mov_b32 v21, 1")
            a.ds("ds_write_b32 v20, v21", "cw")
            self.loader()
            self.stamp(8)

    def build(self):
        a = self.a
        self.prologue()
        self.role_a()
        self.b_common_setup()
        self.sNC = sA + 4
        a(f"s_setprio {self.o.get('bprio', 1)}")
        self.stamp(0)
        a(f"s_and_b32 s{sT0}, s{sI}, 1\ns_sub_u32 s{self.sNC}, 3, s{sT0}")
        a(f"s_cmp_ge_u32 s{sB}, s{self.sNC}\ns_cbranch_scc1 L_pathW")
        self.role_b(True)
        a("L_pathW:")
        self.role_b(False)
        a("L_bjoin:")
        a.vm.q = ["any"]; a.lg.q = ["any"]
        self.final_xn()
        self.stamp(10)
        self.final_rest()
        a("L_end:\ns_endpgm")
        return a.text()


def kernel_file(opt):
    ref = open("parallel_sum__ssm_conv_h3__swiglu_ffn__prompt.s.ref").read()
    head = [l for l in ref.split("\n") if l.startswith(";") and "@launch" not in l]
    head = head[:head.index([l for l in head if "d_ws" in l][0]) + 1]
    body = Gen(opt).build()
    return "\n".join(head) + f"""
; @launch grid=(256,1,1) block=(512,1,1) lds={LDS_BYTES}
.amdgcn_target "amdgcn-amd-amdhsa--gfx950"
.text
.globl {KNAME}
.p2align 8
.type {KNAME},@function
{KNAME}:
{body}.section .rodata,"a"
.p2align 6
.amdhsa_kernel {KNAME}
  .amdhsa_next_free_vgpr 256
  .amdhsa_next_free_sgpr 102
  .amdhsa_accum_offset 256
  .amdhsa_group_segment_fixed_size 0
  .amdhsa_kernarg_size 104
  .amdhsa_user_sgpr_count 2
  .amdhsa_user_sgpr_kernarg_segment_ptr 1
  .amdhsa_system_sgpr_workgroup_id_x 1
  .amdhsa_float_denorm_mode_32 3
.end_amdhsa_kernel
"""


if __name__ == "__main__":
    out = sys.argv[1]
    opt = {}
    for kv in sys.argv[2:]:
        k, _, v = kv.partition("=")
        opt[k] = v if v else True
    open(out, "w").write(kernel_file(opt))
```

```python
import sys
from asmlib import Asm, Rec, play, interleave, vr, sr

KNAME = "parallel_sum__ssm_conv_h3__swiglu_ffn__prompt_kernel"

CNT, ST, CS, UT, YY, WDT, HH, PROF, WS_SIZE = (0, 0x8000, 0xC000, 0x40000, 0x2C0000, 0x540000, 0x720000,
                                               0xD20000, 0xE00000)
cH, cS, cC, cU, cW, cY = 0, 128, 144, 160, 176, 192
XS, WS_, AUX = 0, 49152, 122880
CVR = 8704
XT = AUX + 3 * CVR
STL, CSF, BCNT = AUX + 36352, AUX + 37376, AUX + 38912
YFLG, YCNT, ACNT, WFLG, XFLG, GCNT, CWFLG = [BCNT + 4 * k for k in range(7)]
LDS_BYTES = 163840
SQ, SWG, SWU, SWS, SK, SV, SSH, SSK, SSD, SOUT, SDBG, SWD = 4, 8, 12, 16, 20, 24, 28, 32, 36, 40, 44, 48
sW, sB, sXCD, sI, sRB1, sCB1, sKS, sRB2, sCB2, sWS, sC = 52, 53, 54, 55, 56, 57, 58, 59, 60, 61, 62
sT0, sT1, sT2, sT3, sCNT = 63, 64, 65, 66, 67
sTM = 68
sPR = 70
sA = 86
POLL_LIMIT = 1 << 17
LOG2E = 1.4426950408889634


def f2u(x):
    import struct
    return struct.unpack("<I", struct.pack("<f", x))[0]


class Gen:
    def __init__(self, opt):
        self.o = opt
        self.a = Asm()
        self.nstamp = 0

    def stamp(self, k, kind="1"):
        if self.o.get("profile") != kind and not (k == 0 and self.o.get("profile")):
            return
        a = self.a
        a(f"{'s_memtime' if self.o.get('clk') else 's_memrealtime'} {sr(sTM, 2)}")
        a.lg.drain()
        a(f"s_mov_b32 s{sPR+k}, s{sTM}")

    def dump_stamps(self, role):
        if not self.o.get("profile"):
            return
        a = self.a
        a("s_mov_b64 exec, -1")
        a("v_mov_b32 v1, 0")
        for k in range(16):
            a(f"v_writelane_b32 v1, s{sPR+k}, {k}")
        a(f"s_lshl_b32 s{sT0}, s2, 3\ns_add_u32 s{sT0}, s{sT0}, s{sW}\ns_lshl_b32 s{sT0}, s{sT0}, 6\ns_add_u32 s{sT0}, s{sT0}, {PROF}")
        a("v_mbcnt_lo_u32_b32 v2, -1, 0\nv_mbcnt_hi_u32_b32 v2, -1, v2\nv_lshlrev_b32 v2, 2, v2")
        a("s_mov_b64 exec, 0xffff")
        a(f"buffer_store_dword v1, v2, {sr(SWS,4)}, s{sT0} offen")
        if self.o.get("dbgout"):
            wg = int(self.o["dbgout"])
            skip = a.label("dbgout")
            sel = [1, 2, 3, 4, 8, 5, 6, 7] if role == "A" else [1, 2, 3, 6, 7, 8, 14]
            a(f"s_cmp_lg_u32 s2, {wg}\ns_cbranch_scc1 {skip}\ns_cmp_lg_u32 s{sB}, 1\ns_cbranch_scc1 {skip}")
            for n, k in enumerate(sel):
                a(f"s_sub_u32 s{sT0}, s{sPR+k}, s{sPR}\nv_writelane_b32 v1, s{sT0}, {n}")
            a(f"s_mov_b64 exec, {(1 << len(sel)) - 1}")
            a(f"buffer_store_dword v1, v2, {sr(SDBG,4)}, 0 offen offset:{4 if role == 'A' else 36}")
            a(f"{skip}:")

    def rec(self, fn, *args):
        real = self.a
        self.a = Rec(real)
        fn(*args)
        groups = self.a.groups
        self.a = real
        return groups

    def cnt_off(self, sdst, base, sidx):
        self.a(f"s_add_u32 s{sdst}, s{sidx}, {base}\ns_lshl_b32 s{sdst}, s{sdst}, 7")

    def signal(self, soffs, stmp, only_wave0=False):
        a = self.a
        skip = a.label("sig")
        a.begin()
        if only_wave0:
            a(f"s_cmp_lg_u32 s{sB}, 0\ns_cbranch_scc1 {skip}")
        a(f"s_mov_b32 s{stmp}, 1")
        for so in soffs:
            a(f"s_atomic_add s{stmp}, {sr(SWS,2)}, s{so}")
        if only_wave0:
            a(f"{skip}:")
        a.end()

    def poll_ops(self, items, atomic):
        o = []
        for val, off, _ in items:
            base = sr(SDBG, 2) if off is None else sr(SWS, 2)
            offs = "0" if off is None else f"s{off}"
            if atomic:
                o += [f"s_mov_b32 s{val}, 0", f"s_atomic_add s{val}, {base}, {offs} glc"]
            else:
                o += [f"s_load_dword s{val}, {base}, {offs} glc"]
        return "\n".join(o)

    def poll_issue(self, items, atomic=False, only_wave0=False):
        a = self.a
        skip = a.label("pi")
        a.begin()
        if only_wave0:
            a(f"s_cmp_lg_u32 s{sB}, 0\ns_cbranch_scc1 {skip}")
        a(self.poll_ops(items, atomic))
        if only_wave0:
            a(f"{skip}:")
        a.end()

    def poll_check(self, items, atomic=False, only_wave0=False, sleep=2):
        a = self.a
        lo, again, ok = a.label("poll"), a.label("again"), a.label("pollok")
        a.begin()
        a.lg.drain()
        if only_wave0:
            a(f"s_cmp_lg_u32 s{sB}, 0\ns_cbranch_scc1 {ok}")
        a(f"s_mov_b32 s{sCNT}, 0")
        a(f"{lo}:")
        for k, (val, _, target) in enumerate(items):
            a(f"s_cmp_ge_u32 s{val}, {target}")
            a(f"s_cbranch_scc1 {ok}" if k == len(items) - 1 else f"s_cbranch_scc0 {again}")
        a(f"{again}:")
        if sleep:
            a(f"s_sleep {sleep}")
        a(self.poll_ops(items, atomic))
        a(f"s_add_u32 s{sCNT}, s{sCNT}, 1")
        a(f"s_cmp_lt_u32 s{sCNT}, {POLL_LIMIT}")
        a("s_waitcnt lgkmcnt(0)")
        a(f"s_cbranch_scc1 {lo}")
        a(f"{ok}:")
        a.end()

    def vcheck_issue(self, vret, vaddr, srd, mask, wave=0):
        a = self.a
        skip = a.label("vi")
        a.begin()
        if wave is not None:
            a(f"s_cmp_lg_u32 s{sB}, {wave}\ns_cbranch_scc1 {skip}")
        a(f"s_mov_b64 exec, {mask}")
        a(f"buffer_load_dword v{vret}, v{vaddr}, {sr(srd,4)}, 0 offen sc1")
        a("s_mov_b64 exec, -1")
        a(f"{skip}:")
        a.end()

    def vcheck(self, vret, vaddr, vtarget, srd, mask, wave=0):
        a = self.a
        lo, ok, skip = a.label("vc"), a.label("vcok"), a.label("vcskip")
        a.begin()
        if wave is not None:
            a(f"s_cmp_lg_u32 s{sB}, {wave}\ns_cbranch_scc1 {skip}")
        a(f"""
        s_mov_b64 exec, {mask}
        s_mov_b32 s{sCNT}, 0
        {lo}:
        v_cmp_le_u32 vcc, {vtarget}, v{vret}
        s_cmp_eq_u64 vcc, exec
        s_cbranch_scc1 {ok}
        s_sleep 8
        buffer_load_dword v{vret}, v{vaddr}, {sr(srd,4)}, 0 offen sc1
        s_add_u32 s{sCNT}, s{sCNT}, 1
        s_cmp_lt_u32 s{sCNT}, {POLL_LIMIT}
        s_waitcnt vmcnt(0)
        s_cbranch_scc1 {lo}
        {ok}:
        s_mov_b64 exec, -1
        {skip}:
        """)
        a.end()

    def lds_flag_wait(self, vaddr, vtmp, go, value=1):
        a = self.a
        lo = a.label("lf")
        a(f"""
        s_mov_b32 s{sCNT}, 0
        {lo}:
        ds_read_b32 v{vtmp}, v{vaddr}
        s_add_u32 s{sCNT}, s{sCNT}, 1
        s_waitcnt lgkmcnt(0)
        v_readfirstlane_b32 s{sT0}, v{vtmp}
        s_cmp_eq_u32 s{sT0}, {value}
        s_cbranch_scc1 {go}
        s_sleep 1
        s_cmp_lt_u32 s{sCNT}, {POLL_LIMIT*16}
        s_cbranch_scc1 {lo}
        """)

    def prologue(self):
        a = self.a
        a("s_cmp_ge_u32 s2, 256\ns_cbranch_scc1 L_end")
        if self.o.get("profile"):
            a(f"{'s_memtime' if self.o.get('clk') else 's_memrealtime'} {sr(sTM, 2)}\ns_waitcnt lgkmcnt(0)\ns_mov_b32 s{sPR+15}, s{sTM}")
        if self.o.get("pf", "1") == "1":
            a(f"""
            s_getpc_b64 s[{sT1}:{sT2}]
            L_pc:
            s_lshr_b32 s{sT0}, s2, 3
            s_lshl_b32 s{sT0}, s{sT0}, 11
            v_lshl_add_u32 v1, v0, 2, s{sT0}
            v_cmp_gt_u32 vcc, L_end-L_pc, v1
            s_and_saveexec_b64 s[{sTM}:{sTM+1}], vcc
            s_cbranch_execz L_nopf
            global_load_dword v255, v1, s[{sT1}:{sT2}]
            L_nopf:
            s_mov_b64 exec, -1
            """)
        for srd, off in ((SQ, 0), (SWG, 56), (SWU, 64), (SWS, 96), (SK, 8), (SV, 16), (SSH, 24), (SSK, 32),
                         (SSD, 40), (SOUT, 80), (SDBG, 88), (SWD, 72)):
            a(f"s_load_dwordx2 {sr(srd,2)}, s[0:1], {off}")
        a("v_lshrrev_b32 v1, 6, v0\nv_and_b32 v0, 63, v0")
        a(f"v_readfirstlane_b32 s{sW}, v1")
        for srd, size in ((SQ, 2621440), (SWG, 1966080), (SWU, 1966080), (SWS, WS_SIZE), (SK, 2621440),
                          (SV, 2621440), (SSH, 5120), (SSK, 2621440), (SSD, 1280), (SOUT, 2621440),
                          (SDBG, 256), (SWD, 1966080)):
            a(f"s_mov_b32 s{srd+2}, {size}\ns_mov_b32 s{srd+3}, 0x20000")
        a(f"""
        s_and_b32 s{sB}, s{sW}, 3
        s_and_b32 s{sXCD}, s2, 7
        s_lshr_b32 s{sI}, s2, 3
        s_and_b32 s{sT0}, s{sXCD}, 1
        s_lshr_b32 s{sT1}, s{sXCD}, 1
        s_and_b32 s{sT2}, s{sI}, 7
        s_lshl3_add_u32 s{sRB1}, s{sT0}, s{sT2}
        s_lshr_b32 s{sT2}, s{sI}, 3
        s_lshl2_add_u32 s{sCB1}, s{sT1}, s{sT2}
        s_lshl2_add_u32 s{sT3}, s{sT0}, s{sT1}
        s_and_b32 s{sT2}, s{sI}, 3
        s_lshl2_add_u32 s{sRB2}, s{sT3}, s{sT2}
        s_lshr_b32 s{sCB2}, s{sI}, 2
        s_lshl_b32 s{sWS}, s{sT3}, 5
        s_add_u32 s{sWS}, s{sWS}, s{sI}
        s_mul_i32 s{sT0}, s{sCB1}, 3
        s_add_u32 s{sT0}, s{sT0}, s{sRB1}
        s_mul_i32 s{sT1}, s{sT0}, 26
        s_lshr_b32 s{sT1}, s{sT1}, 8
        s_mul_i32 s{sT1}, s{sT1}, 10
        s_sub_u32 s{sKS}, s{sT0}, s{sT1}
        """)
        if self.o.get("g2map", "48") == "84":
            a(f"""
            s_and_b32 s{sT0}, s{sXCD}, 1
            s_bfe_u32 s{sT1}, s{sXCD}, 0x10001
            s_lshl1_add_u32 s{sT0}, s{sT0}, s{sT1}
            s_and_b32 s{sT1}, s{sI}, 7
            s_lshl3_add_u32 s{sRB2}, s{sT0}, s{sT1}
            s_lshr_b32 s{sT0}, s{sXCD}, 2
            s_lshr_b32 s{sT1}, s{sI}, 3
            s_lshl2_add_u32 s{sCB2}, s{sT0}, s{sT1}
            """)
        if self.o.get("rot") == "0":
            a(f"s_mov_b32 s{sKS}, 0")
        if self.o.get("profile"):
            for k in range(15):
                a(f"s_mov_b32 s{sPR+k}, 0")
        a(f"s_cmp_ge_u32 s{sW}, 4\ns_cbranch_scc1 L_roleB")

    def role_a(self):
        a = self.a
        XA, WA, VH = 1, 5, 11
        FR, ACC = 120, 160
        T = 112
        sWM, sWN = sA, sA + 1
        sH = sA + 2
        xf = lambda p, i: FR + 20 * p + 4 * i
        wf = lambda p, j: FR + 20 * p + 8 + 4 * j
        acc = lambda i, j: ACC + (i * 3 + j) * 16
        def addr_setup():
            a(f"""
            s_and_b32 s{sWM}, s{sB}, 1
            s_lshr_b32 s{sWN}, s{sB}, 1
            v_and_b32 v{T}, 31, v0
            v_lshrrev_b32 v{T+1}, 5, v0
            v_bfe_u32 v{T+2}, v0, 1, 3
            v_xor_b32 v{T+2}, v{T+2}, v{T+1}
            s_lshl_b32 s{sT0}, s{sWM}, 13
            v_lshl_add_u32 v{T}, v{T}, 7, s{sT0}
            """)
            for t in range(4):
                a(f"v_xor_b32 v{T+3}, {2*t}, v{T+2}\nv_lshl_add_u32 v{XA+t}, v{T+3}, 4, v{T}")
            a(f"""
            v_bfe_u32 v{T+2}, v0, 4, 1
            v_mul_u32_u24 v{T+3}, 3072, v{T+2}
            v_mul_u32_u24 v{T+4}, 1536, v{T+1}
            v_bfe_u32 v{T+5}, v0, 2, 2
            v_lshl_add_u32 v{T+3}, v{T+5}, 6, v{T+3}
            v_and_b32 v{T+5}, 1, v0
            v_lshl_add_u32 v{T+3}, v{T+5}, 4, v{T+3}
            v_bfe_u32 v{T+5}, v0, 1, 1
            v_lshl_add_u32 v{T+3}, v{T+5}, 3, v{T+3}
            v_add_u32 v{T+3}, v{T+3}, v{T+4}
            v_lshlrev_b32 v{T+2}, 5, v{T+2}
            s_mul_i32 s{sT0}, s{sWN}, 3
            s_lshl_b32 s{sT3}, s{sRB1}, 1
            s_add_u32 s{sT3}, s{sT3}, s{sWM}
            s_mul_i32 s{sT3}, s{sT3}, 48
            s_mul_i32 s{sT2}, s{sCB1}, 3
            s_add_u32 s{sT3}, s{sT3}, s{sT2}
            """)
            for j in range(3):
                a(f"""
                s_add_u32 s{sT1}, s{sT0}, {j}
                s_lshr_b32 s{sT2}, s{sT1}, 1
                s_and_b32 s{sT1}, s{sT1}, 1
                s_add_u32 s{sH+j}, s{sT3}, s{sT2}
                s_lshl_b32 s{sH+j}, s{sH+j}, 3
                s_add_u32 s{sH+j}, s{sH+j}, s{sT1}
                s_lshl_b32 s{sH+j}, s{sH+j}, 9
                s_add_u32 s{sH+j}, s{sH+j}, {HH}
                s_lshl_b32 s{sT1}, s{sT1}, 5
                v_xor_b32 v{T+4}, s{sT1}, v{T+2}
                s_lshl_b32 s{sT2}, s{sT2}, 8
                s_add_u32 s{sT2}, s{sT2}, {WS_}
                v_add3_u32 v{WA+j}, v{T+3}, v{T+4}, s{sT2}
                v_add_u32 v{WA+3+j}, 49152, v{WA+j}
                """)
            a(f"""
            v_and_b32 v{T+4}, 15, v0
            v_lshlrev_b32 v{T+4}, 4, v{T+4}
            v_lshl_add_u32 v{T+4}, v{T+1}, 8, v{T+4}
            v_bfe_u32 v{T+5}, v0, 4, 1
            v_lshl_add_u32 v{VH}, v{T+5}, 10, v{T+4}
            """)

        a("s_waitcnt lgkmcnt(0)")
        a(f"s_setprio {self.o.get('aprio', 2)}")
        a.vm.issue("pf")
        self.stamp(0)
        a(f"s_or_b32 s{sA+8}, s2, s{sB}\ns_cmp_lg_u32 s{sA+8}, 0\ns_cbranch_scc1 L_noclear")
        a(f"v_lshlrev_b32 v{T}, 7, v0\nv_mov_b32 v{T+1}, 0")
        for p in range(4):
            a(f"s_mov_b32 s{sT0}, {p*8192}\nbuffer_store_dword v{T+1}, v{T}, {sr(SWS,4)}, s{sT0} offen sc1")
        p0a = "sk" if self.o.get("p0", "B") == "A" else "s"
        if "s" not in p0a:
            a(f"s_waitcnt vmcnt(0)\nv_mov_b32 v{T}, 1\ns_mov_b64 exec, 1")
            a(f"buffer_store_dword v{T}, off, {sr(SDBG,4)}, 0 sc1\ns_mov_b64 exec, -1")
        a("L_noclear:")
        if "s" in p0a:
            self.stats_load()
        if "k" in p0a:
            q = list(a.vm.q)
            a(f"s_and_b32 s{sT0}, s{sI}, 1\ns_sub_u32 s{sT0}, 3, s{sT0}\ns_cmp_ge_u32 s{sB}, s{sT0}\ns_cbranch_scc1 L_p0W")
            for typ in "CW":
                a.vm.q = list(q)
                if typ == "W":
                    a("L_p0W:")
                self.task_index(typ == "C")
                (self.kv_issue if typ == "C" else self.wd_issue)()
                addr_setup()
                if "s" in p0a:
                    self.stats_compute(announce=f"L_noann{typ}")
                self.stamp(9)
                (self.kv_work if typ == "C" else self.wd_work)()
                if typ == "C":
                    a("s_branch L_p0done")
            a("L_p0done:")
        else:
            csa = self.o.get("cs", "A") == "A"
            if csa:
                self.colsum_a_issue()
            addr_setup()
            if "s" in p0a:
                self.stats_compute(announce="L_noann")
            if csa:
                self.colsum_a()
        self.stamp(10)

        def reads(g):
            s, t, p = g >> 2, g & 3, g & 1
            sl = s % 3
            wa = WA + (3 if sl == 2 else 0)
            wo = (sl % 2) * 24576 + t * 6144
            r = [f"ds_read_b128 {vr(xf(p,0),4)}, v{XA+t} offset:{sl*16384}"]
            r += [f"ds_read_b64_tr_b16 {vr(wf(p,0)+2*q,2)}, v{wa} offset:{wo+q*768}" for q in range(2)]
            r += [f"ds_read_b128 {vr(xf(p,1),4)}, v{XA+t} offset:{sl*16384+4096}"]
            for j in (1, 2):
                r += [f"ds_read_b64_tr_b16 {vr(wf(p,j)+2*q,2)}, v{wa+j} offset:{wo+q*768}" for q in range(2)]
            return r

        a("s_setprio 0")
        a.vm.wait("pf")
        a("s_barrier")
        self.stamp(1)
        CF, SF, M2, C1, KK, AD, E, HP = 12, 18, 22, 26, 28, 64, 32, 40
        NW, NH = 6, 3
        WR, HR, ACC2 = 8, 128, 176
        sRot, sWb, sHb, sWo, sHo, sPo, sPv = [sA + 5 + k for k in range(7)]

        def mf(p, i, j, first=False):
            c = "0" if first else vr(acc(i, j), 16)
            return f"v_mfma_f32_32x32x16_bf16 {vr(acc(i,j),16)}, {vr(wf(p,j),4)}, {vr(xf(p,i),4)}, {c}"

        def run(mfmas, fill, per):
            k = 0
            for m in mfmas:
                a(m)
                for _ in range(per):
                    if k < len(fill):
                        play(a, fill[k]); k += 1
            for g in fill[k:]:
                play(a, g)

        def dsl(lst):
            return [[("ds", r, "f")] for r in lst]

        def corr_addr():
            b = self.a
            b(f"""
            v_and_b32 v{AD}, 31, v0
            s_lshl_b32 s{sT0}, s{sWM}, 9
            s_add_u32 s{sT0}, s{sT0}, {STL}
            v_lshl_add_u32 v{AD+1}, v{AD}, 3, s{sT0}
            s_mul_i32 s{sT0}, s{sWN}, 768
            s_add_u32 s{sT0}, s{sT0}, {CSF}
            v_lshl_add_u32 v{AD}, v{AD}, 3, s{sT0}
            v_mov_b32 v{AD+2}, {GCNT}
            """)
            self.g2_scalars(sRot, sWb)
            b(f"""
            s_mul_i32 s{sT0}, s{sB}, 12
            s_mul_i32 s{sT1}, s{sRB2}, 48
            s_add_u32 s{sT1}, s{sT1}, s{sT0}
            s_lshl_b32 s{sHb}, s{sT1}, 12
            s_add_u32 s{sHb}, s{sHb}, {HH}
            s_lshl_b32 s{sT0}, s{sRB1}, 1
            s_add_u32 s{sT0}, s{sT0}, s{sWM}
            s_lshr_b32 s{sT1}, s{sCB1}, 2
            s_lshl2_add_u32 s{sT0}, s{sT0}, s{sT1}
            """)
            self.cnt_off(sPo, cH, sT0)

        def corr_prepare():
            b = self.a
            b.begin()
            b("s_mov_b32 exec_lo, 0")
            for j in range(6):
                b(f"v_mov_b32 v{CF+j}, 0")
            b("s_mov_b32 exec_lo, -1")
            b.end()
            for i in range(2):
                b(f"v_rcp_f32 v{C1+i}, v{SF+2*i+1}")
                b(f"v_cvt_pk_bf16_f32 v{M2+2*i}, -v{SF+2*i}, -v{SF+2*i}")
                b(f"v_cvt_pk_bf16_f32 v{M2+2*i+1}, -v{SF+2*i}, -v{SF+2*i}")
                b(f"v_mul_f32 v{KK+i}, v{SF+2*i+1}, v{SF+2*i+1}")
                b(f"v_mul_f32 v{C1+i}, {hex(f2u(-LOG2E))}, v{C1+i}")
            b(f"v_mov_b32 v{AD}, {ACNT}\nv_mov_b32 v{AD+1}, 1")

        pend = []

        def swiglu(n, i, j):
            b = self.a
            c, hp = acc(i, j), HP + 4 * n
            for r in range(8):
                b(f"v_mul_f32 v{E+r}, v{c+r}, v{C1+i}")
            for r in range(8):
                b(f"v_exp_f32 v{E+r}, v{E+r}")
                b(f"v_mul_f32 v{c+r}, v{c+r}, v{c+8+r}")
            for r in range(8):
                b(f"v_fma_f32 v{E+r}, v{E+r}, v{KK+i}, v{KK+i}")
            for r in range(8):
                b(f"v_rcp_f32 v{E+r}, v{E+r}")
            for r in range(8):
                b(f"v_mul_f32 v{c+r}, v{c+r}, v{E+r}")
            for r in range(4):
                b(f"v_cvt_pk_bf16_f32 v{hp+r}, v{c+2*r}, v{c+2*r+1}")
            pend.append(f"buffer_store_dwordx4 {vr(hp,4)}, v{VH}, {sr(SWS,4)}, s{sH+j} offen offset:{i*2048} sc1")
            if str(n) in self.o.get("hflush", "012345"):
                for st in pend:
                    b.vmem(st, "hst")
                pend.clear()

        order = [(i, j) for j in range(3) for i in range(2)]
        for r in reads(0):
            a.ds(r, "f")
        for g in range(39):
            p = g & 1
            a.lg.drain()
            if (g + 1) & 3 == 0:
                if g == 3:
                    a.vm.drain()
                self.stamp(((g + 1) >> 2) + 1, "2")
                a("s_barrier")
            if g == 35:
                a(f"s_setprio {self.o.get('eprio', 2)}")
            fill = dsl(reads(g + 1))
            if g == 33:
                fill += self.rec(corr_addr)
            if g == 37:
                fill += dsl([f"ds_read_b32 v{E}, v{AD+2}"])
                run([mf(p, i, j) for i, j in order], fill, 3)
                continue
            if g == 38:
                go = a.label("ggo")
                a(f"v_readfirstlane_b32 s{sT0}, v{E}\ns_cmp_eq_u32 s{sT0}, 4\ns_cbranch_scc1 {go}")
                self.lds_flag_wait(AD + 2, E, go, 4)
                a(f"{go}:")
                cr = [f"ds_read_b64 {vr(CF+2*j,2)}, v{AD} offset:{j*256}" for j in range(3)]
                cr += [f"ds_read_b64 {vr(SF+2*i,2)}, v{AD+1} offset:{i*256}" for i in range(2)]
                fill = [[("ds", r, "cr")] for r in cr] + fill
                ms = [mf(p, i, j) for i, j in order]
                run(ms[:4], fill, 4)
                run(ms[4:], [[("lgwait", ("cr",))]] + self.rec(corr_prepare), 7)
                continue
            run([mf(p, i, j, g == 0) for i, j in order], fill, 3 if len(fill) <= 16 else 5)
        a.lg.drain()
        a("s_mov_b64 exec, 1")
        a.ds(f"ds_add_u32 v{AD}, v{AD+1}", "ac")
        a("s_mov_b64 exec, -1")
        self.stamp(2)
        self.stamp(1, "3")
        last = []
        for i, j in order:
            last += [mf(1, i, j),
                     f"v_mfma_f32_32x32x8_bf16 {vr(acc(i,j),16)}, {vr(CF+2*j,2)}, {vr(M2+2*i,2)}, {vr(acc(i,j),16)}"]
        for m in last[:4]:
            a(m)
        run(last[4:], self.rec(swiglu, 0, *order[0]), 6)
        for n in range(1, 6):
            self.stamp(1 + n, "3")
            swiglu(n, *order[n])
        self.stamp(3)
        self.stamp(7, "3")
        V16, V16B, VLX, VLW, VF = 1, 2, 3, 4, 5
        a(f"""
        v_lshlrev_b32 v{V16}, 4, v0
        v_add_u32 v{V16B}, 1024, v{V16}
        s_lshl_b32 s{sT0}, s{sB}, 12
        v_add_u32 v{VLX}, s{sT0}, v{V16}
        s_mul_i32 s{sT0}, s{sB}, 6144
        s_add_u32 s{sT0}, s{sT0}, {WS_}
        v_add_u32 v{VLW}, s{sT0}, v{V16}
        v_mov_b32 v{VF}, {WFLG}
        """)

        def wload(i, j):
            if self.o.get("x_nowd"):
                return
            r = WR + (i % NW) * 20 + 4 * j
            v, off = (V16, 0) if j == 0 else (V16B, (j - 1) * 1024)
            a.vmem(f"buffer_load_dwordx4 {vr(r,4)}, v{v}, {sr(SWS,4)}, s{sWo} offen offset:{off} sc1", f"w{i}")

        def hload(i, tt):
            r = HR + (i % NH) * 16 + 4 * tt
            a.vmem(f"buffer_load_dwordx4 {vr(r,4)}, v{V16}, {sr(SWS,4)}, s{sHo} offen offset:{tt*1024} sc1", f"h{i}_{tt}")

        go = a.label("cwgo")
        a(f"v_mov_b32 v{VF+1}, {CWFLG}")
        a.lg.drain()
        self.lds_flag_wait(VF + 1, VF + 2, go)
        a(f"{go}:")
        wseq = [5, 4, 3, 2, 1, 0]
        NPRE = int(self.o.get("npre", 1))
        for i in wseq[:NPRE]:
            self.step_off(i, sWo, sWb, sRot, 5120)
            for j in range(5):
                wload(i, j)
        a.vm.wait("hst")
        self.signal([sPo], sPv)
        a("s_setprio 0")
        self.stamp(4)
        self.stamp(8, "3")
        items = [(sPv + 2, sPv + 1, 0 if self.o.get("x_nopoll") else 8)]
        a(f"s_lshl2_add_u32 s{sT0}, s{sRB2}, s{sB}")
        self.cnt_off(sPv + 1, cH, sT0)
        PW = int(self.o.get("pollw", 1))
        for i in wseq[NPRE:]:
            if i == PW - 1:
                self.poll_issue(items, atomic=True)
            self.step_off(i, sWo, sWb, sRot, 5120)
            for j in range(5):
                wload(i, j)
        if PW == 0:
            self.poll_issue(items, atomic=True)
        self.poll_check(items, atomic=True, sleep=0)
        self.stamp(5)
        self.stamp(9, "3")
        H0 = int(self.o.get("h0", 2))
        sHend = sWo
        self.step_off(0, sHo, sHb, sRot, 4096)
        a(f"s_add_u32 s{sHend}, s{sHb}, {12*4096}")

        def hadv():
            return [[("i", f"s_add_u32 s{sHo}, s{sHo}, 4096")],
                    [("i", f"s_cmp_eq_u32 s{sHo}, s{sHend}"), ("i", f"s_cselect_b32 s{sHo}, s{sHb}, s{sHo}")]]

        def hl(i, tt):
            r = HR + (i % NH) * 16 + 4 * tt
            return [("vmem", f"buffer_load_dwordx4 {vr(r,4)}, v{V16}, {sr(SWS,4)}, s{sHo} offen offset:{tt*1024} sc1", f"h{i}_{tt}")]

        for i in range(H0):
            for tt in range(4):
                play(a, hl(i, tt))
            for g in hadv():
                play(a, g)
        acc2 = lambda tt, j: ACC2 + (tt * 5 + j) * 4
        fill = []
        for i in range(H0, 12):
            for tt in range(4):
                free = 20 * (i - NH) + 5 * tt + 6 if i >= NH else 0
                fill.append((free, hl(i, tt)))
            fill += [(0, g) for g in hadv()]
        TM = int(self.o.get("tm", 2))
        seq = [(i, tt) for i in range(12 - TM) for tt in range(4)] + [(i, tt) for tt in range(4) for i in range(12 - TM, 12)]
        mi = 0
        lfill = []
        pw = []
        for i, tt in seq:
            if tt == 0 and i in (1, 4, 8):
                self.stamp({1: 10, 4: 11, 8: 12}[i], "3")
            if (i, tt) == (4, 0):
                a.ds(f"ds_read_b32 v{VF+1}, v{VF}", "wf")
            if (i, tt) == (4, 2):
                go = a.label("wgo")
                a.lg.drain()
                a(f"v_readfirstlane_b32 s{sT0}, v{VF+1}\ns_cmp_eq_u32 s{sT0}, 1\ns_cbranch_scc1 {go}")
                self.lds_flag_wait(VF, VF + 1, go)
                a(f"{go}:")
            nx = i + 2 if tt == 0 else None
            if nx is not None and NW <= nx < 12:
                for j in range(5):
                    v, off = self.wl_addr(5 * (nx - NW) + j, VLX, VLW)
                    lfill.append((mi + (11 if nx == NW else 0), [("ds", f"ds_read_b128 {vr(WR+(nx%NW)*20+4*j,4)}, v{v} offset:{off}", f"wr{nx}")]))
            assert not any(op[0] == "vmem" and op[2] == f"h{i}_{tt}" for _, g in fill for op in g)
            assert not any(op[2] == f"wr{i}" for _, g in lfill for op in g)
            a.lg.wait(f"wr{i}")
            a.vm.wait(f"w{i}", f"h{i}_{tt}")
            for j in range(5):
                c = "0" if i == 0 else vr(acc2(tt, j), 4)
                a(f"v_mfma_f32_16x16x32_bf16 {vr(acc2(tt,j),4)}, {vr(WR+(i%NW)*20+4*j,4)}, {vr(HR+(i%NH)*16+4*tt,4)}, {c}")
                mi += 1
                if fill and fill[0][0] <= mi:
                    play(a, fill.pop(0)[1])
                elif lfill and lfill[0][0] <= mi:
                    play(a, lfill.pop(0)[1])
                elif pw and pw[0][0] <= mi:
                    play(a, pw.pop(0)[1])
            if i == 11:
                for j in range(5):
                    t = tt * 5 + j
                    v, off = self.wl_addr(t, VLX, VLW)
                    pw.append((mi + 3, [("ds", f"ds_write_b128 v{v}, {vr(ACC2+4*t,4)} offset:{off}", "p")]))
        assert not fill and not lfill
        self.stamp(6)
        self.stamp(13, "3")
        for _, g in pw:
            play(a, g)
        a.lg.drain()
        a("s_barrier")
        self.stamp(7)
        self.dump_stamps("A")
        a("s_endpgm")

    def wl_addr(self, f, vx, vw):
        sl, n = (1, 2, 0)[f // 10], f % 10
        return (vx, XS + sl * 16384 + n * 1024) if n < 4 else (vw, sl * 24576 + (n - 4) * 1024)

    def g2_scalars(self, sRot, sWb):
        a = self.a
        a(f"""
        s_mul_i32 s{sT0}, s{sCB2}, 3
        s_lshr_b32 s{sT0}, s{sT0}, 1
        s_and_b32 s{sT1}, s{sI}, 3
        s_mul_i32 s{sT1}, s{sT1}, 3
        s_add_u32 s{sT0}, s{sT0}, s{sT1}
        s_sub_u32 s{sT1}, s{sT0}, 12
        """)
        a.begin()
        a(f"s_cmp_ge_u32 s{sT0}, 12\ns_cselect_b32 s{sRot}, s{sT1}, s{sT0}")
        a.end()
        if self.o.get("rot2", "0") == "0":
            a(f"s_mov_b32 s{sRot}, 0")
        a(f"""
        s_mul_i32 s{sT0}, s{sB}, 12
        s_mul_i32 s{sT1}, s{sCB2}, 48
        s_add_u32 s{sT1}, s{sT1}, s{sT0}
        s_mul_i32 s{sWb}, s{sT1}, 5120
        s_add_u32 s{sWb}, s{sWb}, {WDT}
        """)

    def step_off(self, i, so, sb, sRot, mul):
        a = self.a
        a.begin()
        a(f"""
        s_add_u32 s{so}, s{sRot}, {i}
        s_sub_u32 s{sT3}, s{so}, 12
        s_cmp_ge_u32 s{so}, 12
        s_cselect_b32 s{so}, s{sT3}, s{so}
        s_mul_i32 s{so}, s{so}, {mul}
        s_add_u32 s{so}, s{so}, s{sb}
        """)
        a.end()

    def b_common_setup(self):
        a = self.a
        VX, VG, VU, T = 1, 5, 8, 20
        self.VX, self.VG, self.VU = VX, VG, VU
        self.sXL, self.sWL, self.sXO, self.sWO = sA, sA + 1, sA + 2, sA + 3
        a("L_roleB:")
        a(f"""
        v_lshrrev_b32 v{T}, 3, v0
        v_mul_u32_u24 v{T}, 1280, v{T}
        s_lshl2_add_u32 s{sT0}, s{sRB1}, s{sB}
        s_mul_i32 s{sT0}, s{sT0}, 40960
        v_add_u32 v{T}, s{sT0}, v{T}
        v_and_b32 v{T+1}, 7, v0
        v_lshrrev_b32 v{T+2}, 4, v0
        v_xor_b32 v{T+1}, v{T+1}, v{T+2}
        v_lshl_add_u32 v{VX}, v{T+1}, 4, v{T}
        v_xor_b32 v{VX+1}, 64, v{VX}
        v_add_u32 v{VX+1}, 10240, v{VX+1}
        v_add_u32 v{VX+2}, 20480, v{VX}
        v_add_u32 v{VX+3}, 20480, v{VX+1}
        v_bfe_u32 v{T}, v0, 2, 2
        v_mul_u32_u24 v{T}, 3072, v{T}
        v_and_b32 v{T+1}, 3, v0
        v_lshl_add_u32 v{T}, v{T+1}, 4, v{T}
        s_mul_i32 s{sT0}, s{sB}, 49152
        s_mul_i32 s{sT1}, s{sCB1}, 192
        s_add_u32 s{sT0}, s{sT0}, s{sT1}
        v_add_u32 v{T}, s{sT0}, v{T}
        """)
        for i in range(3):
            a(f"""
            v_add_u32 v{T+1}, {4*i}, v{T+2}
            v_mul_u32_u24 v{T+3}, 11, v{T+1}
            v_lshrrev_b32 v{T+3}, 5, v{T+3}
            v_mul_u32_u24 v{T+4}, {12288-192}, v{T+3}
            v_lshl_add_u32 v{T+4}, v{T+1}, 6, v{T+4}
            v_add_u32 v{VG+i}, v{T+4}, v{T}
            v_xor_b32 v{VU+i}, 32, v{VG+i}
            """)
        a(f"""
        s_lshl_b32 s{self.sXL}, s{sB}, 12
        s_mul_i32 s{self.sWL}, s{sB}, 6144
        s_add_u32 s{self.sWL}, s{self.sWL}, {WS_}
        s_waitcnt lgkmcnt(0)
        """)

    def stage_issue(self, s):
        a = self.a
        sl = s % 3
        fl = self.o.get("g1flags", "")
        for i in range(4):
            a.begin()
            if i == 0:
                a(f"""
                s_lshl_b32 s{self.sXO}, s{sKS}, 7
                s_mul_i32 s{self.sWO}, s{sKS}, 196608
                s_add_u32 s{sKS}, s{sKS}, 1
                s_cmp_eq_u32 s{sKS}, 10
                s_cselect_b32 s{sKS}, 0, s{sKS}
                """)
            a(f"s_add_u32 m0, s{self.sXL}, {XS+sl*16384+i*1024}")
            a.vmem(f"buffer_load_dwordx4 v{self.VX+i}, {sr(SQ,4)}, s{self.sXO} offen {fl} lds", f"S{s}")
            a.end()
        for up in range(2):
            for i in range(3):
                a.begin()
                a(f"s_add_u32 m0, s{self.sWL}, {sl*24576+up*3072+i*1024}")
                a.vmem(f"buffer_load_dwordx4 v{(self.VU if up else self.VG)+i}, {sr(SWU if up else SWG,4)}, s{self.sWO} offen {fl} lds", f"S{s}")
                a.end()

    def stats_load(self):
        a = self.a
        T, X = 156, 24
        a(f"""
        v_lshrrev_b32 v{T}, 5, v0
        s_lshl2_add_u32 s{sT0}, s{sWS}, s{sB}
        s_lshl_b32 s{sT0}, s{sT0}, 1
        v_add_u32 v{T}, s{sT0}, v{T}
        v_lshlrev_b32 v19, 3, v{T}
        v_mul_u32_u24 v{T}, 1280, v{T}
        v_and_b32 v{T+1}, 31, v0
        v_lshl_add_u32 v{T}, v{T+1}, 3, v{T}
        """)
        for j in range(5):
            a.vmem(f"buffer_load_dwordx2 {vr(X+2*j,2)}, v{T}, {sr(SQ,4)}, 0 offen offset:{j*256}", "stat")

    def reduce32(self, v, t):
        a = self.a
        for n in (8, 4, 2, 1):
            a(f"v_add_f32_dpp v{v}, v{v}, v{v} row_ror:{n} row_mask:0xf bank_mask:0xf")
        a(f"v_mov_b32 v{t}, v{v}\nv_permlane16_swap_b32 v{v}, v{t}\nv_add_f32 v{v}, v{v}, v{t}")

    def stats_compute(self, announce):
        a = self.a
        X, U, T = 24, 34, 20
        a.vm.wait("stat")
        if announce:
            a(f"""
        s_cmp_lg_u32 s{sA+8}, 0
        s_cbranch_scc1 {announce}
        v_mov_b32 v{T}, 1
        s_mov_b64 exec, 1
        buffer_store_dword v{T}, off, {sr(SDBG,4)}, 0 sc1
        s_mov_b64 exec, -1
        {announce}:
        """)
        for j in range(10):
            a(f"v_lshlrev_b32 v{U+2*j}, 16, v{X+j}\nv_and_b32 v{U+2*j+1}, 0xffff0000, v{X+j}")
        a(f"v_add_f32 v{T}, v{U}, v{U+1}\nv_add_f32 v{T+1}, v{U+2}, v{U+3}")
        for j in range(4, 20):
            a(f"v_add_f32 v{T+(j&1)}, v{T+(j&1)}, v{U+j}")
        a(f"v_add_f32 v{T}, v{T}, v{T+1}")
        self.reduce32(T, T + 1)
        a(f"v_mul_f32 v{T}, {hex(f2u(1.0/640))}, v{T}")
        for j in range(20):
            a(f"v_sub_f32 v{U+j}, v{U+j}, v{T}")
        a(f"v_mul_f32 v{T+1}, v{U}, v{U}\nv_mul_f32 v{T+2}, v{U+1}, v{U+1}")
        for j in range(2, 20):
            a(f"v_fmac_f32 v{T+1+(j&1)}, v{U+j}, v{U+j}")
        a(f"v_add_f32 v{T+1}, v{T+1}, v{T+2}")
        self.reduce32(T + 1, T + 2)
        a(f"""
        v_mul_f32 v{T+1}, {hex(f2u(1.0/640))}, v{T+1}
        v_cvt_pk_bf16_f32 v{T+2}, v{T}, v{T+1}
        v_lshlrev_b32 v{T}, 16, v{T+2}
        v_and_b32 v{T+1}, 0xffff0000, v{T+2}
        v_add_f32 v{T+1}, {hex(f2u(1e-5))}, v{T+1}
        v_cvt_pk_bf16_f32 v{T+1}, v{T+1}, v{T+1}
        v_and_b32 v{T+1}, 0xffff0000, v{T+1}
        v_sqrt_f32 v{T+1}, v{T+1}
        v_cvt_pk_bf16_f32 v{T+1}, v{T+1}, v{T+1}
        v_and_b32 v{T+1}, 0xffff0000, v{T+1}
        s_mov_b32 s{sT0}, {ST}
        """)
        a.begin()
        a("s_mov_b32 exec_lo, 1\ns_mov_b32 exec_hi, 1")
        a.vmem(f"buffer_store_dwordx2 {vr(T,2)}, v19, {sr(SWS,4)}, s{sT0} offen sc1", "stst")
        a("s_mov_b64 exec, -1")
        a.end()

    def colsum_partial(self):
        a = self.a
        T, F = 12, 60
        a(f"""
        v_bfe_u32 v{T+2}, v0, 4, 1
        v_mul_u32_u24 v{T+3}, 3072, v{T+2}
        v_lshrrev_b32 v{T+4}, 5, v0
        v_mul_u32_u24 v{T+4}, 1536, v{T+4}
        v_bfe_u32 v{T+5}, v0, 2, 2
        v_lshl_add_u32 v{T+3}, v{T+5}, 6, v{T+3}
        v_and_b32 v{T+5}, 1, v0
        v_lshl_add_u32 v{T+3}, v{T+5}, 4, v{T+3}
        v_bfe_u32 v{T+5}, v0, 1, 1
        v_lshl_add_u32 v{T+3}, v{T+5}, 3, v{T+3}
        v_lshl_add_u32 v{T+3}, v{T+2}, 5, v{T+3}
        s_min_u32 s{sT1}, s{sB}, 2
        s_lshl_b32 s{sT1}, s{sT1}, 8
        s_add_u32 s{sT0}, s{sT1}, {WS_}
        v_add3_u32 v{T}, v{T+3}, v{T+4}, s{sT0}
        v_xor_b32 v{T+1}, 32, v{T}
        s_lshl4_add_u32 s{sT0}, s{sCB1}, s{sRB1}
        s_mul_i32 s{sT0}, s{sT0}, 768
        s_add_u32 s{sT0}, s{sT0}, s{sT1}
        s_add_u32 s{sT0}, s{sT0}, {CS}
        s_mov_b32 s{sT1}, 0x3f803f80
        v_lshlrev_b32 v147, 2, v0
        """)
        for h in range(2):
            for n in range(8):
                a.ds(f"ds_read_b64_tr_b16 {vr(F+16*h+2*n,2)}, v{T+h} offset:{(n>>1)*6144+(n&1)*768}", f"cs{h}")
        for r in range(4):
            a(f"v_mov_b32 v{T+2+r}, 0")
        for h in range(2):
            a.lg.wait(f"cs{h}")
            for n in range(16):
                a(f"v_dot2c_f32_bf16 v{T+2+2*h+(n&1)}, s{sT1}, v{F+16*h+n}")
        a(f"v_add_f32 v{T+2}, v{T+2}, v{T+3}\nv_add_f32 v{T+4}, v{T+4}, v{T+5}")
        a(f"v_permlane32_swap_b32 v{T+2}, v{T+4}\nv_add_f32 v{T+2}, v{T+2}, v{T+4}")
        a(f"v_mov_b32 v148, v{T+2}\nv_add_u32 v149, s{sT0}, v147")

    def colsum_a_issue(self):
        a = self.a
        T = 158
        sL = sA + 9
        a(f"""
        s_min_u32 s{sT1}, s{sB}, 2
        s_mul_i32 s{sL}, s{sB}, 6144
        s_add_u32 s{sL}, s{sL}, {WS_+2*24576}
        v_lshrrev_b32 v{T}, 2, v0
        v_mul_u32_u24 v{T}, 3072, v{T}
        v_and_b32 v{T+1}, 3, v0
        v_lshl_add_u32 v{T}, v{T+1}, 4, v{T}
        s_mul_i32 s{sT0}, s{sRB1}, 122880
        s_mul_i32 s{sT2}, s{sCB1}, 192
        s_add_u32 s{sT0}, s{sT0}, s{sT2}
        s_lshl_b32 s{sT1}, s{sT1}, 6
        s_add_u32 s{sT0}, s{sT0}, s{sT1}
        v_xor_b32 v{T+1}, 32, v{T}
        """)
        for up in range(2):
            for i in range(3):
                a(f"s_add_u32 m0, s{sL}, {up*3072+i*1024}\ns_add_u32 s{sT1}, s{sT0}, {i*49152}")
                if i == 2:
                    a("s_mov_b32 exec_hi, 0")
                a.vmem(f"buffer_load_dwordx4 v{T+up}, {sr(SWU if up else SWG,4)}, s{sT1} offen lds", "cs")
                if i == 2:
                    a("s_mov_b32 exec_hi, -1")

    def colsum_a(self):
        a = self.a
        T, F = 12, 60
        sL = sA + 9
        a(f"""
        v_bfe_u32 v{T+2}, v0, 4, 1
        v_mul_u32_u24 v{T+3}, 3072, v{T+2}
        v_lshrrev_b32 v{T+4}, 5, v0
        v_lshl_add_u32 v{T+3}, v{T+4}, 8, v{T+3}
        v_bfe_u32 v{T+5}, v0, 2, 2
        v_lshl_add_u32 v{T+3}, v{T+5}, 6, v{T+3}
        v_and_b32 v{T+5}, 1, v0
        v_lshl_add_u32 v{T+3}, v{T+5}, 4, v{T+3}
        v_bfe_u32 v{T+5}, v0, 1, 1
        v_lshl_add_u32 v{T+3}, v{T+5}, 3, v{T+3}
        v_lshl_add_u32 v{T+3}, v{T+2}, 5, v{T+3}
        v_add_u32 v{T}, s{sL}, v{T+3}
        v_xor_b32 v{T+1}, 32, v{T}
        s_min_u32 s{sT1}, s{sB}, 2
        s_lshl_b32 s{sT1}, s{sT1}, 8
        s_lshl4_add_u32 s{sT0}, s{sCB1}, s{sRB1}
        s_mul_i32 s{sT0}, s{sT0}, 768
        s_add_u32 s{sT0}, s{sT0}, s{sT1}
        s_add_u32 s{sT0}, s{sT0}, {CS}
        s_mov_b32 s{sT1}, 0x3f803f80
        v_lshlrev_b32 v{T+6}, 2, v0
        """)
        a.vm.wait("cs")
        for h in range(2):
            for n in range(5):
                a.ds(f"ds_read_b64_tr_b16 {vr(F+10*h+2*n,2)}, v{T+h} offset:{n*512}", f"cs{h}")
        for r in range(4):
            a(f"v_mov_b32 v{T+2+r}, 0")
        for h in range(2):
            a.lg.wait(f"cs{h}")
            for n in range(10):
                a(f"v_dot2c_f32_bf16 v{T+2+2*h+(n&1)}, s{sT1}, v{F+10*h+n}")
        a(f"v_add_f32 v{T+2}, v{T+2}, v{T+3}\nv_add_f32 v{T+4}, v{T+4}, v{T+5}")
        a(f"v_permlane32_swap_b32 v{T+2}, v{T+4}\nv_add_f32 v{T+2}, v{T+2}, v{T+4}")
        a.vmem(f"buffer_store_dword v{T+2}, v{T+6}, {sr(SWS,4)}, s{sT0} offen sc1", "csst")

    def colsum_store(self):
        self.a.vmem(f"buffer_store_dword v148, v149, {sr(SWS,4)}, 0 offen sc1", "csst")

    def ncs(self):
        return 16 if self.o.get("cs", "A") == "A" else 10

    def gather_issue(self):
        a = self.a
        T, G = 14, 24
        a(f"""
        v_and_b32 v{T}, 31, v0
        s_lshl2_add_u32 s{sT0}, s{sRB1}, s{sB}
        s_lshl_b32 s{sT0}, s{sT0}, 8
        s_add_u32 s{sT0}, s{sT0}, {ST}
        v_lshlrev_b32 v{T}, 3, v{T}
        s_mul_i32 s{sT1}, s{sCB1}, 12288
        s_mul_i32 s{sT2}, s{sB}, 192
        s_add_u32 s{sT1}, s{sT1}, s{sT2}
        s_add_u32 s{sT1}, s{sT1}, {CS}
        v_lshlrev_b32 v{T+1}, 2, v0
        """)
        a.vmem(f"buffer_load_dwordx2 {vr(G,2)}, v{T}, {sr(SWS,4)}, s{sT0} offen sc1", "gat")
        for p in range(self.ncs()):
            if p and p % 5 == 0:
                a(f"s_add_u32 s{sT1}, s{sT1}, 3840")
            a.vmem(f"buffer_load_dword v{G+2+p}, v{T+1}, {sr(SWS,4)}, s{sT1} offen offset:{(p%5)*768} sc1", "gat")

    def gather_finish(self):
        a = self.a
        T, G = 14, 24
        a.vm.wait("gat")
        a(f"s_lshl_b32 s{sT0}, s{sB}, 8\ns_add_u32 s{sT0}, s{sT0}, {STL}\nv_add_u32 v{T}, s{sT0}, v{T}")
        a.ds(f"ds_write_b64 v{T}, {vr(G,2)}", "gw")
        c = G + 2
        n = self.ncs()
        while n > 1:
            h = n // 2
            for p in range(h):
                a(f"v_add_f32 v{c+p}, v{c+p}, v{c+n-h+p}")
            n -= h
        a(f"""
        v_cvt_pk_bf16_f32 v{c+1}, v{c}, v{c}
        v_and_b32 v{c+1}, 0xffff0000, v{c+1}
        v_sub_f32 v{c+1}, v{c}, v{c+1}
        v_cvt_pk_bf16_f32 v{c+2}, v{c}, v{c+1}
        v_and_b32 v{c+4}, 0xffff0000, v{c+2}
        v_sub_f32 v{c+1}, v{c+1}, v{c+4}
        v_cvt_pk_bf16_f32 v{c+3}, v{c+1}, 0
        s_mul_i32 s{sT0}, s{sB}, 384
        s_add_u32 s{sT0}, s{sT0}, {CSF}
        v_lshl_add_u32 v{T+1}, v0, 3, s{sT0}
        """)
        a.begin()
        a("s_mov_b32 exec_hi, 0xffff")
        a.ds(f"ds_write_b64 v{T+1}, {vr(c+2,2)}", "gw")
        a("s_mov_b32 exec_hi, -1")
        a.end()
        a(f"v_mov_b32 v{T}, {GCNT}\nv_mov_b32 v{T+1}, 1\ns_mov_b64 exec, 1")
        a.ds(f"ds_add_u32 v{T}, v{T+1}", "gw")
        a("s_mov_b64 exec, -1")

    def stage_base(self, sR):
        if self.o.get("p0", "B") == "B":
            return f"s_mul_i32 s{sR}, s{sB}, 8704\ns_add_u32 s{sR}, s{sR}, {AUX}"
        tab = (32768, 98304, 107008, 41472)
        o = f"s_mov_b32 s{sR}, {tab[0]}"
        for b in range(1, 4):
            o += f"\ns_cmp_eq_u32 s{sB}, {b}\ns_cselect_b32 s{sR}, {tab[b]}, s{sR}"
        return o

    def task_index(self, K):
        b = self.a
        b(f"s_and_b32 s{sT0}, s{sI}, 1\ns_lshr_b32 s{sT1}, s{sI}, 1")
        if K:
            b(f"""
            s_mul_i32 s{sT0}, s{sT0}, 3
            s_mul_i32 s{sT1}, s{sT1}, 5
            s_mul_i32 s{sT2}, s{sXCD}, 80
            s_add_u32 s{sT0}, s{sT0}, s{sB}
            """)
        else:
            b(f"""
            s_sub_u32 s{sT2}, s{sB}, 1
            s_mul_i32 s{sT0}, s{sT0}, s{sT2}
            s_mul_i32 s{sT1}, s{sT1}, 3
            s_mul_i32 s{sT2}, s{sXCD}, 48
            """)
        b(f"s_add_u32 s{sT0}, s{sT0}, s{sT1}\ns_add_u32 s{sC}, s{sT0}, s{sT2}")

    def kv_issue(self):
        a = self.a
        T = 150
        fl = self.o.get("p0flags", "nt")
        sR, sT0K, sCG = sA + 5, sA + 6, sA + 7
        a(f"""
        s_and_b32 s{sT0K}, s{sC}, 63
        s_lshl_b32 s{sT0K}, s{sT0K}, 5
        s_lshr_b32 s{sCG}, s{sC}, 6
        {self.stage_base(sR)}
        v_lshrrev_b32 v{T}, 3, v0
        v_mul_u32_u24 v{T}, 1280, v{T}
        v_and_b32 v{T+1}, 7, v0
        v_lshl_add_u32 v{T}, v{T+1}, 4, v{T}
        s_mul_i32 s{sT0}, s{sT0K}, 1280
        s_lshl_b32 s{sT1}, s{sCG}, 7
        s_add_u32 s{sT0}, s{sT0}, s{sT1}
        v_add_u32 v{T+2}, s{sT0}, v{T}
        v_subrev_u32 v{T}, 5120, v{T+2}
        v_add_u32 v{T+1}, 5120, v{T+2}
        s_lshl_b32 s{sT1}, s{sCG}, 9
        v_lshlrev_b32 v{T+3}, 3, v0
        """)
        a.begin()
        a(f"s_mov_b32 m0, s{sR}")
        a.vmem(f"buffer_load_dwordx4 v{T}, {sr(SK,4)}, 0 offen {fl} lds", "kv")
        a.end()
        for i in range(1, 5):
            a.begin()
            a(f"s_add_u32 m0, s{sR}, {i*1024}\ns_mov_b32 s{sT0}, {(i-1)*10240}")
            if i == 4:
                a("s_mov_b32 exec_hi, 0")
            a.vmem(f"buffer_load_dwordx4 v{T+1}, {sr(SK,4)}, s{sT0} offen {fl} lds", "kv")
            if i == 4:
                a("s_mov_b32 exec_hi, -1")
            a.end()
        for i in range(4):
            a.begin()
            a(f"s_add_u32 m0, s{sR}, {4608+i*1024}\ns_mov_b32 s{sT0}, {i*10240}")
            a.vmem(f"buffer_load_dwordx4 v{T+2}, {sr(SV,4)}, s{sT0} offen {fl} lds", "kv")
            a.end()
        a.vmem(f"buffer_load_dwordx2 v[54:55], v{T+3}, {sr(SSH,4)}, s{sT1} offen", "kv")

    def kv_work(self):
        a = self.a
        T, K, Vv, W, KF, O = 20, 60, 78, 14, 96, 132
        sR, sT0K, sCG = sA + 5, sA + 6, sA + 7
        a(f"""
        v_bfe_u32 v{T}, v0, 2, 2
        v_lshrrev_b32 v{T+1}, 4, v0
        v_lshlrev_b32 v{T+1}, 5, v{T+1}
        v_lshl_add_u32 v{T}, v{T}, 7, v{T+1}
        v_and_b32 v{T+1}, 3, v0
        v_lshl_add_u32 v{T}, v{T+1}, 3, v{T}
        v_add_u32 v{T}, s{sR}, v{T}
        v_mul_u32_u24 v150, 80, v0
        v_add_u32 v150, s{sR}, v150
        v_lshrrev_b32 v{T+2}, 2, v0
        v_mul_u32_u24 v151, 80, v{T+2}
        v_lshl_add_u32 v151, v{T+1}, 4, v151
        v_add_u32 v151, s{sR}, v151
        v_lshlrev_b32 v{T+2}, 12, v{T+2}
        v_lshl_add_u32 v152, v{T+1}, 4, v{T+2}
        s_lshl_b32 s{sA+8}, s{sCG}, 18
        s_lshl1_add_u32 s{sA+8}, s{sT0K}, s{sA+8}
        s_add_u32 s{sA+8}, s{sA+8}, {UT}
        """)
        a.vm.wait("kv")
        for i in range(9):
            a.ds(f"ds_read_b64_tr_b16 {vr(K+2*i,2)}, v{T} offset:{i*512}", f"k{i}")
            if i < 8:
                a.ds(f"ds_read_b64_tr_b16 {vr(Vv+2*i,2)}, v{T} offset:{4608+i*512}", f"v{i}")
        a(f"""
        v_lshlrev_b32 v{W}, 16, v54
        v_and_b32 v{W+1}, 0xffff0000, v54
        v_lshlrev_b32 v{W+2}, 16, v55
        v_and_b32 v{W+3}, 0xffff0000, v55
        """)
        nk = 0
        for p in range(16):
            while nk < p + 3:
                a.lg.wait(f"k{nk>>1}")
                a(f"v_lshlrev_b32 v{KF+2*nk}, 16, v{K+nk}\nv_and_b32 v{KF+2*nk+1}, 0xffff0000, v{K+nk}")
                nk += 1
            for e in range(2):
                a(f"v_mul_f32 v{T+e}, v{W+3}, v{KF+2*p+e+1}")
            for d in (2, 1, 0):
                for e in range(2):
                    a(f"v_fmac_f32 v{T+e}, v{W+d}, v{KF+2*p+e+4-d}")
            a.lg.wait(f"v{p>>1}")
            a(f"v_lshlrev_b32 v{T+2}, 16, v{Vv+p}\nv_and_b32 v{T+3}, 0xffff0000, v{Vv+p}")
            a(f"v_mul_f32 v{T}, v{T}, v{T+2}\nv_mul_f32 v{T+1}, v{T+1}, v{T+3}")
            a(f"v_cvt_pk_bf16_f32 v{O+p}, v{T}, v{T+1}")
        for j in range(4):
            a.ds(f"ds_write_b128 v150, {vr(O+4*j,4)} offset:{j*16}", "bw")
        for j in range(4):
            a.ds(f"ds_read_b128 {vr(KF+4*j,4)}, v151 offset:{j*1280}", f"br{j}")
        for j in range(4):
            a.lg.wait(f"br{j}")
            a.vmem(f"buffer_store_dwordx4 {vr(KF+4*j,4)}, v152, {sr(SWS,4)}, s{sA+8} offen sc1", "utst")
            if j < 3:
                a(f"s_add_u32 s{sA+8}, s{sA+8}, 65536")

    def wd_issue(self):
        a = self.a
        T = 150
        fl = self.o.get("p0flags", "nt")
        sR = sA + 5
        a(f"""
        s_lshr_b32 s{sT0}, s{sC}, 3
        s_and_b32 s{sT1}, s{sC}, 3
        s_lshl2_add_u32 s{sT0}, s{sT0}, s{sT1}
        s_mul_i32 s{sT0}, s{sT0}, 10240
        s_bfe_u32 s{sT1}, s{sC}, 0x10002
        s_mul_i32 s{sT1}, s{sT1}, 640
        s_add_u32 s{sT0}, s{sT0}, s{sT1}
        {self.stage_base(sR)}
        """)
        for i in range(5):
            a(f"""
            v_add_u32 v{T+1}, {64*i}, v0
            v_mul_u32_u24 v{T+2}, 1639, v{T+1}
            v_lshrrev_b32 v{T+2}, 16, v{T+2}
            v_mul_u32_u24 v{T+2}, 640, v{T+2}
            v_lshl_add_u32 v{T+2}, v{T+1}, 4, v{T+2}
            """)
            a.begin()
            a(f"s_add_u32 m0, s{sR}, {i*1024}")
            a.vmem(f"buffer_load_dwordx4 v{T+2}, {sr(SWD,4)}, s{sT0} offen {fl} lds", "kv")
            a.end()

    def wd_work(self):
        a = self.a
        T, F, VA = 20, 60, 150
        sR = sA + 5
        a(f"""
        v_bfe_u32 v{T}, v0, 2, 2
        v_mul_u32_u24 v{T}, 640, v{T}
        v_lshrrev_b32 v{T+2}, 4, v0
        v_lshl_add_u32 v{T}, v{T+2}, 5, v{T}
        v_and_b32 v{T+1}, 3, v0
        v_lshl_add_u32 v{T}, v{T+1}, 3, v{T}
        v_add_u32 v{T}, s{sR}, v{T}
        s_bfe_u32 s{sA+8}, s{sC}, 0x10002
        s_mul_i32 s{sA+8}, s{sA+8}, 192
        s_lshr_b32 s{sT1}, s{sC}, 3
        s_add_u32 s{sA+8}, s{sA+8}, s{sT1}
        s_mul_i32 s{sA+8}, s{sA+8}, 5120
        s_and_b32 s{sT1}, s{sC}, 3
        s_lshl_b32 s{sT1}, s{sT1}, 8
        s_add_u32 s{sA+8}, s{sA+8}, s{sT1}
        s_add_u32 s{sA+8}, s{sA+8}, {WDT}
        v_and_b32 v{T+1}, 15, v0
        v_lshlrev_b32 v{T+1}, 4, v{T+1}
        """)
        for n in range(5):
            a(f"""
            v_add_u32 v{T+3}, {4*n}, v{T+2}
            v_mul_u32_u24 v{VA+n}, 13, v{T+3}
            v_lshrrev_b32 v{VA+n}, 6, v{VA+n}
            v_mul_u32_u24 v{VA+n}, {245760-5120}, v{VA+n}
            v_lshl_add_u32 v{VA+n}, v{T+3}, 10, v{VA+n}
            v_add_u32 v{VA+n}, v{VA+n}, v{T+1}
            """)
        a.vm.wait("kv")
        for n in range(5):
            for q in range(2):
                a.ds(f"ds_read_b64_tr_b16 {vr(F+4*n+2*q,2)}, v{T} offset:{q*2560+n*128}", f"wt{n}")
        for n in range(5):
            a.lg.wait(f"wt{n}")
            a.vmem(f"buffer_store_dwordx4 {vr(F+4*n,4)}, v{VA+n}, {sr(SWS,4)}, s{sA+8} offen sc1", "utst")

    def conv_issue(self):
        a = self.a
        fl = self.o.get("p0flags", "nt")
        a(f"""
        s_lshl_b32 s{sT0}, s{self.sCH}, 12
        s_lshl_b32 s{sT1}, s{self.sCH}, 1
        v_lshlrev_b32 v176, 4, v0
        """)
        for i in range(4):
            a.vmem(f"buffer_load_dwordx4 {vr(160+4*i,4)}, v176, {sr(SSK,4)}, s{sT0} offen offset:{i*1024} {fl}", "hk")
        a.vmem(f"buffer_load_ushort v19, off, {sr(SSD,4)}, s{sT1}", "hk")

    def conv_filter_to_lds(self):
        a = self.a
        a(f"v_add_u32 v176, s{self.sR}, v18")
        a.vm.wait("hk")
        if self.o.get("foldd", "1") == "1":
            a.begin()
            a(f"""
            s_mov_b64 exec, 1
            v_lshlrev_b32 v177, 16, v160
            v_lshlrev_b32 v19, 16, v19
            v_add_f32 v177, v177, v19
            v_and_b32 v160, 0xffff0000, v160
            v_cvt_pk_bf16_f32 v160, v177, v160
            s_mov_b64 exec, -1
            """)
            a.end()
        for i in range(4):
            a.ds(f"ds_write_b128 v176, {vr(160+4*i,4)} offset:{96+i*1024}", "hw")

    def conv_u_issue(self):
        a = self.a
        a(f"s_lshl_b32 s{sT0}, s{self.sCH}, 12\ns_add_u32 m0, s{self.sR}, 4352\ns_add_u32 s{sT0}, s{sT0}, {UT}")
        for i in range(4):
            a.vmem(f"buffer_load_dwordx4 v18, {sr(SWS,4)}, s{sT0} offen offset:{i*1024} sc1 lds", f"u{i}")

    def conv_setup(self):
        a = self.a
        T = 4
        a(f"""
        v_lshlrev_b32 v{T}, 2, v0
        v_add_u32 v{T}, s{self.sR}, v{T}
        v_mov_b32 v{T+1}, 0
        s_mov_b32 exec_hi, 0
        s_mov_b32 exec_lo, 0xffffff
        """)
        a.ds(f"ds_write_b32 v{T}, v{T+1}", "z")
        a("s_mov_b32 exec_lo, -1\ns_mov_b32 exec_hi, 0xff")
        a.ds(f"ds_write_b32 v{T}, v{T+1} offset:4192", "z")
        a("s_mov_b64 exec, -1")
        a(f"""
        v_and_b32 v{T}, 3, v0
        v_lshrrev_b32 v{T+1}, 4, v0
        v_bfe_u32 v{T+2}, v0, 2, 2
        v_lshlrev_b32 v{T+3}, 6, v{T+1}
        v_lshl_add_u32 v{T+3}, v{T+2}, 3, v{T+3}
        v_lshl_add_u32 v1, v{T}, 5, v{T+3}
        v_add_u32 v1, s{self.sR}, v1
        v_lshlrev_b32 v{T}, 3, v{T}
        v_sub_u32 v2, v{T}, v{T+3}
        s_add_u32 s{sT0}, s{self.sR}, {4352+64}
        v_add_u32 v2, s{sT0}, v2
        v_lshl_add_u32 v3, v0, 1, s{self.sR}
        v_mov_b32 v10, 0
        v_mov_b32 v11, 0
        v_lshl_add_u32 v12, v0, 4, s{self.sR}
        s_lshl_b32 s{self.sY}, s{self.sCH}, 12
        s_add_u32 s{self.sY}, s{self.sY}, {YY}
        """)

    def xt_issue(self):
        a = self.a
        T = 20
        a(f"""
        s_mul_i32 s{sT1}, s{sRB2}, 81920
        s_mul_i32 s{sT2}, s{sCB2}, 160
        s_add_u32 s{sT1}, s{sT1}, s{sT2}
        """)
        for p in range(10):
            a(f"""
            v_add_u32 v{T}, {64*p}, v0
            v_mul_u32_u24 v{T+1}, 6554, v{T}
            v_lshrrev_b32 v{T+1}, 16, v{T+1}
            v_mul_u32_u24 v{T+1}, 1120, v{T+1}
            v_lshl_add_u32 v{T+1}, v{T}, 4, v{T+1}
            s_mov_b32 m0, {XT+p*1024}
            """)
            a(f"buffer_load_dwordx4 v{T+1}, {sr(SQ,4)}, s{sT1} offen lds")

    def loader(self):
        a = self.a
        T = 20
        sO2 = sA + 10
        depth = int(self.o.get("ldepth", 0))
        late_xt = self.o.get("xtpos", "7") == "L"
        for st in range(6):
            if st == 4:
                if late_xt:
                    self.xt_issue()
                go = a.label("ringfree")
                a(f"v_mov_b32 v{T}, {ACNT}")
                self.lds_flag_wait(T, T + 1, go, 4)
                a(f"{go}:")
            self.step_off(6 + st, self.sWo, self.sWb, self.sRot, 5120)
            for q in range(0 if self.o.get("x_nowd") else 4):
                for j in range(5):
                    isw, off = self.wl_addr(5 * st + j, 0, 1)
                    a(f"s_mov_b32 m0, {off + (WS_ + q * 6144 if isw else q * 4096)}")
                    a(f"s_add_u32 s{sO2}, s{self.sWo}, {q*61440+j*1024}")
                    a.vmem(f"buffer_load_dwordx4 v18, {sr(SWS,4)}, s{sO2} offen sc1 lds", "wl")
                    if depth:
                        a(f"s_waitcnt vmcnt({depth})")
        a(f"v_mov_b32 v{T}, {WFLG}\nv_mov_b32 v{T+1}, 1")
        a.vm.drain()
        a.ds(f"ds_write_b32 v{T}, v{T+1}", "wf")

    def conv_main(self):
        a = self.a
        AF, BF, CA = 24, 88, 216
        NACC = 8
        Z2, Z1, YV, UR, RB = 4, 6, 8, 10, 248
        ca = lambda n: CA + 4 * (n % NACC)
        dpp = "row_mask:0xf bank_mask:0xf"

        def bread(i):
            g = [[("ds", f"ds_read_b64_tr_b16 {vr(BF+4*i+2*q,2)}, v2 offset:{128*i+32*(1-q)}", f"b{i}")] for q in range(2)]
            g[0].insert(0, ("vmwait", (f"u{i >> 3}",)))
            return g

        def uread(n):
            return [("ds", f"ds_read_u16_d16_hi v{UR+(n&1)}, v3 offset:{4352+128*n}", f"ur{n}")]

        yb = self.o.get("yburst", "1") == "1"
        rb = (lambda k: AF + 4 * k) if yb else (lambda k: RB + 4 * (k & 1))

        def yread(k):
            return [("ds", f"ds_read_b128 {vr(rb(k),4)}, v12 offset:{1024*k}", f"yr{k}")]

        def ystore(k):
            return [("lgwait", (f"yr{k}",)),
                    ("vmem", f"buffer_store_dwordx4 {vr(rb(k),4)}, v18, {sr(SWS,4)}, s{self.sY} offen offset:{1024*k} sc1", "yst")]

        fold = self.o.get("foldd", "1") == "1"

        def epi(n):
            c, pc = ca(n), ca(n - 1)
            z2, pz2, z1, pz1 = Z2 + (n & 1), Z2 + 1 - (n & 1), Z1 + (n & 1), Z1 + 1 - (n & 1)
            y, u = YV + (n & 1), UR + (n & 1)
            o = []
            if n < 31 and not fold:
                o.append(uread(n + 1))
            if n & 7 == 0 and n and not yb:
                o.append(yread((n >> 3) - 1))
            if n & 7 == 1 and n > 1 and not yb:
                o.append(ystore((n >> 3) - 1))
            for dst, cur, prev, add in ((z2, c + 3, pc + 3, c + 2), (z1, z2, pz2, c + 1), (y, z1, pz1, c)):
                if n == 0:
                    o.append([("i", f"v_add_f32_dpp v{dst}, v{cur}, v{add} wave_shr:1 {dpp} bound_ctrl:0")])
                else:
                    o.append([("i", f"v_add_f32_dpp v{dst}, v{prev}, v{add} wave_ror:1 {dpp}")])
                    o.append([("i", f"v_add_f32_dpp v{dst}, v{cur}, v{add} wave_shr:1 {dpp}")])
            if not fold:
                o.append([("lgwait", (f"ur{n}",)), ("i", f"v_fmac_f32 v{y}, s{self.sD}, v{u}")])
            if n & 1:
                o.append([("i", f"v_cvt_pk_bf16_f32 v{UR}, v{YV}, v{YV+1}")] if fold else
                         [("i", f"v_cvt_pk_bf16_f32 v{y}, v{YV}, v{YV+1}")])
                w = UR if fold else y
                o.append([("ds", f"ds_write_b16 v3, v{w} offset:{128*(n-1)}", f"yw{n}")])
                o.append([("ds", f"ds_write_b16_d16_hi v3, v{w} offset:{128*n}", f"yw{n}")])
            return o

        if not fold:
            a(f"v_lshlrev_b32 v19, 16, v19")
            a(f"v_readfirstlane_b32 s{self.sD}, v19")
        for m in range(16):
            for q in range(2):
                a.ds(f"ds_read_b64_tr_b16 {vr(AF+4*m+2*q,2)}, v1 offset:{256*m+32*q}", "af")
        for i in range(4):
            for g in bread(i):
                play(a, g)
        if not fold:
            play(a, uread(0))
        a.lg.wait("af")
        nb = 4
        fill = []
        mi = 0
        self.stamp(1, "3")
        for n in range(32):
            if n in (8, 16, 20, 24, 28):
                self.stamp({8: 2, 16: 3, 20: 4, 24: 5, 28: 6}[n], "3")
            while fill and any(f[1] is not None and f[1] <= n - NACC + 1 for f in fill):
                play(a, fill.pop(0)[2])
            pend = []
            while nb < 32 and nb <= n + 4:
                pend += bread(nb); nb += 1
            fill = [(0, None, g) for g in pend] + fill
            ms = list(range(n // 2, -1, -1))
            for k, m in enumerate(ms):
                i = n - 2 * m
                assert not any(op[0] == "ds" and op[2] == f"b{i}" for f in fill for op in f[2])
                a.lg.wait(f"b{i}")
                c = "0" if k == 0 else vr(ca(n), 4)
                a(f"v_mfma_f32_16x16x32_bf16 {vr(ca(n),4)}, {vr(AF+4*m,4)}, {vr(BF+4*i,4)}, {c}")
                mi += 1
                slots = 2
                while slots and fill and fill[0][0] <= mi:
                    play(a, fill.pop(0)[2]); slots -= 1
            fill += [(mi + 8, n, g) for g in epi(n)]
        while fill:
            play(a, fill.pop(0)[2])
        for k in (range(4) if yb else [3]):
            play(a, yread(k))
        for k in (range(4) if yb else [3]):
            play(a, ystore(k))

    def final_prepare(self):
        a = self.a
        self.VO, T = 13, 20
        a(f"""
        s_lshl2_add_u32 s{sT0}, s{sRB2}, s{sB}
        s_mul_i32 s{sT1}, s{sT0}, 20480
        s_mul_i32 s{sT2}, s{sCB2}, 160
        s_add_u32 s{sT1}, s{sT1}, s{sT2}
        """)
        for p in range(3):
            a(f"""
            v_add_u32 v{T}, {64*p}, v0
            v_mul_u32_u24 v{T+1}, 205, v{T}
            v_lshrrev_b32 v{T+1}, 11, v{T+1}
            v_mul_u32_u24 v{T+1}, 1120, v{T+1}
            v_lshl_add_u32 v{T+1}, v{T}, 4, v{T+1}
            v_add_u32 v{self.VO+p}, s{sT1}, v{T+1}
            """)
        a(f"""
        s_lshl_b32 s{sT0}, s{sT0}, 7
        s_add_u32 s{sT0}, s{sT0}, {ST}
        v_and_b32 v{T}, 15, v0
        v_lshlrev_b32 v{T}, 3, v{T}
        """)
        a.vmem(f"buffer_load_dwordx2 v[16:17], v{T}, {sr(SWS,4)}, s{sT0} offen sc1", "xt")

    def final_xn(self):
        a = self.a
        T, X, XF, XN = 20, 24, 40, 60
        a(f"""
        v_and_b32 v{T}, 15, v0
        v_mul_u32_u24 v{T}, 160, v{T}
        v_lshrrev_b32 v{T+1}, 4, v0
        v_lshl_add_u32 v{T}, v{T+1}, 3, v{T}
        s_mul_i32 s{sT1}, s{sB}, 2560
        s_add_u32 s{sT1}, s{sT1}, {XT}
        v_add_u32 v1, s{sT1}, v{T}
        v_lshl_add_u32 v2, v0, 4, s{sT1}
        v_mov_b32 v{T}, {WFLG}
        """)
        if self.o.get("xtpos", "7") == "L":
            go = a.label("xgo")
            a.lg.drain()
            self.lds_flag_wait(T, T + 1, go)
            a(f"{go}:")
        a.vm.drain()
        for j in range(5):
            a.ds(f"ds_read_b64 {vr(X+2*j,2)}, v1 offset:{j*32}", "xr")
        a("v_rcp_f32 v17, v17")
        a.lg.drain()
        for p in range(10):
            x, n = XF + 2 * p, XN + 2 * p
            a(f"""
            v_lshlrev_b32 v{x}, 16, v{X+p}
            v_and_b32 v{x+1}, 0xffff0000, v{X+p}
            v_sub_f32 v{n}, v{x}, v16
            v_sub_f32 v{n+1}, v{x+1}, v16
            v_cvt_pk_bf16_f32 v{n+1}, v{n}, v{n+1}
            v_lshlrev_b32 v{n}, 16, v{n+1}
            v_and_b32 v{n+1}, 0xffff0000, v{n+1}
            v_mul_f32 v{n}, v{n}, v17
            v_mul_f32 v{n+1}, v{n+1}, v17
            v_cvt_pk_bf16_f32 v{n+1}, v{n}, v{n+1}
            v_lshlrev_b32 v{n}, 16, v{n+1}
            v_and_b32 v{n+1}, 0xffff0000, v{n+1}
            """)

    def final_rest(self):
        a = self.a
        T, Y, XF, XN, P = 20, 24, 40, 60, 80
        YT = AUX
        sPo, sPv = sA + 9, sA + 13
        other, go = a.label("ywait"), a.label("ygo")
        a("v_lshlrev_b32 v3, 4, v0")
        for j in range(5):
            offs = []
            for b in range(4):
                v, off = self.wl_addr(5 * b + j, 0, 1)
                offs.append((off + (WS_ if v else 0), 6144 if v else 4096))
            a(f"s_mov_b32 s{sT0}, {offs[0][0]}\ns_mov_b32 s{sT1}, {offs[0][1]}")
            for b in range(1, 4):
                a(f"s_cmp_eq_u32 s{sB}, {b}\ns_cselect_b32 s{sT0}, {offs[b][0]}, s{sT0}\ns_cselect_b32 s{sT1}, {offs[b][1]}, s{sT1}")
            a(f"v_add_u32 v{160+4*j}, s{sT0}, v3")
            for q in range(1, 4):
                a(f"v_add_u32 v{160+4*j+q}, s{sT1}, v{160+4*j+q-1}")
        a(f"""
        v_lshrrev_b32 v{T}, 2, v0
        v_and_b32 v{T+1}, 3, v0
        v_lshlrev_b32 v{T+1}, 3, v{T+1}
        v_lshl_add_u32 v{T}, v{T}, 7, v{T+1}
        s_lshl_b32 s{sT0}, s{sB}, 5
        s_add_u32 s{sT0}, s{sT0}, {YT}
        v_add_u32 v{T}, s{sT0}, v{T}
        v_mov_b32 v{T+1}, {YFLG}
        s_cmp_lg_u32 s{sB}, 3
        s_cbranch_scc1 {other}
        """)
        a(f"s_lshl3_add_u32 s{sT0}, s{sCB2}, s{sXCD}")
        self.cnt_off(sPo, cY, sT0)
        items = [(sPv, sPo, 0 if self.o.get("x_noy") else 32)]
        self.poll_issue(items, atomic=True)
        a(f"""
        v_lshrrev_b32 v{T+2}, 3, v0
        v_and_b32 v{T+3}, 7, v0
        v_lshlrev_b32 v{T+2}, 12, v{T+2}
        v_lshl_add_u32 v{T+2}, v{T+3}, 4, v{T+2}
        """)
        self.poll_check(items, atomic=True, sleep=4)
        ok = a.label("convdone")
        a(f"v_mov_b32 v6, {YCNT}")
        self.lds_flag_wait(6, 7, ok, f"s{self.sNC}")
        a(f"{ok}:")
        self.stamp(11)
        a(f"""
        s_mul_i32 s{sT0}, s{sCB2}, 327680
        s_lshl_b32 s{sT1}, s{sRB2}, 7
        s_add_u32 s{sT0}, s{sT0}, s{sT1}
        s_add_u32 s{sT0}, s{sT0}, {YY}
        """)
        for p in range(10):
            a(f"s_mov_b32 m0, {YT + p * 1024}")
            a(f"buffer_load_dwordx4 v{T+2}, {sr(SWS,4)}, s{sT0} offen sc1 lds")
            a(f"s_add_u32 s{sT0}, s{sT0}, 32768")
        a(f"""
        v_mov_b32 v{T+2}, 1
        s_waitcnt vmcnt(0)
        ds_write_b32 v{T+1}, v{T+2}
        s_branch {go}
        {other}:
        """)
        self.lds_flag_wait(T + 1, T + 3, go)
        a(f"{go}:")
        for j in range(5):
            a.ds(f"ds_read_b64_tr_b16 {vr(Y+2*j,2)}, v{T} offset:{j*2048}", "yr")
        a.lg.drain()
        for p in range(10):
            a(f"""
            v_lshlrev_b32 v{T}, 16, v{Y+p}
            v_and_b32 v{T+1}, 0xffff0000, v{Y+p}
            v_fmac_f32 v{XF+2*p}, v{XN+2*p}, v{T}
            v_fmac_f32 v{XF+2*p+1}, v{XN+2*p+1}, v{T+1}
            """)
        self.stamp(12)
        a("s_barrier")
        self.stamp(13)
        for j in range(5):
            for q in range(4):
                a.ds(f"ds_read_b128 {vr(P+16*j+4*q,4)}, v{160+4*j+q}", f"p{j}")
        for j in range(5):
            a.lg.wait(f"p{j}")
            p = P + 16 * j
            for r in range(4):
                a(f"v_add_f32 v{p+r}, v{p+r}, v{p+4+r}")
            for r in range(4):
                a(f"v_add_f32 v{p+8+r}, v{p+8+r}, v{p+12+r}")
            for r in range(4):
                a(f"v_add_f32 v{p+r}, v{p+r}, v{XF+4*j+r}")
            for r in range(4):
                a(f"v_add_f32 v{p+r}, v{p+r}, v{p+8+r}")
            a(f"v_cvt_pk_bf16_f32 v{p}, v{p}, v{p+1}\nv_cvt_pk_bf16_f32 v{p+1}, v{p+2}, v{p+3}")
            a.ds(f"ds_write_b64 v1, {vr(p,2)} offset:{j*32}", "ow")
        for p in range(3):
            a.ds(f"ds_read_b128 {vr(24+4*p,4)}, v2 offset:{p*1024}", f"or{p}")
        of = self.o.get("outflags", "")
        for p in range(3):
            a.lg.wait(f"or{p}")
            if p == 2:
                a("s_mov_b32 exec_hi, 0")
            a.vmem(f"buffer_store_dwordx4 {vr(24+4*p,4)}, v{self.VO+p}, {sr(SOUT,4)}, 0 offen {of}", "out")
        self.stamp(14)
        self.dump_stamps("B")
        a("s_endpgm")

    def role_b(self, K):
        a = self.a
        a.vm.q = []; a.lg.q = []
        sPo = [sA + 9, sA + 13, sA + 10, sA + 11]
        sPv = [sA + 12, sA + 14]
        self.sY, self.sR, self.sCH, self.sD = sA + 5, sA + 6, sC, sA + 8
        self.sRot, self.sWb, self.sWo = sA + 14, sA + 15, 3
        LAG = int(self.o.get("lag", 10))
        LAG0 = int(self.o.get("lag0", 7))
        assert LAG0 <= 10
        seq, last = [], {}
        for s_ in range(10):
            seq += [(s_, g) for g in self.rec(self.stage_issue, s_)]
            last[s_] = len(seq)
        cut = []
        for s_ in range(10):
            c = min(last[s_] + (LAG0 if s_ == 0 else LAG), len(seq))
            while any(k is not None and k >= s_ + 2 + (1 if s_ == 0 else 0) for k, _ in seq[:c]) and s_ < 9:
                c -= 1
            cut.append(max(c, cut[-1] if cut else 0))

        def zero_lds():
            b = self.a
            b(f"v_mov_b32 v56, {BCNT}\nv_mov_b32 v58, 0\nv_mov_b32 v59, 0")
            for k in range(4):
                b.ds(f"ds_write_b64 v56, v[58:59] offset:{8*k}", "z")
            b.lg.drain()

        def sig_stats():
            b = self.a
            b(f"s_lshr_b32 s{sT0}, s{sWS}, 4")
            self.cnt_off(sPo[0], cS, sT0)
            self.cnt_off(sPo[1], cC, sCB1)
            self.signal(sPo[:2], sPv[0])

        def sig_p0():
            b = self.a
            if K:
                b(f"s_lshr_b32 s{sT0}, s{sC}, 6")
                self.cnt_off(sPo[2], cU, sT0)
            else:
                b(f"""
                s_lshr_b32 s{sT0}, s{sC}, 3
                s_mul_i32 s{sT0}, s{sT0}, 43
                s_lshr_b32 s{sT0}, s{sT0}, 9
                s_and_b32 s{sT1}, s{sC}, 4
                s_add_u32 s{sT0}, s{sT0}, s{sT1}
                """)
                self.cnt_off(sPo[2], cW, sT0)
            self.signal([sPo[2]], sPv[1])

        def b_scalars():
            b = self.a
            b(f"""
            s_mul_i32 s{self.sR}, s{sB}, {CVR}
            s_add_u32 s{self.sR}, s{self.sR}, {AUX}
            v_lshlrev_b32 v18, 4, v0
            """)

        def g2s():
            b = self.a
            b.lg.drain()
            self.g2_scalars(self.sRot, self.sWb)
            b(f"s_mul_i32 s{sT0}, s{sB}, 61440\ns_sub_u32 s{self.sWb}, s{self.sWb}, s{sT0}")

        early = [(sA + 12, sA + 9, 16), (sA + 14, sA + 10, 16), (sA + 15, sA + 11, 16)]

        def poll_early():
            b = self.a
            b.lg.drain()
            for (_, off, _), (base, src, sh) in zip(early, [(cS, sRB1, 0), (cC, sCB1, 0), (cS, sRB2, 1)]):
                b(f"s_lshr_b32 s{sT0}, s{src}, {sh}")
                self.cnt_off(off, base, sT0)
            self.poll_issue(early)

        def wave3(groups):
            lab = a.label("w3")
            return [[("i", f"s_cmp_lg_u32 s{sB}, 3"), ("i", f"s_cbranch_scc1 {lab}")] + sum(groups, []) + [("i", f"{lab}:")]]

        def poll_late():
            b = self.a
            if K:
                b(f"s_lshr_b32 s{sT0}, s{sC}, 6")
                self.cnt_off(sT0, cU, sT0)
                b(f"v_mov_b32 v22, s{sT0}")
            else:
                b(f"s_and_b32 s{sT0}, s{sCB2}, 4")
                self.cnt_off(sT0, cW, sT0)
                b(f"v_lshl_add_u32 v22, v0, 7, s{sT0}")
            b.begin()
            b(f"s_mov_b64 exec, {1 if K else 15}")
            b.vmem(f"buffer_load_dword v23, v22, {sr(SWS,4)}, 0 offen sc1", "late")
            b("s_mov_b64 exec, -1")
            b.end()

        R = self.rec
        tasks = {k: [] for k in range(10)}
        heads = {k: [] for k in range(10)}
        tails = {k: [] for k in range(10)}
        extra = {k: [] for k in range(10)}
        after = {k: [] for k in range(10)}
        tasks[0] += R(self.task_index, K) + R(zero_lds)
        csa = self.o.get("cs", "A") == "A"
        if not csa:
            tasks[1] += R(self.colsum_partial)
        pk = int(self.o.get("kpos", 1))
        nk = int(self.o.get("kspread", 3))
        if not K:
            heads[pk] += R(self.vcheck_issue, 58, 59, SDBG, 1, 3)
            after[pk] += R(self.vcheck, 58, 59, "1", SDBG, 1, 3)
        if self.o.get("p0", "B") == "A":
            ph = int(self.o.get("hpos", 1))
            heads[ph] += R(b_scalars) + (R(self.conv_issue) if K else wave3(R(self.xt_issue)))
            tails[1] += R(self.colsum_store)
            extra[2] += ["csst"]
            heads[2] += R(sig_p0)
        else:
            heads[pk] += R(self.kv_issue if K else self.wd_issue)
            work = R(self.kv_work if K else self.wd_work)
            nst = min(k for k, g in enumerate(work) if any(op[0] == "vmem" for op in g))
            while work[nst - 1][0][0] == "lgwait":
                nst -= 1
            work, stores = work[:nst], work[nst:]
            first = max(pk + 1, 2)
            for n in range(nk):
                tasks[first + n] += work[len(work) * n // nk:len(work) * (n + 1) // nk]
            ps = first + nk
            heads[ps] += stores
            tasks[ps + 1] += R(b_scalars)
            if K:
                heads[pk] += R(self.conv_issue)
                tasks[ps + 1] += R(self.conv_filter_to_lds)
            elif self.o.get("xtpos", "7") != "L":
                heads[int(self.o.get("xtpos", "7"))] += wave3(R(self.xt_issue))
            if not csa:
                tails[1] += R(self.colsum_store)
                extra[2] += ["csst"]
            extra[ps + 1] += ["utst"]
            after[ps + 1] += R(sig_p0)
        if not K:
            heads[3] += wave3(R(sig_stats))
            heads[8] += wave3(R(poll_early))
            after[8] += wave3(R(self.poll_check, early))
        if not K:
            tasks[9] += R(g2s)
        tails[9] += R(self.gather_issue) + R(poll_late)
        if K:
            tails[9] += R(self.conv_setup)
        pos = 0
        for s_ in range(10):
            for g in heads[s_]:
                play(a, g)
            interleave(a, [g for _, g in seq[pos:cut[s_]]], tasks[s_])
            pos = cut[s_]
            for g in tails[s_]:
                play(a, g)
            a.vm.wait(f"S{s_}", *extra[s_])
            for g in after[s_]:
                play(a, g)
            a("s_barrier")
            if s_ in (0, 3, 6, 8, 9):
                self.stamp({0: 1, 3: 2, 6: 3, 8: 5, 9: 6}[s_])
            self.stamp(s_ + 1, "2")
        assert pos == len(seq)
        self.gather_finish()
        a.vm.wait("late")
        if K:
            self.vcheck(23, 22, "64", SWS, 1, None)
            self.conv_u_issue()
            self.final_prepare()
            self.stamp(7)
            self.stamp(9, "3")
            if not self.o.get("x_noconv"):
                self.conv_main()
            self.stamp(8)
            self.stamp(7, "3")
            skip = a.label("ysig")
            a(f"v_mov_b32 v20, {YCNT}\nv_mov_b32 v21, 1")
            a(f"s_lshl_b32 s{sT0}, s{sXCD}, 3")
            self.cnt_off(sPo[0], cY, sT0)
            a.vm.drain()
            a("s_mov_b64 exec, 1")
            a.ds("ds_add_rtn_u32 v21, v20, v21", "yc")
            a.lg.drain()
            a(f"""
            v_readfirstlane_b32 s{sT0}, v21
            s_mov_b64 exec, -1
            s_add_u32 s{sT0}, s{sT0}, 1
            s_cmp_lg_u32 s{sT0}, s{self.sNC}
            s_cbranch_scc1 {skip}
            s_mov_b32 s{sPv[0]}, 1
            s_add_u32 s{sPo[2]}, s{SWS}, s{sPo[0]}
            s_addc_u32 s{sPo[3]}, s{SWS+1}, 0
            """)
            for k in range(8):
                a(f"s_atomic_add s{sPv[0]}, s[{sPo[2]}:{sPo[3]}], {k*128}")
            a(f"{skip}:")
            self.stamp(9)
            a("s_branch L_bjoin")
        else:
            self.final_prepare()
            a(f"s_setprio {self.o.get('lprio', 0)}\ns_cmp_lg_u32 s{sB}, 3\ns_cbranch_scc1 L_bjoin")
            self.vcheck(23, 22, "48", SWS, 15, None)
            a(f"v_mov_b32 v20, {CWFLG}\nv_mov_b32 v21, 1")
            a.ds("ds_write_b32 v20, v21", "cw")
            self.loader()
            self.stamp(8)

    def build(self):
        a = self.a
        self.prologue()
        self.role_a()
        self.b_common_setup()
        self.sNC = sA + 4
        a(f"s_setprio {self.o.get('bprio', 1)}")
        self.stamp(0)
        a(f"s_and_b32 s{sT0}, s{sI}, 1\ns_sub_u32 s{self.sNC}, 3, s{sT0}")
        a(f"s_cmp_ge_u32 s{sB}, s{self.sNC}\ns_cbranch_scc1 L_pathW")
        self.role_b(True)
        a("L_pathW:")
        self.role_b(False)
        a("L_bjoin:")
        a.vm.q = ["any"]; a.lg.q = ["any"]
        self.final_xn()
        self.stamp(10)
        self.final_rest()
        a("L_end:\ns_endpgm")
        return a.text()


def kernel_file(opt):
    ref = open("parallel_sum__ssm_conv_h3__swiglu_ffn__prompt.s.ref").read()
    head = [l for l in ref.split("\n") if l.startswith(";") and "@launch" not in l]
    head = head[:head.index([l for l in head if "d_ws" in l][0]) + 1]
    body = Gen(opt).build()
    return "\n".join(head) + f"""
; @launch grid=(256,1,1) block=(512,1,1) lds={LDS_BYTES}
.amdgcn_target "amdgcn-amd-amdhsa--gfx950"
.text
.globl {KNAME}
.p2align 8
.type {KNAME},@function
{KNAME}:
{body}.section .rodata,"a"
.p2align 6
.amdhsa_kernel {KNAME}
  .amdhsa_next_free_vgpr 256
  .amdhsa_next_free_sgpr 102
  .amdhsa_accum_offset 256
  .amdhsa_group_segment_fixed_size 0
  .amdhsa_kernarg_size 104
  .amdhsa_user_sgpr_count 2
  .amdhsa_user_sgpr_kernarg_segment_ptr 1
  .amdhsa_system_sgpr_workgroup_id_x 1
  .amdhsa_float_denorm_mode_32 3
.end_amdhsa_kernel
"""


if __name__ == "__main__":
    out = sys.argv[1]
    opt = {}
    for kv in sys.argv[2:]:
        k, _, v = kv.partition("=")
        opt[k] = v if v else True
    open(out, "w").write(kernel_file(opt))
```

```python
import re

TRANS = ("v_exp_f32", "v_log_f32", "v_rcp_f32", "v_rsq_f32", "v_sqrt_f32", "v_sin_f32", "v_cos_f32")
NODST_S = ("s_cmp", "s_waitcnt", "s_barrier", "s_branch", "s_cbranch", "s_nop", "s_setprio", "s_sleep",
           "s_endpgm", "s_bitcmp", "s_setpc")


def vr(a, n=1):
    return f"v{a}" if n == 1 else f"v[{a}:{a+n-1}]"


def sr(a, n=1):
    return f"s{a}" if n == 1 else f"s[{a}:{a+n-1}]"


def regs_of(op):
    op = op.strip()
    op = op.lstrip("-")
    if op.startswith("abs(") and op.endswith(")"):
        op = op[4:-1]
    op = op.strip("|")
    m = re.fullmatch(r"([vsa])(\d+)", op)
    if m:
        return {(m.group(1), int(m.group(2)))}
    m = re.fullmatch(r"([vsa])\[(\d+):(\d+)\]", op)
    if m:
        return {(m.group(1), i) for i in range(int(m.group(2)), int(m.group(3)) + 1)}
    if op in ("vcc", "vcc_lo", "vcc_hi"):
        return {("s", "vcc")}
    if op in ("exec", "exec_lo", "exec_hi"):
        return {("s", "exec")}
    if op == "m0":
        return {("s", "m0")}
    return set()


class Ins:
    def __init__(self, text):
        self.text = text
        t = text.split(";")[0].strip()
        self.label = t.endswith(":")
        self.directive = t.startswith(".")
        self.mn = "" if (self.label or self.directive or not t) else t.split()[0]
        self.dst, self.src = set(), set()
        self.a = self.b = self.c = set()
        self.kind = "none"
        self.passes = 0
        self.states = 0 if not self.mn else 1
        if not self.mn:
            return
        rest = t[len(self.mn):].strip()
        rest = re.sub(r"quad_perm:\[[0-9,]*\]", "quad_perm", rest)
        rest = re.sub(r"op_sel(_hi)?:\[[0-9,]*\]", "", rest).strip()
        ops = [o.strip() for o in rest.split(",")] if rest else []
        mods = []
        if ops:
            parts = ops[-1].split()
            ops[-1] = parts[0] if parts else ""
            mods = parts[1:]
        self.mods = mods
        mn = self.mn
        R = [regs_of(o) for o in ops]
        U = lambda l: set().union(*l) if l else set()
        if mn == "s_nop":
            self.kind = "salu"; self.states = int(ops[0], 0) + 1
        elif mn.startswith("v_mfma"):
            self.kind = "mfma"
            self.dst, self.a, self.b, self.c = R[0], R[1], R[2], R[3]
            self.src = self.a | self.b | self.c
            self.passes = 8 if "32x32" in mn else 4
        elif mn.startswith("v_"):
            self.kind = "valu"
            self.dpp = "_dpp" in mn or any(m.startswith(("wave_", "row_", "quad_perm")) for m in mods)
            if "permlane" in mn and "swap" in mn:
                self.dst = R[0] | R[1]; self.src = R[0] | R[1]
            else:
                self.dst = R[0]; self.src = U(R[1:])
                self.src0 = R[1] if len(R) > 1 else set()
                if mn.startswith(("v_fmac", "v_dot2c")) or self.dpp:
                    self.src = self.src | R[0]
                if mn.startswith("v_cndmask") and len(ops) == 3:
                    self.src = self.src | {("s", "vcc")}
        elif mn.startswith("ds_"):
            self.kind = "ds"
            if mn.startswith("ds_read") or "_rtn" in mn or mn.startswith(("ds_bpermute", "ds_swizzle")):
                self.dst = R[0]; self.src = U(R[1:])
                if "d16" in mn:
                    self.src = self.src | R[0]
            else:
                self.src = U(R)
        elif mn.startswith(("buffer_", "global_")):
            self.kind = "vmem"
            self.lds = "lds" in mods or "load_lds" in mn
            if "load" in mn and not self.lds:
                self.dst = R[0]; self.src = U(R[1:])
            else:
                self.src = U(R)
                if "atomic" in mn and "sc0" in mods:
                    self.dst = R[0]
            if self.lds:
                self.src = self.src | {("s", "m0")}
            self.wide_store = ("store" in mn) and mn.endswith(("x3", "x4"))
            self.data = R[0] if "store" in mn else set()
        elif mn.startswith(("s_load", "s_memtime", "s_memrealtime", "s_atomic")):
            self.kind = "smem"; self.dst = R[0]; self.src = U(R[1:])
        elif mn.startswith("s_"):
            self.kind = "salu"
            if mn.startswith(NODST_S):
                self.src = U(R)
            else:
                self.dst = R[0]; self.src = U(R[1:])
                if "saveexec" in mn:
                    self.dst = self.dst | {("s", "exec")}
        else:
            raise ValueError("unknown instruction: " + text)


def V(s):
    return {r for r in s if r[0] in "va"}


def S(s):
    return {r for r in s if r[0] == "s"}


def need(p, c):
    n = 0
    if p.kind == "valu":
        vw = V(p.dst); sw = S(p.dst)
        if c.kind == "mfma" and vw & c.src: n = max(n, 2)
        if c.kind == "valu":
            if c.mn.startswith(("v_readfirstlane", "v_readlane")) and vw & c.src: n = max(n, 1)
            if "permlane" in c.mn and vw & c.src: n = max(n, 2)
            if c.dpp and vw & c.src0: n = max(n, 2)
            if p.mn.startswith(TRANS) and not c.mn.startswith(TRANS) and vw & c.src: n = max(n, 1)
            if sw & c.src: n = max(n, 4 if c.mn.startswith(("v_readlane", "v_writelane")) else 2)
            if p.mn.startswith("v_dot2") and vw & (c.src | c.dst):
                same_c = c.mn == p.mn and vw == V(c.dst)
                if not same_c: n = max(n, 3)
        if p.mn.startswith("v_dot2") and c.kind in ("vmem", "ds", "mfma") and vw & c.src: n = max(n, 3)
        if p.mn.startswith(TRANS) and c.kind in ("vmem", "ds") and vw & c.src: n = max(n, 1)
        if c.kind == "vmem" and sw & c.src: n = max(n, 5)
        if c.kind in ("salu", "smem") and sw & c.src: n = max(n, 1)
    if p.kind == "mfma":
        big = 12 if p.passes == 8 else 8
        if c.kind == "mfma":
            if p.dst & (c.a | c.b): n = max(n, big)
            if p.dst & c.c and not (p.dst == c.c and p.passes == c.passes): n = max(n, big - 2)
            if p.dst & c.dst and not (p.dst == c.c and p.passes == c.passes): n = max(n, big - 2)
        elif c.kind in ("valu", "vmem", "ds"):
            if p.dst & (c.src | c.dst): n = max(n, big)
            if c.kind == "valu" and p.c & c.dst: n = max(n, 7 if p.passes == 8 else 3)
    if p.kind == "salu" and ("s", "m0") in p.dst and c.kind == "vmem" and c.lds: n = max(n, 1)
    if p.kind == "vmem" and p.wide_store and p.data & c.dst:
        n = max(n, 2 if c.kind in ("valu", "mfma") else 1)
    return n


def fix_hazards(lines):
    out = []
    for text in lines:
        c = Ins(text)
        if c.mn:
            dist = 0; worst = 0
            for p in reversed(out):
                if p.mn:
                    worst = max(worst, need(p, c) - dist)
                    dist += p.states
                    if dist > 20 or p.mn in ("s_branch", "s_endpgm", "s_setpc_b64"):
                        break
            while worst > 0:
                k = min(worst, 16)
                out.append(Ins(f"s_nop {k-1}")); worst -= k
        out.append(c)
    return [i.text for i in out]


class Counter:
    def __init__(self, emit, name, maxv):
        self.emit, self.name, self.maxv = emit, name, maxv
        self.q = []

    def issue(self, tag):
        self.q.append(tag)

    def wait(self, *tags):
        idx = [i for i, t in enumerate(self.q) if t in tags]
        if not idx:
            return
        n = len(self.q) - 1 - max(idx)
        self.emit(f"s_waitcnt {self.name}({min(n, self.maxv)})")
        self.q = self.q[len(self.q) - min(n, self.maxv):] if n else []

    def drain(self):
        self.emit(f"s_waitcnt {self.name}(0)")
        self.q = []

    def copy_from(self, other):
        self.q = list(other.q)


class Asm:
    def __init__(self):
        self.lines = []
        self.vm = Counter(self, "vmcnt", 63)
        self.lg = Counter(self, "lgkmcnt", 15)
        self.nlabel = 0

    def __call__(self, text):
        for l in text.split("\n"):
            l = l.strip()
            if l:
                self.lines.append(l)

    def vmem(self, text, tag):
        self(text); self.vm.issue(tag)

    def ds(self, text, tag):
        self(text); self.lg.issue(tag)

    def label(self, base):
        self.nlabel += 1
        return f"L_{base}_{self.nlabel}"

    def begin(self):
        pass

    def end(self):
        pass

    def text(self):
        return "\n".join(fix_hazards(self.lines)) + "\n"


class _RecCounter:
    def __init__(self, rec, which):
        self.rec, self.which = rec, which

    def wait(self, *tags):
        self.rec.add((self.which + "wait", tags))

    def drain(self):
        self.rec.add((self.which + "drain",))


class Rec:
    def __init__(self, asm):
        self.asm = asm
        self.groups = []
        self.depth = 0
        self.vm = _RecCounter(self, "vm")
        self.lg = _RecCounter(self, "lg")

    def add(self, op):
        if self.depth:
            self.groups[-1].append(op)
        else:
            self.groups.append([op])

    def __call__(self, text):
        for l in text.split("\n"):
            l = l.strip()
            if l:
                self.add(("i", l))

    def vmem(self, text, tag):
        self.add(("vmem", text, tag))

    def ds(self, text, tag):
        self.add(("ds", text, tag))

    def label(self, base):
        return self.asm.label(base)

    def begin(self):
        if self.depth == 0:
            self.groups.append([])
        self.depth += 1

    def end(self):
        self.depth -= 1


def play(asm, group):
    for op in group:
        k = op[0]
        if k == "i": asm(op[1])
        elif k == "vmem": asm.vmem(op[1], op[2])
        elif k == "ds": asm.ds(op[1], op[2])
        elif k == "vmwait": asm.vm.wait(*op[1])
        elif k == "lgwait": asm.lg.wait(*op[1])
        elif k == "vmdrain": asm.vm.drain()
        elif k == "lgdrain": asm.lg.drain()


def interleave(asm, main, fill):
    total = sum(len(g) for g in fill)
    done = 0
    fi = 0
    for k, g in enumerate(main):
        play(asm, g)
        want = total * (k + 1) / max(1, len(main))
        while fi < len(fill) and done < want:
            play(asm, fill[fi]); done += len(fill[fi]); fi += 1
    while fi < len(fill):
        play(asm, fill[fi]); fi += 1
```

```python
import sys
from asmlib import Asm, Rec, play, interleave, vr, sr

KNAME = "parallel_sum__ssm_conv_h3__swiglu_ffn__prompt_kernel"

CNT, ST, CS, UT, YY, WDT, HH, PROF, WS_SIZE = (0, 0x8000, 0xC000, 0x40000, 0x340000, 0x640000, 0x820000,
                                               0xE20000, 0xF00000)
ROW = 4352
cH, cS, cC, cU, cW, cY = 0, 128, 144, 160, 176, 192
XS, WS_, AUX = 0, 49152, 122880
CVR = 8704
XT = AUX + 3 * CVR
STL, CSF, BCNT = AUX + 36352, AUX + 37376, AUX + 40448
YFLG, YCNT, ACNT, WFLG, ECNT, GCNT, CWFLG = [BCNT + 4 * k for k in range(7)]
LDS_BYTES = 163840
SQ, SWG, SWU, SWS, SK, SV, SSH, SSK, SSD, SOUT, SDBG, SWD = 4, 8, 12, 16, 20, 24, 28, 32, 36, 40, 44, 48
sW, sB, sXCD, sI, sRB1, sCB1, sKS, sRB2, sCB2, sWS, sC = 52, 53, 54, 55, 56, 57, 58, 59, 60, 61, 62
sT0, sT1, sT2, sT3, sCNT = 63, 64, 65, 66, 67
sTM = 68
sPR = 70
sA = 86
POLL_LIMIT = 1 << 17
LOG2E = 1.4426950408889634


def f2u(x):
    import struct
    return struct.unpack("<I", struct.pack("<f", x))[0]


class Gen:
    def __init__(self, opt):
        self.o = opt
        self.a = Asm()
        self.row = int(opt.get('row', ROW))

    def ws_shift(self):
        off = int(self.o.get("x_wsoff", "0"), 0)
        if off:
            self.a(f"s_add_u32 s{SWS}, s{SWS}, {off}\ns_addc_u32 s{SWS+1}, s{SWS+1}, 0")

    def stamp(self, k, kind="1"):
        if self.o.get("profile") != kind and not (k == 0 and self.o.get("profile")):
            return
        a = self.a
        a(f"{'s_memtime' if self.o.get('clk') else 's_memrealtime'} {sr(sTM, 2)}")
        a.lg.drain()
        a(f"s_mov_b32 s{sPR+k}, s{sTM}")

    def dump_stamps(self, role):
        if not self.o.get("profile"):
            return
        a = self.a
        a("s_mov_b64 exec, -1")
        a("v_mov_b32 v1, 0")
        for k in range(16):
            a(f"v_writelane_b32 v1, s{sPR+k}, {k}")
        a(f"s_lshl_b32 s{sT0}, s2, 3\ns_add_u32 s{sT0}, s{sT0}, s{sW}\ns_lshl_b32 s{sT0}, s{sT0}, 6\ns_add_u32 s{sT0}, s{sT0}, {PROF}")
        a("v_mbcnt_lo_u32_b32 v2, -1, 0\nv_mbcnt_hi_u32_b32 v2, -1, v2\nv_lshlrev_b32 v2, 2, v2")
        a("s_mov_b64 exec, 0xffff")
        a(f"buffer_store_dword v1, v2, {sr(SWS,4)}, s{sT0} offen")
        if self.o.get("dbgout"):
            wg = int(self.o["dbgout"])
            skip = a.label("dbgout")
            sel = [1, 2, 3, 4, 8, 5, 6, 7] if role == "A" else [1, 2, 3, 6, 7, 8, 14]
            a(f"s_cmp_lg_u32 s2, {wg}\ns_cbranch_scc1 {skip}\ns_cmp_lg_u32 s{sB}, 1\ns_cbranch_scc1 {skip}")
            for n, k in enumerate(sel):
                a(f"s_sub_u32 s{sT0}, s{sPR+k}, s{sPR}\nv_writelane_b32 v1, s{sT0}, {n}")
            a(f"s_mov_b64 exec, {(1 << len(sel)) - 1}")
            a(f"buffer_store_dword v1, v2, {sr(SDBG,4)}, 0 offen offset:{4 if role == 'A' else 36}")
            a(f"{skip}:")

    def rec(self, fn, *args):
        real = self.a
        self.a = Rec(real)
        fn(*args)
        groups = self.a.groups
        self.a = real
        return groups

    def cnt_off(self, sdst, base, sidx):
        self.a(f"s_add_u32 s{sdst}, s{sidx}, {base}\ns_lshl_b32 s{sdst}, s{sdst}, 7")

    def signal(self, soffs, stmp, only_wave0=False):
        a = self.a
        skip = a.label("sig")
        a.begin()
        if only_wave0:
            a(f"s_cmp_lg_u32 s{sB}, 0\ns_cbranch_scc1 {skip}")
        a(f"s_mov_b32 s{stmp}, 1")
        for so in soffs:
            a(f"s_atomic_add s{stmp}, {sr(SWS,2)}, s{so}")
        if only_wave0:
            a(f"{skip}:")
        a.end()

    def poll_ops(self, items, atomic):
        o = []
        for val, off, _ in items:
            base = sr(SDBG, 2) if off is None else sr(SWS, 2)
            offs = "0" if off is None else f"s{off}"
            if atomic:
                o += [f"s_mov_b32 s{val}, 0", f"s_atomic_add s{val}, {base}, {offs} glc"]
            else:
                o += [f"s_load_dword s{val}, {base}, {offs} glc"]
        return "\n".join(o)

    def poll_issue(self, items, atomic=False, only_wave0=False):
        a = self.a
        skip = a.label("pi")
        a.begin()
        if only_wave0:
            a(f"s_cmp_lg_u32 s{sB}, 0\ns_cbranch_scc1 {skip}")
        a(self.poll_ops(items, atomic))
        if only_wave0:
            a(f"{skip}:")
        a.end()

    def poll_check(self, items, atomic=False, only_wave0=False, sleep=2):
        a = self.a
        lo, again, ok = a.label("poll"), a.label("again"), a.label("pollok")
        a.begin()
        a.lg.drain()
        if only_wave0:
            a(f"s_cmp_lg_u32 s{sB}, 0\ns_cbranch_scc1 {ok}")
        a(f"s_mov_b32 s{sCNT}, 0")
        a(f"{lo}:")
        for k, (val, _, target) in enumerate(items):
            a(f"s_cmp_ge_u32 s{val}, {target}")
            a(f"s_cbranch_scc1 {ok}" if k == len(items) - 1 else f"s_cbranch_scc0 {again}")
        a(f"{again}:")
        if sleep:
            a(f"s_sleep {sleep}")
        a(self.poll_ops(items, atomic))
        a(f"s_add_u32 s{sCNT}, s{sCNT}, 1")
        a(f"s_cmp_lt_u32 s{sCNT}, {POLL_LIMIT}")
        a("s_waitcnt lgkmcnt(0)")
        a(f"s_cbranch_scc1 {lo}")
        a(f"{ok}:")
        a.end()

    def vcheck_issue(self, vret, vaddr, srd, mask, wave=0):
        a = self.a
        skip = a.label("vi")
        a.begin()
        if wave is not None:
            a(f"s_cmp_lg_u32 s{sB}, {wave}\ns_cbranch_scc1 {skip}")
        a(f"s_mov_b64 exec, {mask}")
        a(f"buffer_load_dword v{vret}, v{vaddr}, {sr(srd,4)}, 0 offen sc1")
        a("s_mov_b64 exec, -1")
        a(f"{skip}:")
        a.end()

    def vcheck(self, vret, vaddr, vtarget, srd, mask, wave=0):
        a = self.a
        lo, ok, skip = a.label("vc"), a.label("vcok"), a.label("vcskip")
        a.begin()
        if wave is not None:
            a(f"s_cmp_lg_u32 s{sB}, {wave}\ns_cbranch_scc1 {skip}")
        a(f"""
        s_mov_b64 exec, {mask}
        s_mov_b32 s{sCNT}, 0
        {lo}:
        v_cmp_le_u32 vcc, {vtarget}, v{vret}
        s_cmp_eq_u64 vcc, exec
        s_cbranch_scc1 {ok}
        s_sleep 8
        buffer_load_dword v{vret}, v{vaddr}, {sr(srd,4)}, 0 offen sc1
        s_add_u32 s{sCNT}, s{sCNT}, 1
        s_cmp_lt_u32 s{sCNT}, {POLL_LIMIT}
        s_waitcnt vmcnt(0)
        s_cbranch_scc1 {lo}
        {ok}:
        s_mov_b64 exec, -1
        {skip}:
        """)
        a.end()

    def lds_flag_wait(self, vaddr, vtmp, go, value=1):
        a = self.a
        lo = a.label("lf")
        a(f"""
        s_mov_b32 s{sCNT}, 0
        {lo}:
        ds_read_b32 v{vtmp}, v{vaddr}
        s_add_u32 s{sCNT}, s{sCNT}, 1
        s_waitcnt lgkmcnt(0)
        v_readfirstlane_b32 s{sT0}, v{vtmp}
        s_cmp_eq_u32 s{sT0}, {value}
        s_cbranch_scc1 {go}
        s_sleep 1
        s_cmp_lt_u32 s{sCNT}, {POLL_LIMIT*16}
        s_cbranch_scc1 {lo}
        """)

    SRDS = ((SQ, 0, 2621440), (SWG, 56, 1966080), (SWU, 64, 1966080), (SWS, 96, WS_SIZE), (SK, 8, 2621440),
            (SV, 16, 2621440), (SSH, 24, 5120), (SSK, 32, 2621440), (SSD, 40, 1280), (SOUT, 80, 2621440),
            (SDBG, 88, 256), (SWD, 72, 1966080))

    def srd_words(self, which):
        for srd, _, size in self.SRDS:
            if srd in which:
                self.a(f"s_mov_b32 s{srd+2}, {size}\ns_mov_b32 s{srd+3}, 0x20000")

    def prologue(self):
        a = self.a
        a("s_cmp_ge_u32 s2, 256\ns_cbranch_scc1 L_end")
        if self.o.get("profile"):
            a(f"{'s_memtime' if self.o.get('clk') else 's_memrealtime'} {sr(sTM, 2)}\ns_waitcnt lgkmcnt(0)\ns_mov_b32 s{sPR+15}, s{sTM}")
        for srd, off, _ in self.SRDS:
            if srd in (SQ, SWG, SWU, SWS, SDBG):
                a(f"s_load_dwordx2 {sr(srd,2)}, s[0:1], {off}")
        a("v_lshrrev_b32 v1, 6, v0")
        a(f"""
        s_and_b32 s{sXCD}, s2, 7
        v_readfirstlane_b32 s{sW}, v1
        s_lshr_b32 s{sI}, s2, 3
        s_and_b32 s{sT0}, s{sXCD}, 1
        s_lshr_b32 s{sT1}, s{sXCD}, 1
        s_and_b32 s{sT2}, s{sI}, 7
        s_lshl3_add_u32 s{sRB1}, s{sT0}, s{sT2}
        s_lshr_b32 s{sT2}, s{sI}, 3
        s_lshl2_add_u32 s{sCB1}, s{sT1}, s{sT2}
        s_and_b32 s{sB}, s{sW}, 3
        s_cmp_ge_u32 s{sW}, 4
        s_cbranch_scc1 L_roleB
        """)
        if self.o.get("pf", "1") == "1":
            a(f"""
            s_getpc_b64 s[{sT1}:{sT2}]
            L_pc:
            s_lshl_b32 s{sT0}, s{sI}, 11
            v_lshl_add_u32 v1, v0, 3, s{sT0}
            v_cmp_gt_u32 vcc, L_end-L_pc-4, v1
            s_and_saveexec_b64 s[{sTM}:{sTM+1}], vcc
            s_cbranch_execz L_nopf
            global_load_dwordx2 v[254:255], v1, s[{sT1}:{sT2}]
            L_nopf:
            s_mov_b64 exec, -1
            """)
        a("s_branch L_roleA")

    def decode_rest(self):
        a = self.a
        a(f"""
        s_and_b32 s{sT0}, s{sXCD}, 1
        s_lshr_b32 s{sT1}, s{sXCD}, 1
        s_lshl2_add_u32 s{sT3}, s{sT0}, s{sT1}
        s_lshl_b32 s{sWS}, s{sT3}, 5
        s_add_u32 s{sWS}, s{sWS}, s{sI}
        """)
        if self.o.get("g2map", "84") == "84":
            a(f"""
            s_bfe_u32 s{sT1}, s{sXCD}, 0x10001
            s_lshl1_add_u32 s{sT0}, s{sT0}, s{sT1}
            s_and_b32 s{sT1}, s{sI}, 7
            s_lshl3_add_u32 s{sRB2}, s{sT0}, s{sT1}
            s_lshr_b32 s{sT0}, s{sXCD}, 2
            s_lshr_b32 s{sT1}, s{sI}, 3
            s_lshl2_add_u32 s{sCB2}, s{sT0}, s{sT1}
            """)
        else:
            a(f"""
            s_and_b32 s{sT2}, s{sI}, 3
            s_lshl2_add_u32 s{sRB2}, s{sT3}, s{sT2}
            s_lshr_b32 s{sCB2}, s{sI}, 2
            """)
        if self.o.get("profile"):
            for k in range(15):
                a(f"s_mov_b32 s{sPR+k}, 0")

    def role_a(self):
        a = self.a
        XA, WA, VH = 1, 5, 11
        FR, ACC = 120, 160
        T = 112
        sWM, sWN = sA, sA + 1
        sH = sA + 2
        xf = lambda p, i: FR + 20 * p + 4 * i
        wf = lambda p, j: FR + 20 * p + 8 + 4 * j
        acc = lambda i, j: ACC + (i * 3 + j) * 16
        def addr_setup():
            a(f"""
            s_and_b32 s{sWM}, s{sB}, 1
            s_lshr_b32 s{sWN}, s{sB}, 1
            v_and_b32 v{T}, 31, v0
            v_lshrrev_b32 v{T+1}, 5, v0
            v_bfe_u32 v{T+2}, v0, 1, 3
            v_xor_b32 v{T+2}, v{T+2}, v{T+1}
            s_lshl_b32 s{sT0}, s{sWM}, 13
            v_lshl_add_u32 v{T}, v{T}, 7, s{sT0}
            """)
            for t in range(4):
                a(f"v_xor_b32 v{T+3}, {2*t}, v{T+2}\nv_lshl_add_u32 v{XA+t}, v{T+3}, 4, v{T}")
            a(f"""
            v_bfe_u32 v{T+2}, v0, 4, 1
            v_mul_u32_u24 v{T+3}, 3072, v{T+2}
            v_mul_u32_u24 v{T+4}, 1536, v{T+1}
            v_bfe_u32 v{T+5}, v0, 2, 2
            v_lshl_add_u32 v{T+3}, v{T+5}, 6, v{T+3}
            v_and_b32 v{T+5}, 1, v0
            v_lshl_add_u32 v{T+3}, v{T+5}, 4, v{T+3}
            v_bfe_u32 v{T+5}, v0, 1, 1
            v_lshl_add_u32 v{T+3}, v{T+5}, 3, v{T+3}
            v_add_u32 v{T+3}, v{T+3}, v{T+4}
            v_lshlrev_b32 v{T+2}, 5, v{T+2}
            s_mul_i32 s{sT0}, s{sWN}, 3
            s_lshl_b32 s{sT3}, s{sRB1}, 1
            s_add_u32 s{sT3}, s{sT3}, s{sWM}
            s_mul_i32 s{sT3}, s{sT3}, 48
            s_mul_i32 s{sT2}, s{sCB1}, 3
            s_add_u32 s{sT3}, s{sT3}, s{sT2}
            """)
            for j in range(3):
                a(f"""
                s_add_u32 s{sT1}, s{sT0}, {j}
                s_lshr_b32 s{sT2}, s{sT1}, 1
                s_and_b32 s{sT1}, s{sT1}, 1
                s_add_u32 s{sH+j}, s{sT3}, s{sT2}
                s_lshl_b32 s{sH+j}, s{sH+j}, 3
                s_add_u32 s{sH+j}, s{sH+j}, s{sT1}
                s_lshl_b32 s{sH+j}, s{sH+j}, 9
                s_add_u32 s{sH+j}, s{sH+j}, {HH}
                s_lshl_b32 s{sT1}, s{sT1}, 5
                v_xor_b32 v{T+4}, s{sT1}, v{T+2}
                s_lshl_b32 s{sT2}, s{sT2}, 8
                s_add_u32 s{sT2}, s{sT2}, {WS_}
                v_add3_u32 v{WA+j}, v{T+3}, v{T+4}, s{sT2}
                v_add_u32 v{WA+3+j}, 49152, v{WA+j}
                """)
            a(f"""
            v_and_b32 v{T+4}, 15, v0
            v_lshlrev_b32 v{T+4}, 4, v{T+4}
            v_lshl_add_u32 v{T+4}, v{T+1}, 8, v{T+4}
            v_bfe_u32 v{T+5}, v0, 4, 1
            v_lshl_add_u32 v{VH}, v{T+5}, 10, v{T+4}
            """)

        a("L_roleA:\nv_and_b32 v0, 63, v0")
        self.decode_rest()
        self.srd_words((SQ, SWS, SDBG, SWG, SWU))
        a("s_waitcnt lgkmcnt(0)")
        self.ws_shift()
        a(f"s_setprio {self.o.get('aprio', 2)}")
        a.vm.issue("pf")
        self.stamp(0)
        a(f"s_or_b32 s{sA+8}, s2, s{sB}\ns_cmp_lg_u32 s{sA+8}, 0\ns_cbranch_scc1 L_noclear")
        a(f"v_lshlrev_b32 v{T}, 7, v0\nv_mov_b32 v{T+1}, 0")
        for p in range(4):
            a(f"s_mov_b32 s{sT0}, {p*8192}\nbuffer_store_dword v{T+1}, v{T}, {sr(SWS,4)}, s{sT0} offen sc1")
        p0a = "sk" if self.o.get("p0", "B") == "A" else "s"
        if "s" not in p0a:
            a(f"s_waitcnt vmcnt(0)\nv_mov_b32 v{T}, 1\ns_mov_b64 exec, 1")
            a(f"buffer_store_dword v{T}, off, {sr(SDBG,4)}, 0 sc1\ns_mov_b64 exec, -1")
        a("L_noclear:")
        if "s" in p0a:
            self.stats_load()
        if "k" in p0a:
            q = list(a.vm.q)
            a(f"s_and_b32 s{sT0}, s{sI}, 1\ns_sub_u32 s{sT0}, 3, s{sT0}\ns_cmp_ge_u32 s{sB}, s{sT0}\ns_cbranch_scc1 L_p0W")
            for typ in "CW":
                a.vm.q = list(q)
                if typ == "W":
                    a("L_p0W:")
                self.task_index(typ == "C")
                (self.kv_issue if typ == "C" else self.wd_issue)()
                addr_setup()
                if "s" in p0a:
                    self.stats_compute(announce=f"L_noann{typ}")
                self.stamp(9)
                (self.kv_work if typ == "C" else self.wd_work)()
                if typ == "C":
                    a("s_branch L_p0done")
            a("L_p0done:")
        else:
            csa = self.o.get("cs", "R") == "A"
            if csa:
                self.colsum_a_issue()
            addr_setup()
            if "s" in p0a:
                self.stats_compute(announce="L_noann")
            if csa:
                self.colsum_a()
        self.stamp(10)

        def reads(g):
            s, t, p = g >> 2, g & 3, g & 1
            sl = s % 3
            wa = WA + (3 if sl == 2 else 0)
            wo = (sl % 2) * 24576 + t * 6144
            r = [f"ds_read_b128 {vr(xf(p,0),4)}, v{XA+t} offset:{sl*16384}"]
            r += [f"ds_read_b64_tr_b16 {vr(wf(p,0)+2*q,2)}, v{wa} offset:{wo+q*768}" for q in range(2)]
            r += [f"ds_read_b128 {vr(xf(p,1),4)}, v{XA+t} offset:{sl*16384+4096}"]
            for j in (1, 2):
                r += [f"ds_read_b64_tr_b16 {vr(wf(p,j)+2*q,2)}, v{wa+j} offset:{wo+q*768}" for q in range(2)]
            return r

        a("s_setprio 0")
        a.vm.wait("pf")
        a("s_barrier")
        self.stamp(1)
        CF, SF, M2, C1, KK, AD, E, HP = 12, 18, 22, 26, 28, 30, 120, 128
        VE, FT = 33, 35
        NW, NH = 6, 3
        HR, ACC2 = 128, 176
        wpool = list(range(36, 116, 4)) + list(range(8, 36, 4)) + list(range(116, 128, 4))
        wr = lambda i, j: wpool[(i % NW) * 5 + j]
        NE = int(self.o.get("ne", 0))
        assert self.ncs() and NE <= 4
        sRot, sWb, sHb, sWo, sHo, sPo, sPv = [sA + 5 + k for k in range(7)]

        def mf(p, i, j, first=False):
            c = "0" if first else vr(acc(i, j), 16)
            return f"v_mfma_f32_32x32x16_bf16 {vr(acc(i,j),16)}, {vr(wf(p,j),4)}, {vr(xf(p,i),4)}, {c}"

        def run(mfmas, fill, per):
            k = 0
            for m in mfmas:
                a(m)
                for _ in range(per):
                    if k < len(fill):
                        play(a, fill[k]); k += 1
            for g in fill[k:]:
                play(a, g)

        def dsl(lst):
            return [[("ds", r, "f")] for r in lst]

        def corr_addr():
            b = self.a
            b(f"""
            v_and_b32 v{AD}, 31, v0
            s_lshl_b32 s{sT0}, s{sWM}, 9
            s_add_u32 s{sT0}, s{sT0}, {STL}
            v_lshl_add_u32 v{AD+1}, v{AD}, 3, s{sT0}
            s_mul_i32 s{sT0}, s{sWN}, {768 if self.ncs() else 1536}
            s_add_u32 s{sT0}, s{sT0}, {CSF}
            v_lshl_add_u32 v{AD}, v{AD}, {3 if self.ncs() else 4}, s{sT0}
            v_mov_b32 v{AD+2}, {GCNT}
            v_lshlrev_b32 v{VE}, 4, v0
            v_add_u32 v{VE+1}, 1024, v{VE}
            """)
            self.g2_scalars(sRot, sWb)
            b(f"""
            s_mul_i32 s{sT0}, s{sB}, 12
            s_mul_i32 s{sT1}, s{sRB2}, 48
            s_add_u32 s{sT1}, s{sT1}, s{sT0}
            s_lshl_b32 s{sHb}, s{sT1}, 12
            s_add_u32 s{sHb}, s{sHb}, {HH}
            s_lshl_b32 s{sT0}, s{sRB1}, 1
            s_add_u32 s{sT0}, s{sT0}, s{sWM}
            s_lshr_b32 s{sT1}, s{sCB1}, 2
            s_lshl2_add_u32 s{sT0}, s{sT0}, s{sT1}
            """)
            self.cnt_off(sPo, cH, sT0)

        def corr_prepare():
            b = self.a
            if not self.ncs():
                for op in range(10):
                    for j in range(3):
                        c = 68 + 4 * j
                        b([f"v_add_f32 v{c}, v{c}, v{c+1}", f"v_add_f32 v{c+2}, v{c+2}, v{c+3}",
                           f"v_add_f32 v{c}, v{c}, v{c+2}", f"v_cvt_pk_bf16_f32 v{c+1}, v{c}, v{c}",
                           f"v_and_b32 v{c+1}, 0xffff0000, v{c+1}", f"v_sub_f32 v{c+1}, v{c}, v{c+1}",
                           f"v_cvt_pk_bf16_f32 v{CF+2*j}, v{c}, v{c+1}", f"v_and_b32 v{c+2}, 0xffff0000, v{CF+2*j}",
                           f"v_sub_f32 v{c+1}, v{c+1}, v{c+2}", f"v_cvt_pk_bf16_f32 v{CF+2*j+1}, v{c+1}, 0"][op])
            b.begin()
            b("s_mov_b32 exec_lo, 0")
            for j in range(6):
                b(f"v_mov_b32 v{CF+j}, 0")
            b("s_mov_b32 exec_lo, -1")
            b.end()
            for i in range(2):
                b(f"v_rcp_f32 v{C1+i}, v{SF+2*i+1}")
                b(f"v_cvt_pk_bf16_f32 v{M2+2*i}, -v{SF+2*i}, -v{SF+2*i}")
                b(f"v_cvt_pk_bf16_f32 v{M2+2*i+1}, -v{SF+2*i}, -v{SF+2*i}")
                b(f"v_mul_f32 v{KK+i}, v{SF+2*i+1}, v{SF+2*i+1}")
                b(f"v_mul_f32 v{C1+i}, {hex(f2u(-LOG2E))}, v{C1+i}")
            b(f"v_mov_b32 v{AD}, {ACNT}\nv_mov_b32 v{AD+1}, 1")

        pend = []

        def wgroups(i, v16):
            b = self.a
            for j in range(0 if self.o.get("x_nowd") else 5):
                b.begin()
                if j == 0:
                    self.step_off(i, sWo, sWb, sRot, 5120)
                v, off = (v16, 0) if j == 0 else (v16 + 1, (j - 1) * 1024)
                b.vmem(f"buffer_load_dwordx4 {vr(wr(i,j),4)}, v{v}, {sr(SWS,4)}, s{sWo} offen offset:{off} sc1", f"w{i}")
                b.end()

        def swiglu(n, i, j):
            b = self.a
            c, hp = acc(i, j), HP + 4 * n
            if n >= int(self.o.get("pk", 6)):
                sel = "op_sel_hi:[1,0]" if i == 0 else "op_sel:[0,1] op_sel_hi:[1,1]"
                sel3 = "op_sel_hi:[1,0,0]" if i == 0 else "op_sel:[0,1,1] op_sel_hi:[1,1,1]"
                for r in range(0, 8, 2):
                    b(f"v_pk_mul_f32 {vr(E+r,2)}, {vr(c+r,2)}, {vr(C1,2)} {sel}")
                for r in range(8):
                    b(f"v_exp_f32 v{E+r}, v{E+r}")
                    if r & 1:
                        b(f"v_pk_mul_f32 {vr(c+r-1,2)}, {vr(c+r-1,2)}, {vr(c+8+r-1,2)}")
                for r in range(0, 8, 2):
                    b(f"v_pk_fma_f32 {vr(E+r,2)}, {vr(E+r,2)}, {vr(KK,2)}, {vr(KK,2)} {sel3}")
                for r in range(8):
                    b(f"v_rcp_f32 v{E+r}, v{E+r}")
                for r in range(0, 8, 2):
                    b(f"v_pk_mul_f32 {vr(c+r,2)}, {vr(c+r,2)}, {vr(E+r,2)}")
            else:
                for r in range(8):
                    b(f"v_mul_f32 v{E+r}, v{c+r}, v{C1+i}")
                for r in range(8):
                    b(f"v_exp_f32 v{E+r}, v{E+r}")
                    b(f"v_mul_f32 v{c+r}, v{c+r}, v{c+8+r}")
                for r in range(8):
                    b(f"v_fma_f32 v{E+r}, v{E+r}, v{KK+i}, v{KK+i}")
                for r in range(8):
                    b(f"v_rcp_f32 v{E+r}, v{E+r}")
                for r in range(8):
                    b(f"v_mul_f32 v{c+r}, v{c+r}, v{E+r}")
            for r in range(4):
                b(f"v_cvt_pk_bf16_f32 v{hp+r}, v{c+2*r}, v{c+2*r+1}")
            pend.append(f"buffer_store_dwordx4 {vr(hp,4)}, v{VH}, {sr(SWS,4)}, s{sH+j} offen offset:{i*2048} sc1")
            if str(n) in self.o.get("hflush", "012345"):
                for st in pend:
                    b.vmem(st, "hst")
                pend.clear()

        order = [(i, j) for j in range(3) for i in range(2)]
        for r in reads(0):
            a.ds(r, "f")
        for g in range(39):
            p = g & 1
            a.lg.drain()
            if (g + 1) & 3 == 0:
                if g == 3:
                    a.vm.drain()
                self.stamp(((g + 1) >> 2) + 1, "2")
                a("s_barrier")
            if g == 35:
                a(f"s_setprio {self.o.get('eprio', 2)}")
            fill = dsl(reads(g + 1))
            if g == 33:
                fill += self.rec(corr_addr)
            if g == 37:
                fill += dsl([f"ds_read_b32 v{FT}, v{AD+2}"])
                run([mf(p, i, j) for i, j in order], fill, 3)
                continue
            if g == 38:
                go = a.label("ggo")
                a(f"v_readfirstlane_b32 s{sT0}, v{FT}\ns_cmp_eq_u32 s{sT0}, 4\ns_cbranch_scc1 {go}")
                self.lds_flag_wait(AD + 2, FT, go, 4)
                a(f"{go}:")
                if self.ncs():
                    cr = [f"ds_read_b64 {vr(CF+2*j,2)}, v{AD} offset:{j*256}" for j in range(3)]
                else:
                    cr = [f"ds_read_b128 {vr(68+4*j,4)}, v{AD} offset:{j*512}" for j in range(3)]
                cr += [f"ds_read_b64 {vr(SF+2*i,2)}, v{AD+1} offset:{i*256}" for i in range(2)]
                fill = [[("ds", r, "cr")] for r in cr] + fill
                ms = [mf(p, i, j) for i, j in order]
                nf = 3 if self.ncs() == 0 else 4
                run(ms[:nf], fill, 5 if nf == 3 else 4)
                run(ms[nf:], [[("lgwait", ("cr",))]] + self.rec(corr_prepare), 7)
                continue
            run([mf(p, i, j, g == 0) for i, j in order], fill, 3 if len(fill) <= 16 else 5)
        a.lg.drain()
        a("s_mov_b64 exec, 1")
        a.ds(f"ds_add_u32 v{AD}, v{AD+1}", "ac")
        a("s_mov_b64 exec, -1")
        self.stamp(2)
        self.stamp(1, "3")
        last = []
        for i, j in order:
            last += [mf(1, i, j),
                     f"v_mfma_f32_32x32x8_bf16 {vr(acc(i,j),16)}, {vr(CF+2*j,2)}, {vr(M2+2*i,2)}, {vr(acc(i,j),16)}"]
        for m in last[:4]:
            a(m)
        run(last[4:], self.rec(swiglu, 0, *order[0]), 6)
        early = sum([self.rec(wgroups, i, VE) for i in range(NE)], [])
        for n in range(1, 6):
            self.stamp(1 + n, "3")
            part = early[len(early) * (n - 1) // 5:len(early) * n // 5]
            body = self.rec(swiglu, n, *order[n])
            k = 0
            for t, g in enumerate(body):
                play(a, g)
                while k < len(part) and k * len(body) < (t + 1) * len(part) - len(part) // 2:
                    play(a, part[k]); k += 1
            for g in part[k:]:
                play(a, g)
        if self.o.get("hold", "0") == "1":
            a("s_mov_b64 exec, 1")
            a.ds(f"ds_add_u32 v{AD}, v{AD+1} offset:{ECNT-ACNT}", "ac")
            a("s_mov_b64 exec, -1")
        self.stamp(3)
        self.stamp(7, "3")
        V16, V16B, VLX, VLW, VF = 1, 2, 3, 4, 5
        a(f"""
        v_lshlrev_b32 v{V16}, 4, v0
        v_add_u32 v{V16B}, 1024, v{V16}
        s_lshl_b32 s{sT0}, s{sB}, 12
        v_add_u32 v{VLX}, s{sT0}, v{V16}
        s_mul_i32 s{sT0}, s{sB}, 6144
        s_add_u32 s{sT0}, s{sT0}, {WS_}
        v_add_u32 v{VLW}, s{sT0}, v{V16}
        v_mov_b32 v{VF}, {WFLG}
        """)

        rest = list(range(NE, NW))
        NPRE = min(int(self.o.get("npre", 1)), len(rest))
        NIN = min(int(self.o.get("nin", 0)), len(rest) - NPRE)
        mid = rest[NPRE:len(rest) - NIN]
        for i in rest[:NPRE]:
            wgroups(i, V16)
        a.vm.wait("hst")
        self.signal([sPo], sPv)
        a("s_setprio 0")
        self.stamp(4)
        self.stamp(8, "3")
        items = [(sPv + 2, sPv + 1, 0 if self.o.get("x_nopoll") else 8)]
        a(f"s_lshl2_add_u32 s{sT0}, s{sRB2}, s{sB}")
        self.cnt_off(sPv + 1, cH, sT0)
        for i in mid[:-1]:
            wgroups(i, V16)
        self.poll_issue(items, atomic=True)
        for i in mid[-1:]:
            wgroups(i, V16)
        self.poll_check(items, atomic=True, sleep=0)
        self.stamp(5)
        self.stamp(9, "3")
        H0 = int(self.o.get("h0", 2))
        sHend = sPo
        self.step_off(0, sHo, sHb, sRot, 4096)
        a(f"s_add_u32 s{sHend}, s{sHb}, {12*4096}")

        def hadv():
            return [[("i", f"s_add_u32 s{sHo}, s{sHo}, 4096")],
                    [("i", f"s_cmp_eq_u32 s{sHo}, s{sHend}"), ("i", f"s_cselect_b32 s{sHo}, s{sHb}, s{sHo}")]]

        def hl(i, tt):
            r = HR + (i % NH) * 16 + 4 * tt
            return [("vmem", f"buffer_load_dwordx4 {vr(r,4)}, v{V16}, {sr(SWS,4)}, s{sHo} offen offset:{tt*1024} sc1", f"h{i}_{tt}")]

        for i in range(H0):
            for tt in range(4):
                play(a, hl(i, tt))
            for g in hadv():
                play(a, g)
        acc2 = lambda tt, j: ACC2 + (tt * 5 + j) * 4
        fill = []
        for i in range(H0, 12):
            for tt in range(4):
                free = 20 * (i - NH) + 5 * tt + 6 if i >= NH else 0
                fill.append((free, hl(i, tt)))
            fill += [(0, g) for g in hadv()]
        wfill = []
        for k, i in enumerate(rest[len(rest) - NIN:]):
            wfill += [(8 + 20 * k + 4 * t, g) for t, g in enumerate(self.rec(wgroups, i, V16))]
        TM = int(self.o.get("tm", 2))
        seq = [(i, tt) for i in range(12 - TM) for tt in range(4)] + [(i, tt) for tt in range(4) for i in range(12 - TM, 12)]
        mi = 0
        lfill = []
        pw = []
        for i, tt in seq:
            if tt == 0 and i in (1, 4, 8):
                self.stamp({1: 10, 4: 11, 8: 12}[i], "3")
            if (i, tt) == (4, 0):
                a.ds(f"ds_read_b32 v{VF+1}, v{VF}", "wf")
            if (i, tt) == (4, 2):
                go = a.label("wgo")
                a.lg.drain()
                a(f"v_readfirstlane_b32 s{sT0}, v{VF+1}\ns_cmp_eq_u32 s{sT0}, 1\ns_cbranch_scc1 {go}")
                self.lds_flag_wait(VF, VF + 1, go)
                a(f"{go}:")
            nx = i + 2 if tt == 0 else None
            if nx is not None and NW <= nx < 12:
                for j in range(5):
                    v, off = self.wl_addr(5 * (nx - NW) + j, VLX, VLW)
                    lfill.append((mi + (11 if nx == NW else 0), [("ds", f"ds_read_b128 {vr(wr(nx,j),4)}, v{v} offset:{off}", f"wr{nx}")]))
            assert not any(op[0] == "vmem" and op[2] == f"h{i}_{tt}" for _, g in fill for op in g)
            assert not any(op[2] == f"wr{i}" for _, g in lfill for op in g)
            assert not any(op[0] == "vmem" and op[2] == f"w{i}" for _, g in wfill for op in g)
            a.lg.wait(f"wr{i}")
            a.vm.wait(f"w{i}", f"h{i}_{tt}")
            for j in range(5):
                c = "0" if i == 0 else vr(acc2(tt, j), 4)
                a(f"v_mfma_f32_16x16x32_bf16 {vr(acc2(tt,j),4)}, {vr(wr(i,j),4)}, {vr(HR+(i%NH)*16+4*tt,4)}, {c}")
                mi += 1
                if fill and fill[0][0] <= mi:
                    play(a, fill.pop(0)[1])
                elif wfill and wfill[0][0] <= mi:
                    play(a, wfill.pop(0)[1])
                elif lfill and lfill[0][0] <= mi:
                    play(a, lfill.pop(0)[1])
                elif pw and pw[0][0] <= mi:
                    play(a, pw.pop(0)[1])
            if i == 11:
                for j in range(5):
                    t = tt * 5 + j
                    v, off = self.wl_addr(t, VLX, VLW)
                    pw.append((mi + 3, [("ds", f"ds_write_b128 v{v}, {vr(ACC2+4*t,4)} offset:{off}", "p")]))
        assert not fill and not lfill
        self.stamp(6)
        self.stamp(13, "3")
        for _, g in pw:
            play(a, g)
        a.lg.drain()
        a("s_barrier")
        self.stamp(7)
        self.dump_stamps("A")
        a("s_endpgm")

    def wl_addr(self, f, vx, vw):
        sl, n = (1, 2, 0)[f // 10], f % 10
        return (vx, XS + sl * 16384 + n * 1024) if n < 4 else (vw, sl * 24576 + (n - 4) * 1024)

    def g2_scalars(self, sRot, sWb):
        a = self.a
        a(f"""
        s_mul_i32 s{sT0}, s{sCB2}, 3
        s_lshr_b32 s{sT0}, s{sT0}, 1
        s_and_b32 s{sT1}, s{sI}, 3
        s_mul_i32 s{sT1}, s{sT1}, 3
        s_add_u32 s{sT0}, s{sT0}, s{sT1}
        s_sub_u32 s{sT1}, s{sT0}, 12
        """)
        a.begin()
        a(f"s_cmp_ge_u32 s{sT0}, 12\ns_cselect_b32 s{sRot}, s{sT1}, s{sT0}")
        a.end()
        rot2 = self.o.get("rot2", "x")
        if rot2 == "0":
            a(f"s_mov_b32 s{sRot}, 0")
        elif rot2 == "x":
            a(f"s_mul_i32 s{sRot}, s{sXCD}, 3\ns_lshr_b32 s{sRot}, s{sRot}, 1")
        a(f"""
        s_mul_i32 s{sT0}, s{sB}, 12
        s_mul_i32 s{sT1}, s{sCB2}, 48
        s_add_u32 s{sT1}, s{sT1}, s{sT0}
        s_mul_i32 s{sWb}, s{sT1}, 5120
        s_add_u32 s{sWb}, s{sWb}, {WDT}
        """)

    def step_off(self, i, so, sb, sRot, mul):
        a = self.a
        a.begin()
        a(f"""
        s_add_u32 s{so}, s{sRot}, {i}
        s_sub_u32 s{sT3}, s{so}, 12
        s_cmp_ge_u32 s{so}, 12
        s_cselect_b32 s{so}, s{sT3}, s{so}
        s_mul_i32 s{so}, s{so}, {mul}
        s_add_u32 s{so}, s{so}, s{sb}
        """)
        a.end()

    def b_common_setup(self):
        a = self.a
        VX, VG, VU, T = 1, 5, 8, 20
        self.VX, self.VG, self.VU = VX, VG, VU
        self.sXL, self.sWL, self.sXO, self.sWO = sA, sA + 1, sA + 2, sA + 3
        a("L_roleB:\nv_and_b32 v0, 63, v0")
        a(f"s_setprio {self.o.get('bprio', 1)}")
        rot = self.o.get("rot", "2")
        if rot == "0":
            a(f"s_mov_b32 s{sKS}, 0")
        elif rot == "1":
            a(f"""
            s_mul_i32 s{sT0}, s{sCB1}, 3
            s_add_u32 s{sT0}, s{sT0}, s{sRB1}
            s_mul_i32 s{sT1}, s{sT0}, 26
            s_lshr_b32 s{sT1}, s{sT1}, 8
            s_mul_i32 s{sT1}, s{sT1}, 10
            s_sub_u32 s{sKS}, s{sT0}, s{sT1}
            """)
        elif rot == "2":
            a(f"s_add_u32 s{sT0}, s{sRB1}, s{sCB1}\ns_and_b32 s{sT0}, s{sT0}, 1\ns_mul_i32 s{sKS}, s{sT0}, 5")
        elif rot == "4":
            a(f"s_add_u32 s{sT0}, s{sRB1}, s{sCB1}\ns_and_b32 s{sT0}, s{sT0}, 3\ns_mul_i32 s{sT0}, s{sT0}, 5\ns_lshr_b32 s{sKS}, s{sT0}, 1")
        a(f"""
        v_lshrrev_b32 v{T}, 3, v0
        v_mul_u32_u24 v{T}, 1280, v{T}
        s_lshl2_add_u32 s{sT0}, s{sRB1}, s{sB}
        s_mul_i32 s{sT0}, s{sT0}, 40960
        v_add_u32 v{T}, s{sT0}, v{T}
        v_and_b32 v{T+1}, 7, v0
        v_lshrrev_b32 v{T+2}, 4, v0
        v_xor_b32 v{T+1}, v{T+1}, v{T+2}
        v_lshl_add_u32 v{VX}, v{T+1}, 4, v{T}
        v_xor_b32 v{VX+1}, 64, v{VX}
        v_add_u32 v{VX+1}, 10240, v{VX+1}
        v_add_u32 v{VX+2}, 20480, v{VX}
        v_add_u32 v{VX+3}, 20480, v{VX+1}
        s_lshl_b32 s{self.sXL}, s{sB}, 12
        s_mul_i32 s{self.sWL}, s{sB}, 6144
        s_add_u32 s{self.sWL}, s{self.sWL}, {WS_}
        v_bfe_u32 v{T}, v0, 2, 2
        v_mul_u32_u24 v{T}, 3072, v{T}
        v_and_b32 v{T+1}, 3, v0
        v_lshl_add_u32 v{T}, v{T+1}, 4, v{T}
        s_mul_i32 s{sT0}, s{sB}, 49152
        s_mul_i32 s{sT1}, s{sCB1}, 192
        s_add_u32 s{sT0}, s{sT0}, s{sT1}
        v_add_u32 v{T}, s{sT0}, v{T}
        """)
        self.srd_words((SQ, SWG, SWU))
        s0 = self.rec(self.stage_issue, 0)
        a("s_waitcnt lgkmcnt(0)")
        for g in s0[:4]:
            play(a, g)
        for srd, off, _ in self.SRDS:
            if srd not in (SQ, SWG, SWU, SWS, SDBG):
                a(f"s_load_dwordx2 {sr(srd,2)}, s[0:1], {off}")
        for i in range(3):
            a(f"""
            v_add_u32 v{T+1}, {4*i}, v{T+2}
            v_mul_u32_u24 v{T+3}, 11, v{T+1}
            v_lshrrev_b32 v{T+3}, 5, v{T+3}
            v_mul_u32_u24 v{T+4}, {12288-192}, v{T+3}
            v_lshl_add_u32 v{T+4}, v{T+1}, 6, v{T+4}
            v_add_u32 v{VG+i}, v{T+4}, v{T}
            v_xor_b32 v{VU+i}, 32, v{VG+i}
            """)
            play(a, s0[4 + i])
        for g in s0[7:]:
            play(a, g)
        self.decode_rest()
        self.srd_words([srd for srd, _, _ in self.SRDS if srd not in (SQ, SWG, SWU)])
        a("s_waitcnt lgkmcnt(0)")
        self.ws_shift()

    def stage_issue(self, s):
        a = self.a
        sl = s % 3
        fl = self.o.get("g1flags", "")
        for i in range(4):
            a.begin()
            if i == 0:
                a(f"""
                s_lshl_b32 s{self.sXO}, s{sKS}, 7
                s_mul_i32 s{self.sWO}, s{sKS}, 196608
                s_add_u32 s{sKS}, s{sKS}, 1
                s_cmp_eq_u32 s{sKS}, 10
                s_cselect_b32 s{sKS}, 0, s{sKS}
                """)
            a(f"s_add_u32 m0, s{self.sXL}, {XS+sl*16384+i*1024}")
            a.vmem(f"buffer_load_dwordx4 v{self.VX+i}, {sr(SQ,4)}, s{self.sXO} offen {fl} lds", f"S{s}" if i else f"F{s}")
            a.end()
        for up in range(2):
            for i in range(3):
                a.begin()
                a(f"s_add_u32 m0, s{self.sWL}, {sl*24576+up*3072+i*1024}")
                a.vmem(f"buffer_load_dwordx4 v{(self.VU if up else self.VG)+i}, {sr(SWU if up else SWG,4)}, s{self.sWO} offen {fl} lds", f"S{s}")
                a.end()

    def stats_load(self):
        a = self.a
        T, X = 156, 24
        a(f"""
        v_lshrrev_b32 v{T}, 5, v0
        s_lshl2_add_u32 s{sT0}, s{sWS}, s{sB}
        s_lshl_b32 s{sT0}, s{sT0}, 1
        v_add_u32 v{T}, s{sT0}, v{T}
        v_lshlrev_b32 v19, 3, v{T}
        v_mul_u32_u24 v{T}, 1280, v{T}
        v_and_b32 v{T+1}, 31, v0
        v_lshl_add_u32 v{T}, v{T+1}, 3, v{T}
        """)
        for j in range(5):
            a.vmem(f"buffer_load_dwordx2 {vr(X+2*j,2)}, v{T}, {sr(SQ,4)}, 0 offen offset:{j*256}", "stat")

    def reduce32(self, v, t):
        a = self.a
        for n in (8, 4, 2, 1):
            a(f"v_add_f32_dpp v{v}, v{v}, v{v} row_ror:{n} row_mask:0xf bank_mask:0xf")
        a(f"v_mov_b32 v{t}, v{v}\nv_permlane16_swap_b32 v{v}, v{t}\nv_add_f32 v{v}, v{v}, v{t}")

    def stats_compute(self, announce):
        a = self.a
        X, U, T = 24, 34, 20
        a.vm.wait("stat")
        if announce:
            a(f"""
        s_cmp_lg_u32 s{sA+8}, 0
        s_cbranch_scc1 {announce}
        v_mov_b32 v{T}, 1
        s_mov_b64 exec, 1
        buffer_store_dword v{T}, off, {sr(SDBG,4)}, 0 sc1
        s_mov_b64 exec, -1
        {announce}:
        """)
        for j in range(10):
            a(f"v_lshlrev_b32 v{U+2*j}, 16, v{X+j}\nv_and_b32 v{U+2*j+1}, 0xffff0000, v{X+j}")
        a(f"v_add_f32 v{T}, v{U}, v{U+1}\nv_add_f32 v{T+1}, v{U+2}, v{U+3}")
        for j in range(4, 20):
            a(f"v_add_f32 v{T+(j&1)}, v{T+(j&1)}, v{U+j}")
        a(f"v_add_f32 v{T}, v{T}, v{T+1}")
        self.reduce32(T, T + 1)
        a(f"v_mul_f32 v{T}, {hex(f2u(1.0/640))}, v{T}")
        for j in range(20):
            a(f"v_sub_f32 v{U+j}, v{U+j}, v{T}")
        a(f"v_mul_f32 v{T+1}, v{U}, v{U}\nv_mul_f32 v{T+2}, v{U+1}, v{U+1}")
        for j in range(2, 20):
            a(f"v_fmac_f32 v{T+1+(j&1)}, v{U+j}, v{U+j}")
        a(f"v_add_f32 v{T+1}, v{T+1}, v{T+2}")
        self.reduce32(T + 1, T + 2)
        a(f"""
        v_mul_f32 v{T+1}, {hex(f2u(1.0/640))}, v{T+1}
        v_cvt_pk_bf16_f32 v{T+2}, v{T}, v{T+1}
        v_lshlrev_b32 v{T}, 16, v{T+2}
        v_and_b32 v{T+1}, 0xffff0000, v{T+2}
        v_add_f32 v{T+1}, {hex(f2u(1e-5))}, v{T+1}
        v_cvt_pk_bf16_f32 v{T+1}, v{T+1}, v{T+1}
        v_and_b32 v{T+1}, 0xffff0000, v{T+1}
        v_sqrt_f32 v{T+1}, v{T+1}
        v_cvt_pk_bf16_f32 v{T+1}, v{T+1}, v{T+1}
        v_and_b32 v{T+1}, 0xffff0000, v{T+1}
        s_mov_b32 s{sT0}, {ST}
        """)
        a.begin()
        a("s_mov_b32 exec_lo, 1\ns_mov_b32 exec_hi, 1")
        a.vmem(f"buffer_store_dwordx2 {vr(T,2)}, v19, {sr(SWS,4)}, s{sT0} offen sc1", "stst")
        a("s_mov_b64 exec, -1")
        a.end()

    def colsum_partial(self):
        a = self.a
        T, F = 12, 60
        a(f"""
        v_bfe_u32 v{T+2}, v0, 4, 1
        v_mul_u32_u24 v{T+3}, 3072, v{T+2}
        v_lshrrev_b32 v{T+4}, 5, v0
        v_mul_u32_u24 v{T+4}, 1536, v{T+4}
        v_bfe_u32 v{T+5}, v0, 2, 2
        v_lshl_add_u32 v{T+3}, v{T+5}, 6, v{T+3}
        v_and_b32 v{T+5}, 1, v0
        v_lshl_add_u32 v{T+3}, v{T+5}, 4, v{T+3}
        v_bfe_u32 v{T+5}, v0, 1, 1
        v_lshl_add_u32 v{T+3}, v{T+5}, 3, v{T+3}
        v_lshl_add_u32 v{T+3}, v{T+2}, 5, v{T+3}
        s_min_u32 s{sT1}, s{sB}, 2
        s_lshl_b32 s{sT1}, s{sT1}, 8
        s_add_u32 s{sT0}, s{sT1}, {WS_}
        v_add3_u32 v{T}, v{T+3}, v{T+4}, s{sT0}
        v_xor_b32 v{T+1}, 32, v{T}
        s_lshl4_add_u32 s{sT0}, s{sCB1}, s{sRB1}
        s_mul_i32 s{sT0}, s{sT0}, 768
        s_add_u32 s{sT0}, s{sT0}, s{sT1}
        s_add_u32 s{sT0}, s{sT0}, {CS}
        s_mov_b32 s{sT1}, 0x3f803f80
        v_lshlrev_b32 v147, 2, v0
        """)
        for h in range(2):
            for n in range(8):
                a.ds(f"ds_read_b64_tr_b16 {vr(F+16*h+2*n,2)}, v{T+h} offset:{(n>>1)*6144+(n&1)*768}", f"cs{h}")
        for r in range(4):
            a(f"v_mov_b32 v{T+2+r}, 0")
        for h in range(2):
            a.lg.wait(f"cs{h}")
            for n in range(16):
                a(f"v_dot2c_f32_bf16 v{T+2+2*h+(n&1)}, s{sT1}, v{F+16*h+n}")
        a(f"v_add_f32 v{T+2}, v{T+2}, v{T+3}\nv_add_f32 v{T+4}, v{T+4}, v{T+5}")
        a(f"v_permlane32_swap_b32 v{T+2}, v{T+4}\nv_add_f32 v{T+2}, v{T+2}, v{T+4}")
        a(f"v_mov_b32 v148, v{T+2}\nv_add_u32 v149, s{sT0}, v147")

    def colsum_a_issue(self):
        a = self.a
        T = 158
        sL = sA + 9
        a(f"""
        s_min_u32 s{sT1}, s{sB}, 2
        s_mul_i32 s{sL}, s{sB}, 6144
        s_add_u32 s{sL}, s{sL}, {WS_+2*24576}
        v_lshrrev_b32 v{T}, 2, v0
        v_mul_u32_u24 v{T}, 3072, v{T}
        v_and_b32 v{T+1}, 3, v0
        v_lshl_add_u32 v{T}, v{T+1}, 4, v{T}
        s_mul_i32 s{sT0}, s{sRB1}, 122880
        s_mul_i32 s{sT2}, s{sCB1}, 192
        s_add_u32 s{sT0}, s{sT0}, s{sT2}
        s_lshl_b32 s{sT1}, s{sT1}, 6
        s_add_u32 s{sT0}, s{sT0}, s{sT1}
        v_xor_b32 v{T+1}, 32, v{T}
        """)
        for up in range(2):
            for i in range(3):
                a(f"s_add_u32 m0, s{sL}, {up*3072+i*1024}\ns_add_u32 s{sT1}, s{sT0}, {i*49152}")
                if i == 2:
                    a("s_mov_b32 exec_hi, 0")
                a.vmem(f"buffer_load_dwordx4 v{T+up}, {sr(SWU if up else SWG,4)}, s{sT1} offen lds", "cs")
                if i == 2:
                    a("s_mov_b32 exec_hi, -1")

    def colsum_a(self):
        a = self.a
        T, F = 12, 60
        sL = sA + 9
        a(f"""
        v_bfe_u32 v{T+2}, v0, 4, 1
        v_mul_u32_u24 v{T+3}, 3072, v{T+2}
        v_lshrrev_b32 v{T+4}, 5, v0
        v_lshl_add_u32 v{T+3}, v{T+4}, 8, v{T+3}
        v_bfe_u32 v{T+5}, v0, 2, 2
        v_lshl_add_u32 v{T+3}, v{T+5}, 6, v{T+3}
        v_and_b32 v{T+5}, 1, v0
        v_lshl_add_u32 v{T+3}, v{T+5}, 4, v{T+3}
        v_bfe_u32 v{T+5}, v0, 1, 1
        v_lshl_add_u32 v{T+3}, v{T+5}, 3, v{T+3}
        v_lshl_add_u32 v{T+3}, v{T+2}, 5, v{T+3}
        v_add_u32 v{T}, s{sL}, v{T+3}
        v_xor_b32 v{T+1}, 32, v{T}
        s_min_u32 s{sT1}, s{sB}, 2
        s_lshl_b32 s{sT1}, s{sT1}, 8
        s_lshl4_add_u32 s{sT0}, s{sCB1}, s{sRB1}
        s_mul_i32 s{sT0}, s{sT0}, 768
        s_add_u32 s{sT0}, s{sT0}, s{sT1}
        s_add_u32 s{sT0}, s{sT0}, {CS}
        s_mov_b32 s{sT1}, 0x3f803f80
        v_lshlrev_b32 v{T+6}, 2, v0
        """)
        a.vm.wait("cs")
        for h in range(2):
            for n in range(5):
                a.ds(f"ds_read_b64_tr_b16 {vr(F+10*h+2*n,2)}, v{T+h} offset:{n*512}", f"cs{h}")
        for r in range(4):
            a(f"v_mov_b32 v{T+2+r}, 0")
        for h in range(2):
            a.lg.wait(f"cs{h}")
            for n in range(10):
                a(f"v_dot2c_f32_bf16 v{T+2+2*h+(n&1)}, s{sT1}, v{F+10*h+n}")
        a(f"v_add_f32 v{T+2}, v{T+2}, v{T+3}\nv_add_f32 v{T+4}, v{T+4}, v{T+5}")
        a(f"v_permlane32_swap_b32 v{T+2}, v{T+4}\nv_add_f32 v{T+2}, v{T+2}, v{T+4}")
        a.vmem(f"buffer_store_dword v{T+2}, v{T+6}, {sr(SWS,4)}, s{sT0} offen sc1", "csst")

    def colsum_l_setup(self):
        a = self.a
        T, A0 = 12, 180
        a(f"""
        v_bfe_u32 v{T+2}, v0, 4, 1
        v_mul_u32_u24 v{T+3}, 3072, v{T+2}
        v_lshrrev_b32 v{T+4}, 5, v0
        v_mul_u32_u24 v{T+4}, 1536, v{T+4}
        v_bfe_u32 v{T+5}, v0, 2, 2
        v_lshl_add_u32 v{T+3}, v{T+5}, 6, v{T+3}
        v_and_b32 v{T+5}, 1, v0
        v_lshl_add_u32 v{T+3}, v{T+5}, 4, v{T+3}
        v_bfe_u32 v{T+5}, v0, 1, 1
        v_lshl_add_u32 v{T+3}, v{T+5}, 3, v{T+3}
        v_lshl_add_u32 v{T+3}, v{T+2}, 5, v{T+3}
        v_add3_u32 v{A0}, v{T+3}, v{T+4}, s{self.sWL}
        v_xor_b32 v{A0+1}, 32, v{A0}
        v_add_u32 v{A0+2}, 49152, v{A0}
        v_add_u32 v{A0+3}, 49152, v{A0+1}
        v_mov_b32 v{A0+4}, 0x3f803f80
        """)
        for J in range(6):
            a(f"v_mov_b32 v{A0+6+J}, 0")

    def colsum_l_stage(self, st):
        a = self.a
        A0, F = 180, 192
        sl = st % 3
        for J in range(6):
            for q in range(2):
                a.ds(f"ds_read_b64_tr_b16 {vr(F+4*J+2*q,2)}, v{A0+(J&1)+(2 if sl == 2 else 0)} offset:{(sl%2)*24576+(J>>1)*256+q*768}", "cl")
        a.begin()
        a.lg.wait("cl")
        for r in range(4):
            for J in range(6):
                a(f"v_dot2c_f32_bf16 v{A0+6+J}, v{A0+4}, v{F+4*J+r}")
        a.end()

    def colsum_l_finish(self):
        a = self.a
        A0 = 180
        a(f"s_lshl_b32 s{sT0}, s{sB}, 2\ns_add_u32 s{sT0}, s{sT0}, {CSF}\nv_lshl_add_u32 v{A0}, v0, 4, s{sT0}")
        for p in range(3):
            a(f"v_permlane32_swap_b32 v{A0+6+2*p}, v{A0+7+2*p}")
        for p in range(3):
            a(f"v_add_f32 v{A0+6+2*p}, v{A0+6+2*p}, v{A0+7+2*p}")
            a.ds(f"ds_write_b32 v{A0}, v{A0+6+2*p} offset:{p*1024}", "gw")

    def colsum_r_setup(self):
        a = self.a
        T, A0, sJ = 12, 180, sA + 13
        r2 = self.o.get("rot", "2") == "2"
        a(f"""
        v_bfe_u32 v{T+2}, v0, 4, 1
        v_mul_u32_u24 v{T+3}, 3072, v{T+2}
        v_lshrrev_b32 v{T+4}, 5, v0
        v_mul_u32_u24 v{T+4}, 1536, v{T+4}
        v_bfe_u32 v{T+5}, v0, 2, 2
        v_lshl_add_u32 v{T+3}, v{T+5}, 6, v{T+3}
        v_and_b32 v{T+5}, 1, v0
        v_lshl_add_u32 v{T+3}, v{T+5}, 4, v{T+3}
        v_bfe_u32 v{T+5}, v0, 1, 1
        v_lshl_add_u32 v{T+3}, v{T+5}, 3, v{T+3}
        v_lshl_add_u32 v{T+3}, v{T+2}, 5, v{T+3}
        s_lshr_b32 s{sJ}, s{sRB1}, {1 if r2 else 2}
        s_mul_i32 s{sT0}, s{sJ}, 11
        s_lshr_b32 s{sT0}, s{sT0}, 5
        s_mul_i32 s{sT0}, s{sT0}, 3
        s_sub_u32 s{sT0}, s{sJ}, s{sT0}
        s_mul_i32 s{sT0}, s{sT0}, 24576
        s_min_u32 s{sT1}, s{sB}, 2
        s_lshl_b32 s{sT1}, s{sT1}, 8
        s_add_u32 s{sT0}, s{sT0}, s{sT1}
        s_add_u32 s{sT0}, s{sT0}, {WS_}
        v_add3_u32 v{A0}, v{T+3}, v{T+4}, s{sT0}
        v_xor_b32 v{A0+1}, 32, v{A0}
        s_add_u32 s{sT2}, s{sRB1}, s{sCB1}
        s_and_b32 s{sT2}, s{sT2}, {1 if r2 else 3}
        s_mul_i32 s{sT0}, s{sT2}, 5
        s_lshr_b32 s{sT0}, s{sT0}, {0 if r2 else 1}
        s_add_u32 s{sT0}, s{sT0}, s{sJ}
        s_lshl4_add_u32 s{sT0}, s{sCB1}, s{sT0}
        s_mul_i32 s{sT0}, s{sT0}, 768
        s_add_u32 s{sT0}, s{sT0}, s{sT1}
        s_add_u32 s{sT0}, s{sT0}, {CS}
        v_lshl_add_u32 v{A0+2}, v0, 2, s{sT0}
        v_mov_b32 v{A0+3}, 0x3f803f80
        """)
        if not r2:
            a.begin()
            a(f"s_and_b32 s{sT2}, s{sT2}, 1\ns_add_u32 s{sT2}, s{sT2}, 2\ns_cmp_lt_u32 s{sJ}, s{sT2}\ns_cselect_b32 s{sJ}, s{sJ}, 15")
            a.end()
        for r in range(4):
            a(f"v_mov_b32 v{A0+4+r}, 0")

    def colsum_r_call(self, j, part):
        a = self.a
        lab = a.label("csr")
        a.begin()
        a(f"s_cmp_lg_u32 s{sA+13}, {j}\ns_cbranch_scc1 {lab}\ns_call_b64 s[{sTM}:{sTM+1}], L_colsum{part}\n{lab}:")
        a.end()

    def colsum_r_body(self):
        a = self.a
        A0, F = 180, 192
        for h in range(2):
            a(f"L_colsum{h}:")
            for n in range(8):
                a(f"ds_read_b64_tr_b16 {vr(F+16*h+2*n,2)}, v{A0+h} offset:{(n>>1)*6144+(n&1)*768}")
            a(f"s_setpc_b64 s[{sTM}:{sTM+1}]")
        for h in range(2):
            a(f"L_colsum{2+h}:")
            a(f"s_waitcnt lgkmcnt(0)")
            for n in range(16):
                a(f"v_dot2c_f32_bf16 v{A0+4+2*h+(n&1)}, v{A0+3}, v{F+16*h+n}")
            if h == 0:
                a(f"s_setpc_b64 s[{sTM}:{sTM+1}]")
        a(f"v_add_f32 v{A0+4}, v{A0+4}, v{A0+5}\nv_add_f32 v{A0+6}, v{A0+6}, v{A0+7}")
        a(f"v_permlane32_swap_b32 v{A0+4}, v{A0+6}\nv_add_f32 v{A0+4}, v{A0+4}, v{A0+6}")
        a(f"buffer_store_dword v{A0+4}, v{A0+2}, {sr(SWS,4)}, 0 offen sc1")
        a(f"s_setpc_b64 s[{sTM}:{sTM+1}]")

    def colsum_store(self):
        self.a.vmem(f"buffer_store_dword v148, v149, {sr(SWS,4)}, 0 offen sc1", "csst")

    def ncs(self):
        return {"A": 16, "B": 10, "L": 0, "R": 10}[self.o.get("cs", "R")]

    def gather_issue(self):
        a = self.a
        T, G = 14, 24
        a(f"""
        v_and_b32 v{T}, 31, v0
        s_lshl2_add_u32 s{sT0}, s{sRB1}, s{sB}
        s_lshl_b32 s{sT0}, s{sT0}, 8
        s_add_u32 s{sT0}, s{sT0}, {ST}
        v_lshlrev_b32 v{T}, 3, v{T}
        s_mul_i32 s{sT1}, s{sCB1}, 12288
        s_mul_i32 s{sT2}, s{sB}, 192
        s_add_u32 s{sT1}, s{sT1}, s{sT2}
        s_add_u32 s{sT1}, s{sT1}, {CS}
        v_lshlrev_b32 v{T+1}, 2, v0
        """)
        a.vmem(f"buffer_load_dwordx2 {vr(G,2)}, v{T}, {sr(SWS,4)}, s{sT0} offen sc1", "gat")
        for p in range(self.ncs()):
            if p and p % 5 == 0:
                a(f"s_add_u32 s{sT1}, s{sT1}, 3840")
            a.vmem(f"buffer_load_dword v{G+2+p}, v{T+1}, {sr(SWS,4)}, s{sT1} offen offset:{(p%5)*768} sc1", "gat")

    def gather_finish(self):
        a = self.a
        T, G = 14, 24
        a.vm.wait("gat")
        a(f"s_lshl_b32 s{sT0}, s{sB}, 8\ns_add_u32 s{sT0}, s{sT0}, {STL}\nv_add_u32 v{T}, s{sT0}, v{T}")
        a.ds(f"ds_write_b64 v{T}, {vr(G,2)}", "gw")
        if self.ncs() == 0:
            self.colsum_l_stage(9)
            self.colsum_l_finish()
        else:
            c = G + 2
            n = self.ncs()
            while n > 1:
                h = n // 2
                for p in range(h):
                    a(f"v_add_f32 v{c+p}, v{c+p}, v{c+n-h+p}")
                n -= h
            a(f"""
            v_cvt_pk_bf16_f32 v{c+1}, v{c}, v{c}
            v_and_b32 v{c+1}, 0xffff0000, v{c+1}
            v_sub_f32 v{c+1}, v{c}, v{c+1}
            v_cvt_pk_bf16_f32 v{c+2}, v{c}, v{c+1}
            v_and_b32 v{c+4}, 0xffff0000, v{c+2}
            v_sub_f32 v{c+1}, v{c+1}, v{c+4}
            v_cvt_pk_bf16_f32 v{c+3}, v{c+1}, 0
            s_mul_i32 s{sT0}, s{sB}, 384
            s_add_u32 s{sT0}, s{sT0}, {CSF}
            v_lshl_add_u32 v{T+1}, v0, 3, s{sT0}
            """)
            a.begin()
            a("s_mov_b32 exec_hi, 0xffff")
            a.ds(f"ds_write_b64 v{T+1}, {vr(c+2,2)}", "gw")
            a("s_mov_b32 exec_hi, -1")
            a.end()
        a(f"v_mov_b32 v{T}, {GCNT}\nv_mov_b32 v{T+1}, 1\ns_mov_b64 exec, 1")
        a.ds(f"ds_add_u32 v{T}, v{T+1}", "gw")
        a("s_mov_b64 exec, -1")

    def stage_base(self, sR):
        if self.o.get("p0", "B") == "B":
            return f"s_mul_i32 s{sR}, s{sB}, 8704\ns_add_u32 s{sR}, s{sR}, {AUX}"
        tab = (32768, 98304, 107008, 41472)
        o = f"s_mov_b32 s{sR}, {tab[0]}"
        for b in range(1, 4):
            o += f"\ns_cmp_eq_u32 s{sB}, {b}\ns_cselect_b32 s{sR}, {tab[b]}, s{sR}"
        return o

    def task_index(self, K):
        b = self.a
        b(f"s_and_b32 s{sT0}, s{sI}, 1\ns_lshr_b32 s{sT1}, s{sI}, 1")
        if K:
            b(f"""
            s_mul_i32 s{sT0}, s{sT0}, 3
            s_mul_i32 s{sT1}, s{sT1}, 5
            s_mul_i32 s{sT2}, s{sXCD}, 80
            s_add_u32 s{sT0}, s{sT0}, s{sB}
            """)
        else:
            b(f"""
            s_sub_u32 s{sT2}, s{sB}, 1
            s_mul_i32 s{sT0}, s{sT0}, s{sT2}
            s_mul_i32 s{sT1}, s{sT1}, 3
            s_mul_i32 s{sT2}, s{sXCD}, 48
            """)
        b(f"s_add_u32 s{sT0}, s{sT0}, s{sT1}\ns_add_u32 s{sC}, s{sT0}, s{sT2}")

    def kv_issue(self):
        a = self.a
        T = 150
        fl = self.o.get("p0flags", "")
        sR, sT0K, sCG = sA + 5, sA + 6, sA + 7
        a(f"""
        s_and_b32 s{sT0K}, s{sC}, 63
        s_lshl_b32 s{sT0K}, s{sT0K}, 5
        s_lshr_b32 s{sCG}, s{sC}, 6
        {self.stage_base(sR)}
        v_lshrrev_b32 v{T}, 3, v0
        v_mul_u32_u24 v{T}, 1280, v{T}
        v_and_b32 v{T+1}, 7, v0
        v_lshl_add_u32 v{T}, v{T+1}, 4, v{T}
        s_mul_i32 s{sT0}, s{sT0K}, 1280
        s_lshl_b32 s{sT1}, s{sCG}, 7
        s_add_u32 s{sT0}, s{sT0}, s{sT1}
        v_add_u32 v{T+2}, s{sT0}, v{T}
        v_subrev_u32 v{T}, 5120, v{T+2}
        v_add_u32 v{T+1}, 5120, v{T+2}
        s_lshl_b32 s{sT1}, s{sCG}, 9
        v_lshl_add_u32 v{T+3}, v0, 3, s{sT1}
        """)
        a.begin()
        a(f"s_mov_b32 m0, s{sR}")
        a.vmem(f"buffer_load_dwordx4 v{T}, {sr(SK,4)}, 0 offen {fl} lds", "K0")
        a.end()
        for i in range(1, 5):
            a.begin()
            a(f"s_add_u32 m0, s{sR}, {i*1024}\ns_mov_b32 s{sT0}, {(i-1)*10240}")
            if i == 4:
                a("s_mov_b32 exec_hi, 0")
            a.vmem(f"buffer_load_dwordx4 v{T+1}, {sr(SK,4)}, s{sT0} offen {fl} lds", f"K{i}")
            if i == 4:
                a("s_mov_b32 exec_hi, -1")
            a.end()
        for i in range(4):
            a.begin()
            a(f"s_add_u32 m0, s{sR}, {4608+i*1024}\ns_mov_b32 s{sT0}, {i*10240}")
            a.vmem(f"buffer_load_dwordx4 v{T+2}, {sr(SV,4)}, s{sT0} offen {fl} lds", f"V{i}")
            a.end()
        a.vmem(f"buffer_load_dwordx2 v[54:55], v{T+3}, {sr(SSH,4)}, 0 offen", "SH")

    def kv_setup(self):
        a = self.a
        T = 20
        sR, sT0K, sCG = sA + 5, sA + 6, sA + 7
        a(f"""
        v_bfe_u32 v{T}, v0, 2, 2
        v_lshrrev_b32 v{T+1}, 4, v0
        v_lshlrev_b32 v{T+1}, 5, v{T+1}
        v_lshl_add_u32 v{T}, v{T}, 7, v{T+1}
        v_and_b32 v{T+1}, 3, v0
        v_lshl_add_u32 v{T}, v{T+1}, 3, v{T}
        v_add_u32 v154, s{sR}, v{T}
        v_lshrrev_b32 v{T+2}, 2, v0
        v_mul_u32_u24 v{T+2}, {4*self.row}, v{T+2}
        v_lshl_add_u32 v157, v{T+1}, 4, v{T+2}
        s_mul_i32 s{sA+8}, s{sCG}, {64*self.row}
        s_lshl1_add_u32 s{sA+8}, s{sT0K}, s{sA+8}
        s_add_u32 s{sA+8}, s{sA+8}, {UT}
        """)

    def kv_block(self, n):
        a = self.a
        T, K, Vv, W, KF, O = 20, 60, 78, 14, 96, 132
        a.vm.wait(f"K{n}", f"K{n+1}", f"V{n}", "SH")
        for i in ([0, 1, 2] if n == 0 else [2 * n + 1, 2 * n + 2]):
            a.ds(f"ds_read_b64_tr_b16 {vr(K+2*i,2)}, v154 offset:{i*512}", f"k{i}")
        for i in (2 * n, 2 * n + 1):
            a.ds(f"ds_read_b64_tr_b16 {vr(Vv+2*i,2)}, v154 offset:{4608+i*512}", f"v{i}")
        if n == 0:
            a(f"""
            v_lshlrev_b32 v{W}, 16, v54
            v_and_b32 v{W+1}, 0xffff0000, v54
            v_lshlrev_b32 v{W+2}, 16, v55
            v_and_b32 v{W+3}, 0xffff0000, v55
            """)
        nk = 0 if n == 0 else 4 * n + 2
        for p in range(4 * n, 4 * n + 4):
            while nk < p + 3:
                a.lg.wait(f"k{nk>>1}")
                a(f"v_lshlrev_b32 v{KF+2*nk}, 16, v{K+nk}\nv_and_b32 v{KF+2*nk+1}, 0xffff0000, v{K+nk}")
                nk += 1
            for e in range(2):
                a(f"v_mul_f32 v{T+e}, v{W+3}, v{KF+2*p+e+1}")
            for d in (2, 1, 0):
                for e in range(2):
                    a(f"v_fmac_f32 v{T+e}, v{W+d}, v{KF+2*p+e+4-d}")
            a.lg.wait(f"v{p>>1}")
            a(f"v_lshlrev_b32 v{T+2}, 16, v{Vv+p}\nv_and_b32 v{T+3}, 0xffff0000, v{Vv+p}")
            a(f"v_mul_f32 v{T}, v{T}, v{T+2}\nv_mul_f32 v{T+1}, v{T+1}, v{T+3}")
            a(f"v_cvt_pk_bf16_f32 v{O+p}, v{T}, v{T+1}")

    def kv_bounce(self):
        a = self.a
        KF, O = 96, 132
        for src, dst, bit, perm in ((O, KF, 1, "[1,0,3,2]"), (KF, O, 2, "[2,3,0,1]")):
            low = 0x55555555 if bit == 1 else 0x33333333
            for mask, js in ((low, [j for j in range(4) if not j & bit]), (low ^ 0xffffffff, [j for j in range(4) if j & bit])):
                for j in js:
                    a.begin()
                    a(f"s_mov_b32 vcc_lo, {hex(mask)}\ns_mov_b32 vcc_hi, {hex(mask)}")
                    for r in range(4):
                        a(f"v_cndmask_b32_dpp v{dst+4*j+r}, v{src+4*(j^bit)+r}, v{src+4*j+r}, vcc quad_perm:{perm} row_mask:0xf bank_mask:0xf")
                    a.end()

    def kv_stores(self):
        a = self.a
        O = 132
        for j in range(4):
            a.begin()
            a.vmem(f"buffer_store_dwordx4 {vr(O+4*j,4)}, v157, {sr(SWS,4)}, s{sA+8} offen sc1", "utst")
            if j < 3:
                a(f"s_add_u32 s{sA+8}, s{sA+8}, {self.row}")
            a.end()

    def wd_issue(self):
        a = self.a
        T = 150
        fl = self.o.get("p0flags", "")
        sR = sA + 5
        a(f"""
        s_lshr_b32 s{sA+6}, s{sC}, 3
        s_and_b32 s{sT1}, s{sC}, 3
        s_lshl2_add_u32 s{sA+6}, s{sA+6}, s{sT1}
        s_mul_i32 s{sA+6}, s{sA+6}, 10240
        s_bfe_u32 s{sT1}, s{sC}, 0x10002
        s_mul_i32 s{sT1}, s{sT1}, 640
        s_add_u32 s{sA+6}, s{sA+6}, s{sT1}
        {self.stage_base(sR)}
        """)
        for i in range(5):
            a(f"""
            v_add_u32 v{T+1}, {64*i}, v0
            v_mul_u32_u24 v{T+2}, 1639, v{T+1}
            v_lshrrev_b32 v{T+2}, 16, v{T+2}
            v_mul_u32_u24 v{T+2}, 640, v{T+2}
            v_lshl_add_u32 v{T+2}, v{T+1}, 4, v{T+2}
            """)
            a.begin()
            a(f"s_add_u32 m0, s{sR}, {i*1024}")
            a.vmem(f"buffer_load_dwordx4 v{T+2}, {sr(SWD,4)}, s{sA+6} offen {fl} lds", "kv")
            a.end()

    def wd_work(self):
        a = self.a
        T, F, VA = 20, 60, 150
        sR = sA + 5
        a(f"""
        v_bfe_u32 v{T}, v0, 2, 2
        v_mul_u32_u24 v{T}, 640, v{T}
        v_lshrrev_b32 v{T+2}, 4, v0
        v_lshl_add_u32 v{T}, v{T+2}, 5, v{T}
        v_and_b32 v{T+1}, 3, v0
        v_lshl_add_u32 v{T}, v{T+1}, 3, v{T}
        v_add_u32 v{T}, s{sR}, v{T}
        s_bfe_u32 s{sA+8}, s{sC}, 0x10002
        s_mul_i32 s{sA+8}, s{sA+8}, 192
        s_lshr_b32 s{sT1}, s{sC}, 3
        s_add_u32 s{sA+8}, s{sA+8}, s{sT1}
        s_mul_i32 s{sA+8}, s{sA+8}, 5120
        s_and_b32 s{sT1}, s{sC}, 3
        s_lshl_b32 s{sT1}, s{sT1}, 8
        s_add_u32 s{sA+8}, s{sA+8}, s{sT1}
        s_add_u32 s{sA+8}, s{sA+8}, {WDT}
        v_and_b32 v{T+1}, 15, v0
        v_lshlrev_b32 v{T+1}, 4, v{T+1}
        """)
        for n in range(5):
            a(f"""
            v_add_u32 v{T+3}, {4*n}, v{T+2}
            v_mul_u32_u24 v{VA+n}, 13, v{T+3}
            v_lshrrev_b32 v{VA+n}, 6, v{VA+n}
            v_mul_u32_u24 v{VA+n}, {245760-5120}, v{VA+n}
            v_lshl_add_u32 v{VA+n}, v{T+3}, 10, v{VA+n}
            v_add_u32 v{VA+n}, v{VA+n}, v{T+1}
            """)
        a.vm.wait("kv")
        for n in range(5):
            for q in range(2):
                a.ds(f"ds_read_b64_tr_b16 {vr(F+4*n+2*q,2)}, v{T} offset:{q*2560+n*128}", f"wt{n}")
        for n in range(5):
            a.lg.wait(f"wt{n}")
            a.vmem(f"buffer_store_dwordx4 {vr(F+4*n,4)}, v{VA+n}, {sr(SWS,4)}, s{sA+8} offen sc1", "utst")

    def conv_issue(self):
        a = self.a
        fl = self.o.get("p0flags", "")
        a(f"""
        s_lshl_b32 s{sT0}, s{self.sCH}, 12
        v_add_u32 v176, s{sT0}, v18
        s_lshl_b32 s{sT0}, s{self.sCH}, 1
        v_mov_b32 v19, s{sT0}
        """)
        a.vmem(f"buffer_load_ushort v19, v19, {sr(SSD,4)}, 0 offen", "hk")
        for i in range(4):
            a.begin()
            a(f"s_add_u32 m0, s{self.sR}, 96")
            a.vmem(f"buffer_load_dwordx4 v176, {sr(SSK,4)}, 0 offen offset:{i*1024} {fl} lds", "hk")
            a.end()

    def conv_fold(self):
        a = self.a
        a(f"v_mov_b32 v176, s{self.sR}")
        a.vm.wait("hk")
        a.ds("ds_read_u16 v177, v176 offset:96", "h0")
        a("v_lshlrev_b32 v19, 16, v19")
        a.lg.wait("h0")
        a("v_lshlrev_b32 v177, 16, v177\nv_add_f32 v177, v177, v19\nv_cvt_pk_bf16_f32 v177, v177, v177")
        a.ds("ds_write_b16 v176, v177 offset:96", "h0")

    def conv_u_issue(self):
        a = self.a
        a(f"s_mul_i32 s{sT0}, s{self.sCH}, {self.row}\ns_add_u32 m0, s{self.sR}, 4352\ns_add_u32 s{sT0}, s{sT0}, {UT}")
        for i in range(4):
            a.vmem(f"buffer_load_dwordx4 v18, {sr(SWS,4)}, s{sT0} offen offset:{i*1024} sc1 lds", f"u{i}")

    def conv_setup(self):
        a = self.a
        T = 4
        a(f"""
        v_lshlrev_b32 v{T}, 2, v0
        v_add_u32 v{T}, s{self.sR}, v{T}
        v_mov_b32 v{T+1}, 0
        s_mov_b32 exec_hi, 0
        s_mov_b32 exec_lo, 0xffffff
        """)
        a.ds(f"ds_write_b32 v{T}, v{T+1}", "z")
        a("s_mov_b32 exec_lo, -1\ns_mov_b32 exec_hi, 0xff")
        a.ds(f"ds_write_b32 v{T}, v{T+1} offset:4192", "z")
        a("s_mov_b64 exec, -1")
        a(f"""
        v_and_b32 v{T}, 3, v0
        v_lshrrev_b32 v{T+1}, 4, v0
        v_bfe_u32 v{T+2}, v0, 2, 2
        v_lshlrev_b32 v{T+3}, 6, v{T+1}
        v_lshl_add_u32 v{T+3}, v{T+2}, 3, v{T+3}
        v_lshl_add_u32 v1, v{T}, 5, v{T+3}
        v_add_u32 v1, s{self.sR}, v1
        v_lshlrev_b32 v{T}, 3, v{T}
        v_sub_u32 v2, v{T}, v{T+3}
        s_add_u32 s{sT0}, s{self.sR}, {4352+64}
        v_add_u32 v2, s{sT0}, v2
        v_lshl_add_u32 v3, v0, 1, s{self.sR}
        v_mov_b32 v10, 0
        v_mov_b32 v11, 0
        v_lshl_add_u32 v12, v0, 4, s{self.sR}
        s_mul_i32 s{self.sY}, s{self.sCH}, {self.row}
        s_add_u32 s{self.sY}, s{self.sY}, {YY}
        """)

    def xt_issue(self, wave3=False):
        a = self.a
        T = 20
        sX = sA + 7
        a(f"""
        s_mul_i32 s{sX}, s{sRB2}, 81920
        s_mul_i32 s{sT2}, s{sCB2}, 160
        s_add_u32 s{sX}, s{sX}, s{sT2}
        """)
        for p in range(10):
            a.begin()
            lab = a.label("xt")
            if wave3:
                a(f"s_cmp_lg_u32 s{sB}, 3\ns_cbranch_scc1 {lab}")
            a(f"""
            v_add_u32 v{T}, {64*p}, v0
            v_mul_u32_u24 v{T+1}, 6554, v{T}
            v_lshrrev_b32 v{T+1}, 16, v{T+1}
            v_mul_u32_u24 v{T+1}, 1120, v{T+1}
            v_lshl_add_u32 v{T+1}, v{T}, 4, v{T+1}
            s_mov_b32 m0, {XT+p*1024}
            """)
            a(f"buffer_load_dwordx4 v{T+1}, {sr(SQ,4)}, s{sX} offen lds")
            a(f"{lab}:")
            a.end()

    def loader(self, steps, finish):
        a = self.a
        T = 20
        sO2 = sA + 10
        depth = int(self.o.get("ldepth", 0))
        late_xt = self.o.get("xtpos", "7") == "L"
        for st in steps:
            if st == 4:
                if late_xt:
                    self.xt_issue()
                go = a.label("ringfree")
                a(f"v_mov_b32 v{T}, {ACNT}")
                self.lds_flag_wait(T, T + 1, go, 4)
                a(f"{go}:")
            self.step_off(6 + st, self.sWo, self.sWb, self.sRot, 5120)
            for q in range(0 if self.o.get("x_nowd") else 4):
                prev = None
                for j in range(5):
                    isw, off = self.wl_addr(5 * st + j, 0, 1)
                    lds = off + (WS_ + q * 6144 if isw else q * 4096)
                    if prev is not None and lds == prev[0] + (j - prev[1]) * 1024 and j - prev[1] < 4:
                        imm = (j - prev[1]) * 1024
                    else:
                        prev, imm = (lds, j), 0
                        a(f"s_mov_b32 m0, {lds}")
                        a(f"s_add_u32 s{sO2}, s{self.sWo}, {q*61440+j*1024}")
                    a.vmem(f"buffer_load_dwordx4 v18, {sr(SWS,4)}, s{sO2} offen offset:{imm} sc1 lds", "wl")
                    if depth:
                        a(f"s_waitcnt vmcnt({depth})")
        if not finish:
            return
        a(f"v_mov_b32 v{T}, {WFLG}\nv_mov_b32 v{T+1}, 1")
        a.vm.drain()
        a.ds(f"ds_write_b32 v{T}, v{T+1}", "wf")

    def conv_main(self):
        a = self.a
        AF, BF, CA = 24, 88, 216
        NACC = 10
        Z2, Z1, YV, UR, RB = 4, 6, 8, 10, 248
        ca = lambda n: CA + 4 * (n % NACC)
        dpp = "row_mask:0xf bank_mask:0xf"

        def bread(i):
            g = [[("ds", f"ds_read_b64_tr_b16 {vr(BF+4*i+2*q,2)}, v2 offset:{128*i+32*(1-q)}", f"b{i}")] for q in range(2)]
            g[0].insert(0, ("vmwait", (f"u{i >> 3}",)))
            return g

        def uread(n):
            return [("ds", f"ds_read_u16_d16_hi v{UR+(n&1)}, v3 offset:{4352+128*n}", f"ur{n}")]

        yb = self.o.get("yburst", "1") == "1"
        rb = (lambda k: AF + 4 * k) if yb else (lambda k: RB + 4 * (k & 1))

        def yread(k):
            return [("ds", f"ds_read_b128 {vr(rb(k),4)}, v12 offset:{1024*k}", f"yr{k}")]

        def ystore(k):
            return [("lgwait", (f"yr{k}",)),
                    ("vmem", f"buffer_store_dwordx4 {vr(rb(k),4)}, v18, {sr(SWS,4)}, s{self.sY} offen offset:{1024*k} sc1", "yst")]

        fold = self.o.get("foldd", "1") == "1"

        def epi(n):
            c, pc = ca(n), ca(n - 1)
            z2, pz2, z1, pz1 = Z2 + (n & 1), Z2 + 1 - (n & 1), Z1 + (n & 1), Z1 + 1 - (n & 1)
            y, u = YV + (n & 1), UR + (n & 1)
            o = []
            if n < 31 and not fold:
                o.append(uread(n + 1))
            if n & 7 == 0 and n and not yb:
                o.append(yread((n >> 3) - 1))
            if n & 7 == 1 and n > 1 and not yb:
                o.append(ystore((n >> 3) - 1))
            for dst, cur, prev, add in ((z2, c + 3, pc + 3, c + 2), (z1, z2, pz2, c + 1), (y, z1, pz1, c)):
                if n == 0:
                    o.append([("i", f"v_add_f32_dpp v{dst}, v{cur}, v{add} wave_shr:1 {dpp} bound_ctrl:0")])
                else:
                    o.append([("i", f"v_add_f32_dpp v{dst}, v{prev}, v{add} wave_ror:1 {dpp}")])
                    o.append([("i", f"v_add_f32_dpp v{dst}, v{cur}, v{add} wave_shr:1 {dpp}")])
            if not fold:
                o.append([("lgwait", (f"ur{n}",)), ("i", f"v_fmac_f32 v{y}, s{self.sD}, v{u}")])
            if n & 1:
                o.append([("i", f"v_cvt_pk_bf16_f32 v{UR}, v{YV}, v{YV+1}")] if fold else
                         [("i", f"v_cvt_pk_bf16_f32 v{y}, v{YV}, v{YV+1}")])
                w = UR if fold else y
                o.append([("ds", f"ds_write_b16 v3, v{w} offset:{128*(n-1)}", f"yw{n}")])
                o.append([("ds", f"ds_write_b16_d16_hi v3, v{w} offset:{128*n}", f"yw{n}")])
            return o

        if not fold:
            a(f"v_lshlrev_b32 v19, 16, v19")
            a(f"v_readfirstlane_b32 s{self.sD}, v19")
        assert yb and fold

        def aread(m):
            return [[("ds", f"ds_read_b64_tr_b16 {vr(AF+4*m+2*q,2)}, v1 offset:{256*m+32*q}", f"a{m}")] for q in range(2)]

        PRE_A, PRE_B = int(self.o.get("prea", 16)), int(self.o.get("preb", 8))
        for m in range(PRE_A):
            for g in aread(m):
                play(a, g)
        for i in range(PRE_B):
            for g in bread(i):
                play(a, g)
        if self.o.get("hold", "0") == "1":
            go = a.label("hold")
            a(f"v_mov_b32 v20, {ECNT}")
            a.lg.drain()
            self.lds_flag_wait(20, 21, go, 4)
            a(f"{go}:")
        na, nb = PRE_A, PRE_B
        fill = []
        mi = 0
        self.stamp(1, "3")
        for n in range(32):
            if n in (8, 16, 24):
                self.stamp({8: 2, 16: 3, 24: 5}[n], "3")
            while fill and any(f[1] is not None and f[1] <= n - NACC + 1 for f in fill):
                play(a, fill.pop(0)[2])
            pend = []
            while nb < 32 and nb <= n + 3:
                pend += bread(nb); nb += 1
            while na < 16 and na <= (n + 3) // 2:
                pend += aread(na); na += 1
            fill = [f for f in fill if f[1] is None] + [(0, None, g) for g in pend] + [f for f in fill if f[1] is not None]
            ms = list(range(n // 2, -1, -1))
            for k, m in enumerate(ms):
                i = n - 2 * m
                while any(op[0] == "ds" and op[2] in (f"b{i}", f"a{m}") for f in fill for op in f[2]):
                    play(a, fill.pop(0)[2])
                a.lg.wait(f"b{i}", f"a{m}")
                c = "0" if k == 0 else vr(ca(n), 4)
                a(f"v_mfma_f32_16x16x32_bf16 {vr(ca(n),4)}, {vr(AF+4*m,4)}, {vr(BF+4*i,4)}, {c}")
                mi += 1
                slots = 2
                while slots and fill and fill[0][0] <= mi:
                    play(a, fill.pop(0)[2]); slots -= 1
            fill += [(mi + 8, n, g) for g in epi(n)]
        while fill:
            play(a, fill.pop(0)[2])
        for k in (range(4) if yb else [3]):
            play(a, yread(k))
        for k in (range(4) if yb else [3]):
            play(a, ystore(k))

    def final_prepare(self):
        a = self.a
        self.VO, T = 13, 20
        a(f"""
        s_lshl2_add_u32 s{sT0}, s{sRB2}, s{sB}
        s_mul_i32 s{sT1}, s{sT0}, 20480
        s_mul_i32 s{sT2}, s{sCB2}, 160
        s_add_u32 s{sT1}, s{sT1}, s{sT2}
        """)
        for p in range(3):
            a(f"""
            v_add_u32 v{T}, {64*p}, v0
            v_mul_u32_u24 v{T+1}, 205, v{T}
            v_lshrrev_b32 v{T+1}, 11, v{T+1}
            v_mul_u32_u24 v{T+1}, 1120, v{T+1}
            v_lshl_add_u32 v{T+1}, v{T}, 4, v{T+1}
            v_add_u32 v{self.VO+p}, s{sT1}, v{T+1}
            """)
        a(f"""
        s_lshl_b32 s{sT0}, s{sT0}, 7
        s_add_u32 s{sT0}, s{sT0}, {ST}
        v_and_b32 v{T}, 15, v0
        v_lshlrev_b32 v{T}, 3, v{T}
        """)
        a.vmem(f"buffer_load_dwordx2 v[16:17], v{T}, {sr(SWS,4)}, s{sT0} offen sc1", "xt")

    def final_xn(self):
        a = self.a
        T, X, XF, XN = 20, 24, 40, 60
        a(f"""
        v_and_b32 v{T}, 15, v0
        v_mul_u32_u24 v{T}, 160, v{T}
        v_lshrrev_b32 v{T+1}, 4, v0
        v_lshl_add_u32 v{T}, v{T+1}, 3, v{T}
        s_mul_i32 s{sT1}, s{sB}, 2560
        s_add_u32 s{sT1}, s{sT1}, {XT}
        v_add_u32 v1, s{sT1}, v{T}
        v_lshl_add_u32 v2, v0, 4, s{sT1}
        v_mov_b32 v{T}, {WFLG}
        """)
        if self.o.get("xtpos", "7") == "L":
            go = a.label("xgo")
            a.lg.drain()
            self.lds_flag_wait(T, T + 1, go)
            a(f"{go}:")
        a.vm.drain()
        for j in range(5):
            a.ds(f"ds_read_b64 {vr(X+2*j,2)}, v1 offset:{j*32}", "xr")
        a("v_rcp_f32 v17, v17")
        a.lg.drain()
        for p in range(10):
            x, n = XF + 2 * p, XN + 2 * p
            a(f"""
            v_lshlrev_b32 v{x}, 16, v{X+p}
            v_and_b32 v{x+1}, 0xffff0000, v{X+p}
            v_sub_f32 v{n}, v{x}, v16
            v_sub_f32 v{n+1}, v{x+1}, v16
            v_cvt_pk_bf16_f32 v{n+1}, v{n}, v{n+1}
            v_lshlrev_b32 v{n}, 16, v{n+1}
            v_and_b32 v{n+1}, 0xffff0000, v{n+1}
            v_mul_f32 v{n}, v{n}, v17
            v_mul_f32 v{n+1}, v{n+1}, v17
            v_cvt_pk_bf16_f32 v{n+1}, v{n}, v{n+1}
            v_lshlrev_b32 v{n}, 16, v{n+1}
            v_and_b32 v{n+1}, 0xffff0000, v{n+1}
            """)

    def final_rest(self):
        a = self.a
        T, Y, XF, XN, P = 20, 24, 40, 60, 80
        YT = AUX
        sPo, sPv = sA + 9, sA + 13
        other, go = a.label("ywait"), a.label("ygo")
        a("v_lshlrev_b32 v3, 4, v0")
        for j in range(5):
            offs = []
            for b in range(4):
                v, off = self.wl_addr(5 * b + j, 0, 1)
                offs.append((off + (WS_ if v else 0), 6144 if v else 4096))
            a(f"s_mov_b32 s{sT0}, {offs[0][0]}\ns_mov_b32 s{sT1}, {offs[0][1]}")
            for b in range(1, 4):
                a(f"s_cmp_eq_u32 s{sB}, {b}\ns_cselect_b32 s{sT0}, {offs[b][0]}, s{sT0}\ns_cselect_b32 s{sT1}, {offs[b][1]}, s{sT1}")
            a(f"v_add_u32 v{160+4*j}, s{sT0}, v3")
            for q in range(1, 4):
                a(f"v_add_u32 v{160+4*j+q}, s{sT1}, v{160+4*j+q-1}")
        a(f"""
        v_lshrrev_b32 v{T}, 2, v0
        v_and_b32 v{T+1}, 3, v0
        v_lshlrev_b32 v{T+1}, 3, v{T+1}
        v_lshl_add_u32 v{T}, v{T}, 7, v{T+1}
        s_lshl_b32 s{sT0}, s{sB}, 5
        s_add_u32 s{sT0}, s{sT0}, {YT}
        v_add_u32 v{T}, s{sT0}, v{T}
        v_mov_b32 v{T+1}, {YFLG}
        s_cmp_lg_u32 s{sB}, 3
        s_cbranch_scc1 {other}
        """)
        a(f"s_lshl3_add_u32 s{sT0}, s{sCB2}, s{sXCD}")
        self.cnt_off(sPo, cY, sT0)
        items = [(sPv, sPo, 0 if self.o.get("x_noy") else 32)]
        self.poll_issue(items, atomic=True)
        a(f"""
        v_lshrrev_b32 v{T+2}, 3, v0
        v_and_b32 v{T+3}, 7, v0
        v_mul_u32_u24 v{T+2}, {self.row}, v{T+2}
        v_lshl_add_u32 v{T+2}, v{T+3}, 4, v{T+2}
        """)
        self.poll_check(items, atomic=True, sleep=4)
        ok = a.label("convdone")
        a(f"v_mov_b32 v6, {YCNT}")
        self.lds_flag_wait(6, 7, ok, f"s{self.sNC}")
        a(f"{ok}:")
        self.stamp(11)
        a(f"""
        s_mul_i32 s{sT0}, s{sCB2}, {80*self.row}
        s_lshl_b32 s{sT1}, s{sRB2}, 7
        s_add_u32 s{sT0}, s{sT0}, s{sT1}
        s_add_u32 s{sT0}, s{sT0}, {YY}
        """)
        for p in range(10):
            a(f"s_mov_b32 m0, {YT + p * 1024}")
            a(f"buffer_load_dwordx4 v{T+2}, {sr(SWS,4)}, s{sT0} offen sc1 lds")
            a(f"s_add_u32 s{sT0}, s{sT0}, {8*self.row}")
        a(f"""
        v_mov_b32 v{T+2}, 1
        s_waitcnt vmcnt(0)
        ds_write_b32 v{T+1}, v{T+2}
        s_branch {go}
        {other}:
        """)
        self.lds_flag_wait(T + 1, T + 3, go)
        a(f"{go}:")
        for j in range(5):
            a.ds(f"ds_read_b64_tr_b16 {vr(Y+2*j,2)}, v{T} offset:{j*2048}", "yr")
        a.lg.drain()
        for p in range(10):
            a(f"""
            v_lshlrev_b32 v{T}, 16, v{Y+p}
            v_and_b32 v{T+1}, 0xffff0000, v{Y+p}
            v_fmac_f32 v{XF+2*p}, v{XN+2*p}, v{T}
            v_fmac_f32 v{XF+2*p+1}, v{XN+2*p+1}, v{T+1}
            """)
        self.stamp(12)
        a("s_barrier")
        self.stamp(13)
        for j in range(5):
            for q in range(4):
                a.ds(f"ds_read_b128 {vr(P+16*j+4*q,4)}, v{160+4*j+q}", f"p{j}")
        for j in range(5):
            a.lg.wait(f"p{j}")
            p = P + 16 * j
            for r in range(4):
                a(f"v_add_f32 v{p+r}, v{p+r}, v{p+4+r}")
            for r in range(4):
                a(f"v_add_f32 v{p+8+r}, v{p+8+r}, v{p+12+r}")
            for r in range(4):
                a(f"v_add_f32 v{p+r}, v{p+r}, v{XF+4*j+r}")
            for r in range(4):
                a(f"v_add_f32 v{p+r}, v{p+r}, v{p+8+r}")
            a(f"v_cvt_pk_bf16_f32 v{p}, v{p}, v{p+1}\nv_cvt_pk_bf16_f32 v{p+1}, v{p+2}, v{p+3}")
            a.ds(f"ds_write_b64 v1, {vr(p,2)} offset:{j*32}", "ow")
        for p in range(3):
            a.ds(f"ds_read_b128 {vr(24+4*p,4)}, v2 offset:{p*1024}", f"or{p}")
        of = self.o.get("outflags", "nt")
        for p in range(3):
            a.lg.wait(f"or{p}")
            if p == 2:
                a("s_mov_b32 exec_hi, 0")
            a.vmem(f"buffer_store_dwordx4 {vr(24+4*p,4)}, v{self.VO+p}, {sr(SOUT,4)}, 0 offen {of}", "out")
        self.stamp(14)
        self.dump_stamps("B")
        a("s_endpgm")

    def role_b(self, K):
        a = self.a
        a.vm.q = ["F0"] + ["S0"] * 9; a.lg.q = []
        sPo = [sA + 9, sA + 15, sA + 10, sA + 11]
        sPv = [sA + 12, sA + 14]
        self.sY, self.sR, self.sCH, self.sD = sA + 5, sA + 6, sC, sA + 8
        self.sRot, self.sWb, self.sWo = sA + 14, sA + 15, 3
        LAG = int(self.o.get("lag", 10))
        LAG0 = int(self.o.get("lag0", 7))
        assert LAG0 <= 10
        seq, last = [], {}
        for s_ in range(10):
            seq += [(s_, g) for g in self.rec(self.stage_issue, s_)]
            last[s_] = len(seq)
        cut = []
        for s_ in range(10):
            c = min(last[s_] + (LAG0 if s_ == 0 else LAG), len(seq))
            while any(k is not None and k >= s_ + 2 + (1 if s_ == 0 else 0) for k, _ in seq[:c]) and s_ < 9:
                c -= 1
            cut.append(max(c, cut[-1] if cut else 0))

        def zero_lds():
            b = self.a
            b(f"v_mov_b32 v56, {BCNT}\nv_mov_b32 v58, 0\nv_mov_b32 v59, 0")
            for k in range(4):
                b.ds(f"ds_write_b64 v56, v[58:59] offset:{8*k}", "z")
            b.lg.drain()

        def sig_stats():
            b = self.a
            b(f"s_lshr_b32 s{sT0}, s{sWS}, 4")
            self.cnt_off(sPo[0], cS, sT0)
            self.cnt_off(sPo[1], cC, sCB1)
            self.signal(sPo[:2] if self.o.get("cs", "R") in "AB" else sPo[:1], sPv[0])

        def sig_cs():
            self.cnt_off(sA + 13, cC, sCB1)
            self.signal([sA + 13], sA + 11)

        def sig_p0():
            b = self.a
            if K:
                b(f"s_lshr_b32 s{sT0}, s{sC}, 6")
                self.cnt_off(sPo[2], cU, sT0)
            else:
                b(f"""
                s_lshr_b32 s{sT0}, s{sC}, 3
                s_mul_i32 s{sT0}, s{sT0}, 43
                s_lshr_b32 s{sT0}, s{sT0}, 9
                s_and_b32 s{sT1}, s{sC}, 4
                s_add_u32 s{sT0}, s{sT0}, s{sT1}
                """)
                self.cnt_off(sPo[2], cW, sT0)
            self.signal([sPo[2]], sPv[1])

        def b_scalars():
            b = self.a
            b(f"""
            s_mul_i32 s{self.sR}, s{sB}, {CVR}
            s_add_u32 s{self.sR}, s{self.sR}, {AUX}
            v_lshlrev_b32 v18, 4, v0
            """)

        def g2s():
            b = self.a
            b.lg.drain()
            self.g2_scalars(self.sRot, self.sWb)
            b(f"s_mul_i32 s{sT0}, s{sB}, 61440\ns_sub_u32 s{self.sWb}, s{self.sWb}, s{sT0}")

        early = [(sA + 12, sA + 9, 16), (sA + 14, sA + 10, {"A": 16, "B": 16, "L": 0, "R": 64}[self.o.get("cs", "R")]), (sA + 15, sA + 11, 16)]

        def poll_early():
            b = self.a
            b.lg.drain()
            for (_, off, _), (base, src, sh) in zip(early, [(cS, sRB1, 0), (cC, sCB1, 0), (cS, sRB2, 1)]):
                b(f"s_lshr_b32 s{sT0}, s{src}, {sh}")
                self.cnt_off(off, base, sT0)
            self.poll_issue(early)

        def wave3(groups):
            lab = a.label("w3")
            return [[("i", f"s_cmp_lg_u32 s{sB}, 3"), ("i", f"s_cbranch_scc1 {lab}")] + sum(groups, []) + [("i", f"{lab}:")]]

        def poll_late():
            b = self.a
            if K:
                b(f"s_lshr_b32 s{sT0}, s{sC}, 6")
                self.cnt_off(sT0, cU, sT0)
                b(f"v_mov_b32 v22, s{sT0}")
            b.begin()
            b(f"s_mov_b64 exec, 1")
            b.vmem(f"buffer_load_dword v23, v22, {sr(SWS,4)}, 0 offen sc1", "late")
            b("s_mov_b64 exec, -1")
            b.end()

        def poll_w():
            b = self.a
            b(f"s_and_b32 s{sT0}, s{sCB2}, 4")
            self.cnt_off(sT0, cW, sT0)
            b(f"v_lshl_add_u32 v22, v0, 7, s{sT0}")
            self.vcheck_issue(23, 22, SWS, 15, 3)

        R = self.rec
        tasks = {k: [] for k in range(10)}
        heads = {k: [] for k in range(10)}
        tails = {k: [] for k in range(10)}
        extra = {k: [] for k in range(10)}
        after = {k: [] for k in range(10)}
        mids = {k: [] for k in range(10)}
        first0 = R(self.task_index, K)
        tasks[0] += R(zero_lds)
        csa = self.o.get("cs", "R") == "A"
        csl = self.o.get("cs", "R") == "L"
        if csl:
            tasks[0] += R(self.colsum_l_setup)
            for st in range(9):
                tasks[st + 1] += R(self.colsum_l_stage, st)
            csa = True
        csr = self.o.get("cs", "R") == "R"
        if csr:
            assert self.o.get("rot", "2") in "24"
            njs = 5 if self.o.get("rot", "2") == "2" else 3
            tasks[0] += R(self.colsum_r_setup)
            assert LAG == 10
            extra[njs + 1] += [f"F{njs+2}"]
            after[njs + 1] += R(sig_cs)
            csa = True
        if not csa:
            tasks[1] += R(self.colsum_partial)
        pk = int(self.o.get("kpos", 1))
        nk = int(self.o.get("kspread", 3))
        if not K:
            heads[pk] += R(self.vcheck_issue, 58, 59, SDBG, 1, 3)
            after[pk] += R(self.vcheck, 58, 59, "1", SDBG, 1, 3)
        def by_tag(groups):
            pre, out, cur = None, {}, []
            for g in groups:
                cur = cur + g
                tags = [op[2] for op in g if op[0] == "vmem"]
                if tags:
                    out.setdefault(tags[0], []).append(cur); cur = []
            return out

        def mix(x, y):
            out, i, j = [], 0, 0
            while i < len(x) or j < len(y):
                if j >= len(y) or (i < len(x) and i * len(y) <= j * len(x)):
                    out.append(x[i]); i += 1
                else:
                    out.append(y[j]); j += 1
            return out

        k0 = 0
        late_hk = []
        if K:
            ld = by_tag(R(self.kv_issue))
            hk = by_tag(R(self.conv_issue))["hk"]
            mids[k0] += ld["K0"] + ld["K1"] + ld["V0"] + ld["SH"]
            tails[k0] += R(self.kv_setup)
            for n in range(4):
                nxt = ld[f"K{n+2}"] + ld[f"V{n+1}"] if n < 3 else []
                tasks[k0 + 1 + n] += nxt + R(self.kv_block, n)
            ps = k0 + 5
            tasks[ps - 1] += R(self.kv_bounce)
            tasks[ps] += R(self.kv_stores)
            tasks[ps + 1] += R(b_scalars)
            hp = int(self.o.get("hpos", 9))
            if hp < 9:
                tasks[hp] += hk[:3]
                tasks[hp + 1] += hk[3:]
            else:
                late_hk = hk
        else:
            ld = by_tag(R(self.wd_issue))["kv"]
            mids[k0] += ld[:2]
            tasks[k0 + 1] += ld[2:4]
            tasks[k0 + 2] += ld[4:]
            work = R(self.wd_work)
            nst = min(k for k, g in enumerate(work) if any(op[0] == "vmem" for op in g))
            while work[nst - 1][0][0] == "lgwait":
                nst -= 1
            st = [g for g in work[nst:] if g[0][0] != "lgwait"]
            tasks[k0 + 3] += work[:nst] + [[("lgdrain",)]] + st[:2]
            tasks[k0 + 4] += st[2:]
            ps = k0 + 4
            tasks[ps + 2] += R(b_scalars)
            if self.o.get("xtpos", "7") != "L":
                xt = R(self.xt_issue, True)
                tasks[k0 + 5] += xt[:3]
                rest = xt[3:]
                for n, st_ in enumerate((5, 6, 7, 8)):
                    tasks[st_] += rest[len(rest) * n // 4:len(rest) * (n + 1) // 4]
        extra[ps + 1] += ["utst"]
        after[ps + 1] += R(sig_p0)
        if not K:
            heads[3] += wave3(R(sig_stats))
            (heads if self.o.get("pe", "h") == "h" else tails)[8] += wave3(R(poll_early))
            after[8] += wave3(R(self.poll_check, early))
        if not K:
            tasks[9] += R(g2s)
        tails[9] += R(self.gather_issue) + (R(poll_late) if K else [])
        if not K:
            heads[8] += R(poll_w)
            after[8] += R(self.vcheck, 23, 22, "48", SWS, 15, 3)
            NL0 = int(self.o.get("nl0", 0))
            if NL0:
                tails[9] += wave3([[("i", op[1]) if op[0] == "vmem" else op for op in g] for g in R(self.loader, range(NL0), False)])
        if K:
            tails[9] += late_hk + R(self.conv_setup)
        if csr:
            for j in range(njs):
                calls = [R(self.colsum_r_call, j, part)[0] for part in range(4)]
                pad = [[] for _ in range(max(0, 8 - len(tasks[j + 1])))]
                tasks[j + 1] = mix(calls, tasks[j + 1] + pad)
        drop = self.o.get("x_drop", "")

        def keep(op):
            if op[0] == "vmem":
                t = op[2]
                if "l" in drop and (t[0] in "KV" or t in ("SH", "kv", "hk")): return False
                if "s" in drop and t == "utst": return False
            if op[0] == "i" and "x" in drop and op[1].startswith("buffer_load_dwordx4 v21"): return False
            if op[0] == "i" and "v" in drop and op[1].startswith(("v_fmac_f32", "v_mul_f32", "v_cvt_pk", "v_and_b32 v9", "v_and_b32 v1", "v_lshlrev_b32 v9", "v_lshlrev_b32 v1")) and "v0" not in op[1]: return False
            return True

        if drop:
            for d in (tasks, heads, tails, mids):
                for k in range(9):
                    d[k] = [[op for op in g if keep(op)] for g in d[k]]
        pos = 10
        for s_ in range(10):
            for g in heads[s_]:
                play(a, g)
            main = [g for _, g in seq[pos:cut[s_]]]
            if s_ == 0:
                for g in first0 + mids[0]:
                    play(a, g)
                interleave(a, main, tasks[0])
            else:
                interleave(a, main, tasks[s_])
            pos = cut[s_]
            for g in tails[s_]:
                play(a, g)
            a.vm.wait(f"S{s_}", *extra[s_])
            for g in after[s_]:
                play(a, g)
            a("s_barrier")
            if s_ in (0, 3, 6, 8, 9):
                self.stamp({0: 1, 3: 2, 6: 3, 8: 5, 9: 6}[s_])
            self.stamp(s_ + 1, "2")
        assert pos == len(seq)
        self.gather_finish()
        a.vm.wait("late")
        if K:
            self.vcheck(23, 22, "64", SWS, 1, None)
            self.conv_u_issue()
            self.final_prepare()
            self.conv_fold()
            self.stamp(7)
            self.stamp(9, "3")
            if not self.o.get("x_noconv"):
                self.conv_main()
            self.stamp(8)
            self.stamp(7, "3")
            skip = a.label("ysig")
            a(f"v_mov_b32 v20, {YCNT}\nv_mov_b32 v21, 1")
            a(f"s_lshl_b32 s{sT0}, s{sXCD}, 3")
            self.cnt_off(sPo[0], cY, sT0)
            a.vm.drain()
            a("s_mov_b64 exec, 1")
            a.ds("ds_add_rtn_u32 v21, v20, v21", "yc")
            a.lg.drain()
            a(f"""
            v_readfirstlane_b32 s{sT0}, v21
            s_mov_b64 exec, -1
            s_add_u32 s{sT0}, s{sT0}, 1
            s_cmp_lg_u32 s{sT0}, s{self.sNC}
            s_cbranch_scc1 {skip}
            s_mov_b32 s{sPv[0]}, 1
            s_add_u32 s{sPo[2]}, s{SWS}, s{sPo[0]}
            s_addc_u32 s{sPo[3]}, s{SWS+1}, 0
            """)
            for k in range(8):
                a(f"s_atomic_add s{sPv[0]}, s[{sPo[2]}:{sPo[3]}], {k*128}")
            a(f"{skip}:")
            self.stamp(9)
            a("s_branch L_bjoin")
        else:
            self.final_prepare()
            a(f"s_setprio {self.o.get('lprio', 1)}\ns_cmp_lg_u32 s{sB}, 3\ns_cbranch_scc1 L_bjoin")
            self.loader(range(NL0, 6), True)
            self.stamp(8)

    def build(self):
        a = self.a
        self.prologue()
        self.b_common_setup()
        self.sNC = sA + 4
        self.stamp(0)
        a(f"s_and_b32 s{sT0}, s{sI}, 1\ns_sub_u32 s{self.sNC}, 3, s{sT0}")
        a(f"s_cmp_ge_u32 s{sB}, s{self.sNC}\ns_cbranch_scc1 L_pathW")
        self.role_b(True)
        a("L_pathW:")
        self.role_b(False)
        a("L_bjoin:")
        a.vm.q = ["any"]; a.lg.q = ["any"]
        self.final_xn()
        self.stamp(10)
        self.final_rest()
        if self.o.get("cs", "R") == "R":
            self.colsum_r_body()
        a.vm.q = []; a.lg.q = []
        self.role_a()
        a("L_end:\ns_endpgm")
        return a.text()


def kernel_file(opt):
    ref = open("parallel_sum__ssm_conv_h3__swiglu_ffn__prompt.s.ref").read()
    head = [l for l in ref.split("\n") if l.startswith(";") and "@launch" not in l]
    head = head[:head.index([l for l in head if "d_ws" in l][0]) + 1]
    body = Gen(opt).build()
    return "\n".join(head) + f"""
; @launch grid=(256,1,1) block=(512,1,1) lds={LDS_BYTES}
.amdgcn_target "amdgcn-amd-amdhsa--gfx950"
.text
.globl {KNAME}
.p2align 8
.type {KNAME},@function
{KNAME}:
{body}.section .rodata,"a"
.p2align 6
.amdhsa_kernel {KNAME}
  .amdhsa_next_free_vgpr 256
  .amdhsa_next_free_sgpr 102
  .amdhsa_accum_offset 256
  .amdhsa_group_segment_fixed_size 0
  .amdhsa_kernarg_size 104
  .amdhsa_user_sgpr_count 2
  .amdhsa_user_sgpr_kernarg_segment_ptr 1
  .amdhsa_system_sgpr_workgroup_id_x 1
  .amdhsa_float_denorm_mode_32 3
.end_amdhsa_kernel
"""


if __name__ == "__main__":
    out = sys.argv[1]
    opt = {}
    for kv in sys.argv[2:]:
        k, _, v = kv.partition("=")
        opt[k] = v if v else True
    open(out, "w").write(kernel_file(opt))
```

```python
import sys
from asmlib import Asm, Rec, play, interleave, vr, sr

KNAME = "parallel_sum__ssm_conv_h3__swiglu_ffn__prompt_kernel"

CNT, ST, CS, UT, YY, WDT, HH, PROF, WS_SIZE = (0, 0x8000, 0xC000, 0x40000, 0x340000, 0x640000, 0x820000,
                                               0xE20000, 0xF00000)
ROW = 4352
cH, cS, cC, cU, cW, cY = 0, 128, 144, 160, 176, 192
XS, WS_, AUX = 0, 49152, 122880
CVR = 8704
XT = AUX + 3 * CVR
STL, CSF, BCNT = AUX + 36352, AUX + 37376, AUX + 40448
YFLG, YCNT, ACNT, WFLG, ECNT, GCNT, CWFLG = [BCNT + 4 * k for k in range(7)]
LDS_BYTES = 163840
SQ, SWG, SWU, SWS, SK, SV, SSH, SSK, SSD, SOUT, SDBG, SWD = 4, 8, 12, 16, 20, 24, 28, 32, 36, 40, 44, 48
sW, sB, sXCD, sI, sRB1, sCB1, sKS, sRB2, sCB2, sWS, sC = 52, 53, 54, 55, 56, 57, 58, 59, 60, 61, 62
sT0, sT1, sT2, sT3, sCNT = 63, 64, 65, 66, 67
sTM = 68
sPR = 70
sA = 86
POLL_LIMIT = 1 << 17
LOG2E = 1.4426950408889634


def f2u(x):
    import struct
    return struct.unpack("<I", struct.pack("<f", x))[0]


class Gen:
    def __init__(self, opt):
        self.o = opt
        self.a = Asm()
        self.row = int(opt.get('row', ROW))

    def ws_shift(self):
        off = int(self.o.get("x_wsoff", "0"), 0)
        if off:
            self.a(f"s_add_u32 s{SWS}, s{SWS}, {off}\ns_addc_u32 s{SWS+1}, s{SWS+1}, 0")

    def stamp(self, k, kind="1"):
        if self.o.get("profile") != kind and not (k == 0 and self.o.get("profile")):
            return
        a = self.a
        a(f"{'s_memtime' if self.o.get('clk') else 's_memrealtime'} {sr(sTM, 2)}")
        a.lg.drain()
        a(f"s_mov_b32 s{sPR+k}, s{sTM}")

    def dump_stamps(self, role):
        if not self.o.get("profile"):
            return
        a = self.a
        a("s_mov_b64 exec, -1")
        a("v_mov_b32 v1, 0")
        for k in range(16):
            a(f"v_writelane_b32 v1, s{sPR+k}, {k}")
        a(f"s_lshl_b32 s{sT0}, s2, 3\ns_add_u32 s{sT0}, s{sT0}, s{sW}\ns_lshl_b32 s{sT0}, s{sT0}, 6\ns_add_u32 s{sT0}, s{sT0}, {PROF}")
        a("v_mbcnt_lo_u32_b32 v2, -1, 0\nv_mbcnt_hi_u32_b32 v2, -1, v2\nv_lshlrev_b32 v2, 2, v2")
        a("s_mov_b64 exec, 0xffff")
        a(f"buffer_store_dword v1, v2, {sr(SWS,4)}, s{sT0} offen")
        if self.o.get("dbgout"):
            wg = int(self.o["dbgout"])
            skip = a.label("dbgout")
            sel = [1, 2, 3, 4, 8, 5, 6, 7] if role == "A" else [1, 2, 3, 6, 7, 8, 14]
            a(f"s_cmp_lg_u32 s2, {wg}\ns_cbranch_scc1 {skip}\ns_cmp_lg_u32 s{sB}, 1\ns_cbranch_scc1 {skip}")
            for n, k in enumerate(sel):
                a(f"s_sub_u32 s{sT0}, s{sPR+k}, s{sPR}\nv_writelane_b32 v1, s{sT0}, {n}")
            a(f"s_mov_b64 exec, {(1 << len(sel)) - 1}")
            a(f"buffer_store_dword v1, v2, {sr(SDBG,4)}, 0 offen offset:{4 if role == 'A' else 36}")
            a(f"{skip}:")

    def rec(self, fn, *args):
        real = self.a
        self.a = Rec(real)
        fn(*args)
        groups = self.a.groups
        self.a = real
        return groups

    def cnt_off(self, sdst, base, sidx):
        self.a(f"s_add_u32 s{sdst}, s{sidx}, {base}\ns_lshl_b32 s{sdst}, s{sdst}, 7")

    def signal(self, soffs, stmp, only_wave0=False):
        a = self.a
        skip = a.label("sig")
        a.begin()
        if only_wave0:
            a(f"s_cmp_lg_u32 s{sB}, 0\ns_cbranch_scc1 {skip}")
        a(f"s_mov_b32 s{stmp}, 1")
        for so in soffs:
            a(f"s_atomic_add s{stmp}, {sr(SWS,2)}, s{so}")
        if only_wave0:
            a(f"{skip}:")
        a.end()

    def poll_ops(self, items, atomic):
        o = []
        for val, off, _ in items:
            base = sr(SDBG, 2) if off is None else sr(SWS, 2)
            offs = "0" if off is None else f"s{off}"
            if atomic:
                o += [f"s_mov_b32 s{val}, 0", f"s_atomic_add s{val}, {base}, {offs} glc"]
            else:
                o += [f"s_load_dword s{val}, {base}, {offs} glc"]
        return "\n".join(o)

    def poll_issue(self, items, atomic=False, only_wave0=False):
        a = self.a
        skip = a.label("pi")
        a.begin()
        if only_wave0:
            a(f"s_cmp_lg_u32 s{sB}, 0\ns_cbranch_scc1 {skip}")
        a(self.poll_ops(items, atomic))
        if only_wave0:
            a(f"{skip}:")
        a.end()

    def poll_check(self, items, atomic=False, only_wave0=False, sleep=2):
        a = self.a
        lo, again, ok = a.label("poll"), a.label("again"), a.label("pollok")
        a.begin()
        a.lg.drain()
        if only_wave0:
            a(f"s_cmp_lg_u32 s{sB}, 0\ns_cbranch_scc1 {ok}")
        a(f"s_mov_b32 s{sCNT}, 0")
        a(f"{lo}:")
        for k, (val, _, target) in enumerate(items):
            a(f"s_cmp_ge_u32 s{val}, {target}")
            a(f"s_cbranch_scc1 {ok}" if k == len(items) - 1 else f"s_cbranch_scc0 {again}")
        a(f"{again}:")
        if sleep:
            a(f"s_sleep {sleep}")
        a(self.poll_ops(items, atomic))
        a(f"s_add_u32 s{sCNT}, s{sCNT}, 1")
        a(f"s_cmp_lt_u32 s{sCNT}, {POLL_LIMIT}")
        a("s_waitcnt lgkmcnt(0)")
        a(f"s_cbranch_scc1 {lo}")
        a(f"{ok}:")
        a.end()

    def vcheck_issue(self, vret, vaddr, srd, mask, wave=0):
        a = self.a
        skip = a.label("vi")
        a.begin()
        if wave is not None:
            a(f"s_cmp_lg_u32 s{sB}, {wave}\ns_cbranch_scc1 {skip}")
        a(f"s_mov_b64 exec, {mask}")
        a(f"buffer_load_dword v{vret}, v{vaddr}, {sr(srd,4)}, 0 offen sc1")
        a("s_mov_b64 exec, -1")
        a(f"{skip}:")
        a.end()

    def vcheck(self, vret, vaddr, vtarget, srd, mask, wave=0):
        a = self.a
        lo, ok, skip = a.label("vc"), a.label("vcok"), a.label("vcskip")
        a.begin()
        if wave is not None:
            a(f"s_cmp_lg_u32 s{sB}, {wave}\ns_cbranch_scc1 {skip}")
        a(f"""
        s_mov_b64 exec, {mask}
        s_mov_b32 s{sCNT}, 0
        {lo}:
        v_cmp_le_u32 vcc, {vtarget}, v{vret}
        s_cmp_eq_u64 vcc, exec
        s_cbranch_scc1 {ok}
        s_sleep 8
        buffer_load_dword v{vret}, v{vaddr}, {sr(srd,4)}, 0 offen sc1
        s_add_u32 s{sCNT}, s{sCNT}, 1
        s_cmp_lt_u32 s{sCNT}, {POLL_LIMIT}
        s_waitcnt vmcnt(0)
        s_cbranch_scc1 {lo}
        {ok}:
        s_mov_b64 exec, -1
        {skip}:
        """)
        a.end()

    def lds_flag_wait(self, vaddr, vtmp, go, value=1):
        a = self.a
        lo = a.label("lf")
        a(f"""
        s_mov_b32 s{sCNT}, 0
        {lo}:
        ds_read_b32 v{vtmp}, v{vaddr}
        s_add_u32 s{sCNT}, s{sCNT}, 1
        s_waitcnt lgkmcnt(0)
        v_readfirstlane_b32 s{sT0}, v{vtmp}
        s_cmp_eq_u32 s{sT0}, {value}
        s_cbranch_scc1 {go}
        s_sleep 1
        s_cmp_lt_u32 s{sCNT}, {POLL_LIMIT*16}
        s_cbranch_scc1 {lo}
        """)

    SRDS = ((SQ, 0, 2621440), (SWG, 56, 1966080), (SWU, 64, 1966080), (SWS, 96, WS_SIZE), (SK, 8, 2621440),
            (SV, 16, 2621440), (SSH, 24, 5120), (SSK, 32, 2621440), (SSD, 40, 1280), (SOUT, 80, 2621440),
            (SDBG, 88, 256), (SWD, 72, 1966080))

    def srd_words(self, which):
        for srd, _, size in self.SRDS:
            if srd in which:
                self.a(f"s_mov_b32 s{srd+2}, {size}\ns_mov_b32 s{srd+3}, 0x20000")

    def prologue(self):
        a = self.a
        a("s_cmp_ge_u32 s2, 256\ns_cbranch_scc1 L_end")
        if self.o.get("profile"):
            a(f"{'s_memtime' if self.o.get('clk') else 's_memrealtime'} {sr(sTM, 2)}\ns_waitcnt lgkmcnt(0)\ns_mov_b32 s{sPR+15}, s{sTM}")
        for srd, off, _ in self.SRDS:
            if srd in (SQ, SWG, SWU, SWS, SDBG):
                a(f"s_load_dwordx2 {sr(srd,2)}, s[0:1], {off}")
        a("v_lshrrev_b32 v1, 6, v0")
        a(f"""
        s_and_b32 s{sXCD}, s2, 7
        v_readfirstlane_b32 s{sW}, v1
        s_lshr_b32 s{sI}, s2, 3
        s_and_b32 s{sT0}, s{sXCD}, 1
        s_lshr_b32 s{sT1}, s{sXCD}, 1
        s_and_b32 s{sT2}, s{sI}, 7
        s_lshl3_add_u32 s{sRB1}, s{sT0}, s{sT2}
        s_lshr_b32 s{sT2}, s{sI}, 3
        s_lshl2_add_u32 s{sCB1}, s{sT1}, s{sT2}
        s_and_b32 s{sB}, s{sW}, 3
        s_cmp_ge_u32 s{sW}, 4
        s_cbranch_scc1 L_roleB
        """)
        if self.o.get("pf", "1") == "1":
            a(f"""
            s_getpc_b64 s[{sT1}:{sT2}]
            L_pc:
            s_lshl_b32 s{sT0}, s{sI}, 11
            v_lshl_add_u32 v1, v0, 3, s{sT0}
            v_cmp_gt_u32 vcc, L_end-L_pc-4, v1
            s_and_saveexec_b64 s[{sTM}:{sTM+1}], vcc
            s_cbranch_execz L_nopf
            global_load_dwordx2 v[254:255], v1, s[{sT1}:{sT2}]
            L_nopf:
            s_mov_b64 exec, -1
            """)
        a("s_branch L_roleA")

    def decode_rest(self):
        a = self.a
        a(f"""
        s_and_b32 s{sT0}, s{sXCD}, 1
        s_lshr_b32 s{sT1}, s{sXCD}, 1
        s_lshl2_add_u32 s{sT3}, s{sT0}, s{sT1}
        s_lshl_b32 s{sWS}, s{sT3}, 5
        s_add_u32 s{sWS}, s{sWS}, s{sI}
        """)
        if self.o.get("g2map", "84") == "84":
            a(f"""
            s_bfe_u32 s{sT1}, s{sXCD}, 0x10001
            s_lshl1_add_u32 s{sT0}, s{sT0}, s{sT1}
            s_and_b32 s{sT1}, s{sI}, 7
            s_lshl3_add_u32 s{sRB2}, s{sT0}, s{sT1}
            s_lshr_b32 s{sT0}, s{sXCD}, 2
            s_lshr_b32 s{sT1}, s{sI}, 3
            s_lshl2_add_u32 s{sCB2}, s{sT0}, s{sT1}
            """)
        else:
            a(f"""
            s_and_b32 s{sT2}, s{sI}, 3
            s_lshl2_add_u32 s{sRB2}, s{sT3}, s{sT2}
            s_lshr_b32 s{sCB2}, s{sI}, 2
            """)
        if self.o.get("profile"):
            for k in range(15):
                a(f"s_mov_b32 s{sPR+k}, 0")

    def role_a(self):
        a = self.a
        XA, WA, VH = 1, 5, 11
        FR, ACC = 120, 160
        T = 112
        sWM, sWN = sA, sA + 1
        sH = sA + 2
        xf = lambda p, i: FR + 20 * p + 4 * i
        wf = lambda p, j: FR + 20 * p + 8 + 4 * j
        acc = lambda i, j: ACC + (i * 3 + j) * 16
        def addr_setup():
            a(f"""
            s_and_b32 s{sWM}, s{sB}, 1
            s_lshr_b32 s{sWN}, s{sB}, 1
            v_and_b32 v{T}, 31, v0
            v_lshrrev_b32 v{T+1}, 5, v0
            v_bfe_u32 v{T+2}, v0, 1, 3
            v_xor_b32 v{T+2}, v{T+2}, v{T+1}
            s_lshl_b32 s{sT0}, s{sWM}, 13
            v_lshl_add_u32 v{T}, v{T}, 7, s{sT0}
            """)
            for t in range(4):
                a(f"v_xor_b32 v{T+3}, {2*t}, v{T+2}\nv_lshl_add_u32 v{XA+t}, v{T+3}, 4, v{T}")
            a(f"""
            v_bfe_u32 v{T+2}, v0, 4, 1
            v_mul_u32_u24 v{T+3}, 3072, v{T+2}
            v_mul_u32_u24 v{T+4}, 1536, v{T+1}
            v_bfe_u32 v{T+5}, v0, 2, 2
            v_lshl_add_u32 v{T+3}, v{T+5}, 6, v{T+3}
            v_and_b32 v{T+5}, 1, v0
            v_lshl_add_u32 v{T+3}, v{T+5}, 4, v{T+3}
            v_bfe_u32 v{T+5}, v0, 1, 1
            v_lshl_add_u32 v{T+3}, v{T+5}, 3, v{T+3}
            v_add_u32 v{T+3}, v{T+3}, v{T+4}
            v_lshlrev_b32 v{T+2}, 5, v{T+2}
            s_mul_i32 s{sT0}, s{sWN}, 3
            s_lshl_b32 s{sT3}, s{sRB1}, 1
            s_add_u32 s{sT3}, s{sT3}, s{sWM}
            s_mul_i32 s{sT3}, s{sT3}, 48
            s_mul_i32 s{sT2}, s{sCB1}, 3
            s_add_u32 s{sT3}, s{sT3}, s{sT2}
            """)
            for j in range(3):
                a(f"""
                s_add_u32 s{sT1}, s{sT0}, {j}
                s_lshr_b32 s{sT2}, s{sT1}, 1
                s_and_b32 s{sT1}, s{sT1}, 1
                s_add_u32 s{sH+j}, s{sT3}, s{sT2}
                s_lshl_b32 s{sH+j}, s{sH+j}, 3
                s_add_u32 s{sH+j}, s{sH+j}, s{sT1}
                s_lshl_b32 s{sH+j}, s{sH+j}, 9
                s_add_u32 s{sH+j}, s{sH+j}, {HH}
                s_lshl_b32 s{sT1}, s{sT1}, 5
                v_xor_b32 v{T+4}, s{sT1}, v{T+2}
                s_lshl_b32 s{sT2}, s{sT2}, 8
                s_add_u32 s{sT2}, s{sT2}, {WS_}
                v_add3_u32 v{WA+j}, v{T+3}, v{T+4}, s{sT2}
                v_add_u32 v{WA+3+j}, 49152, v{WA+j}
                """)
            a(f"""
            v_and_b32 v{T+4}, 15, v0
            v_lshlrev_b32 v{T+4}, 4, v{T+4}
            v_lshl_add_u32 v{T+4}, v{T+1}, 8, v{T+4}
            v_bfe_u32 v{T+5}, v0, 4, 1
            v_lshl_add_u32 v{VH}, v{T+5}, 10, v{T+4}
            """)

        a("L_roleA:\nv_and_b32 v0, 63, v0")
        self.decode_rest()
        self.srd_words((SQ, SWS, SDBG, SWG, SWU))
        a("s_waitcnt lgkmcnt(0)")
        self.ws_shift()
        a(f"s_setprio {self.o.get('aprio', 2)}")
        a.vm.issue("pf")
        self.stamp(0)
        a(f"s_or_b32 s{sA+8}, s2, s{sB}\ns_cmp_lg_u32 s{sA+8}, 0\ns_cbranch_scc1 L_noclear")
        a(f"v_lshlrev_b32 v{T}, 7, v0\nv_mov_b32 v{T+1}, 0")
        for p in range(4):
            a(f"s_mov_b32 s{sT0}, {p*8192}\nbuffer_store_dword v{T+1}, v{T}, {sr(SWS,4)}, s{sT0} offen sc1")
        p0a = "sk" if self.o.get("p0", "B") == "A" else "s"
        if "s" not in p0a:
            a(f"s_waitcnt vmcnt(0)\nv_mov_b32 v{T}, 1\ns_mov_b64 exec, 1")
            a(f"buffer_store_dword v{T}, off, {sr(SDBG,4)}, 0 sc1\ns_mov_b64 exec, -1")
        a("L_noclear:")
        if "s" in p0a:
            self.stats_load()
        if "k" in p0a:
            q = list(a.vm.q)
            a(f"s_and_b32 s{sT0}, s{sI}, 1\ns_sub_u32 s{sT0}, 3, s{sT0}\ns_cmp_ge_u32 s{sB}, s{sT0}\ns_cbranch_scc1 L_p0W")
            for typ in "CW":
                a.vm.q = list(q)
                if typ == "W":
                    a("L_p0W:")
                self.task_index(typ == "C")
                (self.kv_issue if typ == "C" else self.wd_issue)()
                addr_setup()
                if "s" in p0a:
                    self.stats_compute(announce=f"L_noann{typ}")
                self.stamp(9)
                (self.kv_work if typ == "C" else self.wd_work)()
                if typ == "C":
                    a("s_branch L_p0done")
            a("L_p0done:")
        else:
            csa = self.o.get("cs", "B") == "A"
            if csa:
                self.colsum_a_issue()
            addr_setup()
            if "s" in p0a:
                self.stats_compute(announce="L_noann")
            if csa:
                self.colsum_a()
        self.stamp(10)

        def reads(g):
            s, t, p = g >> 2, g & 3, g & 1
            sl = s % 3
            wa = WA + (3 if sl == 2 else 0)
            wo = (sl % 2) * 24576 + t * 6144
            r = [f"ds_read_b128 {vr(xf(p,0),4)}, v{XA+t} offset:{sl*16384}"]
            r += [f"ds_read_b64_tr_b16 {vr(wf(p,0)+2*q,2)}, v{wa} offset:{wo+q*768}" for q in range(2)]
            r += [f"ds_read_b128 {vr(xf(p,1),4)}, v{XA+t} offset:{sl*16384+4096}"]
            for j in (1, 2):
                r += [f"ds_read_b64_tr_b16 {vr(wf(p,j)+2*q,2)}, v{wa+j} offset:{wo+q*768}" for q in range(2)]
            return r

        a("s_setprio 0")
        a.vm.wait("pf")
        a("s_barrier")
        self.stamp(1)
        CF, SF, M2, C1, KK, AD, E, HP = 12, 18, 22, 26, 28, 30, 120, 128
        VE, FT = 33, 35
        NW, NH = 6, 3
        HR, ACC2 = 128, 176
        wpool = list(range(36, 116, 4)) + list(range(8, 36, 4)) + list(range(116, 128, 4))
        wr = lambda i, j: wpool[(i % NW) * 5 + j]
        NE = int(self.o.get("ne", 0))
        assert self.ncs() and NE <= 4
        sRot, sWb, sHb, sWo, sHo, sPo, sPv = [sA + 5 + k for k in range(7)]

        def mf(p, i, j, first=False):
            c = "0" if first else vr(acc(i, j), 16)
            return f"v_mfma_f32_32x32x16_bf16 {vr(acc(i,j),16)}, {vr(wf(p,j),4)}, {vr(xf(p,i),4)}, {c}"

        def run(mfmas, fill, per):
            k = 0
            for m in mfmas:
                a(m)
                for _ in range(per):
                    if k < len(fill):
                        play(a, fill[k]); k += 1
            for g in fill[k:]:
                play(a, g)

        def dsl(lst):
            return [[("ds", r, "f")] for r in lst]

        def corr_addr():
            b = self.a
            b(f"""
            v_and_b32 v{AD}, 31, v0
            s_lshl_b32 s{sT0}, s{sWM}, 9
            s_add_u32 s{sT0}, s{sT0}, {STL}
            v_lshl_add_u32 v{AD+1}, v{AD}, 3, s{sT0}
            s_mul_i32 s{sT0}, s{sWN}, {768 if self.ncs() else 1536}
            s_add_u32 s{sT0}, s{sT0}, {CSF}
            v_lshl_add_u32 v{AD}, v{AD}, {3 if self.ncs() else 4}, s{sT0}
            v_mov_b32 v{AD+2}, {GCNT}
            v_lshlrev_b32 v{VE}, 4, v0
            v_add_u32 v{VE+1}, 1024, v{VE}
            """)
            self.g2_scalars(sRot, sWb)
            b(f"""
            s_mul_i32 s{sT0}, s{sB}, 12
            s_mul_i32 s{sT1}, s{sRB2}, 48
            s_add_u32 s{sT1}, s{sT1}, s{sT0}
            s_lshl_b32 s{sHb}, s{sT1}, 12
            s_add_u32 s{sHb}, s{sHb}, {HH}
            s_lshl_b32 s{sT0}, s{sRB1}, 1
            s_add_u32 s{sT0}, s{sT0}, s{sWM}
            s_lshr_b32 s{sT1}, s{sCB1}, 2
            s_lshl2_add_u32 s{sT0}, s{sT0}, s{sT1}
            """)
            self.cnt_off(sPo, cH, sT0)

        def corr_prepare():
            b = self.a
            if not self.ncs():
                for op in range(10):
                    for j in range(3):
                        c = 68 + 4 * j
                        b([f"v_add_f32 v{c}, v{c}, v{c+1}", f"v_add_f32 v{c+2}, v{c+2}, v{c+3}",
                           f"v_add_f32 v{c}, v{c}, v{c+2}", f"v_cvt_pk_bf16_f32 v{c+1}, v{c}, v{c}",
                           f"v_and_b32 v{c+1}, 0xffff0000, v{c+1}", f"v_sub_f32 v{c+1}, v{c}, v{c+1}",
                           f"v_cvt_pk_bf16_f32 v{CF+2*j}, v{c}, v{c+1}", f"v_and_b32 v{c+2}, 0xffff0000, v{CF+2*j}",
                           f"v_sub_f32 v{c+1}, v{c+1}, v{c+2}", f"v_cvt_pk_bf16_f32 v{CF+2*j+1}, v{c+1}, 0"][op])
            b.begin()
            b("s_mov_b32 exec_lo, 0")
            for j in range(6):
                b(f"v_mov_b32 v{CF+j}, 0")
            b("s_mov_b32 exec_lo, -1")
            b.end()
            for i in range(2):
                b(f"v_rcp_f32 v{C1+i}, v{SF+2*i+1}")
                b(f"v_cvt_pk_bf16_f32 v{M2+2*i}, -v{SF+2*i}, -v{SF+2*i}")
                b(f"v_cvt_pk_bf16_f32 v{M2+2*i+1}, -v{SF+2*i}, -v{SF+2*i}")
                b(f"v_mul_f32 v{KK+i}, v{SF+2*i+1}, v{SF+2*i+1}")
                b(f"v_mul_f32 v{C1+i}, {hex(f2u(-LOG2E))}, v{C1+i}")
            b(f"v_mov_b32 v{AD}, {ACNT}\nv_mov_b32 v{AD+1}, 1")

        pend = []

        def wgroups(i, v16):
            b = self.a
            for j in range(0 if self.o.get("x_nowd") else 5):
                b.begin()
                if j == 0:
                    self.step_off(i, sWo, sWb, sRot, 5120)
                v, off = (v16, 0) if j == 0 else (v16 + 1, (j - 1) * 1024)
                b.vmem(f"buffer_load_dwordx4 {vr(wr(i,j),4)}, v{v}, {sr(SWS,4)}, s{sWo} offen offset:{off} sc1", f"w{i}")
                b.end()

        def swiglu(n, i, j):
            b = self.a
            c, hp = acc(i, j), HP + 4 * n
            if n >= int(self.o.get("pk", 6)):
                sel = "op_sel_hi:[1,0]" if i == 0 else "op_sel:[0,1] op_sel_hi:[1,1]"
                sel3 = "op_sel_hi:[1,0,0]" if i == 0 else "op_sel:[0,1,1] op_sel_hi:[1,1,1]"
                for r in range(0, 8, 2):
                    b(f"v_pk_mul_f32 {vr(E+r,2)}, {vr(c+r,2)}, {vr(C1,2)} {sel}")
                for r in range(8):
                    b(f"v_exp_f32 v{E+r}, v{E+r}")
                    if r & 1:
                        b(f"v_pk_mul_f32 {vr(c+r-1,2)}, {vr(c+r-1,2)}, {vr(c+8+r-1,2)}")
                for r in range(0, 8, 2):
                    b(f"v_pk_fma_f32 {vr(E+r,2)}, {vr(E+r,2)}, {vr(KK,2)}, {vr(KK,2)} {sel3}")
                for r in range(8):
                    b(f"v_rcp_f32 v{E+r}, v{E+r}")
                for r in range(0, 8, 2):
                    b(f"v_pk_mul_f32 {vr(c+r,2)}, {vr(c+r,2)}, {vr(E+r,2)}")
            else:
                for r in range(8):
                    b(f"v_mul_f32 v{E+r}, v{c+r}, v{C1+i}")
                for r in range(8):
                    b(f"v_exp_f32 v{E+r}, v{E+r}")
                    b(f"v_mul_f32 v{c+r}, v{c+r}, v{c+8+r}")
                for r in range(8):
                    b(f"v_fma_f32 v{E+r}, v{E+r}, v{KK+i}, v{KK+i}")
                for r in range(8):
                    b(f"v_rcp_f32 v{E+r}, v{E+r}")
                for r in range(8):
                    b(f"v_mul_f32 v{c+r}, v{c+r}, v{E+r}")
            for r in range(4):
                b(f"v_cvt_pk_bf16_f32 v{hp+r}, v{c+2*r}, v{c+2*r+1}")
            pend.append(f"buffer_store_dwordx4 {vr(hp,4)}, v{VH}, {sr(SWS,4)}, s{sH+j} offen offset:{i*2048} sc1")
            if str(n) in self.o.get("hflush", "012345"):
                for st in pend:
                    b.vmem(st, "hst")
                pend.clear()

        order = [(i, j) for j in range(3) for i in range(2)]
        for r in reads(0):
            a.ds(r, "f")
        for g in range(39):
            p = g & 1
            a.lg.drain()
            if (g + 1) & 3 == 0:
                if g == 3:
                    a.vm.drain()
                self.stamp(((g + 1) >> 2) + 1, "2")
                a("s_barrier")
            if g == 35:
                a(f"s_setprio {self.o.get('eprio', 2)}")
            fill = dsl(reads(g + 1))
            if g == 33:
                fill += self.rec(corr_addr)
            if g == 37:
                fill += dsl([f"ds_read_b32 v{FT}, v{AD+2}"])
                run([mf(p, i, j) for i, j in order], fill, 3)
                continue
            if g == 38:
                go = a.label("ggo")
                a(f"v_readfirstlane_b32 s{sT0}, v{FT}\ns_cmp_eq_u32 s{sT0}, 4\ns_cbranch_scc1 {go}")
                self.lds_flag_wait(AD + 2, FT, go, 4)
                a(f"{go}:")
                if self.ncs():
                    cr = [f"ds_read_b64 {vr(CF+2*j,2)}, v{AD} offset:{j*256}" for j in range(3)]
                else:
                    cr = [f"ds_read_b128 {vr(68+4*j,4)}, v{AD} offset:{j*512}" for j in range(3)]
                cr += [f"ds_read_b64 {vr(SF+2*i,2)}, v{AD+1} offset:{i*256}" for i in range(2)]
                fill = [[("ds", r, "cr")] for r in cr] + fill
                ms = [mf(p, i, j) for i, j in order]
                nf = 3 if self.ncs() == 0 else 4
                run(ms[:nf], fill, 5 if nf == 3 else 4)
                run(ms[nf:], [[("lgwait", ("cr",))]] + self.rec(corr_prepare), 7)
                continue
            run([mf(p, i, j, g == 0) for i, j in order], fill, 3 if len(fill) <= 16 else 5)
        a.lg.drain()
        a("s_mov_b64 exec, 1")
        a.ds(f"ds_add_u32 v{AD}, v{AD+1}", "ac")
        a("s_mov_b64 exec, -1")
        self.stamp(2)
        self.stamp(1, "3")
        last = []
        for i, j in order:
            last += [mf(1, i, j),
                     f"v_mfma_f32_32x32x8_bf16 {vr(acc(i,j),16)}, {vr(CF+2*j,2)}, {vr(M2+2*i,2)}, {vr(acc(i,j),16)}"]
        for m in last[:4]:
            a(m)
        run(last[4:], self.rec(swiglu, 0, *order[0]), 6)
        early = sum([self.rec(wgroups, i, VE) for i in range(NE)], [])
        for n in range(1, 6):
            self.stamp(1 + n, "3")
            part = early[len(early) * (n - 1) // 5:len(early) * n // 5]
            body = self.rec(swiglu, n, *order[n])
            k = 0
            for t, g in enumerate(body):
                play(a, g)
                while k < len(part) and k * len(body) < (t + 1) * len(part) - len(part) // 2:
                    play(a, part[k]); k += 1
            for g in part[k:]:
                play(a, g)
        if self.o.get("hold", "0") == "1":
            a("s_mov_b64 exec, 1")
            a.ds(f"ds_add_u32 v{AD}, v{AD+1} offset:{ECNT-ACNT}", "ac")
            a("s_mov_b64 exec, -1")
        self.stamp(3)
        self.stamp(7, "3")
        V16, V16B, VLX, VLW, VF = 1, 2, 3, 4, 5
        a(f"""
        v_lshlrev_b32 v{V16}, 4, v0
        v_add_u32 v{V16B}, 1024, v{V16}
        s_lshl_b32 s{sT0}, s{sB}, 12
        v_add_u32 v{VLX}, s{sT0}, v{V16}
        s_mul_i32 s{sT0}, s{sB}, 6144
        s_add_u32 s{sT0}, s{sT0}, {WS_}
        v_add_u32 v{VLW}, s{sT0}, v{V16}
        v_mov_b32 v{VF}, {WFLG}
        """)

        rest = list(range(NE, NW))
        NPRE = min(int(self.o.get("npre", 1)), len(rest))
        NIN = min(int(self.o.get("nin", 0)), len(rest) - NPRE)
        mid = rest[NPRE:len(rest) - NIN]
        for i in rest[:NPRE]:
            wgroups(i, V16)
        a.vm.wait("hst")
        self.signal([sPo], sPv)
        a("s_setprio 0")
        self.stamp(4)
        self.stamp(8, "3")
        items = [(sPv + 2, sPv + 1, 0 if self.o.get("x_nopoll") else 8)]
        a(f"s_lshl2_add_u32 s{sT0}, s{sRB2}, s{sB}")
        self.cnt_off(sPv + 1, cH, sT0)
        for i in mid[:-1]:
            wgroups(i, V16)
        self.poll_issue(items, atomic=True)
        for i in mid[-1:]:
            wgroups(i, V16)
        self.poll_check(items, atomic=True, sleep=0)
        self.stamp(5)
        self.stamp(9, "3")
        H0 = int(self.o.get("h0", 2))
        sHend = sPo
        self.step_off(0, sHo, sHb, sRot, 4096)
        a(f"s_add_u32 s{sHend}, s{sHb}, {12*4096}")

        def hadv():
            return [[("i", f"s_add_u32 s{sHo}, s{sHo}, 4096")],
                    [("i", f"s_cmp_eq_u32 s{sHo}, s{sHend}"), ("i", f"s_cselect_b32 s{sHo}, s{sHb}, s{sHo}")]]

        def hl(i, tt):
            r = HR + (i % NH) * 16 + 4 * tt
            return [("vmem", f"buffer_load_dwordx4 {vr(r,4)}, v{V16}, {sr(SWS,4)}, s{sHo} offen offset:{tt*1024} sc1", f"h{i}_{tt}")]

        for i in range(H0):
            for tt in range(4):
                play(a, hl(i, tt))
            for g in hadv():
                play(a, g)
        acc2 = lambda tt, j: ACC2 + (tt * 5 + j) * 4
        fill = []
        for i in range(H0, 12):
            for tt in range(4):
                free = 20 * (i - NH) + 5 * tt + 6 if i >= NH else 0
                fill.append((free, hl(i, tt)))
            fill += [(0, g) for g in hadv()]
        wfill = []
        for k, i in enumerate(rest[len(rest) - NIN:]):
            wfill += [(8 + 20 * k + 4 * t, g) for t, g in enumerate(self.rec(wgroups, i, V16))]
        TM = int(self.o.get("tm", 2))
        seq = [(i, tt) for i in range(12 - TM) for tt in range(4)] + [(i, tt) for tt in range(4) for i in range(12 - TM, 12)]
        mi = 0
        lfill = []
        pw = []
        for i, tt in seq:
            if tt == 0 and i in (1, 4, 8):
                self.stamp({1: 10, 4: 11, 8: 12}[i], "3")
            if (i, tt) == (4, 0):
                a.ds(f"ds_read_b32 v{VF+1}, v{VF}", "wf")
            if (i, tt) == (4, 2):
                go = a.label("wgo")
                a.lg.drain()
                a(f"v_readfirstlane_b32 s{sT0}, v{VF+1}\ns_cmp_eq_u32 s{sT0}, 1\ns_cbranch_scc1 {go}")
                self.lds_flag_wait(VF, VF + 1, go)
                a(f"{go}:")
            nx = i + 2 if tt == 0 else None
            if nx is not None and NW <= nx < 12:
                for j in range(5):
                    v, off = self.wl_addr(5 * (nx - NW) + j, VLX, VLW)
                    lfill.append((mi + (11 if nx == NW else 0), [("ds", f"ds_read_b128 {vr(wr(nx,j),4)}, v{v} offset:{off}", f"wr{nx}")]))
            assert not any(op[0] == "vmem" and op[2] == f"h{i}_{tt}" for _, g in fill for op in g)
            assert not any(op[2] == f"wr{i}" for _, g in lfill for op in g)
            assert not any(op[0] == "vmem" and op[2] == f"w{i}" for _, g in wfill for op in g)
            a.lg.wait(f"wr{i}")
            a.vm.wait(f"w{i}", f"h{i}_{tt}")
            for j in range(5):
                c = "0" if i == 0 else vr(acc2(tt, j), 4)
                a(f"v_mfma_f32_16x16x32_bf16 {vr(acc2(tt,j),4)}, {vr(wr(i,j),4)}, {vr(HR+(i%NH)*16+4*tt,4)}, {c}")
                mi += 1
                if fill and fill[0][0] <= mi:
                    play(a, fill.pop(0)[1])
                elif wfill and wfill[0][0] <= mi:
                    play(a, wfill.pop(0)[1])
                elif lfill and lfill[0][0] <= mi:
                    play(a, lfill.pop(0)[1])
                elif pw and pw[0][0] <= mi:
                    play(a, pw.pop(0)[1])
            if i == 11:
                for j in range(5):
                    t = tt * 5 + j
                    v, off = self.wl_addr(t, VLX, VLW)
                    pw.append((mi + 3, [("ds", f"ds_write_b128 v{v}, {vr(ACC2+4*t,4)} offset:{off}", "p")]))
        assert not fill and not lfill
        self.stamp(6)
        self.stamp(13, "3")
        for _, g in pw:
            play(a, g)
        a.lg.drain()
        a("s_barrier")
        self.stamp(7)
        self.dump_stamps("A")
        a("s_endpgm")

    def wl_addr(self, f, vx, vw):
        sl, n = (1, 2, 0)[f // 10], f % 10
        return (vx, XS + sl * 16384 + n * 1024) if n < 4 else (vw, sl * 24576 + (n - 4) * 1024)

    def g2_scalars(self, sRot, sWb):
        a = self.a
        a(f"""
        s_mul_i32 s{sT0}, s{sCB2}, 3
        s_lshr_b32 s{sT0}, s{sT0}, 1
        s_and_b32 s{sT1}, s{sI}, 3
        s_mul_i32 s{sT1}, s{sT1}, 3
        s_add_u32 s{sT0}, s{sT0}, s{sT1}
        s_sub_u32 s{sT1}, s{sT0}, 12
        """)
        a.begin()
        a(f"s_cmp_ge_u32 s{sT0}, 12\ns_cselect_b32 s{sRot}, s{sT1}, s{sT0}")
        a.end()
        rot2 = self.o.get("rot2", "x")
        if rot2 == "0":
            a(f"s_mov_b32 s{sRot}, 0")
        elif rot2 == "x":
            a(f"s_mul_i32 s{sRot}, s{sXCD}, 3\ns_lshr_b32 s{sRot}, s{sRot}, 1")
        a(f"""
        s_mul_i32 s{sT0}, s{sB}, 12
        s_mul_i32 s{sT1}, s{sCB2}, 48
        s_add_u32 s{sT1}, s{sT1}, s{sT0}
        s_mul_i32 s{sWb}, s{sT1}, 5120
        s_add_u32 s{sWb}, s{sWb}, {WDT}
        """)

    def step_off(self, i, so, sb, sRot, mul):
        a = self.a
        a.begin()
        a(f"""
        s_add_u32 s{so}, s{sRot}, {i}
        s_sub_u32 s{sT3}, s{so}, 12
        s_cmp_ge_u32 s{so}, 12
        s_cselect_b32 s{so}, s{sT3}, s{so}
        s_mul_i32 s{so}, s{so}, {mul}
        s_add_u32 s{so}, s{so}, s{sb}
        """)
        a.end()

    def b_common_setup(self):
        a = self.a
        VX, VG, VU, T = 1, 5, 8, 20
        self.VX, self.VG, self.VU = VX, VG, VU
        self.sXL, self.sWL, self.sXO, self.sWO = sA, sA + 1, sA + 2, sA + 3
        a("L_roleB:\nv_and_b32 v0, 63, v0")
        a(f"s_setprio {self.o.get('bprio', 1)}")
        rot = self.o.get("rot", "1")
        if rot == "0":
            a(f"s_mov_b32 s{sKS}, 0")
        elif rot == "1":
            a(f"""
            s_mul_i32 s{sT0}, s{sCB1}, 3
            s_add_u32 s{sT0}, s{sT0}, s{sRB1}
            s_mul_i32 s{sT1}, s{sT0}, 26
            s_lshr_b32 s{sT1}, s{sT1}, 8
            s_mul_i32 s{sT1}, s{sT1}, 10
            s_sub_u32 s{sKS}, s{sT0}, s{sT1}
            """)
        elif rot == "2":
            a(f"s_add_u32 s{sT0}, s{sRB1}, s{sCB1}\ns_and_b32 s{sT0}, s{sT0}, 1\ns_mul_i32 s{sKS}, s{sT0}, 5")
        elif rot == "4":
            a(f"s_add_u32 s{sT0}, s{sRB1}, s{sCB1}\ns_and_b32 s{sT0}, s{sT0}, 3\ns_mul_i32 s{sT0}, s{sT0}, 5\ns_lshr_b32 s{sKS}, s{sT0}, 1")
        a(f"""
        v_lshrrev_b32 v{T}, 3, v0
        v_mul_u32_u24 v{T}, 1280, v{T}
        s_lshl2_add_u32 s{sT0}, s{sRB1}, s{sB}
        s_mul_i32 s{sT0}, s{sT0}, 40960
        v_add_u32 v{T}, s{sT0}, v{T}
        v_and_b32 v{T+1}, 7, v0
        v_lshrrev_b32 v{T+2}, 4, v0
        v_xor_b32 v{T+1}, v{T+1}, v{T+2}
        v_lshl_add_u32 v{VX}, v{T+1}, 4, v{T}
        v_xor_b32 v{VX+1}, 64, v{VX}
        v_add_u32 v{VX+1}, 10240, v{VX+1}
        v_add_u32 v{VX+2}, 20480, v{VX}
        v_add_u32 v{VX+3}, 20480, v{VX+1}
        s_lshl_b32 s{self.sXL}, s{sB}, 12
        s_mul_i32 s{self.sWL}, s{sB}, 6144
        s_add_u32 s{self.sWL}, s{self.sWL}, {WS_}
        v_bfe_u32 v{T}, v0, 2, 2
        v_mul_u32_u24 v{T}, 3072, v{T}
        v_and_b32 v{T+1}, 3, v0
        v_lshl_add_u32 v{T}, v{T+1}, 4, v{T}
        s_mul_i32 s{sT0}, s{sB}, 49152
        s_mul_i32 s{sT1}, s{sCB1}, 192
        s_add_u32 s{sT0}, s{sT0}, s{sT1}
        v_add_u32 v{T}, s{sT0}, v{T}
        """)
        self.srd_words((SQ, SWG, SWU))
        s0 = self.rec(self.stage_issue, 0)
        a("s_waitcnt lgkmcnt(0)")
        for g in s0[:4]:
            play(a, g)
        for srd, off, _ in self.SRDS:
            if srd not in (SQ, SWG, SWU, SWS, SDBG):
                a(f"s_load_dwordx2 {sr(srd,2)}, s[0:1], {off}")
        for i in range(3):
            a(f"""
            v_add_u32 v{T+1}, {4*i}, v{T+2}
            v_mul_u32_u24 v{T+3}, 11, v{T+1}
            v_lshrrev_b32 v{T+3}, 5, v{T+3}
            v_mul_u32_u24 v{T+4}, {12288-192}, v{T+3}
            v_lshl_add_u32 v{T+4}, v{T+1}, 6, v{T+4}
            v_add_u32 v{VG+i}, v{T+4}, v{T}
            v_xor_b32 v{VU+i}, 32, v{VG+i}
            """)
            play(a, s0[4 + i])
        for g in s0[7:]:
            play(a, g)
        self.decode_rest()
        self.srd_words([srd for srd, _, _ in self.SRDS if srd not in (SQ, SWG, SWU)])
        a("s_waitcnt lgkmcnt(0)")
        self.ws_shift()

    def stage_issue(self, s):
        a = self.a
        sl = s % 3
        fl = self.o.get("g1flags", "")
        for i in range(4):
            a.begin()
            if i == 0:
                a(f"""
                s_lshl_b32 s{self.sXO}, s{sKS}, 7
                s_mul_i32 s{self.sWO}, s{sKS}, 196608
                s_add_u32 s{sKS}, s{sKS}, 1
                s_cmp_eq_u32 s{sKS}, 10
                s_cselect_b32 s{sKS}, 0, s{sKS}
                """)
            a(f"s_add_u32 m0, s{self.sXL}, {XS+sl*16384+i*1024}")
            a.vmem(f"buffer_load_dwordx4 v{self.VX+i}, {sr(SQ,4)}, s{self.sXO} offen {fl} lds", f"S{s}" if i else f"F{s}")
            a.end()
        for up in range(2):
            for i in range(3):
                a.begin()
                a(f"s_add_u32 m0, s{self.sWL}, {sl*24576+up*3072+i*1024}")
                a.vmem(f"buffer_load_dwordx4 v{(self.VU if up else self.VG)+i}, {sr(SWU if up else SWG,4)}, s{self.sWO} offen {fl} lds", f"S{s}")
                a.end()

    def stats_load(self):
        a = self.a
        T, X = 156, 24
        a(f"""
        v_lshrrev_b32 v{T}, 5, v0
        s_lshl2_add_u32 s{sT0}, s{sWS}, s{sB}
        s_lshl_b32 s{sT0}, s{sT0}, 1
        v_add_u32 v{T}, s{sT0}, v{T}
        v_lshlrev_b32 v19, 3, v{T}
        v_mul_u32_u24 v{T}, 1280, v{T}
        v_and_b32 v{T+1}, 31, v0
        v_lshl_add_u32 v{T}, v{T+1}, 3, v{T}
        """)
        for j in range(5):
            a.vmem(f"buffer_load_dwordx2 {vr(X+2*j,2)}, v{T}, {sr(SQ,4)}, 0 offen offset:{j*256}", "stat")

    def reduce32(self, v, t):
        a = self.a
        for n in (8, 4, 2, 1):
            a(f"v_add_f32_dpp v{v}, v{v}, v{v} row_ror:{n} row_mask:0xf bank_mask:0xf")
        a(f"v_mov_b32 v{t}, v{v}\nv_permlane16_swap_b32 v{v}, v{t}\nv_add_f32 v{v}, v{v}, v{t}")

    def stats_compute(self, announce):
        a = self.a
        X, U, T = 24, 34, 20
        a.vm.wait("stat")
        if announce:
            a(f"""
        s_cmp_lg_u32 s{sA+8}, 0
        s_cbranch_scc1 {announce}
        v_mov_b32 v{T}, 1
        s_mov_b64 exec, 1
        buffer_store_dword v{T}, off, {sr(SDBG,4)}, 0 sc1
        s_mov_b64 exec, -1
        {announce}:
        """)
        for j in range(10):
            a(f"v_lshlrev_b32 v{U+2*j}, 16, v{X+j}\nv_and_b32 v{U+2*j+1}, 0xffff0000, v{X+j}")
        a(f"v_add_f32 v{T}, v{U}, v{U+1}\nv_add_f32 v{T+1}, v{U+2}, v{U+3}")
        for j in range(4, 20):
            a(f"v_add_f32 v{T+(j&1)}, v{T+(j&1)}, v{U+j}")
        a(f"v_add_f32 v{T}, v{T}, v{T+1}")
        self.reduce32(T, T + 1)
        a(f"v_mul_f32 v{T}, {hex(f2u(1.0/640))}, v{T}")
        for j in range(20):
            a(f"v_sub_f32 v{U+j}, v{U+j}, v{T}")
        a(f"v_mul_f32 v{T+1}, v{U}, v{U}\nv_mul_f32 v{T+2}, v{U+1}, v{U+1}")
        for j in range(2, 20):
            a(f"v_fmac_f32 v{T+1+(j&1)}, v{U+j}, v{U+j}")
        a(f"v_add_f32 v{T+1}, v{T+1}, v{T+2}")
        self.reduce32(T + 1, T + 2)
        a(f"""
        v_mul_f32 v{T+1}, {hex(f2u(1.0/640))}, v{T+1}
        v_cvt_pk_bf16_f32 v{T+2}, v{T}, v{T+1}
        v_lshlrev_b32 v{T}, 16, v{T+2}
        v_and_b32 v{T+1}, 0xffff0000, v{T+2}
        v_add_f32 v{T+1}, {hex(f2u(1e-5))}, v{T+1}
        v_cvt_pk_bf16_f32 v{T+1}, v{T+1}, v{T+1}
        v_and_b32 v{T+1}, 0xffff0000, v{T+1}
        v_sqrt_f32 v{T+1}, v{T+1}
        v_cvt_pk_bf16_f32 v{T+1}, v{T+1}, v{T+1}
        v_and_b32 v{T+1}, 0xffff0000, v{T+1}
        s_mov_b32 s{sT0}, {ST}
        """)
        a.begin()
        a("s_mov_b32 exec_lo, 1\ns_mov_b32 exec_hi, 1")
        a.vmem(f"buffer_store_dwordx2 {vr(T,2)}, v19, {sr(SWS,4)}, s{sT0} offen sc1", "stst")
        a("s_mov_b64 exec, -1")
        a.end()

    def colsum_partial(self):
        a = self.a
        T, F = 12, 60
        a(f"""
        v_bfe_u32 v{T+2}, v0, 4, 1
        v_mul_u32_u24 v{T+3}, 3072, v{T+2}
        v_lshrrev_b32 v{T+4}, 5, v0
        v_mul_u32_u24 v{T+4}, 1536, v{T+4}
        v_bfe_u32 v{T+5}, v0, 2, 2
        v_lshl_add_u32 v{T+3}, v{T+5}, 6, v{T+3}
        v_and_b32 v{T+5}, 1, v0
        v_lshl_add_u32 v{T+3}, v{T+5}, 4, v{T+3}
        v_bfe_u32 v{T+5}, v0, 1, 1
        v_lshl_add_u32 v{T+3}, v{T+5}, 3, v{T+3}
        v_lshl_add_u32 v{T+3}, v{T+2}, 5, v{T+3}
        s_min_u32 s{sT1}, s{sB}, 2
        s_lshl_b32 s{sT1}, s{sT1}, 8
        s_add_u32 s{sT0}, s{sT1}, {WS_}
        v_add3_u32 v{T}, v{T+3}, v{T+4}, s{sT0}
        v_xor_b32 v{T+1}, 32, v{T}
        s_lshl4_add_u32 s{sT0}, s{sCB1}, s{sRB1}
        s_mul_i32 s{sT0}, s{sT0}, 768
        s_add_u32 s{sT0}, s{sT0}, s{sT1}
        s_add_u32 s{sT0}, s{sT0}, {CS}
        s_mov_b32 s{sT1}, 0x3f803f80
        v_lshlrev_b32 v147, 2, v0
        """)
        for h in range(2):
            for n in range(8):
                a.ds(f"ds_read_b64_tr_b16 {vr(F+16*h+2*n,2)}, v{T+h} offset:{(n>>1)*6144+(n&1)*768}", f"cs{h}")
        for r in range(4):
            a(f"v_mov_b32 v{T+2+r}, 0")
        for h in range(2):
            a.lg.wait(f"cs{h}")
            for n in range(16):
                a(f"v_dot2c_f32_bf16 v{T+2+2*h+(n&1)}, s{sT1}, v{F+16*h+n}")
        a(f"v_add_f32 v{T+2}, v{T+2}, v{T+3}\nv_add_f32 v{T+4}, v{T+4}, v{T+5}")
        a(f"v_permlane32_swap_b32 v{T+2}, v{T+4}\nv_add_f32 v{T+2}, v{T+2}, v{T+4}")
        a(f"v_mov_b32 v148, v{T+2}\nv_add_u32 v149, s{sT0}, v147")

    def colsum_a_issue(self):
        a = self.a
        T = 158
        sL = sA + 9
        a(f"""
        s_min_u32 s{sT1}, s{sB}, 2
        s_mul_i32 s{sL}, s{sB}, 6144
        s_add_u32 s{sL}, s{sL}, {WS_+2*24576}
        v_lshrrev_b32 v{T}, 2, v0
        v_mul_u32_u24 v{T}, 3072, v{T}
        v_and_b32 v{T+1}, 3, v0
        v_lshl_add_u32 v{T}, v{T+1}, 4, v{T}
        s_mul_i32 s{sT0}, s{sRB1}, 122880
        s_mul_i32 s{sT2}, s{sCB1}, 192
        s_add_u32 s{sT0}, s{sT0}, s{sT2}
        s_lshl_b32 s{sT1}, s{sT1}, 6
        s_add_u32 s{sT0}, s{sT0}, s{sT1}
        v_xor_b32 v{T+1}, 32, v{T}
        """)
        for up in range(2):
            for i in range(3):
                a(f"s_add_u32 m0, s{sL}, {up*3072+i*1024}\ns_add_u32 s{sT1}, s{sT0}, {i*49152}")
                if i == 2:
                    a("s_mov_b32 exec_hi, 0")
                a.vmem(f"buffer_load_dwordx4 v{T+up}, {sr(SWU if up else SWG,4)}, s{sT1} offen lds", "cs")
                if i == 2:
                    a("s_mov_b32 exec_hi, -1")

    def colsum_a(self):
        a = self.a
        T, F = 12, 60
        sL = sA + 9
        a(f"""
        v_bfe_u32 v{T+2}, v0, 4, 1
        v_mul_u32_u24 v{T+3}, 3072, v{T+2}
        v_lshrrev_b32 v{T+4}, 5, v0
        v_lshl_add_u32 v{T+3}, v{T+4}, 8, v{T+3}
        v_bfe_u32 v{T+5}, v0, 2, 2
        v_lshl_add_u32 v{T+3}, v{T+5}, 6, v{T+3}
        v_and_b32 v{T+5}, 1, v0
        v_lshl_add_u32 v{T+3}, v{T+5}, 4, v{T+3}
        v_bfe_u32 v{T+5}, v0, 1, 1
        v_lshl_add_u32 v{T+3}, v{T+5}, 3, v{T+3}
        v_lshl_add_u32 v{T+3}, v{T+2}, 5, v{T+3}
        v_add_u32 v{T}, s{sL}, v{T+3}
        v_xor_b32 v{T+1}, 32, v{T}
        s_min_u32 s{sT1}, s{sB}, 2
        s_lshl_b32 s{sT1}, s{sT1}, 8
        s_lshl4_add_u32 s{sT0}, s{sCB1}, s{sRB1}
        s_mul_i32 s{sT0}, s{sT0}, 768
        s_add_u32 s{sT0}, s{sT0}, s{sT1}
        s_add_u32 s{sT0}, s{sT0}, {CS}
        s_mov_b32 s{sT1}, 0x3f803f80
        v_lshlrev_b32 v{T+6}, 2, v0
        """)
        a.vm.wait("cs")
        for h in range(2):
            for n in range(5):
                a.ds(f"ds_read_b64_tr_b16 {vr(F+10*h+2*n,2)}, v{T+h} offset:{n*512}", f"cs{h}")
        for r in range(4):
            a(f"v_mov_b32 v{T+2+r}, 0")
        for h in range(2):
            a.lg.wait(f"cs{h}")
            for n in range(10):
                a(f"v_dot2c_f32_bf16 v{T+2+2*h+(n&1)}, s{sT1}, v{F+10*h+n}")
        a(f"v_add_f32 v{T+2}, v{T+2}, v{T+3}\nv_add_f32 v{T+4}, v{T+4}, v{T+5}")
        a(f"v_permlane32_swap_b32 v{T+2}, v{T+4}\nv_add_f32 v{T+2}, v{T+2}, v{T+4}")
        a.vmem(f"buffer_store_dword v{T+2}, v{T+6}, {sr(SWS,4)}, s{sT0} offen sc1", "csst")

    def colsum_l_setup(self):
        a = self.a
        T, A0 = 12, 180
        a(f"""
        v_bfe_u32 v{T+2}, v0, 4, 1
        v_mul_u32_u24 v{T+3}, 3072, v{T+2}
        v_lshrrev_b32 v{T+4}, 5, v0
        v_mul_u32_u24 v{T+4}, 1536, v{T+4}
        v_bfe_u32 v{T+5}, v0, 2, 2
        v_lshl_add_u32 v{T+3}, v{T+5}, 6, v{T+3}
        v_and_b32 v{T+5}, 1, v0
        v_lshl_add_u32 v{T+3}, v{T+5}, 4, v{T+3}
        v_bfe_u32 v{T+5}, v0, 1, 1
        v_lshl_add_u32 v{T+3}, v{T+5}, 3, v{T+3}
        v_lshl_add_u32 v{T+3}, v{T+2}, 5, v{T+3}
        v_add3_u32 v{A0}, v{T+3}, v{T+4}, s{self.sWL}
        v_xor_b32 v{A0+1}, 32, v{A0}
        v_add_u32 v{A0+2}, 49152, v{A0}
        v_add_u32 v{A0+3}, 49152, v{A0+1}
        v_mov_b32 v{A0+4}, 0x3f803f80
        """)
        for J in range(6):
            a(f"v_mov_b32 v{A0+6+J}, 0")

    def colsum_l_stage(self, st):
        a = self.a
        A0, F = 180, 192
        sl = st % 3
        for J in range(6):
            for q in range(2):
                a.ds(f"ds_read_b64_tr_b16 {vr(F+4*J+2*q,2)}, v{A0+(J&1)+(2 if sl == 2 else 0)} offset:{(sl%2)*24576+(J>>1)*256+q*768}", "cl")
        a.begin()
        a.lg.wait("cl")
        for r in range(4):
            for J in range(6):
                a(f"v_dot2c_f32_bf16 v{A0+6+J}, v{A0+4}, v{F+4*J+r}")
        a.end()

    def colsum_l_finish(self):
        a = self.a
        A0 = 180
        a(f"s_lshl_b32 s{sT0}, s{sB}, 2\ns_add_u32 s{sT0}, s{sT0}, {CSF}\nv_lshl_add_u32 v{A0}, v0, 4, s{sT0}")
        for p in range(3):
            a(f"v_permlane32_swap_b32 v{A0+6+2*p}, v{A0+7+2*p}")
        for p in range(3):
            a(f"v_add_f32 v{A0+6+2*p}, v{A0+6+2*p}, v{A0+7+2*p}")
            a.ds(f"ds_write_b32 v{A0}, v{A0+6+2*p} offset:{p*1024}", "gw")

    def colsum_r_setup(self):
        a = self.a
        T, A0, sJ = 12, 180, sA + 13
        r2 = self.o.get("rot", "1") == "2"
        a(f"""
        v_bfe_u32 v{T+2}, v0, 4, 1
        v_mul_u32_u24 v{T+3}, 3072, v{T+2}
        v_lshrrev_b32 v{T+4}, 5, v0
        v_mul_u32_u24 v{T+4}, 1536, v{T+4}
        v_bfe_u32 v{T+5}, v0, 2, 2
        v_lshl_add_u32 v{T+3}, v{T+5}, 6, v{T+3}
        v_and_b32 v{T+5}, 1, v0
        v_lshl_add_u32 v{T+3}, v{T+5}, 4, v{T+3}
        v_bfe_u32 v{T+5}, v0, 1, 1
        v_lshl_add_u32 v{T+3}, v{T+5}, 3, v{T+3}
        v_lshl_add_u32 v{T+3}, v{T+2}, 5, v{T+3}
        s_lshr_b32 s{sJ}, s{sRB1}, {1 if r2 else 2}
        s_mul_i32 s{sT0}, s{sJ}, 11
        s_lshr_b32 s{sT0}, s{sT0}, 5
        s_mul_i32 s{sT0}, s{sT0}, 3
        s_sub_u32 s{sT0}, s{sJ}, s{sT0}
        s_mul_i32 s{sT0}, s{sT0}, 24576
        s_min_u32 s{sT1}, s{sB}, 2
        s_lshl_b32 s{sT1}, s{sT1}, 8
        s_add_u32 s{sT0}, s{sT0}, s{sT1}
        s_add_u32 s{sT0}, s{sT0}, {WS_}
        v_add3_u32 v{A0}, v{T+3}, v{T+4}, s{sT0}
        v_xor_b32 v{A0+1}, 32, v{A0}
        s_add_u32 s{sT2}, s{sRB1}, s{sCB1}
        s_and_b32 s{sT2}, s{sT2}, {1 if r2 else 3}
        s_mul_i32 s{sT0}, s{sT2}, 5
        s_lshr_b32 s{sT0}, s{sT0}, {0 if r2 else 1}
        s_add_u32 s{sT0}, s{sT0}, s{sJ}
        s_lshl4_add_u32 s{sT0}, s{sCB1}, s{sT0}
        s_mul_i32 s{sT0}, s{sT0}, 768
        s_add_u32 s{sT0}, s{sT0}, s{sT1}
        s_add_u32 s{sT0}, s{sT0}, {CS}
        v_lshl_add_u32 v{A0+2}, v0, 2, s{sT0}
        v_mov_b32 v{A0+3}, 0x3f803f80
        """)
        if not r2:
            a.begin()
            a(f"s_and_b32 s{sT2}, s{sT2}, 1\ns_add_u32 s{sT2}, s{sT2}, 2\ns_cmp_lt_u32 s{sJ}, s{sT2}\ns_cselect_b32 s{sJ}, s{sJ}, 15")
            a.end()
        for r in range(4):
            a(f"v_mov_b32 v{A0+4+r}, 0")

    def colsum_r_call(self, j, part):
        a = self.a
        lab = a.label("csr")
        a.begin()
        a(f"s_cmp_lg_u32 s{sA+13}, {j}\ns_cbranch_scc1 {lab}\ns_call_b64 s[{sTM}:{sTM+1}], L_colsum{part}\n{lab}:")
        a.end()

    def colsum_r_body(self):
        a = self.a
        A0, F = 180, 192
        for h in range(2):
            a(f"L_colsum{h}:")
            for n in range(8):
                a(f"ds_read_b64_tr_b16 {vr(F+16*h+2*n,2)}, v{A0+h} offset:{(n>>1)*6144+(n&1)*768}")
            a(f"s_setpc_b64 s[{sTM}:{sTM+1}]")
        for h in range(2):
            a(f"L_colsum{2+h}:")
            a(f"s_waitcnt lgkmcnt(0)")
            for n in range(16):
                a(f"v_dot2c_f32_bf16 v{A0+4+2*h+(n&1)}, v{A0+3}, v{F+16*h+n}")
            if h == 0:
                a(f"s_setpc_b64 s[{sTM}:{sTM+1}]")
        a(f"v_add_f32 v{A0+4}, v{A0+4}, v{A0+5}\nv_add_f32 v{A0+6}, v{A0+6}, v{A0+7}")
        a(f"v_permlane32_swap_b32 v{A0+4}, v{A0+6}\nv_add_f32 v{A0+4}, v{A0+4}, v{A0+6}")
        a(f"buffer_store_dword v{A0+4}, v{A0+2}, {sr(SWS,4)}, 0 offen sc1")
        a(f"s_setpc_b64 s[{sTM}:{sTM+1}]")

    def colsum_store(self):
        self.a.vmem(f"buffer_store_dword v148, v149, {sr(SWS,4)}, 0 offen sc1", "csst")

    def ncs(self):
        return {"A": 16, "B": 10, "L": 0, "R": 10}[self.o.get("cs", "B")]

    def gather_issue(self):
        a = self.a
        T, G = 14, 24
        a(f"""
        v_and_b32 v{T}, 31, v0
        s_lshl2_add_u32 s{sT0}, s{sRB1}, s{sB}
        s_lshl_b32 s{sT0}, s{sT0}, 8
        s_add_u32 s{sT0}, s{sT0}, {ST}
        v_lshlrev_b32 v{T}, 3, v{T}
        s_mul_i32 s{sT1}, s{sCB1}, 12288
        s_mul_i32 s{sT2}, s{sB}, 192
        s_add_u32 s{sT1}, s{sT1}, s{sT2}
        s_add_u32 s{sT1}, s{sT1}, {CS}
        v_lshlrev_b32 v{T+1}, 2, v0
        """)
        a.vmem(f"buffer_load_dwordx2 {vr(G,2)}, v{T}, {sr(SWS,4)}, s{sT0} offen sc1", "gat")
        for p in range(self.ncs()):
            if p and p % 5 == 0:
                a(f"s_add_u32 s{sT1}, s{sT1}, 3840")
            a.vmem(f"buffer_load_dword v{G+2+p}, v{T+1}, {sr(SWS,4)}, s{sT1} offen offset:{(p%5)*768} sc1", "gat")

    def gather_finish(self):
        a = self.a
        T, G = 14, 24
        a.vm.wait("gat")
        a(f"s_lshl_b32 s{sT0}, s{sB}, 8\ns_add_u32 s{sT0}, s{sT0}, {STL}\nv_add_u32 v{T}, s{sT0}, v{T}")
        a.ds(f"ds_write_b64 v{T}, {vr(G,2)}", "gw")
        if self.ncs() == 0:
            self.colsum_l_stage(9)
            self.colsum_l_finish()
        else:
            c = G + 2
            n = self.ncs()
            while n > 1:
                h = n // 2
                for p in range(h):
                    a(f"v_add_f32 v{c+p}, v{c+p}, v{c+n-h+p}")
                n -= h
            a(f"""
            v_cvt_pk_bf16_f32 v{c+1}, v{c}, v{c}
            v_and_b32 v{c+1}, 0xffff0000, v{c+1}
            v_sub_f32 v{c+1}, v{c}, v{c+1}
            v_cvt_pk_bf16_f32 v{c+2}, v{c}, v{c+1}
            v_and_b32 v{c+4}, 0xffff0000, v{c+2}
            v_sub_f32 v{c+1}, v{c+1}, v{c+4}
            v_cvt_pk_bf16_f32 v{c+3}, v{c+1}, 0
            s_mul_i32 s{sT0}, s{sB}, 384
            s_add_u32 s{sT0}, s{sT0}, {CSF}
            v_lshl_add_u32 v{T+1}, v0, 3, s{sT0}
            """)
            a.begin()
            a("s_mov_b32 exec_hi, 0xffff")
            a.ds(f"ds_write_b64 v{T+1}, {vr(c+2,2)}", "gw")
            a("s_mov_b32 exec_hi, -1")
            a.end()
        a(f"v_mov_b32 v{T}, {GCNT}\nv_mov_b32 v{T+1}, 1\ns_mov_b64 exec, 1")
        a.ds(f"ds_add_u32 v{T}, v{T+1}", "gw")
        a("s_mov_b64 exec, -1")

    def stage_base(self, sR):
        if self.o.get("p0", "B") == "B":
            return f"s_mul_i32 s{sR}, s{sB}, 8704\ns_add_u32 s{sR}, s{sR}, {AUX}"
        tab = (32768, 98304, 107008, 41472)
        o = f"s_mov_b32 s{sR}, {tab[0]}"
        for b in range(1, 4):
            o += f"\ns_cmp_eq_u32 s{sB}, {b}\ns_cselect_b32 s{sR}, {tab[b]}, s{sR}"
        return o

    def task_index(self, K):
        b = self.a
        b(f"s_and_b32 s{sT0}, s{sI}, 1\ns_lshr_b32 s{sT1}, s{sI}, 1")
        if K:
            b(f"""
            s_mul_i32 s{sT0}, s{sT0}, 3
            s_mul_i32 s{sT1}, s{sT1}, 5
            s_mul_i32 s{sT2}, s{sXCD}, 80
            s_add_u32 s{sT0}, s{sT0}, s{sB}
            """)
        else:
            b(f"""
            s_sub_u32 s{sT2}, s{sB}, 1
            s_mul_i32 s{sT0}, s{sT0}, s{sT2}
            s_mul_i32 s{sT1}, s{sT1}, 3
            s_mul_i32 s{sT2}, s{sXCD}, 48
            """)
        b(f"s_add_u32 s{sT0}, s{sT0}, s{sT1}\ns_add_u32 s{sC}, s{sT0}, s{sT2}")

    def kv_issue(self):
        a = self.a
        T = 150
        fl = self.o.get("p0flags", "nt")
        sR, sT0K, sCG = sA + 5, sA + 6, sA + 7
        a(f"""
        s_and_b32 s{sT0K}, s{sC}, 63
        s_lshl_b32 s{sT0K}, s{sT0K}, 5
        s_lshr_b32 s{sCG}, s{sC}, 6
        {self.stage_base(sR)}
        v_lshrrev_b32 v{T}, 3, v0
        v_mul_u32_u24 v{T}, 1280, v{T}
        v_and_b32 v{T+1}, 7, v0
        v_lshl_add_u32 v{T}, v{T+1}, 4, v{T}
        s_mul_i32 s{sT0}, s{sT0K}, 1280
        s_lshl_b32 s{sT1}, s{sCG}, 7
        s_add_u32 s{sT0}, s{sT0}, s{sT1}
        v_add_u32 v{T+2}, s{sT0}, v{T}
        v_subrev_u32 v{T}, 5120, v{T+2}
        v_add_u32 v{T+1}, 5120, v{T+2}
        s_lshl_b32 s{sT1}, s{sCG}, 9
        v_lshl_add_u32 v{T+3}, v0, 3, s{sT1}
        """)
        a.begin()
        a(f"s_mov_b32 m0, s{sR}")
        a.vmem(f"buffer_load_dwordx4 v{T}, {sr(SK,4)}, 0 offen {fl} lds", "K0")
        a.end()
        for i in range(1, 5):
            a.begin()
            a(f"s_add_u32 m0, s{sR}, {i*1024}\ns_mov_b32 s{sT0}, {(i-1)*10240}")
            if i == 4:
                a("s_mov_b32 exec_hi, 0")
            a.vmem(f"buffer_load_dwordx4 v{T+1}, {sr(SK,4)}, s{sT0} offen {fl} lds", f"K{i}")
            if i == 4:
                a("s_mov_b32 exec_hi, -1")
            a.end()
        for i in range(4):
            a.begin()
            a(f"s_add_u32 m0, s{sR}, {4608+i*1024}\ns_mov_b32 s{sT0}, {i*10240}")
            a.vmem(f"buffer_load_dwordx4 v{T+2}, {sr(SV,4)}, s{sT0} offen {fl} lds", f"V{i}")
            a.end()
        a.vmem(f"buffer_load_dwordx2 v[54:55], v{T+3}, {sr(SSH,4)}, 0 offen", "SH")

    def kv_setup(self):
        a = self.a
        T = 20
        sR, sT0K, sCG = sA + 5, sA + 6, sA + 7
        a(f"""
        v_bfe_u32 v{T}, v0, 2, 2
        v_lshrrev_b32 v{T+1}, 4, v0
        v_lshlrev_b32 v{T+1}, 5, v{T+1}
        v_lshl_add_u32 v{T}, v{T}, 7, v{T+1}
        v_and_b32 v{T+1}, 3, v0
        v_lshl_add_u32 v{T}, v{T+1}, 3, v{T}
        v_add_u32 v154, s{sR}, v{T}
        v_lshrrev_b32 v{T+2}, 2, v0
        v_mul_u32_u24 v{T+2}, {4*self.row}, v{T+2}
        v_lshl_add_u32 v157, v{T+1}, 4, v{T+2}
        s_mul_i32 s{sA+8}, s{sCG}, {64*self.row}
        s_lshl1_add_u32 s{sA+8}, s{sT0K}, s{sA+8}
        s_add_u32 s{sA+8}, s{sA+8}, {UT}
        """)

    def kv_block(self, n):
        a = self.a
        T, K, Vv, W, KF, O = 20, 60, 78, 14, 96, 132
        a.vm.wait(f"K{n}", f"K{n+1}", f"V{n}", "SH")
        for i in ([0, 1, 2] if n == 0 else [2 * n + 1, 2 * n + 2]):
            a.ds(f"ds_read_b64_tr_b16 {vr(K+2*i,2)}, v154 offset:{i*512}", f"k{i}")
        for i in (2 * n, 2 * n + 1):
            a.ds(f"ds_read_b64_tr_b16 {vr(Vv+2*i,2)}, v154 offset:{4608+i*512}", f"v{i}")
        if n == 0:
            a(f"""
            v_lshlrev_b32 v{W}, 16, v54
            v_and_b32 v{W+1}, 0xffff0000, v54
            v_lshlrev_b32 v{W+2}, 16, v55
            v_and_b32 v{W+3}, 0xffff0000, v55
            """)
        nk = 0 if n == 0 else 4 * n + 2
        for p in range(4 * n, 4 * n + 4):
            while nk < p + 3:
                a.lg.wait(f"k{nk>>1}")
                a(f"v_lshlrev_b32 v{KF+2*nk}, 16, v{K+nk}\nv_and_b32 v{KF+2*nk+1}, 0xffff0000, v{K+nk}")
                nk += 1
            for e in range(2):
                a(f"v_mul_f32 v{T+e}, v{W+3}, v{KF+2*p+e+1}")
            for d in (2, 1, 0):
                for e in range(2):
                    a(f"v_fmac_f32 v{T+e}, v{W+d}, v{KF+2*p+e+4-d}")
            a.lg.wait(f"v{p>>1}")
            a(f"v_lshlrev_b32 v{T+2}, 16, v{Vv+p}\nv_and_b32 v{T+3}, 0xffff0000, v{Vv+p}")
            a(f"v_mul_f32 v{T}, v{T}, v{T+2}\nv_mul_f32 v{T+1}, v{T+1}, v{T+3}")
            a(f"v_cvt_pk_bf16_f32 v{O+p}, v{T}, v{T+1}")

    def kv_bounce(self):
        a = self.a
        KF, O = 96, 132
        for src, dst, bit, perm in ((O, KF, 1, "[1,0,3,2]"), (KF, O, 2, "[2,3,0,1]")):
            low = 0x55555555 if bit == 1 else 0x33333333
            for mask, js in ((low, [j for j in range(4) if not j & bit]), (low ^ 0xffffffff, [j for j in range(4) if j & bit])):
                for j in js:
                    a.begin()
                    a(f"s_mov_b32 vcc_lo, {hex(mask)}\ns_mov_b32 vcc_hi, {hex(mask)}")
                    for r in range(4):
                        a(f"v_cndmask_b32_dpp v{dst+4*j+r}, v{src+4*(j^bit)+r}, v{src+4*j+r}, vcc quad_perm:{perm} row_mask:0xf bank_mask:0xf")
                    a.end()

    def kv_stores(self):
        a = self.a
        O = 132
        for j in range(4):
            a.begin()
            a.vmem(f"buffer_store_dwordx4 {vr(O+4*j,4)}, v157, {sr(SWS,4)}, s{sA+8} offen sc1", "utst")
            if j < 3:
                a(f"s_add_u32 s{sA+8}, s{sA+8}, {self.row}")
            a.end()

    def wd_issue(self):
        a = self.a
        T = 150
        fl = self.o.get("p0flags", "nt")
        sR = sA + 5
        a(f"""
        s_lshr_b32 s{sA+6}, s{sC}, 3
        s_and_b32 s{sT1}, s{sC}, 3
        s_lshl2_add_u32 s{sA+6}, s{sA+6}, s{sT1}
        s_mul_i32 s{sA+6}, s{sA+6}, 10240
        s_bfe_u32 s{sT1}, s{sC}, 0x10002
        s_mul_i32 s{sT1}, s{sT1}, 640
        s_add_u32 s{sA+6}, s{sA+6}, s{sT1}
        {self.stage_base(sR)}
        """)
        for i in range(5):
            a(f"""
            v_add_u32 v{T+1}, {64*i}, v0
            v_mul_u32_u24 v{T+2}, 1639, v{T+1}
            v_lshrrev_b32 v{T+2}, 16, v{T+2}
            v_mul_u32_u24 v{T+2}, 640, v{T+2}
            v_lshl_add_u32 v{T+2}, v{T+1}, 4, v{T+2}
            """)
            a.begin()
            a(f"s_add_u32 m0, s{sR}, {i*1024}")
            a.vmem(f"buffer_load_dwordx4 v{T+2}, {sr(SWD,4)}, s{sA+6} offen {fl} lds", "kv")
            a.end()

    def wd_work(self):
        a = self.a
        T, F, VA = 20, 60, 150
        sR = sA + 5
        a(f"""
        v_bfe_u32 v{T}, v0, 2, 2
        v_mul_u32_u24 v{T}, 640, v{T}
        v_lshrrev_b32 v{T+2}, 4, v0
        v_lshl_add_u32 v{T}, v{T+2}, 5, v{T}
        v_and_b32 v{T+1}, 3, v0
        v_lshl_add_u32 v{T}, v{T+1}, 3, v{T}
        v_add_u32 v{T}, s{sR}, v{T}
        s_bfe_u32 s{sA+8}, s{sC}, 0x10002
        s_mul_i32 s{sA+8}, s{sA+8}, 192
        s_lshr_b32 s{sT1}, s{sC}, 3
        s_add_u32 s{sA+8}, s{sA+8}, s{sT1}
        s_mul_i32 s{sA+8}, s{sA+8}, 5120
        s_and_b32 s{sT1}, s{sC}, 3
        s_lshl_b32 s{sT1}, s{sT1}, 8
        s_add_u32 s{sA+8}, s{sA+8}, s{sT1}
        s_add_u32 s{sA+8}, s{sA+8}, {WDT}
        v_and_b32 v{T+1}, 15, v0
        v_lshlrev_b32 v{T+1}, 4, v{T+1}
        """)
        for n in range(5):
            a(f"""
            v_add_u32 v{T+3}, {4*n}, v{T+2}
            v_mul_u32_u24 v{VA+n}, 13, v{T+3}
            v_lshrrev_b32 v{VA+n}, 6, v{VA+n}
            v_mul_u32_u24 v{VA+n}, {245760-5120}, v{VA+n}
            v_lshl_add_u32 v{VA+n}, v{T+3}, 10, v{VA+n}
            v_add_u32 v{VA+n}, v{VA+n}, v{T+1}
            """)
        a.vm.wait("kv")
        for n in range(5):
            for q in range(2):
                a.ds(f"ds_read_b64_tr_b16 {vr(F+4*n+2*q,2)}, v{T} offset:{q*2560+n*128}", f"wt{n}")
        for n in range(5):
            a.lg.wait(f"wt{n}")
            a.vmem(f"buffer_store_dwordx4 {vr(F+4*n,4)}, v{VA+n}, {sr(SWS,4)}, s{sA+8} offen sc1", "utst")

    def conv_issue(self):
        a = self.a
        fl = self.o.get("p0flags", "nt")
        regs = self.o.get("p0mode", "burst") == "burst"
        a(f"""
        s_lshl_b32 s{sT0}, s{self.sCH}, 12
        v_lshl_add_u32 v176, v0, 4, s{sT0}
        s_lshl_b32 s{sT0}, s{self.sCH}, 1
        v_mov_b32 v19, s{sT0}
        """)
        a.vmem(f"buffer_load_ushort v19, v19, {sr(SSD,4)}, 0 offen", "hk")
        for i in range(4):
            if regs:
                a.vmem(f"buffer_load_dwordx4 {vr(160+4*i,4)}, v176, {sr(SSK,4)}, 0 offen offset:{i*1024} {fl}", "hk")
                continue
            a.begin()
            a(f"s_add_u32 m0, s{self.sR}, 96")
            a.vmem(f"buffer_load_dwordx4 v176, {sr(SSK,4)}, 0 offen offset:{i*1024} {fl} lds", "hk")
            a.end()

    def conv_fold(self):
        a = self.a
        if self.o.get("p0mode", "burst") == "burst":
            a.vm.wait("hk")
            a(f"""
            v_add_u32 v176, s{self.sR}, v18
            s_mov_b64 exec, 1
            v_lshlrev_b32 v177, 16, v160
            v_lshlrev_b32 v19, 16, v19
            v_add_f32 v177, v177, v19
            v_and_b32 v160, 0xffff0000, v160
            v_cvt_pk_bf16_f32 v160, v177, v160
            s_mov_b64 exec, -1
            """)
            for i in range(4):
                a.ds(f"ds_write_b128 v176, {vr(160+4*i,4)} offset:{96+i*1024}", "hw")
            return
        a(f"v_mov_b32 v176, s{self.sR}")
        a.vm.wait("hk")
        a.ds("ds_read_u16 v177, v176 offset:96", "h0")
        a("v_lshlrev_b32 v19, 16, v19")
        a.lg.wait("h0")
        a("v_lshlrev_b32 v177, 16, v177\nv_add_f32 v177, v177, v19\nv_cvt_pk_bf16_f32 v177, v177, v177")
        a.ds("ds_write_b16 v176, v177 offset:96", "h0")

    def conv_u_issue(self):
        a = self.a
        a(f"s_mul_i32 s{sT0}, s{self.sCH}, {self.row}\ns_add_u32 m0, s{self.sR}, 4352\ns_add_u32 s{sT0}, s{sT0}, {UT}")
        for i in range(4):
            a.vmem(f"buffer_load_dwordx4 v18, {sr(SWS,4)}, s{sT0} offen offset:{i*1024} sc1 lds", f"u{i}")

    def conv_setup(self):
        a = self.a
        T = 4
        a(f"""
        v_lshlrev_b32 v{T}, 2, v0
        v_add_u32 v{T}, s{self.sR}, v{T}
        v_mov_b32 v{T+1}, 0
        s_mov_b32 exec_hi, 0
        s_mov_b32 exec_lo, 0xffffff
        """)
        a.ds(f"ds_write_b32 v{T}, v{T+1}", "z")
        a("s_mov_b32 exec_lo, -1\ns_mov_b32 exec_hi, 0xff")
        a.ds(f"ds_write_b32 v{T}, v{T+1} offset:4192", "z")
        a("s_mov_b64 exec, -1")
        a(f"""
        v_and_b32 v{T}, 3, v0
        v_lshrrev_b32 v{T+1}, 4, v0
        v_bfe_u32 v{T+2}, v0, 2, 2
        v_lshlrev_b32 v{T+3}, 6, v{T+1}
        v_lshl_add_u32 v{T+3}, v{T+2}, 3, v{T+3}
        v_lshl_add_u32 v1, v{T}, 5, v{T+3}
        v_add_u32 v1, s{self.sR}, v1
        v_lshlrev_b32 v{T}, 3, v{T}
        v_sub_u32 v2, v{T}, v{T+3}
        s_add_u32 s{sT0}, s{self.sR}, {4352+64}
        v_add_u32 v2, s{sT0}, v2
        v_lshl_add_u32 v3, v0, 1, s{self.sR}
        v_mov_b32 v10, 0
        v_mov_b32 v11, 0
        v_lshl_add_u32 v12, v0, 4, s{self.sR}
        s_mul_i32 s{self.sY}, s{self.sCH}, {self.row}
        s_add_u32 s{self.sY}, s{self.sY}, {YY}
        """)

    def xt_issue(self, wave3=False):
        a = self.a
        T = 20
        sX = sA + 7
        a(f"""
        s_mul_i32 s{sX}, s{sRB2}, 81920
        s_mul_i32 s{sT2}, s{sCB2}, 160
        s_add_u32 s{sX}, s{sX}, s{sT2}
        """)
        for p in range(10):
            a.begin()
            lab = a.label("xt")
            if wave3:
                a(f"s_cmp_lg_u32 s{sB}, 3\ns_cbranch_scc1 {lab}")
            a(f"""
            v_add_u32 v{T}, {64*p}, v0
            v_mul_u32_u24 v{T+1}, 6554, v{T}
            v_lshrrev_b32 v{T+1}, 16, v{T+1}
            v_mul_u32_u24 v{T+1}, 1120, v{T+1}
            v_lshl_add_u32 v{T+1}, v{T}, 4, v{T+1}
            s_mov_b32 m0, {XT+p*1024}
            """)
            a(f"buffer_load_dwordx4 v{T+1}, {sr(SQ,4)}, s{sX} offen lds")
            a(f"{lab}:")
            a.end()

    def loader(self, steps, finish):
        a = self.a
        T = 20
        sO2 = sA + 10
        depth = int(self.o.get("ldepth", 0))
        late_xt = self.o.get("xtpos", "7") == "L"
        for st in steps:
            if st == 4:
                if late_xt:
                    self.xt_issue()
                go = a.label("ringfree")
                a(f"v_mov_b32 v{T}, {ACNT}")
                self.lds_flag_wait(T, T + 1, go, 4)
                a(f"{go}:")
            self.step_off(6 + st, self.sWo, self.sWb, self.sRot, 5120)
            for q in range(0 if self.o.get("x_nowd") else 4):
                prev = None
                for j in range(5):
                    isw, off = self.wl_addr(5 * st + j, 0, 1)
                    lds = off + (WS_ + q * 6144 if isw else q * 4096)
                    if prev is not None and lds == prev[0] + (j - prev[1]) * 1024 and j - prev[1] < 4:
                        imm = (j - prev[1]) * 1024
                    else:
                        prev, imm = (lds, j), 0
                        a(f"s_mov_b32 m0, {lds}")
                        a(f"s_add_u32 s{sO2}, s{self.sWo}, {q*61440+j*1024}")
                    a.vmem(f"buffer_load_dwordx4 v18, {sr(SWS,4)}, s{sO2} offen offset:{imm} sc1 lds", "wl")
                    if depth:
                        a(f"s_waitcnt vmcnt({depth})")
        if not finish:
            return
        a(f"v_mov_b32 v{T}, {WFLG}\nv_mov_b32 v{T+1}, 1")
        a.vm.drain()
        a.ds(f"ds_write_b32 v{T}, v{T+1}", "wf")

    def conv_main(self):
        a = self.a
        AF, BF, CA = 24, 88, 216
        NACC = 10
        Z2, Z1, YV, UR, RB = 4, 6, 8, 10, 248
        ca = lambda n: CA + 4 * (n % NACC)
        dpp = "row_mask:0xf bank_mask:0xf"

        def bread(i):
            g = [[("ds", f"ds_read_b64_tr_b16 {vr(BF+4*i+2*q,2)}, v2 offset:{128*i+32*(1-q)}", f"b{i}")] for q in range(2)]
            g[0].insert(0, ("vmwait", (f"u{i >> 3}",)))
            return g

        def uread(n):
            return [("ds", f"ds_read_u16_d16_hi v{UR+(n&1)}, v3 offset:{4352+128*n}", f"ur{n}")]

        yb = self.o.get("yburst", "1") == "1"
        rb = (lambda k: AF + 4 * k) if yb else (lambda k: RB + 4 * (k & 1))

        def yread(k):
            return [("ds", f"ds_read_b128 {vr(rb(k),4)}, v12 offset:{1024*k}", f"yr{k}")]

        def ystore(k):
            return [("lgwait", (f"yr{k}",)),
                    ("vmem", f"buffer_store_dwordx4 {vr(rb(k),4)}, v18, {sr(SWS,4)}, s{self.sY} offen offset:{1024*k} sc1", "yst")]

        fold = self.o.get("foldd", "1") == "1"

        def epi(n):
            c, pc = ca(n), ca(n - 1)
            z2, pz2, z1, pz1 = Z2 + (n & 1), Z2 + 1 - (n & 1), Z1 + (n & 1), Z1 + 1 - (n & 1)
            y, u = YV + (n & 1), UR + (n & 1)
            o = []
            if n < 31 and not fold:
                o.append(uread(n + 1))
            if n & 7 == 0 and n and not yb:
                o.append(yread((n >> 3) - 1))
            if n & 7 == 1 and n > 1 and not yb:
                o.append(ystore((n >> 3) - 1))
            for dst, cur, prev, add in ((z2, c + 3, pc + 3, c + 2), (z1, z2, pz2, c + 1), (y, z1, pz1, c)):
                if n == 0:
                    o.append([("i", f"v_add_f32_dpp v{dst}, v{cur}, v{add} wave_shr:1 {dpp} bound_ctrl:0")])
                else:
                    o.append([("i", f"v_add_f32_dpp v{dst}, v{prev}, v{add} wave_ror:1 {dpp}")])
                    o.append([("i", f"v_add_f32_dpp v{dst}, v{cur}, v{add} wave_shr:1 {dpp}")])
            if not fold:
                o.append([("lgwait", (f"ur{n}",)), ("i", f"v_fmac_f32 v{y}, s{self.sD}, v{u}")])
            if n & 1:
                o.append([("i", f"v_cvt_pk_bf16_f32 v{UR}, v{YV}, v{YV+1}")] if fold else
                         [("i", f"v_cvt_pk_bf16_f32 v{y}, v{YV}, v{YV+1}")])
                w = UR if fold else y
                o.append([("ds", f"ds_write_b16 v3, v{w} offset:{128*(n-1)}", f"yw{n}")])
                o.append([("ds", f"ds_write_b16_d16_hi v3, v{w} offset:{128*n}", f"yw{n}")])
            return o

        if not fold:
            a(f"v_lshlrev_b32 v19, 16, v19")
            a(f"v_readfirstlane_b32 s{self.sD}, v19")
        assert yb and fold

        def aread(m):
            return [[("ds", f"ds_read_b64_tr_b16 {vr(AF+4*m+2*q,2)}, v1 offset:{256*m+32*q}", f"a{m}")] for q in range(2)]

        PRE_A, PRE_B = int(self.o.get("prea", 16)), int(self.o.get("preb", 8))
        for m in range(PRE_A):
            for g in aread(m):
                play(a, g)
        for i in range(PRE_B):
            for g in bread(i):
                play(a, g)
        if self.o.get("hold", "0") == "1":
            go = a.label("hold")
            a(f"v_mov_b32 v20, {ECNT}")
            a.lg.drain()
            self.lds_flag_wait(20, 21, go, 4)
            a(f"{go}:")
        na, nb = PRE_A, PRE_B
        fill = []
        mi = 0
        self.stamp(1, "3")
        for n in range(32):
            if n in (8, 16, 24):
                self.stamp({8: 2, 16: 3, 24: 5}[n], "3")
            while fill and any(f[1] is not None and f[1] <= n - NACC + 1 for f in fill):
                play(a, fill.pop(0)[2])
            pend = []
            while nb < 32 and nb <= n + 3:
                pend += bread(nb); nb += 1
            while na < 16 and na <= (n + 3) // 2:
                pend += aread(na); na += 1
            fill = [f for f in fill if f[1] is None] + [(0, None, g) for g in pend] + [f for f in fill if f[1] is not None]
            ms = list(range(n // 2, -1, -1))
            for k, m in enumerate(ms):
                i = n - 2 * m
                while any(op[0] == "ds" and op[2] in (f"b{i}", f"a{m}") for f in fill for op in f[2]):
                    play(a, fill.pop(0)[2])
                a.lg.wait(f"b{i}", f"a{m}")
                c = "0" if k == 0 else vr(ca(n), 4)
                a(f"v_mfma_f32_16x16x32_bf16 {vr(ca(n),4)}, {vr(AF+4*m,4)}, {vr(BF+4*i,4)}, {c}")
                mi += 1
                slots = 2
                while slots and fill and fill[0][0] <= mi:
                    play(a, fill.pop(0)[2]); slots -= 1
            fill += [(mi + 8, n, g) for g in epi(n)]
        while fill:
            play(a, fill.pop(0)[2])
        for k in (range(4) if yb else [3]):
            play(a, yread(k))
        for k in (range(4) if yb else [3]):
            play(a, ystore(k))

    def final_prepare(self):
        a = self.a
        self.VO, T = 13, 20
        a(f"""
        s_lshl2_add_u32 s{sT0}, s{sRB2}, s{sB}
        s_mul_i32 s{sT1}, s{sT0}, 20480
        s_mul_i32 s{sT2}, s{sCB2}, 160
        s_add_u32 s{sT1}, s{sT1}, s{sT2}
        """)
        for p in range(3):
            a(f"""
            v_add_u32 v{T}, {64*p}, v0
            v_mul_u32_u24 v{T+1}, 205, v{T}
            v_lshrrev_b32 v{T+1}, 11, v{T+1}
            v_mul_u32_u24 v{T+1}, 1120, v{T+1}
            v_lshl_add_u32 v{T+1}, v{T}, 4, v{T+1}
            v_add_u32 v{self.VO+p}, s{sT1}, v{T+1}
            """)
        a(f"""
        s_lshl_b32 s{sT0}, s{sT0}, 7
        s_add_u32 s{sT0}, s{sT0}, {ST}
        v_and_b32 v{T}, 15, v0
        v_lshlrev_b32 v{T}, 3, v{T}
        """)
        a.vmem(f"buffer_load_dwordx2 v[16:17], v{T}, {sr(SWS,4)}, s{sT0} offen sc1", "xt")

    def final_xn(self):
        a = self.a
        T, X, XF, XN = 20, 24, 40, 60
        a(f"""
        v_and_b32 v{T}, 15, v0
        v_mul_u32_u24 v{T}, 160, v{T}
        v_lshrrev_b32 v{T+1}, 4, v0
        v_lshl_add_u32 v{T}, v{T+1}, 3, v{T}
        s_mul_i32 s{sT1}, s{sB}, 2560
        s_add_u32 s{sT1}, s{sT1}, {XT}
        v_add_u32 v1, s{sT1}, v{T}
        v_lshl_add_u32 v2, v0, 4, s{sT1}
        v_mov_b32 v{T}, {WFLG}
        """)
        if self.o.get("xtpos", "7") == "L":
            go = a.label("xgo")
            a.lg.drain()
            self.lds_flag_wait(T, T + 1, go)
            a(f"{go}:")
        a.vm.drain()
        for j in range(5):
            a.ds(f"ds_read_b64 {vr(X+2*j,2)}, v1 offset:{j*32}", "xr")
        a("v_rcp_f32 v17, v17")
        a.lg.drain()
        for p in range(10):
            x, n = XF + 2 * p, XN + 2 * p
            a(f"""
            v_lshlrev_b32 v{x}, 16, v{X+p}
            v_and_b32 v{x+1}, 0xffff0000, v{X+p}
            v_sub_f32 v{n}, v{x}, v16
            v_sub_f32 v{n+1}, v{x+1}, v16
            v_cvt_pk_bf16_f32 v{n+1}, v{n}, v{n+1}
            v_lshlrev_b32 v{n}, 16, v{n+1}
            v_and_b32 v{n+1}, 0xffff0000, v{n+1}
            v_mul_f32 v{n}, v{n}, v17
            v_mul_f32 v{n+1}, v{n+1}, v17
            v_cvt_pk_bf16_f32 v{n+1}, v{n}, v{n+1}
            v_lshlrev_b32 v{n}, 16, v{n+1}
            v_and_b32 v{n+1}, 0xffff0000, v{n+1}
            """)

    def final_rest(self):
        a = self.a
        T, Y, XF, XN, P = 20, 24, 40, 60, 80
        YT = AUX
        sPo, sPv = sA + 9, sA + 13
        other, go = a.label("ywait"), a.label("ygo")
        a("v_lshlrev_b32 v3, 4, v0")
        for j in range(5):
            offs = []
            for b in range(4):
                v, off = self.wl_addr(5 * b + j, 0, 1)
                offs.append((off + (WS_ if v else 0), 6144 if v else 4096))
            a(f"s_mov_b32 s{sT0}, {offs[0][0]}\ns_mov_b32 s{sT1}, {offs[0][1]}")
            for b in range(1, 4):
                a(f"s_cmp_eq_u32 s{sB}, {b}\ns_cselect_b32 s{sT0}, {offs[b][0]}, s{sT0}\ns_cselect_b32 s{sT1}, {offs[b][1]}, s{sT1}")
            a(f"v_add_u32 v{160+4*j}, s{sT0}, v3")
            for q in range(1, 4):
                a(f"v_add_u32 v{160+4*j+q}, s{sT1}, v{160+4*j+q-1}")
        a(f"""
        v_lshrrev_b32 v{T}, 2, v0
        v_and_b32 v{T+1}, 3, v0
        v_lshlrev_b32 v{T+1}, 3, v{T+1}
        v_lshl_add_u32 v{T}, v{T}, 7, v{T+1}
        s_lshl_b32 s{sT0}, s{sB}, 5
        s_add_u32 s{sT0}, s{sT0}, {YT}
        v_add_u32 v{T}, s{sT0}, v{T}
        v_mov_b32 v{T+1}, {YFLG}
        s_cmp_lg_u32 s{sB}, 3
        s_cbranch_scc1 {other}
        """)
        a(f"s_lshl3_add_u32 s{sT0}, s{sCB2}, s{sXCD}")
        self.cnt_off(sPo, cY, sT0)
        items = [(sPv, sPo, 0 if self.o.get("x_noy") else 32)]
        self.poll_issue(items, atomic=True)
        a(f"""
        v_lshrrev_b32 v{T+2}, 3, v0
        v_and_b32 v{T+3}, 7, v0
        v_mul_u32_u24 v{T+2}, {self.row}, v{T+2}
        v_lshl_add_u32 v{T+2}, v{T+3}, 4, v{T+2}
        """)
        self.poll_check(items, atomic=True, sleep=4)
        ok = a.label("convdone")
        a(f"v_mov_b32 v6, {YCNT}")
        self.lds_flag_wait(6, 7, ok, f"s{self.sNC}")
        a(f"{ok}:")
        self.stamp(11)
        a(f"""
        s_mul_i32 s{sT0}, s{sCB2}, {80*self.row}
        s_lshl_b32 s{sT1}, s{sRB2}, 7
        s_add_u32 s{sT0}, s{sT0}, s{sT1}
        s_add_u32 s{sT0}, s{sT0}, {YY}
        """)
        for p in range(10):
            a(f"s_mov_b32 m0, {YT + p * 1024}")
            a(f"buffer_load_dwordx4 v{T+2}, {sr(SWS,4)}, s{sT0} offen sc1 lds")
            a(f"s_add_u32 s{sT0}, s{sT0}, {8*self.row}")
        a(f"""
        v_mov_b32 v{T+2}, 1
        s_waitcnt vmcnt(0)
        ds_write_b32 v{T+1}, v{T+2}
        s_branch {go}
        {other}:
        """)
        self.lds_flag_wait(T + 1, T + 3, go)
        a(f"{go}:")
        for j in range(5):
            a.ds(f"ds_read_b64_tr_b16 {vr(Y+2*j,2)}, v{T} offset:{j*2048}", "yr")
        a.lg.drain()
        for p in range(10):
            a(f"""
            v_lshlrev_b32 v{T}, 16, v{Y+p}
            v_and_b32 v{T+1}, 0xffff0000, v{Y+p}
            v_fmac_f32 v{XF+2*p}, v{XN+2*p}, v{T}
            v_fmac_f32 v{XF+2*p+1}, v{XN+2*p+1}, v{T+1}
            """)
        self.stamp(12)
        a("s_barrier")
        self.stamp(13)
        for j in range(5):
            for q in range(4):
                a.ds(f"ds_read_b128 {vr(P+16*j+4*q,4)}, v{160+4*j+q}", f"p{j}")
        for j in range(5):
            a.lg.wait(f"p{j}")
            p = P + 16 * j
            for r in range(4):
                a(f"v_add_f32 v{p+r}, v{p+r}, v{p+4+r}")
            for r in range(4):
                a(f"v_add_f32 v{p+8+r}, v{p+8+r}, v{p+12+r}")
            for r in range(4):
                a(f"v_add_f32 v{p+r}, v{p+r}, v{XF+4*j+r}")
            for r in range(4):
                a(f"v_add_f32 v{p+r}, v{p+r}, v{p+8+r}")
            a(f"v_cvt_pk_bf16_f32 v{p}, v{p}, v{p+1}\nv_cvt_pk_bf16_f32 v{p+1}, v{p+2}, v{p+3}")
            a.ds(f"ds_write_b64 v1, {vr(p,2)} offset:{j*32}", "ow")
        for p in range(3):
            a.ds(f"ds_read_b128 {vr(24+4*p,4)}, v2 offset:{p*1024}", f"or{p}")
        of = self.o.get("outflags", "nt")
        for p in range(3):
            a.lg.wait(f"or{p}")
            if p == 2:
                a("s_mov_b32 exec_hi, 0")
            a.vmem(f"buffer_store_dwordx4 {vr(24+4*p,4)}, v{self.VO+p}, {sr(SOUT,4)}, 0 offen {of}", "out")
        self.stamp(14)
        self.dump_stamps("B")
        a("s_endpgm")

    def role_b(self, K):
        a = self.a
        a.vm.q = ["F0"] + ["S0"] * 9; a.lg.q = []
        sPo = [sA + 9, sA + 15, sA + 10, sA + 11]
        sPv = [sA + 12, sA + 14]
        self.sY, self.sR, self.sCH, self.sD = sA + 5, sA + 6, sC, sA + 8
        self.sRot, self.sWb, self.sWo = sA + 14, sA + 15, 3
        LAG = int(self.o.get("lag", 10))
        LAG0 = int(self.o.get("lag0", 7))
        assert LAG0 <= 10
        seq, last = [], {}
        for s_ in range(10):
            seq += [(s_, g) for g in self.rec(self.stage_issue, s_)]
            last[s_] = len(seq)
        cut = []
        for s_ in range(10):
            c = min(last[s_] + (LAG0 if s_ == 0 else LAG), len(seq))
            while any(k is not None and k >= s_ + 2 + (1 if s_ == 0 else 0) for k, _ in seq[:c]) and s_ < 9:
                c -= 1
            cut.append(max(c, cut[-1] if cut else 0))

        def zero_lds():
            b = self.a
            b(f"v_mov_b32 v56, {BCNT}\nv_mov_b32 v58, 0\nv_mov_b32 v59, 0")
            for k in range(4):
                b.ds(f"ds_write_b64 v56, v[58:59] offset:{8*k}", "z")
            b.lg.drain()

        def sig_stats():
            b = self.a
            b(f"s_lshr_b32 s{sT0}, s{sWS}, 4")
            self.cnt_off(sPo[0], cS, sT0)
            self.cnt_off(sPo[1], cC, sCB1)
            self.signal(sPo[:2] if self.o.get("cs", "B") in "AB" else sPo[:1], sPv[0])

        def sig_cs():
            self.cnt_off(sA + 13, cC, sCB1)
            self.signal([sA + 13], sA + 11)

        def sig_p0():
            b = self.a
            if K:
                b(f"s_lshr_b32 s{sT0}, s{sC}, 6")
                self.cnt_off(sPo[2], cU, sT0)
            else:
                b(f"""
                s_lshr_b32 s{sT0}, s{sC}, 3
                s_mul_i32 s{sT0}, s{sT0}, 43
                s_lshr_b32 s{sT0}, s{sT0}, 9
                s_and_b32 s{sT1}, s{sC}, 4
                s_add_u32 s{sT0}, s{sT0}, s{sT1}
                """)
                self.cnt_off(sPo[2], cW, sT0)
            self.signal([sPo[2]], sPv[1])

        def b_scalars():
            b = self.a
            b(f"""
            s_mul_i32 s{self.sR}, s{sB}, {CVR}
            s_add_u32 s{self.sR}, s{self.sR}, {AUX}
            v_lshlrev_b32 v18, 4, v0
            """)

        def g2s():
            b = self.a
            b.lg.drain()
            self.g2_scalars(self.sRot, self.sWb)
            b(f"s_mul_i32 s{sT0}, s{sB}, 61440\ns_sub_u32 s{self.sWb}, s{self.sWb}, s{sT0}")

        early = [(sA + 12, sA + 9, 16), (sA + 14, sA + 10, {"A": 16, "B": 16, "L": 0, "R": 64}[self.o.get("cs", "B")]), (sA + 15, sA + 11, 16)]

        def poll_early():
            b = self.a
            b.lg.drain()
            for (_, off, _), (base, src, sh) in zip(early, [(cS, sRB1, 0), (cC, sCB1, 0), (cS, sRB2, 1)]):
                b(f"s_lshr_b32 s{sT0}, s{src}, {sh}")
                self.cnt_off(off, base, sT0)
            self.poll_issue(early)

        def wave3(groups):
            lab = a.label("w3")
            return [[("i", f"s_cmp_lg_u32 s{sB}, 3"), ("i", f"s_cbranch_scc1 {lab}")] + sum(groups, []) + [("i", f"{lab}:")]]

        def poll_late():
            b = self.a
            if K:
                b(f"s_lshr_b32 s{sT0}, s{sC}, 6")
                self.cnt_off(sT0, cU, sT0)
                b(f"v_mov_b32 v22, s{sT0}")
            b.begin()
            b(f"s_mov_b64 exec, 1")
            b.vmem(f"buffer_load_dword v23, v22, {sr(SWS,4)}, 0 offen sc1", "late")
            b("s_mov_b64 exec, -1")
            b.end()

        def poll_w():
            b = self.a
            b(f"s_and_b32 s{sT0}, s{sCB2}, 4")
            self.cnt_off(sT0, cW, sT0)
            b(f"v_lshl_add_u32 v22, v0, 7, s{sT0}")
            self.vcheck_issue(23, 22, SWS, 15, 3)

        R = self.rec
        tasks = {k: [] for k in range(10)}
        heads = {k: [] for k in range(10)}
        tails = {k: [] for k in range(10)}
        extra = {k: [] for k in range(10)}
        after = {k: [] for k in range(10)}
        mids = {k: [] for k in range(10)}
        first0 = R(self.task_index, K)
        tasks[0] += R(zero_lds)
        csa = self.o.get("cs", "B") == "A"
        csl = self.o.get("cs", "B") == "L"
        if csl:
            tasks[0] += R(self.colsum_l_setup)
            for st in range(9):
                tasks[st + 1] += R(self.colsum_l_stage, st)
            csa = True
        csr = self.o.get("cs", "B") == "R"
        if csr:
            assert self.o.get("rot", "1") in "24"
            njs = 5 if self.o.get("rot", "1") == "2" else 3
            tasks[0] += R(self.colsum_r_setup)
            assert LAG == 10
            extra[njs + 1] += [f"F{njs+2}"]
            after[njs + 1] += R(sig_cs)
            csa = True
        if not csa:
            tasks[1] = R(self.colsum_partial) + tasks[1]
            tails[1] += R(self.colsum_store)
            extra[2] += ["csst"]
        pk = int(self.o.get("kpos", 0))
        nk = int(self.o.get("kspread", 3))
        if not K:
            heads[1] += R(self.vcheck_issue, 58, 59, SDBG, 1, 3)
            after[1] += R(self.vcheck, 58, 59, "1", SDBG, 1, 3)
        def by_tag(groups):
            pre, out, cur = None, {}, []
            for g in groups:
                cur = cur + g
                tags = [op[2] for op in g if op[0] == "vmem"]
                if tags:
                    out.setdefault(tags[0], []).append(cur); cur = []
            return out

        def mix(x, y):
            out, i, j = [], 0, 0
            while i < len(x) or j < len(y):
                if j >= len(y) or (i < len(x) and i * len(y) <= j * len(x)):
                    out.append(x[i]); i += 1
                else:
                    out.append(y[j]); j += 1
            return out

        k0 = 0
        late_hk = []
        burst = self.o.get("p0mode", "burst") == "burst"
        if K:
            ld = by_tag(R(self.kv_issue))
            hk = by_tag(R(self.conv_issue))["hk"]
            if burst:
                allld = sum([ld[t] for t in ("K0", "K1", "V0", "SH", "K2", "V1", "K3", "V2", "K4", "V3")], []) + hk
                (mids if pk == 0 else heads)[pk] += allld
                tails[pk] += R(self.kv_setup)
                blocks = sum([R(self.kv_block, n) for n in range(4)], [])
                nk = 4 - pk
                for n in range(nk):
                    tasks[pk + 1 + n] += blocks[len(blocks) * n // nk:len(blocks) * (n + 1) // nk]
                hk = []
            else:
                mids[k0] += ld["K0"] + ld["K1"] + ld["V0"] + ld["SH"]
                tails[k0] += R(self.kv_setup)
                for n in range(4):
                    nxt = ld[f"K{n+2}"] + ld[f"V{n+1}"] if n < 3 else []
                    tasks[k0 + 1 + n] += nxt + R(self.kv_block, n)
            ps = k0 + 5
            tasks[ps - 1] += R(self.kv_bounce)
            tasks[ps] += R(self.kv_stores)
            tasks[ps + 1] += R(b_scalars)
            hp = int(self.o.get("hpos", 9))
            if hp < 9:
                tasks[hp] += hk[:3]
                tasks[hp + 1] += hk[3:]
            else:
                late_hk = hk
        else:
            ld = by_tag(R(self.wd_issue))["kv"]
            if burst:
                (mids if pk == 0 else heads)[pk] += ld
            else:
                mids[k0] += ld[:2]
                tasks[k0 + 1] += ld[2:4]
                tasks[k0 + 2] += ld[4:]
            work = R(self.wd_work)
            nst = min(k for k, g in enumerate(work) if any(op[0] == "vmem" for op in g))
            while work[nst - 1][0][0] == "lgwait":
                nst -= 1
            st = [g for g in work[nst:] if g[0][0] != "lgwait"]
            tasks[k0 + 3] += work[:nst] + [[("lgdrain",)]] + st[:2]
            tasks[k0 + 4] += st[2:]
            ps = k0 + 4
            tasks[ps + 2] += R(b_scalars)
            if self.o.get("xtpos", "7") != "L":
                xt = R(self.xt_issue, True)
                tasks[k0 + 5] += xt[:3]
                rest = xt[3:]
                for n, st_ in enumerate((5, 6, 7, 8)):
                    tasks[st_] += rest[len(rest) * n // 4:len(rest) * (n + 1) // 4]
        extra[ps + 1] += ["utst"]
        after[ps + 1] += R(sig_p0)
        if not K:
            heads[3] += wave3(R(sig_stats))
            (heads if self.o.get("pe", "h") == "h" else tails)[8] += wave3(R(poll_early))
            after[8] += wave3(R(self.poll_check, early))
        if not K:
            tasks[9] += R(g2s)
        tails[9] += R(self.gather_issue) + (R(poll_late) if K else [])
        if not K:
            heads[8] += R(poll_w)
            after[8] += R(self.vcheck, 23, 22, "48", SWS, 15, 3)
            NL0 = int(self.o.get("nl0", 0))
            if NL0:
                tails[9] += wave3([[("i", op[1]) if op[0] == "vmem" else op for op in g] for g in R(self.loader, range(NL0), False)])
        if K:
            tails[9] += late_hk + R(self.conv_setup)
        if csr:
            for j in range(njs):
                calls = [R(self.colsum_r_call, j, part)[0] for part in range(4)]
                pad = [[] for _ in range(max(0, 8 - len(tasks[j + 1])))]
                tasks[j + 1] = mix(calls, tasks[j + 1] + pad)
        drop = self.o.get("x_drop", "")

        def keep(op):
            if op[0] == "vmem":
                t = op[2]
                if "l" in drop and (t[0] in "KV" or t in ("SH", "kv", "hk")): return False
                if "s" in drop and t == "utst": return False
            if op[0] == "i" and "x" in drop and op[1].startswith("buffer_load_dwordx4 v21"): return False
            if op[0] == "i" and "v" in drop and op[1].startswith(("v_fmac_f32", "v_mul_f32", "v_cvt_pk", "v_and_b32 v9", "v_and_b32 v1", "v_lshlrev_b32 v9", "v_lshlrev_b32 v1")) and "v0" not in op[1]: return False
            return True

        if drop:
            for d in (tasks, heads, tails, mids):
                for k in range(9):
                    d[k] = [[op for op in g if keep(op)] for g in d[k]]
        pos = 10
        for s_ in range(10):
            for g in heads[s_]:
                play(a, g)
            main = [g for _, g in seq[pos:cut[s_]]]
            if s_ == 0:
                for g in first0 + mids[0]:
                    play(a, g)
                interleave(a, main, tasks[0])
            else:
                interleave(a, main, tasks[s_])
            pos = cut[s_]
            for g in tails[s_]:
                play(a, g)
            a.vm.wait(f"S{s_}", *extra[s_])
            for g in after[s_]:
                play(a, g)
            a("s_barrier")
            if s_ in (0, 3, 6, 8, 9):
                self.stamp({0: 1, 3: 2, 6: 3, 8: 5, 9: 6}[s_])
            self.stamp(s_ + 1, "2")
        assert pos == len(seq)
        self.gather_finish()
        a.vm.wait("late")
        if K:
            self.vcheck(23, 22, "64", SWS, 1, None)
            self.conv_u_issue()
            self.final_prepare()
            self.conv_fold()
            self.stamp(7)
            self.stamp(9, "3")
            if not self.o.get("x_noconv"):
                self.conv_main()
            self.stamp(8)
            self.stamp(7, "3")
            skip = a.label("ysig")
            a(f"v_mov_b32 v20, {YCNT}\nv_mov_b32 v21, 1")
            a(f"s_lshl_b32 s{sT0}, s{sXCD}, 3")
            self.cnt_off(sPo[0], cY, sT0)
            a.vm.drain()
            a("s_mov_b64 exec, 1")
            a.ds("ds_add_rtn_u32 v21, v20, v21", "yc")
            a.lg.drain()
            a(f"""
            v_readfirstlane_b32 s{sT0}, v21
            s_mov_b64 exec, -1
            s_add_u32 s{sT0}, s{sT0}, 1
            s_cmp_lg_u32 s{sT0}, s{self.sNC}
            s_cbranch_scc1 {skip}
            s_mov_b32 s{sPv[0]}, 1
            s_add_u32 s{sPo[2]}, s{SWS}, s{sPo[0]}
            s_addc_u32 s{sPo[3]}, s{SWS+1}, 0
            """)
            for k in range(8):
                a(f"s_atomic_add s{sPv[0]}, s[{sPo[2]}:{sPo[3]}], {k*128}")
            a(f"{skip}:")
            self.stamp(9)
            a("s_branch L_bjoin")
        else:
            self.final_prepare()
            a(f"s_setprio {self.o.get('lprio', 1)}\ns_cmp_lg_u32 s{sB}, 3\ns_cbranch_scc1 L_bjoin")
            self.loader(range(NL0, 6), True)
            self.stamp(8)

    def build(self):
        a = self.a
        self.prologue()
        self.b_common_setup()
        self.sNC = sA + 4
        self.stamp(0)
        a(f"s_and_b32 s{sT0}, s{sI}, 1\ns_sub_u32 s{self.sNC}, 3, s{sT0}")
        a(f"s_cmp_ge_u32 s{sB}, s{self.sNC}\ns_cbranch_scc1 L_pathW")
        self.role_b(True)
        a("L_pathW:")
        self.role_b(False)
        a("L_bjoin:")
        a.vm.q = ["any"]; a.lg.q = ["any"]
        self.final_xn()
        self.stamp(10)
        self.final_rest()
        if self.o.get("cs", "B") == "R":
            self.colsum_r_body()
        a.vm.q = []; a.lg.q = []
        self.role_a()
        a("L_end:\ns_endpgm")
        return a.text()


def kernel_file(opt):
    ref = open("parallel_sum__ssm_conv_h3__swiglu_ffn__prompt.s.ref").read()
    head = [l for l in ref.split("\n") if l.startswith(";") and "@launch" not in l]
    head = head[:head.index([l for l in head if "d_ws" in l][0]) + 1]
    body = Gen(opt).build()
    return "\n".join(head) + f"""
; @launch grid=(256,1,1) block=(512,1,1) lds={LDS_BYTES}
.amdgcn_target "amdgcn-amd-amdhsa--gfx950"
.text
.globl {KNAME}
.p2align 8
.type {KNAME},@function
{KNAME}:
{body}.section .rodata,"a"
.p2align 6
.amdhsa_kernel {KNAME}
  .amdhsa_next_free_vgpr 256
  .amdhsa_next_free_sgpr 102
  .amdhsa_accum_offset 256
  .amdhsa_group_segment_fixed_size 0
  .amdhsa_kernarg_size 104
  .amdhsa_user_sgpr_count 2
  .amdhsa_user_sgpr_kernarg_segment_ptr 1
  .amdhsa_system_sgpr_workgroup_id_x 1
  .amdhsa_float_denorm_mode_32 3
.end_amdhsa_kernel
"""


if __name__ == "__main__":
    out = sys.argv[1]
    opt = {}
    for kv in sys.argv[2:]:
        k, _, v = kv.partition("=")
        opt[k] = v if v else True
    open(out, "w").write(kernel_file(opt))
```

```python
import sys
from asmlib import Asm, Rec, play, interleave, vr, sr

KNAME = "parallel_sum__ssm_conv_h3__swiglu_ffn__prompt_kernel"

CNT, ST, CS, UT, YY, WDT, HH, PROF, WS_SIZE = (0, 0x8000, 0xC000, 0x40000, 0x340000, 0x640000, 0x830000,
                                               0x1360000, 0x1400000)
BS = 49
ROW = 4352
cH, cS, cC, cU, cW, cY = 0, 128, 144, 160, 176, 208
XS, WS_, AUX = 0, 49152, 122880
CVR = 8704
XT = AUX + 3 * CVR
STL, CSF, BCNT = AUX + 36352, AUX + 37376, AUX + 40448
YFLG, YCNT, ACNT, WFLG, ECNT, GCNT, CWFLG = [BCNT + 4 * k for k in range(7)]
LDS_BYTES = 163840
SQ, SWG, SWU, SWS, SK, SV, SSH, SSK, SSD, SOUT, SDBG, SWD = 4, 8, 12, 16, 20, 24, 28, 32, 36, 40, 44, 48
sW, sB, sXCD, sI, sRB1, sCB1, sKS, sRB2, sCB2, sWS, sC = 52, 53, 54, 55, 56, 57, 58, 59, 60, 61, 62
sT0, sT1, sT2, sT3, sCNT = 63, 64, 65, 66, 67
sTM = 68
sPR = 70
sA = 86
POLL_LIMIT = 1 << 17
LOG2E = 1.4426950408889634


def f2u(x):
    import struct
    return struct.unpack("<I", struct.pack("<f", x))[0]


class Gen:
    def __init__(self, opt):
        self.o = opt
        self.a = Asm()
        self.row = int(opt.get('row', ROW))

    def ws_shift(self):
        off = int(self.o.get("x_wsoff", "0"), 0)
        if off:
            self.a(f"s_add_u32 s{SWS}, s{SWS}, {off}\ns_addc_u32 s{SWS+1}, s{SWS+1}, 0")

    def stamp(self, k, kind="1"):
        if self.o.get("profile") != kind and not (k == 0 and self.o.get("profile")):
            return
        a = self.a
        a(f"{'s_memtime' if self.o.get('clk') else 's_memrealtime'} {sr(sTM, 2)}")
        a.lg.drain()
        a(f"s_mov_b32 s{sPR+k}, s{sTM}")

    def dump_stamps(self, role):
        if not self.o.get("profile"):
            return
        a = self.a
        a("s_mov_b64 exec, -1")
        a("v_mov_b32 v1, 0")
        for k in range(16):
            a(f"v_writelane_b32 v1, s{sPR+k}, {k}")
        a(f"s_lshl_b32 s{sT0}, s2, 3\ns_add_u32 s{sT0}, s{sT0}, s{sW}\ns_lshl_b32 s{sT0}, s{sT0}, 6\ns_add_u32 s{sT0}, s{sT0}, {PROF}")
        a("v_mbcnt_lo_u32_b32 v2, -1, 0\nv_mbcnt_hi_u32_b32 v2, -1, v2\nv_lshlrev_b32 v2, 2, v2")
        a("s_mov_b64 exec, 0xffff")
        a(f"buffer_store_dword v1, v2, {sr(SWS,4)}, s{sT0} offen")
        if self.o.get("dbgout"):
            wg = int(self.o["dbgout"])
            skip = a.label("dbgout")
            sel = [1, 2, 3, 4, 8, 5, 6, 7] if role == "A" else [1, 2, 3, 6, 7, 8, 14]
            a(f"s_cmp_lg_u32 s2, {wg}\ns_cbranch_scc1 {skip}\ns_cmp_lg_u32 s{sB}, 1\ns_cbranch_scc1 {skip}")
            for n, k in enumerate(sel):
                a(f"s_sub_u32 s{sT0}, s{sPR+k}, s{sPR}\nv_writelane_b32 v1, s{sT0}, {n}")
            a(f"s_mov_b64 exec, {(1 << len(sel)) - 1}")
            a(f"buffer_store_dword v1, v2, {sr(SDBG,4)}, 0 offen offset:{4 if role == 'A' else 36}")
            a(f"{skip}:")

    def rec(self, fn, *args):
        real = self.a
        self.a = Rec(real)
        fn(*args)
        groups = self.a.groups
        self.a = real
        return groups

    def cnt_off(self, sdst, base, sidx):
        self.a(f"s_add_u32 s{sdst}, s{sidx}, {base}\ns_lshl_b32 s{sdst}, s{sdst}, 7")

    def signal(self, soffs, stmp, only_wave0=False):
        a = self.a
        skip = a.label("sig")
        a.begin()
        if only_wave0:
            a(f"s_cmp_lg_u32 s{sB}, 0\ns_cbranch_scc1 {skip}")
        a(f"s_mov_b32 s{stmp}, 1")
        for so in soffs:
            a(f"s_atomic_add s{stmp}, {sr(SWS,2)}, s{so}")
        if only_wave0:
            a(f"{skip}:")
        a.end()

    def poll_ops(self, items, atomic):
        o = []
        for val, off, _ in items:
            base = sr(SDBG, 2) if off is None else sr(SWS, 2)
            offs = "0" if off is None else f"s{off}"
            if atomic:
                o += [f"s_mov_b32 s{val}, 0", f"s_atomic_add s{val}, {base}, {offs} glc"]
            else:
                o += [f"s_load_dword s{val}, {base}, {offs} glc"]
        return "\n".join(o)

    def poll_issue(self, items, atomic=False, only_wave0=False):
        a = self.a
        skip = a.label("pi")
        a.begin()
        if only_wave0:
            a(f"s_cmp_lg_u32 s{sB}, 0\ns_cbranch_scc1 {skip}")
        a(self.poll_ops(items, atomic))
        if only_wave0:
            a(f"{skip}:")
        a.end()

    def poll_check(self, items, atomic=False, only_wave0=False, sleep=2):
        a = self.a
        lo, again, ok = a.label("poll"), a.label("again"), a.label("pollok")
        a.begin()
        a.lg.drain()
        if only_wave0:
            a(f"s_cmp_lg_u32 s{sB}, 0\ns_cbranch_scc1 {ok}")
        a(f"s_mov_b32 s{sCNT}, 0")
        a(f"{lo}:")
        for k, (val, _, target) in enumerate(items):
            a(f"s_cmp_ge_u32 s{val}, {target}")
            a(f"s_cbranch_scc1 {ok}" if k == len(items) - 1 else f"s_cbranch_scc0 {again}")
        a(f"{again}:")
        if sleep:
            a(f"s_sleep {sleep}")
        a(self.poll_ops(items, atomic))
        a(f"s_add_u32 s{sCNT}, s{sCNT}, 1")
        a(f"s_cmp_lt_u32 s{sCNT}, {POLL_LIMIT}")
        a("s_waitcnt lgkmcnt(0)")
        a(f"s_cbranch_scc1 {lo}")
        a(f"{ok}:")
        a.end()

    def vcheck_issue(self, vret, vaddr, srd, mask, wave=0):
        a = self.a
        skip = a.label("vi")
        a.begin()
        if wave is not None:
            a(f"s_cmp_lg_u32 s{sB}, {wave}\ns_cbranch_scc1 {skip}")
        a(f"s_mov_b64 exec, {mask}")
        a(f"buffer_load_dword v{vret}, v{vaddr}, {sr(srd,4)}, 0 offen sc1")
        a("s_mov_b64 exec, -1")
        a(f"{skip}:")
        a.end()

    def vcheck(self, vret, vaddr, vtarget, srd, mask, wave=0):
        a = self.a
        lo, ok, skip = a.label("vc"), a.label("vcok"), a.label("vcskip")
        a.begin()
        if wave is not None:
            a(f"s_cmp_lg_u32 s{sB}, {wave}\ns_cbranch_scc1 {skip}")
        a(f"""
        s_mov_b64 exec, {mask}
        s_mov_b32 s{sCNT}, 0
        {lo}:
        v_cmp_le_u32 vcc, {vtarget}, v{vret}
        s_cmp_eq_u64 vcc, exec
        s_cbranch_scc1 {ok}
        s_sleep 8
        buffer_load_dword v{vret}, v{vaddr}, {sr(srd,4)}, 0 offen sc1
        s_add_u32 s{sCNT}, s{sCNT}, 1
        s_cmp_lt_u32 s{sCNT}, {POLL_LIMIT}
        s_waitcnt vmcnt(0)
        s_cbranch_scc1 {lo}
        {ok}:
        s_mov_b64 exec, -1
        {skip}:
        """)
        a.end()

    def lds_flag_wait(self, vaddr, vtmp, go, value=1):
        a = self.a
        lo = a.label("lf")
        a(f"""
        s_mov_b32 s{sCNT}, 0
        {lo}:
        ds_read_b32 v{vtmp}, v{vaddr}
        s_add_u32 s{sCNT}, s{sCNT}, 1
        s_waitcnt lgkmcnt(0)
        v_readfirstlane_b32 s{sT0}, v{vtmp}
        s_cmp_eq_u32 s{sT0}, {value}
        s_cbranch_scc1 {go}
        s_sleep 1
        s_cmp_lt_u32 s{sCNT}, {POLL_LIMIT*16}
        s_cbranch_scc1 {lo}
        """)

    SRDS = ((SQ, 0, 2621440), (SWG, 56, 1966080), (SWU, 64, 1966080), (SWS, 96, WS_SIZE), (SK, 8, 2621440),
            (SV, 16, 2621440), (SSH, 24, 5120), (SSK, 32, 2621440), (SSD, 40, 1280), (SOUT, 80, 2621440),
            (SDBG, 88, 256), (SWD, 72, 1966080))

    def srd_words(self, which):
        for srd, _, size in self.SRDS:
            if srd in which:
                self.a(f"s_mov_b32 s{srd+2}, {size}\ns_mov_b32 s{srd+3}, 0x20000")

    def prologue(self):
        a = self.a
        a("s_cmp_ge_u32 s2, 256\ns_cbranch_scc1 L_end")
        if self.o.get("profile"):
            a(f"{'s_memtime' if self.o.get('clk') else 's_memrealtime'} {sr(sTM, 2)}\ns_waitcnt lgkmcnt(0)\ns_mov_b32 s{sPR+15}, s{sTM}")
        for srd, off, _ in self.SRDS:
            if srd in (SQ, SWG, SWU, SWS, SDBG):
                a(f"s_load_dwordx2 {sr(srd,2)}, s[0:1], {off}")
        a("v_lshrrev_b32 v1, 6, v0")
        a(f"""
        s_and_b32 s{sXCD}, s2, 7
        v_readfirstlane_b32 s{sW}, v1
        s_lshr_b32 s{sI}, s2, 3
        s_and_b32 s{sT0}, s{sXCD}, 1
        s_lshr_b32 s{sT1}, s{sXCD}, 1
        s_and_b32 s{sT2}, s{sI}, 7
        s_lshl3_add_u32 s{sRB1}, s{sT0}, s{sT2}
        s_lshr_b32 s{sT2}, s{sI}, 3
        s_lshl2_add_u32 s{sCB1}, s{sT1}, s{sT2}
        s_and_b32 s{sB}, s{sW}, 3
        s_cmp_ge_u32 s{sW}, 4
        s_cbranch_scc1 L_roleB
        """)
        if self.o.get("pf", "1") == "1":
            a(f"""
            s_getpc_b64 s[{sT1}:{sT2}]
            L_pc:
            s_lshl_b32 s{sT0}, s{sI}, 11
            v_lshl_add_u32 v1, v0, 3, s{sT0}
            v_cmp_gt_u32 vcc, L_end-L_pc-4, v1
            s_and_saveexec_b64 s[{sTM}:{sTM+1}], vcc
            s_cbranch_execz L_nopf
            global_load_dwordx2 v[254:255], v1, s[{sT1}:{sT2}]
            L_nopf:
            s_mov_b64 exec, -1
            """)
        a("s_branch L_roleA")

    def decode_rest(self):
        a = self.a
        a(f"""
        s_and_b32 s{sT0}, s{sXCD}, 1
        s_lshr_b32 s{sT1}, s{sXCD}, 1
        s_lshl2_add_u32 s{sT3}, s{sT0}, s{sT1}
        s_lshl_b32 s{sWS}, s{sT3}, 5
        s_add_u32 s{sWS}, s{sWS}, s{sI}
        """)
        if self.o.get("g2map", "84") == "84":
            a(f"""
            s_bfe_u32 s{sT1}, s{sXCD}, 0x10001
            s_lshl1_add_u32 s{sT0}, s{sT0}, s{sT1}
            s_and_b32 s{sT1}, s{sI}, 7
            s_lshl3_add_u32 s{sRB2}, s{sT0}, s{sT1}
            s_lshr_b32 s{sT0}, s{sXCD}, 2
            s_lshr_b32 s{sT1}, s{sI}, 3
            s_lshl2_add_u32 s{sCB2}, s{sT0}, s{sT1}
            """)
        else:
            a(f"""
            s_and_b32 s{sT2}, s{sI}, 3
            s_lshl2_add_u32 s{sRB2}, s{sT3}, s{sT2}
            s_lshr_b32 s{sCB2}, s{sI}, 2
            """)
        if self.o.get("profile"):
            for k in range(15):
                a(f"s_mov_b32 s{sPR+k}, 0")

    def role_a(self):
        a = self.a
        XA, WA, VH = 1, 5, 11
        FR, ACC = 120, 160
        T = 112
        sWM, sWN = sA, sA + 1
        sH = sA + 2
        xf = lambda p, i: FR + 20 * p + 4 * i
        wf = lambda p, j: FR + 20 * p + 8 + 4 * j
        acc = lambda i, j: ACC + (i * 3 + j) * 16
        def addr_setup():
            a(f"""
            s_and_b32 s{sWM}, s{sB}, 1
            s_lshr_b32 s{sWN}, s{sB}, 1
            v_and_b32 v{T}, 31, v0
            v_lshrrev_b32 v{T+1}, 5, v0
            v_bfe_u32 v{T+2}, v0, 1, 3
            v_xor_b32 v{T+2}, v{T+2}, v{T+1}
            s_lshl_b32 s{sT0}, s{sWM}, 13
            v_lshl_add_u32 v{T}, v{T}, 7, s{sT0}
            """)
            for t in range(4):
                a(f"v_xor_b32 v{T+3}, {2*t}, v{T+2}\nv_lshl_add_u32 v{XA+t}, v{T+3}, 4, v{T}")
            a(f"""
            v_bfe_u32 v{T+2}, v0, 4, 1
            v_mul_u32_u24 v{T+3}, 3072, v{T+2}
            v_mul_u32_u24 v{T+4}, 1536, v{T+1}
            v_bfe_u32 v{T+5}, v0, 2, 2
            v_lshl_add_u32 v{T+3}, v{T+5}, 6, v{T+3}
            v_and_b32 v{T+5}, 1, v0
            v_lshl_add_u32 v{T+3}, v{T+5}, 4, v{T+3}
            v_bfe_u32 v{T+5}, v0, 1, 1
            v_lshl_add_u32 v{T+3}, v{T+5}, 3, v{T+3}
            v_add_u32 v{T+3}, v{T+3}, v{T+4}
            v_lshlrev_b32 v{T+2}, 5, v{T+2}
            s_mul_i32 s{sT0}, s{sWN}, 3
            s_lshl_b32 s{sT3}, s{sRB1}, 1
            s_add_u32 s{sT3}, s{sT3}, s{sWM}
            s_mul_i32 s{sT3}, s{sT3}, {BS}
            s_mul_i32 s{sT2}, s{sCB1}, 3
            s_add_u32 s{sT3}, s{sT3}, s{sT2}
            """)
            for j in range(3):
                a(f"""
                s_add_u32 s{sT1}, s{sT0}, {j}
                s_lshr_b32 s{sT2}, s{sT1}, 1
                s_and_b32 s{sT1}, s{sT1}, 1
                s_add_u32 s{sH+j}, s{sT3}, s{sT2}
                s_lshl_b32 s{sH+j}, s{sH+j}, 3
                s_add_u32 s{sH+j}, s{sH+j}, s{sT1}
                s_lshl_b32 s{sH+j}, s{sH+j}, 9
                s_add_u32 s{sH+j}, s{sH+j}, {HH}
                s_lshl_b32 s{sT1}, s{sT1}, 5
                v_xor_b32 v{T+4}, s{sT1}, v{T+2}
                s_lshl_b32 s{sT2}, s{sT2}, 8
                s_add_u32 s{sT2}, s{sT2}, {WS_}
                v_add3_u32 v{WA+j}, v{T+3}, v{T+4}, s{sT2}
                v_add_u32 v{WA+3+j}, 49152, v{WA+j}
                """)
            a(f"""
            v_and_b32 v{T+4}, 15, v0
            v_lshlrev_b32 v{T+4}, 4, v{T+4}
            v_lshl_add_u32 v{T+4}, v{T+1}, 8, v{T+4}
            v_bfe_u32 v{T+5}, v0, 4, 1
            v_lshl_add_u32 v{VH}, v{T+5}, 10, v{T+4}
            """)

        a("L_roleA:\nv_and_b32 v0, 63, v0")
        self.decode_rest()
        self.srd_words((SQ, SWS, SDBG, SWG, SWU))
        a("s_waitcnt lgkmcnt(0)")
        self.ws_shift()
        a(f"s_setprio {self.o.get('aprio', 2)}")
        a.vm.issue("pf")
        self.stamp(0)
        a(f"s_or_b32 s{sA+8}, s2, s{sB}\ns_cmp_lg_u32 s{sA+8}, 0\ns_cbranch_scc1 L_noclear")
        a(f"v_lshlrev_b32 v{T}, 7, v0\nv_mov_b32 v{T+1}, 0")
        for p in range(4):
            a(f"s_mov_b32 s{sT0}, {p*8192}\nbuffer_store_dword v{T+1}, v{T}, {sr(SWS,4)}, s{sT0} offen sc1")
        p0a = "sk" if self.o.get("p0", "B") == "A" else "s"
        if "s" not in p0a:
            a(f"s_waitcnt vmcnt(0)\nv_mov_b32 v{T}, 1\ns_mov_b64 exec, 1")
            a(f"buffer_store_dword v{T}, off, {sr(SDBG,4)}, 0 sc1\ns_mov_b64 exec, -1")
        a("L_noclear:")
        if "s" in p0a:
            self.stats_load()
        if self.o.get("touch", "0") == "1":
            self.touch_pages()
        if "k" in p0a:
            q = list(a.vm.q)
            a(f"s_and_b32 s{sT0}, s{sI}, 1\ns_sub_u32 s{sT0}, 3, s{sT0}\ns_cmp_ge_u32 s{sB}, s{sT0}\ns_cbranch_scc1 L_p0W")
            for typ in "CW":
                a.vm.q = list(q)
                if typ == "W":
                    a("L_p0W:")
                self.task_index(typ == "C")
                (self.kv_issue if typ == "C" else self.wd_issue)()
                addr_setup()
                if "s" in p0a:
                    self.stats_compute(announce=f"L_noann{typ}")
                self.stamp(9)
                (self.kv_work if typ == "C" else self.wd_work)()
                if typ == "C":
                    a("s_branch L_p0done")
            a("L_p0done:")
        else:
            csa = self.o.get("cs", "B") == "A"
            if csa:
                self.colsum_a_issue()
            addr_setup()
            if "s" in p0a:
                self.stats_compute(announce="L_noann")
            if csa:
                self.colsum_a()
        self.stamp(10)

        def reads(g):
            s, t, p = g >> 2, g & 3, g & 1
            sl = s % 3
            wa = WA + (3 if sl == 2 else 0)
            wo = (sl % 2) * 24576 + t * 6144
            r = [f"ds_read_b128 {vr(xf(p,0),4)}, v{XA+t} offset:{sl*16384}"]
            r += [f"ds_read_b64_tr_b16 {vr(wf(p,0)+2*q,2)}, v{wa} offset:{wo+q*768}" for q in range(2)]
            r += [f"ds_read_b128 {vr(xf(p,1),4)}, v{XA+t} offset:{sl*16384+4096}"]
            for j in (1, 2):
                r += [f"ds_read_b64_tr_b16 {vr(wf(p,j)+2*q,2)}, v{wa+j} offset:{wo+q*768}" for q in range(2)]
            return r

        a("s_setprio 0")
        a.vm.wait("pf")
        a("s_barrier")
        self.stamp(1)
        CF, SF, M2, C1, KK, AD, E, HP = 12, 18, 22, 26, 28, 30, 120, 128
        VE, FT = 33, 35
        NW, NH = 6, 3
        HR, ACC2 = 128, 176
        wpool = list(range(36, 116, 4)) + list(range(8, 36, 4)) + list(range(116, 128, 4))
        wr = lambda i, j: wpool[(i % NW) * 5 + j]
        NE = int(self.o.get("ne", 0))
        assert self.ncs() and NE <= 4
        sRot, sWb, sHb, sWo, sHo, sPo, sPv = [sA + 5 + k for k in range(7)]

        def mf(p, i, j, first=False):
            c = "0" if first else vr(acc(i, j), 16)
            if self.o.get("x_m16") and not first:
                k = acc(i, j) + 8 * p
                return "\n".join(f"v_mfma_f32_16x16x32_bf16 {vr(k+4*u,4)}, {vr(wf(p,j),4)}, {vr(xf(p,i),4)}, {vr(k+4*u,4)}" for u in range(2))
            return f"v_mfma_f32_32x32x16_bf16 {vr(acc(i,j),16)}, {vr(wf(p,j),4)}, {vr(xf(p,i),4)}, {c}"

        def run(mfmas, fill, per):
            k = 0
            for m in mfmas:
                a(m)
                for _ in range(per):
                    if k < len(fill):
                        play(a, fill[k]); k += 1
            for g in fill[k:]:
                play(a, g)

        def dsl(lst):
            return [[("ds", r, "f")] for r in lst]

        def corr_addr():
            b = self.a
            b(f"""
            v_and_b32 v{AD}, 31, v0
            s_lshl_b32 s{sT0}, s{sWM}, 9
            s_add_u32 s{sT0}, s{sT0}, {STL}
            v_lshl_add_u32 v{AD+1}, v{AD}, 3, s{sT0}
            s_mul_i32 s{sT0}, s{sWN}, {768 if self.ncs() else 1536}
            s_add_u32 s{sT0}, s{sT0}, {CSF}
            v_lshl_add_u32 v{AD}, v{AD}, {3 if self.ncs() else 4}, s{sT0}
            v_mov_b32 v{AD+2}, {GCNT}
            v_lshlrev_b32 v{VE}, 4, v0
            v_add_u32 v{VE+1}, 1024, v{VE}
            """)
            self.g2_scalars(sRot, sWb)
            b(f"""
            s_mul_i32 s{sT0}, s{sB}, 12
            s_mul_i32 s{sT1}, s{sRB2}, {BS}
            s_add_u32 s{sT1}, s{sT1}, s{sT0}
            s_lshl_b32 s{sHb}, s{sT1}, 12
            s_add_u32 s{sHb}, s{sHb}, {HH}
            s_lshl_b32 s{sT0}, s{sRB1}, 1
            s_add_u32 s{sT0}, s{sT0}, s{sWM}
            s_lshr_b32 s{sT1}, s{sCB1}, 2
            s_lshl2_add_u32 s{sT0}, s{sT0}, s{sT1}
            """)
            self.cnt_off(sPo, cH, sT0)

        def corr_prepare():
            b = self.a
            if not self.ncs():
                for op in range(10):
                    for j in range(3):
                        c = 68 + 4 * j
                        b([f"v_add_f32 v{c}, v{c}, v{c+1}", f"v_add_f32 v{c+2}, v{c+2}, v{c+3}",
                           f"v_add_f32 v{c}, v{c}, v{c+2}", f"v_cvt_pk_bf16_f32 v{c+1}, v{c}, v{c}",
                           f"v_and_b32 v{c+1}, 0xffff0000, v{c+1}", f"v_sub_f32 v{c+1}, v{c}, v{c+1}",
                           f"v_cvt_pk_bf16_f32 v{CF+2*j}, v{c}, v{c+1}", f"v_and_b32 v{c+2}, 0xffff0000, v{CF+2*j}",
                           f"v_sub_f32 v{c+1}, v{c+1}, v{c+2}", f"v_cvt_pk_bf16_f32 v{CF+2*j+1}, v{c+1}, 0"][op])
            b.begin()
            b("s_mov_b32 exec_lo, 0")
            for j in range(6):
                b(f"v_mov_b32 v{CF+j}, 0")
            b("s_mov_b32 exec_lo, -1")
            b.end()
            for i in range(2):
                b(f"v_rcp_f32 v{C1+i}, v{SF+2*i+1}")
                b(f"v_cvt_pk_bf16_f32 v{M2+2*i}, -v{SF+2*i}, -v{SF+2*i}")
                b(f"v_cvt_pk_bf16_f32 v{M2+2*i+1}, -v{SF+2*i}, -v{SF+2*i}")
                b(f"v_mul_f32 v{KK+i}, v{SF+2*i+1}, v{SF+2*i+1}")
                b(f"v_mul_f32 v{C1+i}, {hex(f2u(-LOG2E))}, v{C1+i}")
            b(f"v_mov_b32 v{AD}, {ACNT}\nv_mov_b32 v{AD+1}, 1")

        pend = []

        def wgroups(i, v16):
            b = self.a
            for j in range(0 if self.o.get("x_nowd") else 5):
                b.begin()
                if j == 0:
                    self.step_off(i, sWo, sWb, sRot, 5120)
                v, off = (v16, 0) if j == 0 else (v16 + 1, (j - 1) * 1024)
                b.vmem(f"buffer_load_dwordx4 {vr(wr(i,j),4)}, v{v}, {sr(SWS,4)}, s{sWo} offen offset:{off} sc1", f"w{i}")
                b.end()

        def swiglu(n, i, j):
            b = self.a
            c, hp = acc(i, j), HP + 4 * n
            if n >= int(self.o.get("pk", 6)):
                sel = "op_sel_hi:[1,0]" if i == 0 else "op_sel:[0,1] op_sel_hi:[1,1]"
                sel3 = "op_sel_hi:[1,0,0]" if i == 0 else "op_sel:[0,1,1] op_sel_hi:[1,1,1]"
                for r in range(0, 8, 2):
                    b(f"v_pk_mul_f32 {vr(E+r,2)}, {vr(c+r,2)}, {vr(C1,2)} {sel}")
                for r in range(8):
                    b(f"v_exp_f32 v{E+r}, v{E+r}")
                    if r & 1:
                        b(f"v_pk_mul_f32 {vr(c+r-1,2)}, {vr(c+r-1,2)}, {vr(c+8+r-1,2)}")
                for r in range(0, 8, 2):
                    b(f"v_pk_fma_f32 {vr(E+r,2)}, {vr(E+r,2)}, {vr(KK,2)}, {vr(KK,2)} {sel3}")
                for r in range(8):
                    b(f"v_rcp_f32 v{E+r}, v{E+r}")
                for r in range(0, 8, 2):
                    b(f"v_pk_mul_f32 {vr(c+r,2)}, {vr(c+r,2)}, {vr(E+r,2)}")
            else:
                for r in range(8):
                    b(f"v_mul_f32 v{E+r}, v{c+r}, v{C1+i}")
                for r in range(8):
                    b(f"v_exp_f32 v{E+r}, v{E+r}")
                    b(f"v_mul_f32 v{c+r}, v{c+r}, v{c+8+r}")
                for r in range(8):
                    b(f"v_fma_f32 v{E+r}, v{E+r}, v{KK+i}, v{KK+i}")
                for r in range(8):
                    b(f"v_rcp_f32 v{E+r}, v{E+r}")
                for r in range(8):
                    b(f"v_mul_f32 v{c+r}, v{c+r}, v{E+r}")
            for r in range(4):
                b(f"v_cvt_pk_bf16_f32 v{hp+r}, v{c+2*r}, v{c+2*r+1}")
            pend.append(f"buffer_store_dwordx4 {vr(hp,4)}, v{VH}, {sr(SWS,4)}, s{sH+j} offen offset:{i*2048} sc1")
            if str(n) in self.o.get("hflush", "012345"):
                for st in pend:
                    b.vmem(st, "hst")
                pend.clear()

        order = [(i, j) for j in range(3) for i in range(2)]
        if self.o.get("snake", "0") == "1":
            order = [(0, 0), (1, 0), (1, 1), (0, 1), (0, 2), (1, 2)]
        for r in reads(0):
            a.ds(r, "f")
        for g in range(39):
            p = g & 1
            a.lg.drain()
            if (g + 1) & 3 == 0:
                if g == 3:
                    a.vm.drain()
                self.stamp(((g + 1) >> 2) + 1, "2")
                a("s_barrier")
            if g == 35:
                a(f"s_setprio {self.o.get('eprio', 2)}")
            fill = dsl(reads(g + 1))
            if g == 33:
                fill += self.rec(corr_addr)
            if g == 37:
                fill += dsl([f"ds_read_b32 v{FT}, v{AD+2}"])
                run([mf(p, i, j) for i, j in order], fill, 3)
                continue
            if g == 38:
                go = a.label("ggo")
                a(f"v_readfirstlane_b32 s{sT0}, v{FT}\ns_cmp_eq_u32 s{sT0}, 4\ns_cbranch_scc1 {go}")
                self.lds_flag_wait(AD + 2, FT, go, 4)
                a(f"{go}:")
                if self.ncs():
                    cr = [f"ds_read_b64 {vr(CF+2*j,2)}, v{AD} offset:{j*256}" for j in range(3)]
                else:
                    cr = [f"ds_read_b128 {vr(68+4*j,4)}, v{AD} offset:{j*512}" for j in range(3)]
                cr += [f"ds_read_b64 {vr(SF+2*i,2)}, v{AD+1} offset:{i*256}" for i in range(2)]
                fill = [[("ds", r, "cr")] for r in cr] + fill
                ms = [mf(p, i, j) for i, j in order]
                nf = 3 if self.ncs() == 0 else 4
                run(ms[:nf], fill, 5 if nf == 3 else 4)
                run(ms[nf:], [[("lgwait", ("cr",))]] + self.rec(corr_prepare), 7)
                continue
            run([mf(p, i, j, g == 0) for i, j in order], fill, 3 if len(fill) <= 16 else 5)
        a.lg.drain()
        a("s_mov_b64 exec, 1")
        a.ds(f"ds_add_u32 v{AD}, v{AD+1}", "ac")
        a("s_mov_b64 exec, -1")
        self.stamp(2)
        self.stamp(1, "3")
        last = []
        for i, j in order:
            last += [mf(1, i, j),
                     f"v_mfma_f32_32x32x8_bf16 {vr(acc(i,j),16)}, {vr(CF+2*j,2)}, {vr(M2+2*i,2)}, {vr(acc(i,j),16)}"]
        for m in last[:4]:
            a(m)
        run(last[4:], self.rec(swiglu, 0, *order[0]), 6)
        early = sum([self.rec(wgroups, i, VE) for i in range(NE)], [])
        for n in range(1, 6):
            self.stamp(1 + n, "3")
            part = early[len(early) * (n - 1) // 5:len(early) * n // 5]
            body = self.rec(swiglu, n, *order[n])
            k = 0
            for t, g in enumerate(body):
                play(a, g)
                while k < len(part) and k * len(body) < (t + 1) * len(part) - len(part) // 2:
                    play(a, part[k]); k += 1
            for g in part[k:]:
                play(a, g)
        if self.o.get("hold", "0") == "1":
            a("s_mov_b64 exec, 1")
            a.ds(f"ds_add_u32 v{AD}, v{AD+1} offset:{ECNT-ACNT}", "ac")
            a("s_mov_b64 exec, -1")
        self.stamp(3)
        self.stamp(7, "3")
        V16, V16B, VLX, VLW, VF = 1, 2, 3, 4, 5
        a(f"""
        v_lshlrev_b32 v{V16}, 4, v0
        v_add_u32 v{V16B}, 1024, v{V16}
        s_lshl_b32 s{sT0}, s{sB}, 12
        v_add_u32 v{VLX}, s{sT0}, v{V16}
        s_mul_i32 s{sT0}, s{sB}, 6144
        s_add_u32 s{sT0}, s{sT0}, {WS_}
        v_add_u32 v{VLW}, s{sT0}, v{V16}
        v_mov_b32 v{VF}, {WFLG}
        """)

        rest = list(range(NE, NW))
        NPRE = min(int(self.o.get("npre", 1)), len(rest))
        NIN = min(int(self.o.get("nin", 0)), len(rest) - NPRE)
        mid = rest[NPRE:len(rest) - NIN]
        for i in rest[:NPRE]:
            wgroups(i, V16)
        a.vm.wait("hst")
        self.signal([sPo], sPv)
        a("s_setprio 0")
        self.stamp(4)
        self.stamp(8, "3")
        items = [(sPv + 2, sPv + 1, 0 if self.o.get("x_nopoll") else 8)]
        a(f"s_lshl2_add_u32 s{sT0}, s{sRB2}, s{sB}")
        self.cnt_off(sPv + 1, cH, sT0)
        PW = min(int(self.o.get("pollw", 2)), len(mid))
        for i in mid[:len(mid) - PW]:
            wgroups(i, V16)
        self.poll_issue(items, atomic=True)
        for i in mid[len(mid) - PW:]:
            wgroups(i, V16)
        self.poll_check(items, atomic=True, sleep=0)
        self.stamp(5)
        self.stamp(9, "3")
        H0 = int(self.o.get("h0", 2))
        sHend = sPo
        self.step_off(0, sHo, sHb, sRot, 4096)
        a(f"s_add_u32 s{sHend}, s{sHb}, {12*4096}")

        def hadv():
            return [[("i", f"s_add_u32 s{sHo}, s{sHo}, 4096")],
                    [("i", f"s_cmp_eq_u32 s{sHo}, s{sHend}"), ("i", f"s_cselect_b32 s{sHo}, s{sHb}, s{sHo}")]]

        def hl(i, tt):
            r = HR + (i % NH) * 16 + 4 * tt
            if self.o.get("x_noh") and i >= 3:
                return [("i", "s_nop 0")]
            return [("vmem", f"buffer_load_dwordx4 {vr(r,4)}, v{V16}, {sr(SWS,4)}, s{sHo} offen offset:{tt*1024} sc1", f"h{i}_{tt}")]

        for i in range(H0):
            for tt in range(4):
                play(a, hl(i, tt))
            for g in hadv():
                play(a, g)
        acc2 = lambda tt, j: ACC2 + (tt * 5 + j) * 4
        fill = []
        for i in range(H0, 12):
            for tt in range(4):
                free = 20 * (i - NH) + 5 * tt + 6 if i >= NH else 0
                fill.append((free, hl(i, tt)))
            fill += [(0, g) for g in hadv()]
        wfill = []
        for k, i in enumerate(rest[len(rest) - NIN:]):
            wfill += [(8 + 20 * k + 4 * t, g) for t, g in enumerate(self.rec(wgroups, i, V16))]
        TM = int(self.o.get("tm", 2))
        seq = [(i, tt) for i in range(12 - TM) for tt in range(4)] + [(i, tt) for tt in range(4) for i in range(12 - TM, 12)]
        mi = 0
        lfill = []
        pw = []
        for i, tt in seq:
            if tt == 0 and i in (1, 4, 8):
                self.stamp({1: 10, 4: 11, 8: 12}[i], "3")
            if (i, tt) == (4, 0):
                a.ds(f"ds_read_b32 v{VF+1}, v{VF}", "wf")
            if (i, tt) == (4, 2):
                go = a.label("wgo")
                a.lg.drain()
                a(f"v_readfirstlane_b32 s{sT0}, v{VF+1}\ns_cmp_eq_u32 s{sT0}, 1\ns_cbranch_scc1 {go}")
                self.lds_flag_wait(VF, VF + 1, go)
                a(f"{go}:")
            nx = i + 2 if tt == 0 else None
            if nx is not None and NW <= nx < 12:
                for j in range(5):
                    v, off = self.wl_addr(5 * (nx - NW) + j, VLX, VLW)
                    lfill.append((mi + (11 if nx == NW else 0), [("ds", f"ds_read_b128 {vr(wr(nx,j),4)}, v{v} offset:{off}", f"wr{nx}")]))
            assert not any(op[0] == "vmem" and op[2] == f"h{i}_{tt}" for _, g in fill for op in g)
            assert not any(op[2] == f"wr{i}" for _, g in lfill for op in g)
            assert not any(op[0] == "vmem" and op[2] == f"w{i}" for _, g in wfill for op in g)
            a.lg.wait(f"wr{i}")
            a.vm.wait(f"w{i}", f"h{i}_{tt}")
            for j in range(5):
                c = "0" if i == 0 else vr(acc2(tt, j), 4)
                if not (self.o.get("x_nomfma") and i > 0):
                    a(f"v_mfma_f32_16x16x32_bf16 {vr(acc2(tt,j),4)}, {vr(wr(i,j),4)}, {vr(HR+(i%NH)*16+4*tt,4)}, {c}")
                mi += 1
                if fill and fill[0][0] <= mi:
                    play(a, fill.pop(0)[1])
                elif wfill and wfill[0][0] <= mi:
                    play(a, wfill.pop(0)[1])
                elif lfill and lfill[0][0] <= mi:
                    play(a, lfill.pop(0)[1])
                elif pw and pw[0][0] <= mi:
                    play(a, pw.pop(0)[1])
            if i == 11:
                for j in range(5):
                    t = tt * 5 + j
                    v, off = self.wl_addr(t, VLX, VLW)
                    pw.append((mi + 3, [("ds", f"ds_write_b128 v{v}, {vr(ACC2+4*t,4)} offset:{off}", "p")]))
        assert not fill and not lfill
        self.stamp(6)
        self.stamp(13, "3")
        for _, g in pw:
            play(a, g)
        a.lg.drain()
        a("s_barrier")
        self.stamp(7)
        self.dump_stamps("A")
        a("s_endpgm")

    def wl_addr(self, f, vx, vw):
        sl, n = (1, 2, 0)[f // 10], f % 10
        return (vx, XS + sl * 16384 + n * 1024) if n < 4 else (vw, sl * 24576 + (n - 4) * 1024)

    def g2_scalars(self, sRot, sWb):
        a = self.a
        a(f"""
        s_mul_i32 s{sT0}, s{sCB2}, 3
        s_lshr_b32 s{sT0}, s{sT0}, 1
        s_and_b32 s{sT1}, s{sI}, 3
        s_mul_i32 s{sT1}, s{sT1}, 3
        s_add_u32 s{sT0}, s{sT0}, s{sT1}
        s_sub_u32 s{sT1}, s{sT0}, 12
        """)
        a.begin()
        a(f"s_cmp_ge_u32 s{sT0}, 12\ns_cselect_b32 s{sRot}, s{sT1}, s{sT0}")
        a.end()
        rot2 = self.o.get("rot2", "x")
        if rot2 == "0":
            a(f"s_mov_b32 s{sRot}, 0")
        elif rot2 == "x":
            a(f"s_mul_i32 s{sRot}, s{sXCD}, 3\ns_lshr_b32 s{sRot}, s{sRot}, 1")
        a(f"""
        s_mul_i32 s{sT0}, s{sB}, 12
        s_mul_i32 s{sT1}, s{sCB2}, {BS}
        s_add_u32 s{sT1}, s{sT1}, s{sT0}
        s_mul_i32 s{sWb}, s{sT1}, 5120
        s_add_u32 s{sWb}, s{sWb}, {WDT}
        """)

    def step_off(self, i, so, sb, sRot, mul):
        a = self.a
        a.begin()
        a(f"""
        s_add_u32 s{so}, s{sRot}, {i}
        s_sub_u32 s{sT3}, s{so}, 12
        s_cmp_ge_u32 s{so}, 12
        s_cselect_b32 s{so}, s{sT3}, s{so}
        s_mul_i32 s{so}, s{so}, {mul}
        s_add_u32 s{so}, s{so}, s{sb}
        """)
        a.end()

    def b_common_setup(self):
        a = self.a
        VX, VG, VU, T = 1, 5, 8, 20
        self.VX, self.VG, self.VU = VX, VG, VU
        self.sXL, self.sWL, self.sXO, self.sWO = sA, sA + 1, sA + 2, sA + 3
        a("L_roleB:\nv_and_b32 v0, 63, v0")
        a(f"s_setprio {self.o.get('bprio', 1)}")
        rot = self.o.get("rot", "1")
        if rot == "0":
            a(f"s_mov_b32 s{sKS}, 0")
        elif rot == "1":
            a(f"""
            s_mul_i32 s{sT0}, s{sCB1}, 3
            s_add_u32 s{sT0}, s{sT0}, s{sRB1}
            s_mul_i32 s{sT1}, s{sT0}, 26
            s_lshr_b32 s{sT1}, s{sT1}, 8
            s_mul_i32 s{sT1}, s{sT1}, 10
            s_sub_u32 s{sKS}, s{sT0}, s{sT1}
            """)
        elif rot == "2":
            a(f"s_add_u32 s{sT0}, s{sRB1}, s{sCB1}\ns_and_b32 s{sT0}, s{sT0}, 1\ns_mul_i32 s{sKS}, s{sT0}, 5")
        elif rot == "4":
            a(f"s_add_u32 s{sT0}, s{sRB1}, s{sCB1}\ns_and_b32 s{sT0}, s{sT0}, 3\ns_mul_i32 s{sT0}, s{sT0}, 5\ns_lshr_b32 s{sKS}, s{sT0}, 1")
        a(f"""
        v_lshrrev_b32 v{T}, 3, v0
        v_mul_u32_u24 v{T}, 1280, v{T}
        s_lshl2_add_u32 s{sT0}, s{sRB1}, s{sB}
        s_mul_i32 s{sT0}, s{sT0}, 40960
        v_add_u32 v{T}, s{sT0}, v{T}
        v_and_b32 v{T+1}, 7, v0
        v_lshrrev_b32 v{T+2}, 4, v0
        v_xor_b32 v{T+1}, v{T+1}, v{T+2}
        v_lshl_add_u32 v{VX}, v{T+1}, 4, v{T}
        v_xor_b32 v{VX+1}, 64, v{VX}
        v_add_u32 v{VX+1}, 10240, v{VX+1}
        v_add_u32 v{VX+2}, 20480, v{VX}
        v_add_u32 v{VX+3}, 20480, v{VX+1}
        s_lshl_b32 s{self.sXL}, s{sB}, 12
        s_mul_i32 s{self.sWL}, s{sB}, 6144
        s_add_u32 s{self.sWL}, s{self.sWL}, {WS_}
        v_bfe_u32 v{T}, v0, 2, 2
        v_mul_u32_u24 v{T}, 3072, v{T}
        v_and_b32 v{T+1}, 3, v0
        v_lshl_add_u32 v{T}, v{T+1}, 4, v{T}
        s_mul_i32 s{sT0}, s{sB}, 49152
        s_mul_i32 s{sT1}, s{sCB1}, {384 if self.o.get("x_noover") else 192}
        s_add_u32 s{sT0}, s{sT0}, s{sT1}
        v_add_u32 v{T}, s{sT0}, v{T}
        """)
        if self.o.get("x_noover"):
            a(f"v_bfe_u32 v{T+1}, v0, 2, 1\nv_mul_u32_u24 v{T+1}, {3072-192}, v{T+1}\nv_sub_u32 v{T}, v{T}, v{T+1}")
        self.srd_words((SQ, SWG, SWU))
        s0 = self.rec(self.stage_issue, 0)
        a("s_waitcnt lgkmcnt(0)")
        for g in s0[:4]:
            play(a, g)
        for srd, off, _ in self.SRDS:
            if srd not in (SQ, SWG, SWU, SWS, SDBG):
                a(f"s_load_dwordx2 {sr(srd,2)}, s[0:1], {off}")
        for i in range(3):
            a(f"""
            v_add_u32 v{T+1}, {4*i}, v{T+2}
            v_mul_u32_u24 v{T+3}, 11, v{T+1}
            v_lshrrev_b32 v{T+3}, 5, v{T+3}
            v_mul_u32_u24 v{T+4}, {12288-192}, v{T+3}
            v_lshl_add_u32 v{T+4}, v{T+1}, 6, v{T+4}
            v_add_u32 v{VG+i}, v{T+4}, v{T}
            v_xor_b32 v{VU+i}, 32, v{VG+i}
            """)
            play(a, s0[4 + i])
        for g in s0[7:]:
            play(a, g)
        self.decode_rest()
        self.srd_words([srd for srd, _, _ in self.SRDS if srd not in (SQ, SWG, SWU)])
        a("s_waitcnt lgkmcnt(0)")
        self.ws_shift()

    def stage_issue(self, s):
        a = self.a
        sl = s % 3
        fl = self.o.get("g1flags", "")
        for i in range(4):
            a.begin()
            if i == 0:
                a(f"""
                s_lshl_b32 s{self.sXO}, s{sKS}, 7
                s_mul_i32 s{self.sWO}, s{sKS}, 196608
                s_add_u32 s{sKS}, s{sKS}, 1
                s_cmp_eq_u32 s{sKS}, 10
                s_cselect_b32 s{sKS}, 0, s{sKS}
                """)
            a(f"s_add_u32 m0, s{self.sXL}, {XS+sl*16384+i*1024}")
            a.vmem(f"buffer_load_dwordx4 v{self.VX+i}, {sr(SQ,4)}, s{self.sXO} offen {fl} lds", f"S{s}" if i else f"F{s}")
            a.end()
        for up in range(2):
            for i in range(3):
                a.begin()
                a(f"s_add_u32 m0, s{self.sWL}, {sl*24576+up*3072+i*1024}")
                a.vmem(f"buffer_load_dwordx4 v{(self.VU if up else self.VG)+i}, {sr(SWU if up else SWG,4)}, s{self.sWO} offen {fl} lds", f"S{s}")
                a.end()

    def touch_pages(self):
        a = self.a
        T = 110
        items = [(sRB2, 0, BS * 4096, HH - 128), (sRB2, 0, BS * 4096, HH + (BS - 1) * 4096),
                 (sRB1, 1, BS * 4096, HH + (BS - 1) * 4096), (sCB2, 0, BS * 5120, WDT - 128),
                 (sCB2, 0, BS * 5120, WDT + (BS - 1) * 5120), (sXCD, 0, 80 * self.row, UT + 4096),
                 (sXCD, 0, 80 * self.row, UT + 79 * self.row + 4096), (sXCD, 0, 80 * self.row, YY + 4096),
                 (sXCD, 0, 80 * self.row, YY + 79 * self.row + 4096), (sCB2, 0, 80 * self.row, YY + 4096),
                 (sCB2, 0, 80 * self.row, YY + 79 * self.row + 4096)]
        for lane, (src, sh, mul, base) in enumerate(items):
            a(f"s_mul_i32 s{sT0}, s{src}, {mul << sh}\ns_add_u32 s{sT0}, s{sT0}, {base}\nv_writelane_b32 v{T}, s{sT0}, {lane}")
        a(f"s_mov_b64 exec, {(1 << len(items)) - 1}")
        a.vmem(f"buffer_load_dword v{T+1}, v{T}, {sr(SWS,4)}, 0 offen", "pf")
        a("s_mov_b64 exec, -1")

    def stats_load(self):
        a = self.a
        T, X = 156, 24
        a(f"""
        v_lshrrev_b32 v{T}, 5, v0
        s_lshl2_add_u32 s{sT0}, s{sWS}, s{sB}
        s_lshl_b32 s{sT0}, s{sT0}, 1
        v_add_u32 v{T}, s{sT0}, v{T}
        v_lshlrev_b32 v19, 3, v{T}
        v_mul_u32_u24 v{T}, 1280, v{T}
        v_and_b32 v{T+1}, 31, v0
        v_lshl_add_u32 v{T}, v{T+1}, 3, v{T}
        """)
        for j in range(5):
            a.vmem(f"buffer_load_dwordx2 {vr(X+2*j,2)}, v{T}, {sr(SQ,4)}, 0 offen offset:{j*256}", "stat")

    def reduce32(self, v, t):
        a = self.a
        for n in (8, 4, 2, 1):
            a(f"v_add_f32_dpp v{v}, v{v}, v{v} row_ror:{n} row_mask:0xf bank_mask:0xf")
        a(f"v_mov_b32 v{t}, v{v}\nv_permlane16_swap_b32 v{v}, v{t}\nv_add_f32 v{v}, v{v}, v{t}")

    def stats_compute(self, announce):
        a = self.a
        X, U, T = 24, 34, 20
        a.vm.wait("stat")
        if announce:
            a(f"""
        s_cmp_lg_u32 s{sA+8}, 0
        s_cbranch_scc1 {announce}
        v_mov_b32 v{T}, 1
        s_mov_b64 exec, 1
        buffer_store_dword v{T}, off, {sr(SDBG,4)}, 0 sc1
        s_mov_b64 exec, -1
        {announce}:
        """)
        for j in range(10):
            a(f"v_lshlrev_b32 v{U+2*j}, 16, v{X+j}\nv_and_b32 v{U+2*j+1}, 0xffff0000, v{X+j}")
        a(f"v_add_f32 v{T}, v{U}, v{U+1}\nv_add_f32 v{T+1}, v{U+2}, v{U+3}")
        for j in range(4, 20):
            a(f"v_add_f32 v{T+(j&1)}, v{T+(j&1)}, v{U+j}")
        a(f"v_add_f32 v{T}, v{T}, v{T+1}")
        self.reduce32(T, T + 1)
        a(f"v_mul_f32 v{T}, {hex(f2u(1.0/640))}, v{T}")
        for j in range(20):
            a(f"v_sub_f32 v{U+j}, v{U+j}, v{T}")
        a(f"v_mul_f32 v{T+1}, v{U}, v{U}\nv_mul_f32 v{T+2}, v{U+1}, v{U+1}")
        for j in range(2, 20):
            a(f"v_fmac_f32 v{T+1+(j&1)}, v{U+j}, v{U+j}")
        a(f"v_add_f32 v{T+1}, v{T+1}, v{T+2}")
        self.reduce32(T + 1, T + 2)
        a(f"""
        v_mul_f32 v{T+1}, {hex(f2u(1.0/640))}, v{T+1}
        v_cvt_pk_bf16_f32 v{T+2}, v{T}, v{T+1}
        v_lshlrev_b32 v{T}, 16, v{T+2}
        v_and_b32 v{T+1}, 0xffff0000, v{T+2}
        v_add_f32 v{T+1}, {hex(f2u(1e-5))}, v{T+1}
        v_cvt_pk_bf16_f32 v{T+1}, v{T+1}, v{T+1}
        v_and_b32 v{T+1}, 0xffff0000, v{T+1}
        v_sqrt_f32 v{T+1}, v{T+1}
        v_cvt_pk_bf16_f32 v{T+1}, v{T+1}, v{T+1}
        v_and_b32 v{T+1}, 0xffff0000, v{T+1}
        s_mov_b32 s{sT0}, {ST}
        """)
        a.begin()
        a("s_mov_b32 exec_lo, 1\ns_mov_b32 exec_hi, 1")
        a.vmem(f"buffer_store_dwordx2 {vr(T,2)}, v19, {sr(SWS,4)}, s{sT0} offen sc1", "stst")
        a("s_mov_b64 exec, -1")
        a.end()

    def colsum_partial(self):
        a = self.a
        T, F = 12, 60
        a(f"""
        v_bfe_u32 v{T+2}, v0, 4, 1
        v_mul_u32_u24 v{T+3}, 3072, v{T+2}
        v_lshrrev_b32 v{T+4}, 5, v0
        v_mul_u32_u24 v{T+4}, 1536, v{T+4}
        v_bfe_u32 v{T+5}, v0, 2, 2
        v_lshl_add_u32 v{T+3}, v{T+5}, 6, v{T+3}
        v_and_b32 v{T+5}, 1, v0
        v_lshl_add_u32 v{T+3}, v{T+5}, 4, v{T+3}
        v_bfe_u32 v{T+5}, v0, 1, 1
        v_lshl_add_u32 v{T+3}, v{T+5}, 3, v{T+3}
        v_lshl_add_u32 v{T+3}, v{T+2}, 5, v{T+3}
        s_min_u32 s{sT1}, s{sB}, 2
        s_lshl_b32 s{sT1}, s{sT1}, 8
        s_add_u32 s{sT0}, s{sT1}, {WS_}
        v_add3_u32 v{T}, v{T+3}, v{T+4}, s{sT0}
        v_xor_b32 v{T+1}, 32, v{T}
        s_lshl4_add_u32 s{sT0}, s{sCB1}, s{sRB1}
        s_mul_i32 s{sT0}, s{sT0}, 768
        s_add_u32 s{sT0}, s{sT0}, s{sT1}
        s_add_u32 s{sT0}, s{sT0}, {CS}
        s_mov_b32 s{sT1}, 0x3f803f80
        v_lshlrev_b32 v147, 2, v0
        """)
        for h in range(2):
            for n in range(8):
                a.ds(f"ds_read_b64_tr_b16 {vr(F+16*h+2*n,2)}, v{T+h} offset:{(n>>1)*6144+(n&1)*768}", f"cs{h}")
        for r in range(4):
            a(f"v_mov_b32 v{T+2+r}, 0")
        for h in range(2):
            a.lg.wait(f"cs{h}")
            for n in range(16):
                a(f"v_dot2c_f32_bf16 v{T+2+2*h+(n&1)}, s{sT1}, v{F+16*h+n}")
        a(f"v_add_f32 v{T+2}, v{T+2}, v{T+3}\nv_add_f32 v{T+4}, v{T+4}, v{T+5}")
        a(f"v_permlane32_swap_b32 v{T+2}, v{T+4}\nv_add_f32 v{T+2}, v{T+2}, v{T+4}")
        a(f"v_mov_b32 v148, v{T+2}\nv_add_u32 v149, s{sT0}, v147")

    def colsum_a_issue(self):
        a = self.a
        T = 158
        sL = sA + 9
        a(f"""
        s_min_u32 s{sT1}, s{sB}, 2
        s_mul_i32 s{sL}, s{sB}, 6144
        s_add_u32 s{sL}, s{sL}, {WS_+2*24576}
        v_lshrrev_b32 v{T}, 2, v0
        v_mul_u32_u24 v{T}, 3072, v{T}
        v_and_b32 v{T+1}, 3, v0
        v_lshl_add_u32 v{T}, v{T+1}, 4, v{T}
        s_mul_i32 s{sT0}, s{sRB1}, 122880
        s_mul_i32 s{sT2}, s{sCB1}, 192
        s_add_u32 s{sT0}, s{sT0}, s{sT2}
        s_lshl_b32 s{sT1}, s{sT1}, 6
        s_add_u32 s{sT0}, s{sT0}, s{sT1}
        v_xor_b32 v{T+1}, 32, v{T}
        """)
        for up in range(2):
            for i in range(3):
                a(f"s_add_u32 m0, s{sL}, {up*3072+i*1024}\ns_add_u32 s{sT1}, s{sT0}, {i*49152}")
                if i == 2:
                    a("s_mov_b32 exec_hi, 0")
                a.vmem(f"buffer_load_dwordx4 v{T+up}, {sr(SWU if up else SWG,4)}, s{sT1} offen lds", "cs")
                if i == 2:
                    a("s_mov_b32 exec_hi, -1")

    def colsum_a(self):
        a = self.a
        T, F = 12, 60
        sL = sA + 9
        a(f"""
        v_bfe_u32 v{T+2}, v0, 4, 1
        v_mul_u32_u24 v{T+3}, 3072, v{T+2}
        v_lshrrev_b32 v{T+4}, 5, v0
        v_lshl_add_u32 v{T+3}, v{T+4}, 8, v{T+3}
        v_bfe_u32 v{T+5}, v0, 2, 2
        v_lshl_add_u32 v{T+3}, v{T+5}, 6, v{T+3}
        v_and_b32 v{T+5}, 1, v0
        v_lshl_add_u32 v{T+3}, v{T+5}, 4, v{T+3}
        v_bfe_u32 v{T+5}, v0, 1, 1
        v_lshl_add_u32 v{T+3}, v{T+5}, 3, v{T+3}
        v_lshl_add_u32 v{T+3}, v{T+2}, 5, v{T+3}
        v_add_u32 v{T}, s{sL}, v{T+3}
        v_xor_b32 v{T+1}, 32, v{T}
        s_min_u32 s{sT1}, s{sB}, 2
        s_lshl_b32 s{sT1}, s{sT1}, 8
        s_lshl4_add_u32 s{sT0}, s{sCB1}, s{sRB1}
        s_mul_i32 s{sT0}, s{sT0}, 768
        s_add_u32 s{sT0}, s{sT0}, s{sT1}
        s_add_u32 s{sT0}, s{sT0}, {CS}
        s_mov_b32 s{sT1}, 0x3f803f80
        v_lshlrev_b32 v{T+6}, 2, v0
        """)
        a.vm.wait("cs")
        for h in range(2):
            for n in range(5):
                a.ds(f"ds_read_b64_tr_b16 {vr(F+10*h+2*n,2)}, v{T+h} offset:{n*512}", f"cs{h}")
        for r in range(4):
            a(f"v_mov_b32 v{T+2+r}, 0")
        for h in range(2):
            a.lg.wait(f"cs{h}")
            for n in range(10):
                a(f"v_dot2c_f32_bf16 v{T+2+2*h+(n&1)}, s{sT1}, v{F+10*h+n}")
        a(f"v_add_f32 v{T+2}, v{T+2}, v{T+3}\nv_add_f32 v{T+4}, v{T+4}, v{T+5}")
        a(f"v_permlane32_swap_b32 v{T+2}, v{T+4}\nv_add_f32 v{T+2}, v{T+2}, v{T+4}")
        a.vmem(f"buffer_store_dword v{T+2}, v{T+6}, {sr(SWS,4)}, s{sT0} offen sc1", "csst")

    def colsum_l_setup(self):
        a = self.a
        T, A0 = 12, 180
        a(f"""
        v_bfe_u32 v{T+2}, v0, 4, 1
        v_mul_u32_u24 v{T+3}, 3072, v{T+2}
        v_lshrrev_b32 v{T+4}, 5, v0
        v_mul_u32_u24 v{T+4}, 1536, v{T+4}
        v_bfe_u32 v{T+5}, v0, 2, 2
        v_lshl_add_u32 v{T+3}, v{T+5}, 6, v{T+3}
        v_and_b32 v{T+5}, 1, v0
        v_lshl_add_u32 v{T+3}, v{T+5}, 4, v{T+3}
        v_bfe_u32 v{T+5}, v0, 1, 1
        v_lshl_add_u32 v{T+3}, v{T+5}, 3, v{T+3}
        v_lshl_add_u32 v{T+3}, v{T+2}, 5, v{T+3}
        v_add3_u32 v{A0}, v{T+3}, v{T+4}, s{self.sWL}
        v_xor_b32 v{A0+1}, 32, v{A0}
        v_add_u32 v{A0+2}, 49152, v{A0}
        v_add_u32 v{A0+3}, 49152, v{A0+1}
        v_mov_b32 v{A0+4}, 0x3f803f80
        """)
        for J in range(6):
            a(f"v_mov_b32 v{A0+6+J}, 0")

    def colsum_l_stage(self, st):
        a = self.a
        A0, F = 180, 192
        sl = st % 3
        for J in range(6):
            for q in range(2):
                a.ds(f"ds_read_b64_tr_b16 {vr(F+4*J+2*q,2)}, v{A0+(J&1)+(2 if sl == 2 else 0)} offset:{(sl%2)*24576+(J>>1)*256+q*768}", "cl")
        a.begin()
        a.lg.wait("cl")
        for r in range(4):
            for J in range(6):
                a(f"v_dot2c_f32_bf16 v{A0+6+J}, v{A0+4}, v{F+4*J+r}")
        a.end()

    def colsum_l_finish(self):
        a = self.a
        A0 = 180
        a(f"s_lshl_b32 s{sT0}, s{sB}, 2\ns_add_u32 s{sT0}, s{sT0}, {CSF}\nv_lshl_add_u32 v{A0}, v0, 4, s{sT0}")
        for p in range(3):
            a(f"v_permlane32_swap_b32 v{A0+6+2*p}, v{A0+7+2*p}")
        for p in range(3):
            a(f"v_add_f32 v{A0+6+2*p}, v{A0+6+2*p}, v{A0+7+2*p}")
            a.ds(f"ds_write_b32 v{A0}, v{A0+6+2*p} offset:{p*1024}", "gw")

    def colsum_r_setup(self):
        a = self.a
        T, A0, sJ = 12, 180, sA + 13
        r2 = self.o.get("rot", "1") == "2"
        a(f"""
        v_bfe_u32 v{T+2}, v0, 4, 1
        v_mul_u32_u24 v{T+3}, 3072, v{T+2}
        v_lshrrev_b32 v{T+4}, 5, v0
        v_mul_u32_u24 v{T+4}, 1536, v{T+4}
        v_bfe_u32 v{T+5}, v0, 2, 2
        v_lshl_add_u32 v{T+3}, v{T+5}, 6, v{T+3}
        v_and_b32 v{T+5}, 1, v0
        v_lshl_add_u32 v{T+3}, v{T+5}, 4, v{T+3}
        v_bfe_u32 v{T+5}, v0, 1, 1
        v_lshl_add_u32 v{T+3}, v{T+5}, 3, v{T+3}
        v_lshl_add_u32 v{T+3}, v{T+2}, 5, v{T+3}
        s_lshr_b32 s{sJ}, s{sRB1}, {1 if r2 else 2}
        s_mul_i32 s{sT0}, s{sJ}, 11
        s_lshr_b32 s{sT0}, s{sT0}, 5
        s_mul_i32 s{sT0}, s{sT0}, 3
        s_sub_u32 s{sT0}, s{sJ}, s{sT0}
        s_mul_i32 s{sT0}, s{sT0}, 24576
        s_min_u32 s{sT1}, s{sB}, 2
        s_lshl_b32 s{sT1}, s{sT1}, 8
        s_add_u32 s{sT0}, s{sT0}, s{sT1}
        s_add_u32 s{sT0}, s{sT0}, {WS_}
        v_add3_u32 v{A0}, v{T+3}, v{T+4}, s{sT0}
        v_xor_b32 v{A0+1}, 32, v{A0}
        s_add_u32 s{sT2}, s{sRB1}, s{sCB1}
        s_and_b32 s{sT2}, s{sT2}, {1 if r2 else 3}
        s_mul_i32 s{sT0}, s{sT2}, 5
        s_lshr_b32 s{sT0}, s{sT0}, {0 if r2 else 1}
        s_add_u32 s{sT0}, s{sT0}, s{sJ}
        s_lshl4_add_u32 s{sT0}, s{sCB1}, s{sT0}
        s_mul_i32 s{sT0}, s{sT0}, 768
        s_add_u32 s{sT0}, s{sT0}, s{sT1}
        s_add_u32 s{sT0}, s{sT0}, {CS}
        v_lshl_add_u32 v{A0+2}, v0, 2, s{sT0}
        v_mov_b32 v{A0+3}, 0x3f803f80
        """)
        if not r2:
            a.begin()
            a(f"s_and_b32 s{sT2}, s{sT2}, 1\ns_add_u32 s{sT2}, s{sT2}, 2\ns_cmp_lt_u32 s{sJ}, s{sT2}\ns_cselect_b32 s{sJ}, s{sJ}, 15")
            a.end()
        for r in range(4):
            a(f"v_mov_b32 v{A0+4+r}, 0")

    def colsum_r_call(self, j, part):
        a = self.a
        lab = a.label("csr")
        a.begin()
        a(f"s_cmp_lg_u32 s{sA+13}, {j}\ns_cbranch_scc1 {lab}\ns_call_b64 s[{sTM}:{sTM+1}], L_colsum{part}\n{lab}:")
        a.end()

    def colsum_r_body(self):
        a = self.a
        A0, F = 180, 192
        for h in range(2):
            a(f"L_colsum{h}:")
            for n in range(8):
                a(f"ds_read_b64_tr_b16 {vr(F+16*h+2*n,2)}, v{A0+h} offset:{(n>>1)*6144+(n&1)*768}")
            a(f"s_setpc_b64 s[{sTM}:{sTM+1}]")
        for h in range(2):
            a(f"L_colsum{2+h}:")
            a(f"s_waitcnt lgkmcnt(0)")
            for n in range(16):
                a(f"v_dot2c_f32_bf16 v{A0+4+2*h+(n&1)}, v{A0+3}, v{F+16*h+n}")
            if h == 0:
                a(f"s_setpc_b64 s[{sTM}:{sTM+1}]")
        a(f"v_add_f32 v{A0+4}, v{A0+4}, v{A0+5}\nv_add_f32 v{A0+6}, v{A0+6}, v{A0+7}")
        a(f"v_permlane32_swap_b32 v{A0+4}, v{A0+6}\nv_add_f32 v{A0+4}, v{A0+4}, v{A0+6}")
        a(f"buffer_store_dword v{A0+4}, v{A0+2}, {sr(SWS,4)}, 0 offen sc1")
        a(f"s_setpc_b64 s[{sTM}:{sTM+1}]")

    def colsum_store(self):
        self.a.vmem(f"buffer_store_dword v148, v149, {sr(SWS,4)}, 0 offen sc1", "csst")

    def ncs(self):
        return {"A": 16, "B": 10, "L": 0, "R": 10}[self.o.get("cs", "B")]

    def gather_issue(self):
        a = self.a
        T, G = 14, 24
        a(f"""
        v_and_b32 v{T}, 31, v0
        s_lshl2_add_u32 s{sT0}, s{sRB1}, s{sB}
        s_lshl_b32 s{sT0}, s{sT0}, 8
        s_add_u32 s{sT0}, s{sT0}, {ST}
        v_lshlrev_b32 v{T}, 3, v{T}
        s_mul_i32 s{sT1}, s{sCB1}, 12288
        s_mul_i32 s{sT2}, s{sB}, 192
        s_add_u32 s{sT1}, s{sT1}, s{sT2}
        s_add_u32 s{sT1}, s{sT1}, {CS}
        v_lshlrev_b32 v{T+1}, 2, v0
        """)
        a.vmem(f"buffer_load_dwordx2 {vr(G,2)}, v{T}, {sr(SWS,4)}, s{sT0} offen sc1", "gat")
        for p in range(self.ncs()):
            if p and p % 5 == 0:
                a(f"s_add_u32 s{sT1}, s{sT1}, 3840")
            a.vmem(f"buffer_load_dword v{G+2+p}, v{T+1}, {sr(SWS,4)}, s{sT1} offen offset:{(p%5)*768} sc1", "gat")

    def gather_finish(self):
        a = self.a
        T, G = 14, 24
        a.vm.wait("gat")
        a(f"s_lshl_b32 s{sT0}, s{sB}, 8\ns_add_u32 s{sT0}, s{sT0}, {STL}\nv_add_u32 v{T}, s{sT0}, v{T}")
        a.ds(f"ds_write_b64 v{T}, {vr(G,2)}", "gw")
        if self.ncs() == 0:
            self.colsum_l_stage(9)
            self.colsum_l_finish()
        else:
            c = G + 2
            n = self.ncs()
            while n > 1:
                h = n // 2
                for p in range(h):
                    a(f"v_add_f32 v{c+p}, v{c+p}, v{c+n-h+p}")
                n -= h
            a(f"""
            v_cvt_pk_bf16_f32 v{c+1}, v{c}, v{c}
            v_and_b32 v{c+1}, 0xffff0000, v{c+1}
            v_sub_f32 v{c+1}, v{c}, v{c+1}
            v_cvt_pk_bf16_f32 v{c+2}, v{c}, v{c+1}
            v_and_b32 v{c+4}, 0xffff0000, v{c+2}
            v_sub_f32 v{c+1}, v{c+1}, v{c+4}
            v_cvt_pk_bf16_f32 v{c+3}, v{c+1}, 0
            s_mul_i32 s{sT0}, s{sB}, 384
            s_add_u32 s{sT0}, s{sT0}, {CSF}
            v_lshl_add_u32 v{T+1}, v0, 3, s{sT0}
            """)
            a.begin()
            a("s_mov_b32 exec_hi, 0xffff")
            a.ds(f"ds_write_b64 v{T+1}, {vr(c+2,2)}", "gw")
            a("s_mov_b32 exec_hi, -1")
            a.end()
        a(f"v_mov_b32 v{T}, {GCNT}\nv_mov_b32 v{T+1}, 1\ns_mov_b64 exec, 1")
        a.ds(f"ds_add_u32 v{T}, v{T+1}", "gw")
        a("s_mov_b64 exec, -1")

    def stage_base(self, sR):
        if self.o.get("p0", "B") == "B":
            return f"s_mul_i32 s{sR}, s{sB}, 8704\ns_add_u32 s{sR}, s{sR}, {AUX}"
        tab = (32768, 98304, 107008, 41472)
        o = f"s_mov_b32 s{sR}, {tab[0]}"
        for b in range(1, 4):
            o += f"\ns_cmp_eq_u32 s{sB}, {b}\ns_cselect_b32 s{sR}, {tab[b]}, s{sR}"
        return o

    def task_index(self, K, CV):
        b = self.a
        bal = self.o.get("bal", "0") == "1"
        b(f"s_and_b32 s{sT0}, s{sI}, 1\ns_lshr_b32 s{sT1}, s{sI}, 1")
        if CV:
            b(f"""
            s_mul_i32 s{sT2}, s{sT0}, 3
            s_mul_i32 s{sT3}, s{sT1}, 5
            s_add_u32 s{sT2}, s{sT2}, s{sT3}
            s_mul_i32 s{sT3}, s{sXCD}, 80
            s_add_u32 s{sT2}, s{sT2}, s{sT3}
            s_add_u32 s{self.sCH}, s{sT2}, s{sB}
            """)
        if K:
            b(f"""
            s_mul_i32 s{sT0}, s{sT0}, {2 if bal else 3}
            s_mul_i32 s{sT1}, s{sT1}, 5
            s_mul_i32 s{sT2}, s{sXCD}, 80
            s_add_u32 s{sT0}, s{sT0}, s{sB}
            """)
        elif bal:
            b(f"""
            s_add_u32 s{sT0}, s{sT0}, s{sB}
            s_sub_u32 s{sT0}, s{sT0}, 2
            s_mul_i32 s{sT1}, s{sT1}, 3
            s_mul_i32 s{sT2}, s{sXCD}, 48
            """)
        else:
            b(f"""
            s_sub_u32 s{sT2}, s{sB}, 1
            s_mul_i32 s{sT0}, s{sT0}, s{sT2}
            s_mul_i32 s{sT1}, s{sT1}, 3
            s_mul_i32 s{sT2}, s{sXCD}, 48
            """)
        b(f"s_add_u32 s{sT0}, s{sT0}, s{sT1}\ns_add_u32 s{sC}, s{sT0}, s{sT2}")

    def kv_issue(self):
        a = self.a
        T = 150
        fl = self.o.get("p0flags", "nt")
        sR, sT0K, sCG = sA + 5, sA + 6, sA + 7
        a(f"""
        s_and_b32 s{sT0K}, s{sC}, 63
        s_lshl_b32 s{sT0K}, s{sT0K}, 5
        s_lshr_b32 s{sCG}, s{sC}, 6
        {self.stage_base(sR)}
        v_lshrrev_b32 v{T}, 3, v0
        v_mul_u32_u24 v{T}, 1280, v{T}
        v_and_b32 v{T+1}, 7, v0
        v_lshl_add_u32 v{T}, v{T+1}, 4, v{T}
        s_mul_i32 s{sT0}, s{sT0K}, 1280
        s_lshl_b32 s{sT1}, s{sCG}, 7
        s_add_u32 s{sT0}, s{sT0}, s{sT1}
        v_add_u32 v{T+2}, s{sT0}, v{T}
        v_subrev_u32 v{T}, 5120, v{T+2}
        v_add_u32 v{T+1}, 5120, v{T+2}
        s_lshl_b32 s{sT1}, s{sCG}, 9
        v_lshl_add_u32 v{T+3}, v0, 3, s{sT1}
        """)
        a.begin()
        a(f"s_mov_b32 m0, s{sR}")
        a.vmem(f"buffer_load_dwordx4 v{T}, {sr(SK,4)}, 0 offen {fl} lds", "K0")
        a.end()
        for i in range(1, 5):
            a.begin()
            a(f"s_add_u32 m0, s{sR}, {i*1024}\ns_mov_b32 s{sT0}, {(i-1)*10240}")
            if i == 4:
                a("s_mov_b32 exec_hi, 0")
            a.vmem(f"buffer_load_dwordx4 v{T+1}, {sr(SK,4)}, s{sT0} offen {fl} lds", f"K{i}")
            if i == 4:
                a("s_mov_b32 exec_hi, -1")
            a.end()
        for i in range(4):
            a.begin()
            a(f"s_add_u32 m0, s{sR}, {4608+i*1024}\ns_mov_b32 s{sT0}, {i*10240}")
            a.vmem(f"buffer_load_dwordx4 v{T+2}, {sr(SV,4)}, s{sT0} offen {fl} lds", f"V{i}")
            a.end()
        a.vmem(f"buffer_load_dwordx2 v[54:55], v{T+3}, {sr(SSH,4)}, 0 offen", "SH")

    def kv_setup(self):
        a = self.a
        T = 20
        sR, sT0K, sCG = sA + 5, sA + 6, sA + 7
        a(f"""
        v_bfe_u32 v{T}, v0, 2, 2
        v_lshrrev_b32 v{T+1}, 4, v0
        v_lshlrev_b32 v{T+1}, 5, v{T+1}
        v_lshl_add_u32 v{T}, v{T}, 7, v{T+1}
        v_and_b32 v{T+1}, 3, v0
        v_lshl_add_u32 v{T}, v{T+1}, 3, v{T}
        v_add_u32 v154, s{sR}, v{T}
        v_lshrrev_b32 v{T+2}, 2, v0
        v_mul_u32_u24 v{T+2}, {4*self.row}, v{T+2}
        v_lshl_add_u32 v157, v{T+1}, 4, v{T+2}
        s_mul_i32 s{sA+8}, s{sCG}, {64*self.row}
        s_lshl1_add_u32 s{sA+8}, s{sT0K}, s{sA+8}
        s_add_u32 s{sA+8}, s{sA+8}, {UT}
        """)

    def kv_block(self, n):
        a = self.a
        T, K, Vv, W, KF, O = 20, 60, 78, 14, 96, 132
        a.vm.wait(f"K{n}", f"K{n+1}", f"V{n}", "SH")
        for i in ([0, 1, 2] if n == 0 else [2 * n + 1, 2 * n + 2]):
            a.ds(f"ds_read_b64_tr_b16 {vr(K+2*i,2)}, v154 offset:{i*512}", f"k{i}")
        for i in (2 * n, 2 * n + 1):
            a.ds(f"ds_read_b64_tr_b16 {vr(Vv+2*i,2)}, v154 offset:{4608+i*512}", f"v{i}")
        if n == 0:
            a(f"""
            v_lshlrev_b32 v{W}, 16, v54
            v_and_b32 v{W+1}, 0xffff0000, v54
            v_lshlrev_b32 v{W+2}, 16, v55
            v_and_b32 v{W+3}, 0xffff0000, v55
            """)
        nk = 0 if n == 0 else 4 * n + 2
        for p in range(4 * n, 4 * n + 4):
            while nk < p + 3:
                a.lg.wait(f"k{nk>>1}")
                a(f"v_lshlrev_b32 v{KF+2*nk}, 16, v{K+nk}\nv_and_b32 v{KF+2*nk+1}, 0xffff0000, v{K+nk}")
                nk += 1
            for e in range(2):
                a(f"v_mul_f32 v{T+e}, v{W+3}, v{KF+2*p+e+1}")
            for d in (2, 1, 0):
                for e in range(2):
                    a(f"v_fmac_f32 v{T+e}, v{W+d}, v{KF+2*p+e+4-d}")
            a.lg.wait(f"v{p>>1}")
            a(f"v_lshlrev_b32 v{T+2}, 16, v{Vv+p}\nv_and_b32 v{T+3}, 0xffff0000, v{Vv+p}")
            a(f"v_mul_f32 v{T}, v{T}, v{T+2}\nv_mul_f32 v{T+1}, v{T+1}, v{T+3}")
            a(f"v_cvt_pk_bf16_f32 v{O+p}, v{T}, v{T+1}")

    def kv_bounce(self):
        a = self.a
        KF, O = 96, 132
        for src, dst, bit, perm in ((O, KF, 1, "[1,0,3,2]"), (KF, O, 2, "[2,3,0,1]")):
            low = 0x55555555 if bit == 1 else 0x33333333
            for mask, js in ((low, [j for j in range(4) if not j & bit]), (low ^ 0xffffffff, [j for j in range(4) if j & bit])):
                for j in js:
                    a.begin()
                    a(f"s_mov_b32 vcc_lo, {hex(mask)}\ns_mov_b32 vcc_hi, {hex(mask)}")
                    for r in range(4):
                        a(f"v_cndmask_b32_dpp v{dst+4*j+r}, v{src+4*(j^bit)+r}, v{src+4*j+r}, vcc quad_perm:{perm} row_mask:0xf bank_mask:0xf")
                    a.end()

    def kv_stores(self):
        a = self.a
        O = 132
        for j in range(4):
            a.begin()
            a.vmem(f"buffer_store_dwordx4 {vr(O+4*j,4)}, v157, {sr(SWS,4)}, s{sA+8} offen sc1", "utst")
            if j < 3:
                a(f"s_add_u32 s{sA+8}, s{sA+8}, {self.row}")
            a.end()

    def wd_issue(self):
        a = self.a
        T = 150
        fl = self.o.get("p0flags", "nt")
        sR = sA + 5
        a(f"""
        s_lshr_b32 s{sA+6}, s{sC}, 3
        s_and_b32 s{sT1}, s{sC}, 3
        s_lshl2_add_u32 s{sA+6}, s{sA+6}, s{sT1}
        s_mul_i32 s{sA+6}, s{sA+6}, 10240
        s_bfe_u32 s{sT1}, s{sC}, 0x10002
        s_mul_i32 s{sT1}, s{sT1}, 640
        s_add_u32 s{sA+6}, s{sA+6}, s{sT1}
        {self.stage_base(sR)}
        """)
        for i in range(5):
            a(f"""
            v_add_u32 v{T+1}, {64*i}, v0
            v_mul_u32_u24 v{T+2}, 1639, v{T+1}
            v_lshrrev_b32 v{T+2}, 16, v{T+2}
            v_mul_u32_u24 v{T+2}, 640, v{T+2}
            v_lshl_add_u32 v{T+2}, v{T+1}, 4, v{T+2}
            """)
            a.begin()
            a(f"s_add_u32 m0, s{sR}, {i*1024}")
            a.vmem(f"buffer_load_dwordx4 v{T+2}, {sr(SWD,4)}, s{sA+6} offen {fl} lds", "kv")
            a.end()

    def wd_work(self):
        a = self.a
        T, F, VA = 20, 60, 150
        sR = sA + 5
        a(f"""
        v_bfe_u32 v{T}, v0, 2, 2
        v_mul_u32_u24 v{T}, 640, v{T}
        v_lshrrev_b32 v{T+2}, 4, v0
        v_lshl_add_u32 v{T}, v{T+2}, 5, v{T}
        v_and_b32 v{T+1}, 3, v0
        v_lshl_add_u32 v{T}, v{T+1}, 3, v{T}
        v_add_u32 v{T}, s{sR}, v{T}
        s_bfe_u32 s{sA+8}, s{sC}, 0x10002
        s_mul_i32 s{sA+8}, s{sA+8}, {4*BS}
        s_lshr_b32 s{sT1}, s{sC}, 3
        s_add_u32 s{sA+8}, s{sA+8}, s{sT1}
        s_mul_i32 s{sA+8}, s{sA+8}, 5120
        s_and_b32 s{sT1}, s{sC}, 3
        s_lshl_b32 s{sT1}, s{sT1}, 8
        s_add_u32 s{sA+8}, s{sA+8}, s{sT1}
        s_add_u32 s{sA+8}, s{sA+8}, {WDT}
        v_and_b32 v{T+1}, 15, v0
        v_lshlrev_b32 v{T+1}, 4, v{T+1}
        """)
        for n in range(5):
            a(f"""
            v_add_u32 v{T+3}, {4*n}, v{T+2}
            v_mul_u32_u24 v{VA+n}, 13, v{T+3}
            v_lshrrev_b32 v{VA+n}, 6, v{VA+n}
            v_mul_u32_u24 v{VA+n}, {(BS-1)*5120}, v{VA+n}
            v_lshl_add_u32 v{VA+n}, v{T+3}, 10, v{VA+n}
            v_add_u32 v{VA+n}, v{VA+n}, v{T+1}
            """)
        a.vm.wait("kv")
        for n in range(5):
            for q in range(2):
                a.ds(f"ds_read_b64_tr_b16 {vr(F+4*n+2*q,2)}, v{T} offset:{q*2560+n*128}", f"wt{n}")
        for n in range(5):
            a.lg.wait(f"wt{n}")
            a.vmem(f"buffer_store_dwordx4 {vr(F+4*n,4)}, v{VA+n}, {sr(SWS,4)}, s{sA+8} offen sc1", "utst")

    def conv_issue(self):
        a = self.a
        fl = self.o.get("p0flags", "nt")
        regs = self.o.get("p0mode", "burst") == "burst"
        a(f"""
        s_lshl_b32 s{sT0}, s{self.sCH}, 12
        v_lshl_add_u32 v176, v0, 4, s{sT0}
        s_lshl_b32 s{sT0}, s{self.sCH}, 1
        v_mov_b32 v19, s{sT0}
        """)
        a.vmem(f"buffer_load_ushort v19, v19, {sr(SSD,4)}, 0 offen", "hk")
        for i in range(4):
            if regs:
                a.vmem(f"buffer_load_dwordx4 {vr(160+4*i,4)}, v176, {sr(SSK,4)}, 0 offen offset:{i*1024} {fl}", "hk")
                continue
            a.begin()
            a(f"s_add_u32 m0, s{self.sR}, 96")
            a.vmem(f"buffer_load_dwordx4 v176, {sr(SSK,4)}, 0 offen offset:{i*1024} {fl} lds", "hk")
            a.end()

    def conv_fold(self):
        a = self.a
        if self.o.get("p0mode", "burst") == "burst":
            a.vm.wait("hk")
            a(f"""
            v_add_u32 v176, s{self.sR}, v18
            s_mov_b64 exec, 1
            v_lshlrev_b32 v177, 16, v160
            v_lshlrev_b32 v19, 16, v19
            v_add_f32 v177, v177, v19
            v_and_b32 v160, 0xffff0000, v160
            v_cvt_pk_bf16_f32 v160, v177, v160
            s_mov_b64 exec, -1
            """)
            for i in range(4):
                a.ds(f"ds_write_b128 v176, {vr(160+4*i,4)} offset:{96+i*1024}", "hw")
            return
        a(f"v_mov_b32 v176, s{self.sR}")
        a.vm.wait("hk")
        a.ds("ds_read_u16 v177, v176 offset:96", "h0")
        a("v_lshlrev_b32 v19, 16, v19")
        a.lg.wait("h0")
        a("v_lshlrev_b32 v177, 16, v177\nv_add_f32 v177, v177, v19\nv_cvt_pk_bf16_f32 v177, v177, v177")
        a.ds("ds_write_b16 v176, v177 offset:96", "h0")

    def conv_u_issue(self):
        a = self.a
        a(f"s_mul_i32 s{sT0}, s{self.sCH}, {self.row}\ns_add_u32 m0, s{self.sR}, 4352\ns_add_u32 s{sT0}, s{sT0}, {UT}")
        for i in range(4):
            a.vmem(f"buffer_load_dwordx4 v18, {sr(SWS,4)}, s{sT0} offen offset:{i*1024} sc1 lds", f"u{i}")

    def conv_setup(self):
        a = self.a
        T = 4
        a(f"""
        v_lshlrev_b32 v{T}, 2, v0
        v_add_u32 v{T}, s{self.sR}, v{T}
        v_mov_b32 v{T+1}, 0
        s_mov_b32 exec_hi, 0
        s_mov_b32 exec_lo, 0xffffff
        """)
        a.ds(f"ds_write_b32 v{T}, v{T+1}", "z")
        a("s_mov_b32 exec_lo, -1\ns_mov_b32 exec_hi, 0xff")
        a.ds(f"ds_write_b32 v{T}, v{T+1} offset:4192", "z")
        a("s_mov_b64 exec, -1")
        a(f"""
        v_and_b32 v{T}, 3, v0
        v_lshrrev_b32 v{T+1}, 4, v0
        v_bfe_u32 v{T+2}, v0, 2, 2
        v_lshlrev_b32 v{T+3}, 6, v{T+1}
        v_lshl_add_u32 v{T+3}, v{T+2}, 3, v{T+3}
        v_lshl_add_u32 v1, v{T}, 5, v{T+3}
        v_add_u32 v1, s{self.sR}, v1
        v_lshlrev_b32 v{T}, 3, v{T}
        v_sub_u32 v2, v{T}, v{T+3}
        s_add_u32 s{sT0}, s{self.sR}, {4352+64}
        v_add_u32 v2, s{sT0}, v2
        v_lshl_add_u32 v3, v0, 1, s{self.sR}
        v_mov_b32 v10, 0
        v_mov_b32 v11, 0
        v_lshl_add_u32 v12, v0, 4, s{self.sR}
        s_mul_i32 s{self.sY}, s{self.sCH}, {self.row}
        s_add_u32 s{self.sY}, s{self.sY}, {YY}
        """)

    def xt_issue(self, wave3=False):
        a = self.a
        T = 20
        sX = sA + 7
        a(f"""
        s_mul_i32 s{sX}, s{sRB2}, 81920
        s_mul_i32 s{sT2}, s{sCB2}, 160
        s_add_u32 s{sX}, s{sX}, s{sT2}
        """)
        for p in range(10):
            a.begin()
            lab = a.label("xt")
            if wave3:
                a(f"s_cmp_lg_u32 s{sB}, 3\ns_cbranch_scc1 {lab}")
            a(f"""
            v_add_u32 v{T}, {64*p}, v0
            v_mul_u32_u24 v{T+1}, 6554, v{T}
            v_lshrrev_b32 v{T+1}, 16, v{T+1}
            v_mul_u32_u24 v{T+1}, 1120, v{T+1}
            v_lshl_add_u32 v{T+1}, v{T}, 4, v{T+1}
            s_mov_b32 m0, {XT+p*1024}
            """)
            a(f"buffer_load_dwordx4 v{T+1}, {sr(SQ,4)}, s{sX} offen lds")
            a(f"{lab}:")
            a.end()

    def loader(self, steps, finish):
        a = self.a
        T = 20
        sO2 = sA + 10
        depth = int(self.o.get("ldepth", 0))
        late_xt = self.o.get("xtpos", "7") == "L"
        for st in steps:
            if st == 4:
                if late_xt:
                    self.xt_issue()
                go = a.label("ringfree")
                a(f"v_mov_b32 v{T}, {ACNT}")
                self.lds_flag_wait(T, T + 1, go, 4)
                a(f"{go}:")
            self.step_off(6 + st, self.sWo, self.sWb, self.sRot, 5120)
            for q in range(0 if self.o.get("x_nowd") else 4):
                prev = None
                for j in range(5):
                    isw, off = self.wl_addr(5 * st + j, 0, 1)
                    lds = off + (WS_ + q * 6144 if isw else q * 4096)
                    if prev is not None and lds == prev[0] + (j - prev[1]) * 1024 and j - prev[1] < 4:
                        imm = (j - prev[1]) * 1024
                    else:
                        prev, imm = (lds, j), 0
                        a(f"s_mov_b32 m0, {lds}")
                        a(f"s_add_u32 s{sO2}, s{self.sWo}, {q*61440+j*1024}")
                    a.vmem(f"buffer_load_dwordx4 v18, {sr(SWS,4)}, s{sO2} offen offset:{imm} sc1 lds", "wl")
                    if depth:
                        a(f"s_waitcnt vmcnt({depth})")
        if not finish:
            return
        a(f"v_mov_b32 v{T}, {WFLG}\nv_mov_b32 v{T+1}, 1")
        a.vm.drain()
        a.ds(f"ds_write_b32 v{T}, v{T+1}", "wf")

    def conv_main(self):
        a = self.a
        AF, BF, CA = 24, 88, 216
        NACC = 10
        Z2, Z1, YV, UR, RB = 4, 6, 8, 10, 248
        ca = lambda n: CA + 4 * (n % NACC)
        dpp = "row_mask:0xf bank_mask:0xf"

        def bread(i):
            g = [[("ds", f"ds_read_b64_tr_b16 {vr(BF+4*i+2*q,2)}, v2 offset:{128*i+32*(1-q)}", f"b{i}")] for q in range(2)]
            g[0].insert(0, ("vmwait", (f"u{i >> 3}",)))
            return g

        def uread(n):
            return [("ds", f"ds_read_u16_d16_hi v{UR+(n&1)}, v3 offset:{4352+128*n}", f"ur{n}")]

        yb = self.o.get("yburst", "1") == "1"
        rb = (lambda k: AF + 4 * k) if yb else (lambda k: RB + 4 * (k & 1))

        def yread(k):
            return [("ds", f"ds_read_b128 {vr(rb(k),4)}, v12 offset:{1024*k}", f"yr{k}")]

        def ystore(k):
            return [("lgwait", (f"yr{k}",)),
                    ("vmem", f"buffer_store_dwordx4 {vr(rb(k),4)}, v18, {sr(SWS,4)}, s{self.sY} offen offset:{1024*k} sc1", "yst")]

        fold = self.o.get("foldd", "1") == "1"

        def epi(n):
            c, pc = ca(n), ca(n - 1)
            z2, pz2, z1, pz1 = Z2 + (n & 1), Z2 + 1 - (n & 1), Z1 + (n & 1), Z1 + 1 - (n & 1)
            y, u = YV + (n & 1), UR + (n & 1)
            o = []
            if n < 31 and not fold:
                o.append(uread(n + 1))
            if n & 7 == 0 and n and not yb:
                o.append(yread((n >> 3) - 1))
            if n & 7 == 1 and n > 1 and not yb:
                o.append(ystore((n >> 3) - 1))
            for dst, cur, prev, add in ((z2, c + 3, pc + 3, c + 2), (z1, z2, pz2, c + 1), (y, z1, pz1, c)):
                if n == 0:
                    o.append([("i", f"v_add_f32_dpp v{dst}, v{cur}, v{add} wave_shr:1 {dpp} bound_ctrl:0")])
                else:
                    o.append([("i", f"v_add_f32_dpp v{dst}, v{prev}, v{add} wave_ror:1 {dpp}")])
                    o.append([("i", f"v_add_f32_dpp v{dst}, v{cur}, v{add} wave_shr:1 {dpp}")])
            if not fold:
                o.append([("lgwait", (f"ur{n}",)), ("i", f"v_fmac_f32 v{y}, s{self.sD}, v{u}")])
            if n & 1:
                o.append([("i", f"v_cvt_pk_bf16_f32 v{UR}, v{YV}, v{YV+1}")] if fold else
                         [("i", f"v_cvt_pk_bf16_f32 v{y}, v{YV}, v{YV+1}")])
                w = UR if fold else y
                o.append([("ds", f"ds_write_b16 v3, v{w} offset:{128*(n-1)}", f"yw{n}")])
                o.append([("ds", f"ds_write_b16_d16_hi v3, v{w} offset:{128*n}", f"yw{n}")])
            return o

        if not fold:
            a(f"v_lshlrev_b32 v19, 16, v19")
            a(f"v_readfirstlane_b32 s{self.sD}, v19")
        assert yb and fold

        def aread(m):
            return [[("ds", f"ds_read_b64_tr_b16 {vr(AF+4*m+2*q,2)}, v1 offset:{256*m+32*q}", f"a{m}")] for q in range(2)]

        PRE_A, PRE_B = int(self.o.get("prea", 16)), int(self.o.get("preb", 8))
        for m in range(PRE_A):
            for g in aread(m):
                play(a, g)
        for i in range(PRE_B):
            for g in bread(i):
                play(a, g)
        if self.o.get("hold", "0") == "1":
            go = a.label("hold")
            a(f"v_mov_b32 v20, {ECNT}")
            a.lg.drain()
            self.lds_flag_wait(20, 21, go, 4)
            a(f"{go}:")
        na, nb = PRE_A, PRE_B
        fill = []
        mi = 0
        self.stamp(1, "3")
        for n in range(32):
            if n in (8, 16, 24):
                self.stamp({8: 2, 16: 3, 24: 5}[n], "3")
            while fill and any(f[1] is not None and f[1] <= n - NACC + 1 for f in fill):
                play(a, fill.pop(0)[2])
            pend = []
            while nb < 32 and nb <= n + 3:
                pend += bread(nb); nb += 1
            while na < 16 and na <= (n + 3) // 2:
                pend += aread(na); na += 1
            fill = [f for f in fill if f[1] is None] + [(0, None, g) for g in pend] + [f for f in fill if f[1] is not None]
            ms = list(range(n // 2, -1, -1))
            for k, m in enumerate(ms):
                i = n - 2 * m
                while any(op[0] == "ds" and op[2] in (f"b{i}", f"a{m}") for f in fill for op in f[2]):
                    play(a, fill.pop(0)[2])
                a.lg.wait(f"b{i}", f"a{m}")
                c = "0" if k == 0 else vr(ca(n), 4)
                a(f"v_mfma_f32_16x16x32_bf16 {vr(ca(n),4)}, {vr(AF+4*m,4)}, {vr(BF+4*i,4)}, {c}")
                mi += 1
                slots = 2
                while slots and fill and fill[0][0] <= mi:
                    play(a, fill.pop(0)[2]); slots -= 1
            fill += [(mi + 8, n, g) for g in epi(n)]
        while fill:
            play(a, fill.pop(0)[2])
        for k in (range(4) if yb else [3]):
            play(a, yread(k))
        for k in (range(4) if yb else [3]):
            play(a, ystore(k))

    def final_prepare(self):
        a = self.a
        self.VO, T = 13, 20
        a(f"""
        s_lshl2_add_u32 s{sT0}, s{sRB2}, s{sB}
        s_mul_i32 s{sT1}, s{sT0}, 20480
        s_mul_i32 s{sT2}, s{sCB2}, 160
        s_add_u32 s{sT1}, s{sT1}, s{sT2}
        """)
        for p in range(3):
            a(f"""
            v_add_u32 v{T}, {64*p}, v0
            v_mul_u32_u24 v{T+1}, 205, v{T}
            v_lshrrev_b32 v{T+1}, 11, v{T+1}
            v_mul_u32_u24 v{T+1}, 1120, v{T+1}
            v_lshl_add_u32 v{T+1}, v{T}, 4, v{T+1}
            v_add_u32 v{self.VO+p}, s{sT1}, v{T+1}
            """)
        a(f"""
        s_lshl_b32 s{sT0}, s{sT0}, 7
        s_add_u32 s{sT0}, s{sT0}, {ST}
        v_and_b32 v{T}, 15, v0
        v_lshlrev_b32 v{T}, 3, v{T}
        """)
        a.vmem(f"buffer_load_dwordx2 v[16:17], v{T}, {sr(SWS,4)}, s{sT0} offen sc1", "xt")

    def final_xn(self):
        a = self.a
        T, X, XF, XN = 20, 24, 40, 60
        a(f"""
        v_and_b32 v{T}, 15, v0
        v_mul_u32_u24 v{T}, 160, v{T}
        v_lshrrev_b32 v{T+1}, 4, v0
        v_lshl_add_u32 v{T}, v{T+1}, 3, v{T}
        s_mul_i32 s{sT1}, s{sB}, 2560
        s_add_u32 s{sT1}, s{sT1}, {XT}
        v_add_u32 v1, s{sT1}, v{T}
        v_lshl_add_u32 v2, v0, 4, s{sT1}
        v_mov_b32 v{T}, {WFLG}
        """)
        if self.o.get("xtpos", "7") == "L":
            go = a.label("xgo")
            a.lg.drain()
            self.lds_flag_wait(T, T + 1, go)
            a(f"{go}:")
        a.vm.drain()
        for j in range(5):
            a.ds(f"ds_read_b64 {vr(X+2*j,2)}, v1 offset:{j*32}", "xr")
        a("v_rcp_f32 v17, v17")
        a.lg.drain()
        for p in range(10):
            x, n = XF + 2 * p, XN + 2 * p
            a(f"""
            v_lshlrev_b32 v{x}, 16, v{X+p}
            v_and_b32 v{x+1}, 0xffff0000, v{X+p}
            v_sub_f32 v{n}, v{x}, v16
            v_sub_f32 v{n+1}, v{x+1}, v16
            v_cvt_pk_bf16_f32 v{n+1}, v{n}, v{n+1}
            v_lshlrev_b32 v{n}, 16, v{n+1}
            v_and_b32 v{n+1}, 0xffff0000, v{n+1}
            v_mul_f32 v{n}, v{n}, v17
            v_mul_f32 v{n+1}, v{n+1}, v17
            v_cvt_pk_bf16_f32 v{n+1}, v{n}, v{n+1}
            v_lshlrev_b32 v{n}, 16, v{n+1}
            v_and_b32 v{n+1}, 0xffff0000, v{n+1}
            """)

    def final_rest(self):
        a = self.a
        T, Y, XF, XN, P = 20, 24, 40, 60, 80
        YT = AUX
        sPo, sPv = sA + 9, sA + 13
        other, go = a.label("ywait"), a.label("ygo")
        a("v_lshlrev_b32 v3, 4, v0")
        for j in range(5):
            offs = []
            for b in range(4):
                v, off = self.wl_addr(5 * b + j, 0, 1)
                offs.append((off + (WS_ if v else 0), 6144 if v else 4096))
            a(f"s_mov_b32 s{sT0}, {offs[0][0]}\ns_mov_b32 s{sT1}, {offs[0][1]}")
            for b in range(1, 4):
                a(f"s_cmp_eq_u32 s{sB}, {b}\ns_cselect_b32 s{sT0}, {offs[b][0]}, s{sT0}\ns_cselect_b32 s{sT1}, {offs[b][1]}, s{sT1}")
            a(f"v_add_u32 v{160+4*j}, s{sT0}, v3")
            for q in range(1, 4):
                a(f"v_add_u32 v{160+4*j+q}, s{sT1}, v{160+4*j+q-1}")
        a(f"""
        v_lshrrev_b32 v{T}, 2, v0
        v_and_b32 v{T+1}, 3, v0
        v_lshlrev_b32 v{T+1}, 3, v{T+1}
        v_lshl_add_u32 v{T}, v{T}, 7, v{T+1}
        s_lshl_b32 s{sT0}, s{sB}, 5
        s_add_u32 s{sT0}, s{sT0}, {YT}
        v_add_u32 v{T}, s{sT0}, v{T}
        v_mov_b32 v{T+1}, {YFLG}
        s_cmp_lg_u32 s{sB}, 3
        s_cbranch_scc1 {other}
        """)
        a(f"s_and_b32 s{sT0}, s{sXCD}, 3\ns_lshl2_add_u32 s{sT0}, s{sCB2}, s{sT0}")
        self.cnt_off(sPo, cY, sT0)
        items = [(sPv, sPo, 0 if self.o.get("x_noy") else 32)]
        self.poll_issue(items, atomic=True)
        a(f"""
        v_lshrrev_b32 v{T+2}, 3, v0
        v_and_b32 v{T+3}, 7, v0
        v_mul_u32_u24 v{T+2}, {self.row}, v{T+2}
        v_lshl_add_u32 v{T+2}, v{T+3}, 4, v{T+2}
        """)
        self.poll_check(items, atomic=True, sleep=int(self.o.get("ysleep", 4)))
        ok = a.label("convdone")
        a(f"v_mov_b32 v6, {YCNT}")
        self.lds_flag_wait(6, 7, ok, f"s{self.sNC}")
        a(f"{ok}:")
        self.stamp(11)
        a(f"""
        s_mul_i32 s{sT0}, s{sCB2}, {80*self.row}
        s_lshl_b32 s{sT1}, s{sRB2}, 7
        s_add_u32 s{sT0}, s{sT0}, s{sT1}
        s_add_u32 s{sT0}, s{sT0}, {YY}
        """)
        for p in range(10):
            a(f"s_mov_b32 m0, {YT + p * 1024}")
            a(f"buffer_load_dwordx4 v{T+2}, {sr(SWS,4)}, s{sT0} offen sc1 lds")
            a(f"s_add_u32 s{sT0}, s{sT0}, {8*self.row}")
        a(f"""
        v_mov_b32 v{T+2}, 1
        s_waitcnt vmcnt(0)
        ds_write_b32 v{T+1}, v{T+2}
        s_branch {go}
        {other}:
        """)
        self.lds_flag_wait(T + 1, T + 3, go)
        a(f"{go}:")
        for j in range(5):
            a.ds(f"ds_read_b64_tr_b16 {vr(Y+2*j,2)}, v{T} offset:{j*2048}", "yr")
        a.lg.drain()
        for p in range(10):
            a(f"""
            v_lshlrev_b32 v{T}, 16, v{Y+p}
            v_and_b32 v{T+1}, 0xffff0000, v{Y+p}
            v_fmac_f32 v{XF+2*p}, v{XN+2*p}, v{T}
            v_fmac_f32 v{XF+2*p+1}, v{XN+2*p+1}, v{T+1}
            """)
        self.stamp(12)
        a("s_barrier")
        self.stamp(13)
        for j in range(5):
            for q in range(4):
                a.ds(f"ds_read_b128 {vr(P+16*j+4*q,4)}, v{160+4*j+q}", f"p{j}")
        for j in range(5):
            a.lg.wait(f"p{j}")
            p = P + 16 * j
            if self.o.get("pkadd", "1") == "1":
                for d, x, y in ((p, p, p + 4), (p + 8, p + 8, p + 12), (p, p, XF + 4 * j), (p, p, p + 8)):
                    for r in (0, 2):
                        a(f"v_pk_add_f32 {vr(d+r,2)}, {vr(x+r,2)}, {vr(y+r,2)}")
            else:
                for r in range(4):
                    a(f"v_add_f32 v{p+r}, v{p+r}, v{p+4+r}")
                for r in range(4):
                    a(f"v_add_f32 v{p+8+r}, v{p+8+r}, v{p+12+r}")
                for r in range(4):
                    a(f"v_add_f32 v{p+r}, v{p+r}, v{XF+4*j+r}")
                for r in range(4):
                    a(f"v_add_f32 v{p+r}, v{p+r}, v{p+8+r}")
            a(f"v_cvt_pk_bf16_f32 v{p}, v{p}, v{p+1}\nv_cvt_pk_bf16_f32 v{p+1}, v{p+2}, v{p+3}")
            a.ds(f"ds_write_b64 v1, {vr(p,2)} offset:{j*32}", "ow")
        for p in range(3):
            a.ds(f"ds_read_b128 {vr(24+4*p,4)}, v2 offset:{p*1024}", f"or{p}")
        of = self.o.get("outflags", "nt")
        for p in range(3):
            a.lg.wait(f"or{p}")
            if p == 2:
                a("s_mov_b32 exec_hi, 0")
            a.vmem(f"buffer_store_dwordx4 {vr(24+4*p,4)}, v{self.VO+p}, {sr(SOUT,4)}, 0 offen {of}", "out")
        self.stamp(14)
        self.dump_stamps("B")
        a("s_endpgm")

    def role_b(self, K, CV, first_conv=False):
        a = self.a
        a.vm.q = ["F0"] + ["S0"] * 9; a.lg.q = []
        sPo = [sA + 9, sA + 15, sA + 10, sA + 11]
        sPv = [sA + 12, sA + 14]
        self.sY, self.sR, self.sCH, self.sD = sA + 5, sA + 6, 3, sA + 8
        LD = not K and not CV
        self.sRot, self.sWb, self.sWo = sA + 14, sA + 15, 3
        LAG = int(self.o.get("lag", 10))
        LAG0 = int(self.o.get("lag0", 7))
        assert LAG0 <= 10
        seq, last = [], {}
        for s_ in range(10):
            seq += [(s_, g) for g in self.rec(self.stage_issue, s_)]
            last[s_] = len(seq)
        cut = []
        for s_ in range(10):
            c = min(last[s_] + (LAG0 if s_ == 0 else LAG), len(seq))
            while any(k is not None and k >= s_ + 2 + (1 if s_ == 0 else 0) for k, _ in seq[:c]) and s_ < 9:
                c -= 1
            cut.append(max(c, cut[-1] if cut else 0))

        def zero_lds():
            b = self.a
            b(f"v_mov_b32 v56, {BCNT}\nv_mov_b32 v58, 0\nv_mov_b32 v59, 0")
            for k in range(4):
                b.ds(f"ds_write_b64 v56, v[58:59] offset:{8*k}", "z")
            b.lg.drain()

        def sig_stats():
            b = self.a
            b(f"s_lshr_b32 s{sT0}, s{sWS}, 4")
            self.cnt_off(sPo[0], cS, sT0)
            self.cnt_off(sPo[1], cC, sCB1)
            self.signal(sPo[:2] if self.o.get("cs", "B") in "AB" else sPo[:1], sPv[0])

        def sig_cs():
            self.cnt_off(sA + 13, cC, sCB1)
            self.signal([sA + 13], sA + 11)

        def sig_p0():
            b = self.a
            if K:
                b(f"s_lshr_b32 s{sT0}, s{sC}, 6")
                self.cnt_off(sPo[2], cU, sT0)
            else:
                b(f"""
                s_lshr_b32 s{sT0}, s{sC}, 3
                s_mul_i32 s{sT0}, s{sT0}, 43
                s_lshr_b32 s{sT0}, s{sT0}, 9
                s_and_b32 s{sT1}, s{sC}, 4
                s_lshl2_add_u32 s{sT0}, s{sT1}, s{sT0}
                """)
                self.cnt_off(sT0, cW, sT0)
                b.begin()
                b(f"s_mov_b32 s{sPv[1]}, 1\ns_add_u32 s{sPo[2]}, s{SWS}, s{sT0}\ns_addc_u32 s{sPo[3]}, s{SWS+1}, 0")
                for k in range(4):
                    b(f"s_atomic_add s{sPv[1]}, s[{sPo[2]}:{sPo[3]}], {k*512}")
                b.end()
                return
            self.signal([sPo[2]], sPv[1])

        def b_scalars():
            b = self.a
            b(f"""
            s_mul_i32 s{self.sR}, s{sB}, {CVR}
            s_add_u32 s{self.sR}, s{self.sR}, {AUX}
            v_lshlrev_b32 v18, 4, v0
            """)

        def g2s():
            b = self.a
            b.lg.drain()
            self.g2_scalars(self.sRot, self.sWb)
            b(f"s_mul_i32 s{sT0}, s{sB}, 61440\ns_sub_u32 s{self.sWb}, s{self.sWb}, s{sT0}")

        early = [(sA + 12, sA + 9, 16), (sA + 14, sA + 10, {"A": 16, "B": 16, "L": 0, "R": 64}[self.o.get("cs", "B")]), (sA + 15, sA + 11, 16)]

        def poll_early():
            b = self.a
            b.lg.drain()
            for (_, off, _), (base, src, sh) in zip(early, [(cS, sRB1, 0), (cC, sCB1, 0), (cS, sRB2, 1)]):
                b(f"s_lshr_b32 s{sT0}, s{src}, {sh}")
                self.cnt_off(off, base, sT0)
            self.poll_issue(early)

        def wave3(groups):
            lab = a.label("w3")
            return [[("i", f"s_cmp_lg_u32 s{sB}, 3"), ("i", f"s_cbranch_scc1 {lab}")] + sum(groups, []) + [("i", f"{lab}:")]]

        def poll_late():
            b = self.a
            b(f"s_lshr_b32 s{sT0}, s{self.sCH}, 6")
            self.cnt_off(sT0, cU, sT0)
            b(f"v_mov_b32 v22, s{sT0}")
            b.begin()
            b(f"s_mov_b64 exec, 1")
            b.vmem(f"buffer_load_dword v23, v22, {sr(SWS,4)}, 0 offen sc1", "late")
            b("s_mov_b64 exec, -1")
            b.end()

        def poll_w_ops():
            return "\n".join(f"s_load_dword s{sA+12+k}, s[{sA+10}:{sA+11}], {k*128} glc" for k in range(4))

        def poll_w():
            b = self.a
            b.lg.drain()
            b(f"s_lshl_b32 s{sT0}, s{sXCD}, 2")
            self.cnt_off(sT0, cW, sT0)
            b(f"s_add_u32 s{sA+10}, s{SWS}, s{sT0}\ns_addc_u32 s{sA+11}, s{SWS+1}, 0")
            b(poll_w_ops())

        def check_w():
            b = self.a
            lo, again, ok = b.label("cw"), b.label("cwa"), b.label("cwok")
            b.lg.drain()
            b(f"s_mov_b32 s{sCNT}, 0\n{lo}:")
            for k in range(4):
                b(f"s_cmp_ge_u32 s{sA+12+k}, 48")
                b(f"s_cbranch_scc1 {ok}" if k == 3 else f"s_cbranch_scc0 {again}")
            b(f"{again}:\ns_sleep 4\n{poll_w_ops()}")
            b(f"s_add_u32 s{sCNT}, s{sCNT}, 1\ns_cmp_lt_u32 s{sCNT}, {POLL_LIMIT}\ns_waitcnt lgkmcnt(0)\ns_cbranch_scc1 {lo}\n{ok}:")

        R = self.rec
        tasks = {k: [] for k in range(10)}
        heads = {k: [] for k in range(10)}
        tails = {k: [] for k in range(10)}
        extra = {k: [] for k in range(10)}
        after = {k: [] for k in range(10)}
        mids = {k: [] for k in range(10)}
        first0 = R(self.task_index, K, CV)
        tasks[0] += R(zero_lds)
        csa = self.o.get("cs", "B") == "A"
        csl = self.o.get("cs", "B") == "L"
        if csl:
            tasks[0] += R(self.colsum_l_setup)
            for st in range(9):
                tasks[st + 1] += R(self.colsum_l_stage, st)
            csa = True
        csr = self.o.get("cs", "B") == "R"
        if csr:
            assert self.o.get("rot", "1") in "24"
            njs = 5 if self.o.get("rot", "1") == "2" else 3
            tasks[0] += R(self.colsum_r_setup)
            assert LAG == 10
            extra[njs + 1] += [f"F{njs+2}"]
            after[njs + 1] += R(sig_cs)
            csa = True
        if not csa:
            tasks[1] = R(self.colsum_partial) + tasks[1]
            tails[1] += R(self.colsum_store)
            extra[2] += ["csst"]
        pk = int(self.o.get("kpos", 0))
        nk = int(self.o.get("kspread", 3))
        if LD:
            heads[1] += R(self.vcheck_issue, 58, 59, SDBG, 1, 3)
            after[1] += R(self.vcheck, 58, 59, "1", SDBG, 1, 3)
        def by_tag(groups):
            pre, out, cur = None, {}, []
            for g in groups:
                cur = cur + g
                tags = [op[2] for op in g if op[0] == "vmem"]
                if tags:
                    out.setdefault(tags[0], []).append(cur); cur = []
            return out

        def mix(x, y):
            out, i, j = [], 0, 0
            while i < len(x) or j < len(y):
                if j >= len(y) or (i < len(x) and i * len(y) <= j * len(x)):
                    out.append(x[i]); i += 1
                else:
                    out.append(y[j]); j += 1
            return out

        k0 = 0
        late_hk = []
        burst = self.o.get("p0mode", "burst") == "burst"
        if K:
            ld = by_tag(R(self.kv_issue))
            hk = by_tag(R(self.conv_issue))["hk"] if CV else []
            if burst:
                allld = sum([ld[t] for t in ("K0", "K1", "V0", "SH", "K2", "V1", "K3", "V2", "K4", "V3")], []) + hk
                (mids if pk == 0 else heads)[pk] += allld
                tails[pk] += R(self.kv_setup)
                blocks = sum([R(self.kv_block, n) for n in range(4)], [])
                nk = int(self.o.get("nk", 4 - pk))
                for n in range(nk):
                    tasks[pk + 1 + n] += blocks[len(blocks) * n // nk:len(blocks) * (n + 1) // nk]
                hk = []
            else:
                mids[k0] += ld["K0"] + ld["K1"] + ld["V0"] + ld["SH"]
                tails[k0] += R(self.kv_setup)
                for n in range(4):
                    nxt = ld[f"K{n+2}"] + ld[f"V{n+1}"] if n < 3 else []
                    tasks[k0 + 1 + n] += nxt + R(self.kv_block, n)
            ps = pk + 1 + nk if burst else k0 + 5
            tasks[ps - 1] += R(self.kv_bounce)
            {"t": tasks, "h": heads}[self.o.get("stpos", "t")][ps] += R(self.kv_stores)
            tasks[ps + 1] += R(b_scalars)
            hp = int(self.o.get("hpos", 9))
            if hp < 9:
                tasks[hp] += hk[:3]
                tasks[hp + 1] += hk[3:]
            else:
                late_hk = hk
        else:
            ld = by_tag(R(self.wd_issue))["kv"]
            if burst:
                (mids if pk == 0 else heads)[pk] += ld + (by_tag(R(self.conv_issue))["hk"] if CV else [])
            else:
                mids[k0] += ld[:2]
                tasks[k0 + 1] += ld[2:4]
                tasks[k0 + 2] += ld[4:]
            work = R(self.wd_work)
            nst = min(k for k, g in enumerate(work) if any(op[0] == "vmem" for op in g))
            while work[nst - 1][0][0] == "lgwait":
                nst -= 1
            st = [g for g in work[nst:] if g[0][0] != "lgwait"]
            if self.o.get("wsame"):
                ps = pk + 1 + int(self.o.get("nk", 4 - pk))
                tasks[ps - 1] += work[:nst] + [[("lgdrain",)]]
                {"t": tasks, "h": heads}[self.o.get("stpos", "t")][ps] += st
            else:
                tasks[k0 + 3] += work[:nst] + [[("lgdrain",)]] + st[:2]
                tasks[k0 + 4] += st[2:]
                ps = k0 + 4
            tasks[ps + 2] += R(b_scalars)
            if self.o.get("xtpos", "7") != "L" and LD:
                xt = R(self.xt_issue, True)
                tasks[5] += xt[:3]
                rest = xt[3:]
                for n, st_ in enumerate((5, 6, 7, 8)):
                    tasks[st_] += rest[len(rest) * n // 4:len(rest) * (n + 1) // 4]
        extra[ps + 1] += ["utst"]
        after[ps + 1] += R(sig_p0)
        if LD:
            heads[3] += wave3(R(sig_stats))
            (heads if self.o.get("pe", "h") == "h" else tails)[8] += wave3(R(poll_early))
            after[8] += wave3(R(self.poll_check, early))
        tails[9] += R(self.gather_issue) + (R(poll_late) if CV else [])
        if LD:
            assert self.o.get("g2map", "84") == "84"
            heads[9] += wave3(R(poll_w))
            after[9] += wave3(R(check_w)) + R(g2s)
        if CV:
            tails[9] += late_hk + R(self.conv_setup)
        if csr:
            for j in range(njs):
                calls = [R(self.colsum_r_call, j, part)[0] for part in range(4)]
                pad = [[] for _ in range(max(0, 8 - len(tasks[j + 1])))]
                tasks[j + 1] = mix(calls, tasks[j + 1] + pad)
        drop = self.o.get("x_drop", "")

        def keep(op):
            if op[0] == "vmem":
                t = op[2]
                if "l" in drop and (t[0] in "KV" or t in ("SH", "kv", "hk")): return False
                if "s" in drop and t == "utst": return False
            if op[0] == "i" and "x" in drop and op[1].startswith("buffer_load_dwordx4 v21"): return False
            if op[0] == "i" and "v" in drop and op[1].startswith(("v_fmac_f32", "v_mul_f32", "v_cvt_pk", "v_and_b32 v9", "v_and_b32 v1", "v_lshlrev_b32 v9", "v_lshlrev_b32 v1")) and "v0" not in op[1]: return False
            return True

        if drop:
            for d in (tasks, heads, tails, mids):
                for k in range(9):
                    d[k] = [[op for op in g if keep(op)] for g in d[k]]
        pos = 10
        for s_ in range(10):
            for g in heads[s_]:
                play(a, g)
            main = [g for _, g in seq[pos:cut[s_]]]
            if s_ == 0:
                for g in first0 + mids[0]:
                    play(a, g)
                interleave(a, main, tasks[0])
            else:
                interleave(a, main, tasks[s_])
            pos = cut[s_]
            for g in tails[s_]:
                play(a, g)
            a.vm.wait(f"S{s_}", *extra[s_])
            for g in after[s_]:
                play(a, g)
            a("s_barrier")
            if s_ in (0, 3, 6, 8, 9):
                self.stamp({0: 1, 3: 2, 6: 3, 8: 5, 9: 6}[s_])
            self.stamp(s_ + 1, "2")
        assert pos == len(seq)
        if CV and not first_conv:
            assert a.vm.q == self.conv_q, (a.vm.q, self.conv_q)
            a("s_branch L_conv")
            return
        if CV:
            self.conv_q = list(a.vm.q)
            a("L_conv:")
        self.gather_finish()
        a.vm.wait("late")
        if CV:
            self.vcheck(23, 22, "64", SWS, 1, None)
            self.conv_u_issue()
            self.final_prepare()
            self.conv_fold()
            self.stamp(7)
            self.stamp(9, "3")
            if not self.o.get("x_noconv"):
                self.conv_main()
            self.stamp(8)
            self.stamp(7, "3")
            skip = a.label("ysig")
            a(f"v_mov_b32 v20, {YCNT}\nv_mov_b32 v21, 1")
            a(f"s_lshl_b32 s{sT0}, s{sXCD}, 2")
            self.cnt_off(sPo[0], cY, sT0)
            a.vm.drain()
            a("s_mov_b64 exec, 1")
            a.ds("ds_add_rtn_u32 v21, v20, v21", "yc")
            a.lg.drain()
            a(f"""
            v_readfirstlane_b32 s{sT0}, v21
            s_mov_b64 exec, -1
            s_add_u32 s{sT0}, s{sT0}, 1
            s_cmp_lg_u32 s{sT0}, s{self.sNC}
            s_cbranch_scc1 {skip}
            s_mov_b32 s{sPv[0]}, 1
            s_add_u32 s{sPo[2]}, s{SWS}, s{sPo[0]}
            s_addc_u32 s{sPo[3]}, s{SWS+1}, 0
            """)
            for k in range(4):
                a(f"s_atomic_add s{sPv[0]}, s[{sPo[2]}:{sPo[3]}], {k*128}")
            a(f"{skip}:")
            self.stamp(9)
            a("s_branch L_bjoin")
        elif K:
            self.final_prepare()
            a("s_branch L_bjoin")
        else:
            self.final_prepare()
            a(f"s_setprio {self.o.get('lprio', 1)}\ns_cmp_lg_u32 s{sB}, 3\ns_cbranch_scc1 L_bjoin")
            self.loader(range(6), True)
            self.stamp(8)

    def build(self):
        a = self.a
        self.prologue()
        self.b_common_setup()
        self.sNC = sA + 4
        self.stamp(0)
        a(f"s_and_b32 s{sT0}, s{sI}, 1\ns_sub_u32 s{self.sNC}, 3, s{sT0}")
        if self.o.get("bal", "0") == "1":
            a(f"""
            s_cmp_eq_u32 s{sB}, 3
            s_cbranch_scc1 L_pathW
            s_cmp_lt_u32 s{sB}, 2
            s_cbranch_scc1 L_pathKC
            s_cmp_eq_u32 s{self.sNC}, 3
            s_cbranch_scc1 L_pathWC
            """)
            self.role_b(True, False)
            a("L_pathKC:")
            self.role_b(True, True, True)
            a("L_pathWC:")
            self.role_b(False, True)
        else:
            a(f"s_cmp_ge_u32 s{sB}, s{self.sNC}\ns_cbranch_scc1 L_pathW")
            self.role_b(True, True, True)
        a("L_pathW:")
        self.role_b(False, False)
        a("L_bjoin:")
        a.vm.q = ["any"]; a.lg.q = ["any"]
        self.final_xn()
        self.stamp(10)
        self.final_rest()
        if self.o.get("cs", "B") == "R":
            self.colsum_r_body()
        a.vm.q = []; a.lg.q = []
        self.role_a()
        a("L_end:\ns_endpgm")
        return a.text()


def align_runs(body, minrun):
    import subprocess, tempfile, os, re
    d = tempfile.mkdtemp()
    open(d + "/a.s", "w").write('.amdgcn_target "amdgcn-amd-amdhsa--gfx950"\n.text\n' + body)
    subprocess.run(["clang", "-x", "assembler", "-target", "amdgcn-amd-amdhsa", "-mcpu=gfx950", "-c",
                    d + "/a.s", "-o", d + "/a.o"], check=True)
    dis = subprocess.run(["llvm-objdump", "-d", "--mcpu=gfx950", d + "/a.o"], capture_output=True, text=True).stdout
    sizes = [4 * len(m.group(1).split()) for m in re.finditer(r"// [0-9A-F]{12}: ([0-9A-F ]+?)(?: <.*)?$", dis, re.M)]
    lines = body.rstrip("\n").split("\n")
    idx = [k for k, l in enumerate(lines) if not l.endswith(":")]
    assert len(idx) == len(sizes), (len(idx), len(sizes))
    size = dict(zip(idx, sizes))
    out, addr = [], 0
    for k, l in enumerate(lines):
        if k in size and size[k] == 8 and addr % 8 == 4:
            run, q = 0, k
            while q < len(lines) and (q not in size or size[q] == 8):
                run += q in size
                q += 1
            if run >= minrun:
                out.append("s_nop 0"); addr += 4
        out.append(l)
        addr += size.get(k, 0)
    return "\n".join(out) + "\n"


def kernel_file(opt):
    ref = open("parallel_sum__ssm_conv_h3__swiglu_ffn__prompt.s.ref").read()
    head = [l for l in ref.split("\n") if l.startswith(";") and "@launch" not in l]
    head = head[:head.index([l for l in head if "d_ws" in l][0]) + 1]
    body = Gen(opt).build()
    if opt.get("stscope"):
        body = "\n".join(l.replace(" sc1", " " + opt["stscope"].replace("_", " ")) if l.startswith("buffer_store") else l for l in body.split("\n"))
    if opt.get("ldscope"):
        body = "\n".join(l.replace(" sc1", " " + opt["ldscope"].replace("_", " ")) if l.startswith("buffer_load") else l for l in body.split("\n"))
    if int(opt.get("align", 0)):
        body = align_runs(body, int(opt["align"]))
    return "\n".join(head) + f"""
; @launch grid=(256,1,1) block=(512,1,1) lds={LDS_BYTES}
;
; One persistent launch: 256 workgroups (one per CU) of 8 waves; workgroups past 255 exit at once.
;   waves 0-3: row statistics of 8 rows, gate/up GEMM tile (128 tokens x 96 features, LayerNorm applied
;              algebraically after the K loop), SwiGLU, down GEMM tile (64 tokens x 80 channels, K split over waves)
;   waves 4-7: LDS-DMA loader of the gate/up GEMM, k*v shift convolution with transposition or w_down re-layout,
;              long causal convolution as a Toeplitz MFMA product (one channel per wave), final combination
; Hand-offs between workgroups go through d_ws with write-through stores and counters that workgroup 0 zeroes
; first (announced in d_debug[0]); every wait is bounded.
.amdgcn_target "amdgcn-amd-amdhsa--gfx950"
.text
.globl {KNAME}
.p2align 8
.type {KNAME},@function
{KNAME}:
{body}.section .rodata,"a"
.p2align 6
.amdhsa_kernel {KNAME}
  .amdhsa_next_free_vgpr 256
  .amdhsa_next_free_sgpr 102
  .amdhsa_accum_offset 256
  .amdhsa_group_segment_fixed_size 0
  .amdhsa_kernarg_size 104
  .amdhsa_user_sgpr_count 2
  .amdhsa_user_sgpr_kernarg_segment_ptr 1
  .amdhsa_system_sgpr_workgroup_id_x 1
  .amdhsa_float_denorm_mode_32 3
.end_amdhsa_kernel
"""


if __name__ == "__main__":
    out = sys.argv[1]
    opt = {}
    for kv in sys.argv[2:]:
        k, _, v = kv.partition("=")
        opt[k] = v if v else True
    open(out, "w").write(kernel_file(opt))
```

```python
import sys
from asmlib import Asm, Rec, play, interleave, vr, sr

KNAME = "parallel_sum__ssm_conv_h3__swiglu_ffn__prompt_kernel"

CNT, ST, CS, UT, YY, WDT, HH, PROF, WS_SIZE = (0, 0x8000, 0xC000, 0x40000, 0x340000, 0x640000, 0x830000,
                                               0x1360000, 0x1400000)
BS = 49
ROW = 4352
cH, cS, cC, cU, cW, cY = 0, 128, 144, 160, 176, 208
XS, WS_, AUX = 0, 49152, 122880
CVR = 8704
XT = AUX + 3 * CVR
STL, CSF, BCNT = AUX + 36352, AUX + 37376, AUX + 40448
YFLG, YCNT, ACNT, WFLG, ECNT, GCNT, CWFLG = [BCNT + 4 * k for k in range(7)]
LDS_BYTES = 163840
SQ, SWG, SWU, SWS, SK, SV, SSH, SSK, SSD, SOUT, SDBG, SWD = 4, 8, 12, 16, 20, 24, 28, 32, 36, 40, 44, 48
sW, sB, sXCD, sI, sRB1, sCB1, sKS, sRB2, sCB2, sWS, sC = 52, 53, 54, 55, 56, 57, 58, 59, 60, 61, 62
sT0, sT1, sT2, sT3, sCNT = 63, 64, 65, 66, 67
sTM = 68
sPR = 70
sA = 86
POLL_LIMIT = 1 << 17
LOG2E = 1.4426950408889634


def f2u(x):
    import struct
    return struct.unpack("<I", struct.pack("<f", x))[0]


class Gen:
    def __init__(self, opt):
        self.o = opt
        self.a = Asm()
        self.row = int(opt.get('row', ROW))

    def ws_shift(self):
        off = int(self.o.get("x_wsoff", "0"), 0)
        if off:
            self.a(f"s_add_u32 s{SWS}, s{SWS}, {off}\ns_addc_u32 s{SWS+1}, s{SWS+1}, 0")

    def stamp(self, k, kind="1"):
        if self.o.get("profile") != kind and not (k == 0 and self.o.get("profile")):
            return
        a = self.a
        a(f"{'s_memtime' if self.o.get('clk') else 's_memrealtime'} {sr(sTM, 2)}")
        a.lg.drain()
        a(f"s_mov_b32 s{sPR+k}, s{sTM}")

    def dump_stamps(self, role):
        if not self.o.get("profile"):
            return
        a = self.a
        a("s_mov_b64 exec, -1")
        a("v_mov_b32 v1, 0")
        for k in range(16):
            a(f"v_writelane_b32 v1, s{sPR+k}, {k}")
        a(f"s_lshl_b32 s{sT0}, s2, 3\ns_add_u32 s{sT0}, s{sT0}, s{sW}\ns_lshl_b32 s{sT0}, s{sT0}, 6\ns_add_u32 s{sT0}, s{sT0}, {PROF}")
        a("v_mbcnt_lo_u32_b32 v2, -1, 0\nv_mbcnt_hi_u32_b32 v2, -1, v2\nv_lshlrev_b32 v2, 2, v2")
        a("s_mov_b64 exec, 0xffff")
        a(f"buffer_store_dword v1, v2, {sr(SWS,4)}, s{sT0} offen")
        if self.o.get("dbgxcd") and role == "B":
            skip = a.label("dbgx")
            a(f"s_cmp_lg_u32 s{sI}, 5\ns_cbranch_scc1 {skip}\ns_cmp_lg_u32 s{sB}, 1\ns_cbranch_scc1 {skip}")
            a(f"s_and_b32 s{sT0}, s{sPR+15}, 0xffff\ns_sub_u32 s{sT1}, s{sPR+14}, s{sPR+15}\ns_lshl_b32 s{sT1}, s{sT1}, 16\ns_or_b32 s{sT0}, s{sT0}, s{sT1}")
            a(f"v_mov_b32 v1, s{sT0}\ns_lshl_b32 s{sT0}, s{sXCD}, 2\ns_mov_b64 exec, 1")
            a(f"buffer_store_dword v1, off, {sr(SDBG,4)}, s{sT0} offset:4")
            a(f"{skip}:")
        if self.o.get("dbgout"):
            wg = int(self.o["dbgout"])
            skip = a.label("dbgout")
            sel = [1, 2, 3, 4, 8, 5, 6, 7] if role == "A" else [1, 2, 3, 6, 7, 8, 14]
            a(f"s_cmp_lg_u32 s2, {wg}\ns_cbranch_scc1 {skip}\ns_cmp_lg_u32 s{sB}, 1\ns_cbranch_scc1 {skip}")
            for n, k in enumerate(sel):
                a(f"s_sub_u32 s{sT0}, s{sPR+k}, s{sPR}\nv_writelane_b32 v1, s{sT0}, {n}")
            a(f"s_mov_b64 exec, {(1 << len(sel)) - 1}")
            a(f"buffer_store_dword v1, v2, {sr(SDBG,4)}, 0 offen offset:{4 if role == 'A' else 36}")
            a(f"{skip}:")

    def rec(self, fn, *args):
        real = self.a
        self.a = Rec(real)
        fn(*args)
        groups = self.a.groups
        self.a = real
        return groups

    def cnt_off(self, sdst, base, sidx):
        self.a(f"s_add_u32 s{sdst}, s{sidx}, {base}\ns_lshl_b32 s{sdst}, s{sdst}, 7")

    def signal(self, soffs, stmp, only_wave0=False):
        a = self.a
        skip = a.label("sig")
        a.begin()
        if only_wave0:
            a(f"s_cmp_lg_u32 s{sB}, 0\ns_cbranch_scc1 {skip}")
        a(f"s_mov_b32 s{stmp}, 1")
        for so in soffs:
            a(f"s_atomic_add s{stmp}, {sr(SWS,2)}, s{so}")
        if only_wave0:
            a(f"{skip}:")
        a.end()

    def poll_ops(self, items, atomic):
        o = []
        for val, off, _ in items:
            base = sr(SDBG, 2) if off is None else sr(SWS, 2)
            offs = "0" if off is None else f"s{off}"
            if atomic:
                o += [f"s_mov_b32 s{val}, 0", f"s_atomic_add s{val}, {base}, {offs} glc"]
            else:
                o += [f"s_load_dword s{val}, {base}, {offs} glc"]
        return "\n".join(o)

    def poll_issue(self, items, atomic=False, only_wave0=False):
        a = self.a
        skip = a.label("pi")
        a.begin()
        if only_wave0:
            a(f"s_cmp_lg_u32 s{sB}, 0\ns_cbranch_scc1 {skip}")
        a(self.poll_ops(items, atomic))
        if only_wave0:
            a(f"{skip}:")
        a.end()

    def poll_check(self, items, atomic=False, only_wave0=False, sleep=2):
        a = self.a
        lo, again, ok = a.label("poll"), a.label("again"), a.label("pollok")
        a.begin()
        a.lg.drain()
        if only_wave0:
            a(f"s_cmp_lg_u32 s{sB}, 0\ns_cbranch_scc1 {ok}")
        a(f"s_mov_b32 s{sCNT}, 0")
        a(f"{lo}:")
        for k, (val, _, target) in enumerate(items):
            a(f"s_cmp_ge_u32 s{val}, {target}")
            a(f"s_cbranch_scc1 {ok}" if k == len(items) - 1 else f"s_cbranch_scc0 {again}")
        a(f"{again}:")
        if sleep:
            a(f"s_sleep {sleep}")
        a(self.poll_ops(items, atomic))
        a(f"s_add_u32 s{sCNT}, s{sCNT}, 1")
        a(f"s_cmp_lt_u32 s{sCNT}, {POLL_LIMIT}")
        a("s_waitcnt lgkmcnt(0)")
        a(f"s_cbranch_scc1 {lo}")
        a(f"{ok}:")
        a.end()

    def vcheck_issue(self, vret, vaddr, srd, mask, wave=0):
        a = self.a
        skip = a.label("vi")
        a.begin()
        if wave is not None:
            a(f"s_cmp_lg_u32 s{sB}, {wave}\ns_cbranch_scc1 {skip}")
        a(f"s_mov_b64 exec, {mask}")
        a(f"buffer_load_dword v{vret}, v{vaddr}, {sr(srd,4)}, 0 offen sc1")
        a("s_mov_b64 exec, -1")
        a(f"{skip}:")
        a.end()

    def vcheck(self, vret, vaddr, vtarget, srd, mask, wave=0):
        a = self.a
        lo, ok, skip = a.label("vc"), a.label("vcok"), a.label("vcskip")
        a.begin()
        if wave is not None:
            a(f"s_cmp_lg_u32 s{sB}, {wave}\ns_cbranch_scc1 {skip}")
        a(f"""
        s_mov_b64 exec, {mask}
        s_mov_b32 s{sCNT}, 0
        {lo}:
        v_cmp_le_u32 vcc, {vtarget}, v{vret}
        s_cmp_eq_u64 vcc, exec
        s_cbranch_scc1 {ok}
        s_sleep 8
        buffer_load_dword v{vret}, v{vaddr}, {sr(srd,4)}, 0 offen sc1
        s_add_u32 s{sCNT}, s{sCNT}, 1
        s_cmp_lt_u32 s{sCNT}, {POLL_LIMIT}
        s_waitcnt vmcnt(0)
        s_cbranch_scc1 {lo}
        {ok}:
        s_mov_b64 exec, -1
        {skip}:
        """)
        a.end()

    def lds_flag_wait(self, vaddr, vtmp, go, value=1):
        a = self.a
        lo = a.label("lf")
        a(f"""
        s_mov_b32 s{sCNT}, 0
        {lo}:
        ds_read_b32 v{vtmp}, v{vaddr}
        s_add_u32 s{sCNT}, s{sCNT}, 1
        s_waitcnt lgkmcnt(0)
        v_readfirstlane_b32 s{sT0}, v{vtmp}
        s_cmp_eq_u32 s{sT0}, {value}
        s_cbranch_scc1 {go}
        s_sleep 1
        s_cmp_lt_u32 s{sCNT}, {POLL_LIMIT*16}
        s_cbranch_scc1 {lo}
        """)

    SRDS = ((SQ, 0, 2621440), (SWG, 56, 1966080), (SWU, 64, 1966080), (SWS, 96, WS_SIZE), (SK, 8, 2621440),
            (SV, 16, 2621440), (SSH, 24, 5120), (SSK, 32, 2621440), (SSD, 40, 1280), (SOUT, 80, 2621440),
            (SDBG, 88, 256), (SWD, 72, 1966080))

    def srd_words(self, which):
        for srd, _, size in self.SRDS:
            if srd in which:
                self.a(f"s_mov_b32 s{srd+2}, {size}\ns_mov_b32 s{srd+3}, 0x20000")

    def prologue(self):
        a = self.a
        a("s_cmp_ge_u32 s2, 256\ns_cbranch_scc1 L_end")
        if self.o.get("profile"):
            a(f"{'s_memtime' if self.o.get('clk') else 's_memrealtime'} {sr(sTM, 2)}\ns_waitcnt lgkmcnt(0)\ns_mov_b32 s{sPR+15}, s{sTM}")
        for srd, off, _ in self.SRDS:
            if srd in (SQ, SWG, SWU, SWS, SDBG):
                a(f"s_load_dwordx2 {sr(srd,2)}, s[0:1], {off}")
        a("v_lshrrev_b32 v1, 6, v0")
        a(f"""
        s_and_b32 s{sXCD}, s2, 7
        v_readfirstlane_b32 s{sW}, v1
        s_lshr_b32 s{sI}, s2, 3
        s_and_b32 s{sT0}, s{sXCD}, 1
        s_lshr_b32 s{sT1}, s{sXCD}, 1
        s_and_b32 s{sT2}, s{sI}, 7
        s_lshl3_add_u32 s{sRB1}, s{sT0}, s{sT2}
        s_lshr_b32 s{sT2}, s{sI}, 3
        s_lshl2_add_u32 s{sCB1}, s{sT1}, s{sT2}
        s_and_b32 s{sB}, s{sW}, 3
        s_cmp_ge_u32 s{sW}, 4
        s_cbranch_scc1 L_roleB
        """)
        if self.o.get("pf", "1") == "1":
            a(f"""
            s_getpc_b64 s[{sT1}:{sT2}]
            L_pc:
            s_lshl_b32 s{sT0}, s{sI}, 11
            v_lshl_add_u32 v1, v0, 3, s{sT0}
            v_cmp_gt_u32 vcc, L_end-L_pc-4, v1
            s_and_saveexec_b64 s[{sTM}:{sTM+1}], vcc
            s_cbranch_execz L_nopf
            global_load_dwordx2 v[254:255], v1, s[{sT1}:{sT2}]
            L_nopf:
            s_mov_b64 exec, -1
            """)
        a("s_branch L_roleA")

    def decode_rest(self):
        a = self.a
        a(f"""
        s_and_b32 s{sT0}, s{sXCD}, 1
        s_lshr_b32 s{sT1}, s{sXCD}, 1
        s_lshl2_add_u32 s{sT3}, s{sT0}, s{sT1}
        s_lshl_b32 s{sWS}, s{sT3}, 5
        s_add_u32 s{sWS}, s{sWS}, s{sI}
        """)
        if self.o.get("g2map", "84") == "84":
            a(f"""
            s_bfe_u32 s{sT1}, s{sXCD}, 0x10001
            s_lshl1_add_u32 s{sT0}, s{sT0}, s{sT1}
            s_and_b32 s{sT1}, s{sI}, 7
            s_lshl3_add_u32 s{sRB2}, s{sT0}, s{sT1}
            s_lshr_b32 s{sT0}, s{sXCD}, 2
            s_lshr_b32 s{sT1}, s{sI}, 3
            s_lshl2_add_u32 s{sCB2}, s{sT0}, s{sT1}
            """)
        else:
            a(f"""
            s_and_b32 s{sT2}, s{sI}, 3
            s_lshl2_add_u32 s{sRB2}, s{sT3}, s{sT2}
            s_lshr_b32 s{sCB2}, s{sI}, 2
            """)
        if self.o.get("profile"):
            for k in range(15):
                a(f"s_mov_b32 s{sPR+k}, 0")

    def role_a(self):
        a = self.a
        XA, WA, VH = 1, 5, 11
        FR, ACC = 120, 160
        T = 112
        sWM, sWN = sA, sA + 1
        sH = sA + 2
        xf = lambda p, i: FR + 20 * p + 4 * i
        wf = lambda p, j: FR + 20 * p + 8 + 4 * j
        acc = lambda i, j: ACC + (i * 3 + j) * 16
        def addr_setup():
            a(f"""
            s_and_b32 s{sWM}, s{sB}, 1
            s_lshr_b32 s{sWN}, s{sB}, 1
            v_and_b32 v{T}, 31, v0
            v_lshrrev_b32 v{T+1}, 5, v0
            v_bfe_u32 v{T+2}, v0, 1, 3
            v_xor_b32 v{T+2}, v{T+2}, v{T+1}
            s_lshl_b32 s{sT0}, s{sWM}, 13
            v_lshl_add_u32 v{T}, v{T}, 7, s{sT0}
            """)
            for t in range(4):
                a(f"v_xor_b32 v{T+3}, {2*t}, v{T+2}\nv_lshl_add_u32 v{XA+t}, v{T+3}, 4, v{T}")
            a(f"""
            v_bfe_u32 v{T+2}, v0, 4, 1
            v_mul_u32_u24 v{T+3}, 3072, v{T+2}
            v_mul_u32_u24 v{T+4}, 1536, v{T+1}
            v_bfe_u32 v{T+5}, v0, 2, 2
            v_lshl_add_u32 v{T+3}, v{T+5}, 6, v{T+3}
            v_and_b32 v{T+5}, 1, v0
            v_lshl_add_u32 v{T+3}, v{T+5}, 4, v{T+3}
            v_bfe_u32 v{T+5}, v0, 1, 1
            v_lshl_add_u32 v{T+3}, v{T+5}, 3, v{T+3}
            v_add_u32 v{T+3}, v{T+3}, v{T+4}
            v_lshlrev_b32 v{T+2}, 5, v{T+2}
            s_mul_i32 s{sT0}, s{sWN}, 3
            s_lshl_b32 s{sT3}, s{sRB1}, 1
            s_add_u32 s{sT3}, s{sT3}, s{sWM}
            s_mul_i32 s{sT3}, s{sT3}, {BS}
            s_mul_i32 s{sT2}, s{sCB1}, 3
            s_add_u32 s{sT3}, s{sT3}, s{sT2}
            """)
            for j in range(3):
                a(f"""
                s_add_u32 s{sT1}, s{sT0}, {j}
                s_lshr_b32 s{sT2}, s{sT1}, 1
                s_and_b32 s{sT1}, s{sT1}, 1
                s_add_u32 s{sH+j}, s{sT3}, s{sT2}
                s_lshl_b32 s{sH+j}, s{sH+j}, 3
                s_add_u32 s{sH+j}, s{sH+j}, s{sT1}
                s_lshl_b32 s{sH+j}, s{sH+j}, 9
                s_add_u32 s{sH+j}, s{sH+j}, {HH}
                s_lshl_b32 s{sT1}, s{sT1}, 5
                v_xor_b32 v{T+4}, s{sT1}, v{T+2}
                s_lshl_b32 s{sT2}, s{sT2}, 8
                s_add_u32 s{sT2}, s{sT2}, {WS_}
                v_add3_u32 v{WA+j}, v{T+3}, v{T+4}, s{sT2}
                v_add_u32 v{WA+3+j}, 49152, v{WA+j}
                """)
            a(f"""
            v_and_b32 v{T+4}, 15, v0
            v_lshlrev_b32 v{T+4}, 4, v{T+4}
            v_lshl_add_u32 v{T+4}, v{T+1}, 8, v{T+4}
            v_bfe_u32 v{T+5}, v0, 4, 1
            v_lshl_add_u32 v{VH}, v{T+5}, 10, v{T+4}
            """)

        a("L_roleA:\nv_and_b32 v0, 63, v0")
        self.decode_rest()
        self.srd_words((SQ, SWS, SDBG, SWG, SWU))
        a("s_waitcnt lgkmcnt(0)")
        self.ws_shift()
        a(f"s_setprio {self.o.get('aprio', 2)}")
        a.vm.issue("pf")
        self.stamp(0)
        a(f"s_or_b32 s{sA+8}, s2, s{sB}\ns_cmp_lg_u32 s{sA+8}, 0\ns_cbranch_scc1 L_noclear")
        a(f"v_lshlrev_b32 v{T}, 7, v0\nv_mov_b32 v{T+1}, 0")
        for p in range(4):
            a(f"s_mov_b32 s{sT0}, {p*8192}\nbuffer_store_dword v{T+1}, v{T}, {sr(SWS,4)}, s{sT0} offen sc1")
        p0a = "sk" if self.o.get("p0", "B") == "A" else "s"
        if "s" not in p0a:
            a(f"s_waitcnt vmcnt(0)\nv_mov_b32 v{T}, 1\ns_mov_b64 exec, 1")
            a(f"buffer_store_dword v{T}, off, {sr(SDBG,4)}, 0 sc1\ns_mov_b64 exec, -1")
        a("L_noclear:")
        if "s" in p0a:
            self.stats_load()
        if self.o.get("touch", "0") == "1":
            self.touch_pages()
        if "k" in p0a:
            q = list(a.vm.q)
            a(f"s_and_b32 s{sT0}, s{sI}, 1\ns_sub_u32 s{sT0}, 3, s{sT0}\ns_cmp_ge_u32 s{sB}, s{sT0}\ns_cbranch_scc1 L_p0W")
            for typ in "CW":
                a.vm.q = list(q)
                if typ == "W":
                    a("L_p0W:")
                self.task_index(typ == "C")
                (self.kv_issue if typ == "C" else self.wd_issue)()
                addr_setup()
                if "s" in p0a:
                    self.stats_compute(announce=f"L_noann{typ}")
                self.stamp(9)
                (self.kv_work if typ == "C" else self.wd_work)()
                if typ == "C":
                    a("s_branch L_p0done")
            a("L_p0done:")
        else:
            csa = self.o.get("cs", "B") == "A"
            if csa:
                self.colsum_a_issue()
            addr_setup()
            if "s" in p0a:
                self.stats_compute(announce="L_noann")
            if csa:
                self.colsum_a()
        self.stamp(10)

        def reads(g):
            s, t, p = g >> 2, g & 3, g & 1
            sl = s % 3
            wa = WA + (3 if sl == 2 else 0)
            wo = (sl % 2) * 24576 + t * 6144
            r = [f"ds_read_b128 {vr(xf(p,0),4)}, v{XA+t} offset:{sl*16384}"]
            r += [f"ds_read_b64_tr_b16 {vr(wf(p,0)+2*q,2)}, v{wa} offset:{wo+q*768}" for q in range(2)]
            r += [f"ds_read_b128 {vr(xf(p,1),4)}, v{XA+t} offset:{sl*16384+4096}"]
            for j in (1, 2):
                r += [f"ds_read_b64_tr_b16 {vr(wf(p,j)+2*q,2)}, v{wa+j} offset:{wo+q*768}" for q in range(2)]
            return r

        a("s_setprio 0")
        a.vm.wait("pf")
        a("s_barrier")
        self.stamp(1)
        CF, SF, M2, C1, KK, AD, E, HP = 12, 18, 22, 26, 28, 30, 120, 128
        VE, FT = 33, 35
        NW, NH = 6, 3
        HR, ACC2 = 128, 176
        wpool = list(range(36, 116, 4)) + list(range(8, 36, 4)) + list(range(116, 128, 4))
        wr = lambda i, j: wpool[(i % NW) * 5 + j]
        NE = int(self.o.get("ne", 0))
        assert self.ncs() and NE <= 4
        sRot, sWb, sHb, sWo, sHo, sPo, sPv = [sA + 5 + k for k in range(7)]

        def mf(p, i, j, first=False):
            c = "0" if first else vr(acc(i, j), 16)
            if self.o.get("x_m16") and not first:
                k = acc(i, j) + 8 * p
                return "\n".join(f"v_mfma_f32_16x16x32_bf16 {vr(k+4*u,4)}, {vr(wf(p,j),4)}, {vr(xf(p,i),4)}, {vr(k+4*u,4)}" for u in range(2))
            return f"v_mfma_f32_32x32x16_bf16 {vr(acc(i,j),16)}, {vr(wf(p,j),4)}, {vr(xf(p,i),4)}, {c}"

        def run(mfmas, fill, per):
            k = 0
            for m in mfmas:
                a(m)
                for _ in range(per):
                    if k < len(fill):
                        play(a, fill[k]); k += 1
            for g in fill[k:]:
                play(a, g)

        def dsl(lst):
            return [[("ds", r, "f")] for r in lst]

        def corr_addr():
            b = self.a
            b(f"""
            v_and_b32 v{AD}, 31, v0
            s_lshl_b32 s{sT0}, s{sWM}, 9
            s_add_u32 s{sT0}, s{sT0}, {STL}
            v_lshl_add_u32 v{AD+1}, v{AD}, 3, s{sT0}
            s_mul_i32 s{sT0}, s{sWN}, {768 if self.ncs() else 1536}
            s_add_u32 s{sT0}, s{sT0}, {CSF}
            v_lshl_add_u32 v{AD}, v{AD}, {3 if self.ncs() else 4}, s{sT0}
            v_mov_b32 v{AD+2}, {GCNT}
            v_lshlrev_b32 v{VE}, 4, v0
            v_add_u32 v{VE+1}, 1024, v{VE}
            """)
            self.g2_scalars(sRot, sWb)
            b(f"""
            s_mul_i32 s{sT0}, s{sB}, 12
            s_mul_i32 s{sT1}, s{sRB2}, {BS}
            s_add_u32 s{sT1}, s{sT1}, s{sT0}
            s_lshl_b32 s{sHb}, s{sT1}, 12
            s_add_u32 s{sHb}, s{sHb}, {HH}
            s_lshl_b32 s{sT0}, s{sRB1}, 1
            s_add_u32 s{sT0}, s{sT0}, s{sWM}
            s_lshr_b32 s{sT1}, s{sCB1}, 2
            s_lshl2_add_u32 s{sT0}, s{sT0}, s{sT1}
            """)
            self.cnt_off(sPo, cH, sT0)

        def corr_prepare():
            b = self.a
            if not self.ncs():
                for op in range(10):
                    for j in range(3):
                        c = 68 + 4 * j
                        b([f"v_add_f32 v{c}, v{c}, v{c+1}", f"v_add_f32 v{c+2}, v{c+2}, v{c+3}",
                           f"v_add_f32 v{c}, v{c}, v{c+2}", f"v_cvt_pk_bf16_f32 v{c+1}, v{c}, v{c}",
                           f"v_and_b32 v{c+1}, 0xffff0000, v{c+1}", f"v_sub_f32 v{c+1}, v{c}, v{c+1}",
                           f"v_cvt_pk_bf16_f32 v{CF+2*j}, v{c}, v{c+1}", f"v_and_b32 v{c+2}, 0xffff0000, v{CF+2*j}",
                           f"v_sub_f32 v{c+1}, v{c+1}, v{c+2}", f"v_cvt_pk_bf16_f32 v{CF+2*j+1}, v{c+1}, 0"][op])
            b.begin()
            b("s_mov_b32 exec_lo, 0")
            for j in range(6):
                b(f"v_mov_b32 v{CF+j}, 0")
            b("s_mov_b32 exec_lo, -1")
            b.end()
            for i in range(2):
                b(f"v_rcp_f32 v{C1+i}, v{SF+2*i+1}")
                b(f"v_cvt_pk_bf16_f32 v{M2+2*i}, -v{SF+2*i}, -v{SF+2*i}")
                b(f"v_cvt_pk_bf16_f32 v{M2+2*i+1}, -v{SF+2*i}, -v{SF+2*i}")
                b(f"v_mul_f32 v{KK+i}, v{SF+2*i+1}, v{SF+2*i+1}")
                b(f"v_mul_f32 v{C1+i}, {hex(f2u(-LOG2E))}, v{C1+i}")
            b(f"v_mov_b32 v{AD}, {ACNT}\nv_mov_b32 v{AD+1}, 1")

        pend = []

        def wgroups(i, v16):
            b = self.a
            for j in range(0 if self.o.get("x_nowd") else 5):
                b.begin()
                if j == 0:
                    self.step_off(i, sWo, sWb, sRot, 5120)
                v, off = (v16, 0) if j == 0 else (v16 + 1, (j - 1) * 1024)
                b.vmem(f"buffer_load_dwordx4 {vr(wr(i,j),4)}, v{v}, {sr(SWS,4)}, s{sWo} offen offset:{off} sc1", f"w{i}")
                b.end()

        def swiglu(n, i, j):
            b = self.a
            c, hp = acc(i, j), HP + 4 * n
            if n >= int(self.o.get("pk", 6)):
                sel = "op_sel_hi:[1,0]" if i == 0 else "op_sel:[0,1] op_sel_hi:[1,1]"
                sel3 = "op_sel_hi:[1,0,0]" if i == 0 else "op_sel:[0,1,1] op_sel_hi:[1,1,1]"
                for r in range(0, 8, 2):
                    b(f"v_pk_mul_f32 {vr(E+r,2)}, {vr(c+r,2)}, {vr(C1,2)} {sel}")
                for r in range(8):
                    b(f"v_exp_f32 v{E+r}, v{E+r}")
                    if r & 1:
                        b(f"v_pk_mul_f32 {vr(c+r-1,2)}, {vr(c+r-1,2)}, {vr(c+8+r-1,2)}")
                for r in range(0, 8, 2):
                    b(f"v_pk_fma_f32 {vr(E+r,2)}, {vr(E+r,2)}, {vr(KK,2)}, {vr(KK,2)} {sel3}")
                for r in range(8):
                    b(f"v_rcp_f32 v{E+r}, v{E+r}")
                for r in range(0, 8, 2):
                    b(f"v_pk_mul_f32 {vr(c+r,2)}, {vr(c+r,2)}, {vr(E+r,2)}")
            else:
                for r in range(8):
                    b(f"v_mul_f32 v{E+r}, v{c+r}, v{C1+i}")
                for r in range(8):
                    b(f"v_exp_f32 v{E+r}, v{E+r}")
                    b(f"v_mul_f32 v{c+r}, v{c+r}, v{c+8+r}")
                for r in range(8):
                    b(f"v_fma_f32 v{E+r}, v{E+r}, v{KK+i}, v{KK+i}")
                for r in range(8):
                    b(f"v_rcp_f32 v{E+r}, v{E+r}")
                for r in range(8):
                    b(f"v_mul_f32 v{c+r}, v{c+r}, v{E+r}")
            for r in range(4):
                b(f"v_cvt_pk_bf16_f32 v{hp+r}, v{c+2*r}, v{c+2*r+1}")
            pend.append(f"buffer_store_dwordx4 {vr(hp,4)}, v{VH}, {sr(SWS,4)}, s{sH+j} offen offset:{i*2048} sc1")
            if str(n) in self.o.get("hflush", "012345"):
                for st in pend:
                    b.vmem(st, "hst")
                pend.clear()

        order = [(i, j) for j in range(3) for i in range(2)]
        if self.o.get("snake", "0") == "1":
            order = [(0, 0), (1, 0), (1, 1), (0, 1), (0, 2), (1, 2)]
        for r in reads(0):
            a.ds(r, "f")
        for g in range(39):
            p = g & 1
            a.lg.drain()
            if (g + 1) & 3 == 0:
                if g == 3:
                    a.vm.drain()
                self.stamp(((g + 1) >> 2) + 1, "2")
                a("s_barrier")
            if g == 35:
                a(f"s_setprio {self.o.get('eprio', 2)}")
            fill = dsl(reads(g + 1))
            if g == 33:
                fill += self.rec(corr_addr)
            if g == 37:
                fill += dsl([f"ds_read_b32 v{FT}, v{AD+2}"])
                run([mf(p, i, j) for i, j in order], fill, 3)
                continue
            if g == 38:
                go = a.label("ggo")
                a(f"v_readfirstlane_b32 s{sT0}, v{FT}\ns_cmp_eq_u32 s{sT0}, 4\ns_cbranch_scc1 {go}")
                self.lds_flag_wait(AD + 2, FT, go, 4)
                a(f"{go}:")
                if self.ncs():
                    cr = [f"ds_read_b64 {vr(CF+2*j,2)}, v{AD} offset:{j*256}" for j in range(3)]
                else:
                    cr = [f"ds_read_b128 {vr(68+4*j,4)}, v{AD} offset:{j*512}" for j in range(3)]
                cr += [f"ds_read_b64 {vr(SF+2*i,2)}, v{AD+1} offset:{i*256}" for i in range(2)]
                fill = [[("ds", r, "cr")] for r in cr] + fill
                ms = [mf(p, i, j) for i, j in order]
                nf = 3 if self.ncs() == 0 else 4
                run(ms[:nf], fill, 5 if nf == 3 else 4)
                run(ms[nf:], [[("lgwait", ("cr",))]] + self.rec(corr_prepare), 7)
                continue
            run([mf(p, i, j, g == 0) for i, j in order], fill, 3 if len(fill) <= 16 else 5)
        a.lg.drain()
        a("s_mov_b64 exec, 1")
        a.ds(f"ds_add_u32 v{AD}, v{AD+1}", "ac")
        a("s_mov_b64 exec, -1")
        self.stamp(2)
        self.stamp(1, "3")
        last = []
        for i, j in order:
            last += [mf(1, i, j),
                     f"v_mfma_f32_32x32x8_bf16 {vr(acc(i,j),16)}, {vr(CF+2*j,2)}, {vr(M2+2*i,2)}, {vr(acc(i,j),16)}"]
        for m in last[:4]:
            a(m)
        run(last[4:], self.rec(swiglu, 0, *order[0]), 6)
        early = sum([self.rec(wgroups, i, VE) for i in range(NE)], [])
        for n in range(1, 6):
            self.stamp(1 + n, "3")
            part = early[len(early) * (n - 1) // 5:len(early) * n // 5]
            body = self.rec(swiglu, n, *order[n])
            k = 0
            for t, g in enumerate(body):
                play(a, g)
                while k < len(part) and k * len(body) < (t + 1) * len(part) - len(part) // 2:
                    play(a, part[k]); k += 1
            for g in part[k:]:
                play(a, g)
        if self.o.get("hold", "0") == "1":
            a("s_mov_b64 exec, 1")
            a.ds(f"ds_add_u32 v{AD}, v{AD+1} offset:{ECNT-ACNT}", "ac")
            a("s_mov_b64 exec, -1")
        self.stamp(3)
        self.stamp(7, "3")
        V16, V16B, VLX, VLW, VF = 1, 2, 3, 4, 5
        a(f"""
        v_lshlrev_b32 v{V16}, 4, v0
        v_add_u32 v{V16B}, 1024, v{V16}
        s_lshl_b32 s{sT0}, s{sB}, 12
        v_add_u32 v{VLX}, s{sT0}, v{V16}
        s_mul_i32 s{sT0}, s{sB}, 6144
        s_add_u32 s{sT0}, s{sT0}, {WS_}
        v_add_u32 v{VLW}, s{sT0}, v{V16}
        v_mov_b32 v{VF}, {WFLG}
        """)

        rest = list(range(NE, NW))
        NPRE = min(int(self.o.get("npre", 1)), len(rest))
        NIN = min(int(self.o.get("nin", 0)), len(rest) - NPRE)
        mid = rest[NPRE:len(rest) - NIN]
        for i in rest[:NPRE]:
            wgroups(i, V16)
        a.vm.wait("hst")
        self.signal([sPo], sPv)
        a("s_setprio 0")
        self.stamp(4)
        self.stamp(8, "3")
        items = [(sPv + 2, sPv + 1, 0 if self.o.get("x_nopoll") else 8)]
        a(f"s_lshl2_add_u32 s{sT0}, s{sRB2}, s{sB}")
        self.cnt_off(sPv + 1, cH, sT0)
        PW = min(int(self.o.get("pollw", 2)), len(mid))
        for i in mid[:len(mid) - PW]:
            wgroups(i, V16)
        self.poll_issue(items, atomic=True)
        for i in mid[len(mid) - PW:]:
            wgroups(i, V16)
        self.poll_check(items, atomic=True, sleep=0)
        self.stamp(5)
        self.stamp(9, "3")
        H0 = int(self.o.get("h0", 2))
        sHend = sPo
        self.step_off(0, sHo, sHb, sRot, 4096)
        a(f"s_add_u32 s{sHend}, s{sHb}, {12*4096}")

        def hadv():
            return [[("i", f"s_add_u32 s{sHo}, s{sHo}, 4096")],
                    [("i", f"s_cmp_eq_u32 s{sHo}, s{sHend}"), ("i", f"s_cselect_b32 s{sHo}, s{sHb}, s{sHo}")]]

        def hl(i, tt):
            r = HR + (i % NH) * 16 + 4 * tt
            if self.o.get("x_noh") and i >= 3:
                return [("i", "s_nop 0")]
            return [("vmem", f"buffer_load_dwordx4 {vr(r,4)}, v{V16}, {sr(SWS,4)}, s{sHo} offen offset:{tt*1024} sc1", f"h{i}_{tt}")]

        for i in range(H0):
            for tt in range(4):
                play(a, hl(i, tt))
            for g in hadv():
                play(a, g)
        acc2 = lambda tt, j: ACC2 + (tt * 5 + j) * 4
        fill = []
        for i in range(H0, 12):
            for tt in range(4):
                free = 20 * (i - NH) + 5 * tt + 6 if i >= NH else 0
                fill.append((free, hl(i, tt)))
            fill += [(0, g) for g in hadv()]
        wfill = []
        for k, i in enumerate(rest[len(rest) - NIN:]):
            wfill += [(8 + 20 * k + 4 * t, g) for t, g in enumerate(self.rec(wgroups, i, V16))]
        TM = int(self.o.get("tm", 2))
        seq = [(i, tt) for i in range(12 - TM) for tt in range(4)] + [(i, tt) for tt in range(4) for i in range(12 - TM, 12)]
        mi = 0
        lfill = []
        pw = []
        for i, tt in seq:
            if tt == 0 and i in (1, 4, 8):
                self.stamp({1: 10, 4: 11, 8: 12}[i], "3")
            if (i, tt) == (4, 0):
                a.ds(f"ds_read_b32 v{VF+1}, v{VF}", "wf")
            if (i, tt) == (4, 2):
                go = a.label("wgo")
                a.lg.drain()
                a(f"v_readfirstlane_b32 s{sT0}, v{VF+1}\ns_cmp_eq_u32 s{sT0}, 1\ns_cbranch_scc1 {go}")
                self.lds_flag_wait(VF, VF + 1, go)
                a(f"{go}:")
            nx = i + 2 if tt == 0 else None
            if nx is not None and NW <= nx < 12:
                for j in range(5):
                    v, off = self.wl_addr(5 * (nx - NW) + j, VLX, VLW)
                    lfill.append((mi + (11 if nx == NW else 0), [("ds", f"ds_read_b128 {vr(wr(nx,j),4)}, v{v} offset:{off}", f"wr{nx}")]))
            assert not any(op[0] == "vmem" and op[2] == f"h{i}_{tt}" for _, g in fill for op in g)
            assert not any(op[2] == f"wr{i}" for _, g in lfill for op in g)
            assert not any(op[0] == "vmem" and op[2] == f"w{i}" for _, g in wfill for op in g)
            a.lg.wait(f"wr{i}")
            a.vm.wait(f"w{i}", f"h{i}_{tt}")
            for j in range(5):
                c = "0" if i == 0 else vr(acc2(tt, j), 4)
                if not (self.o.get("x_nomfma") and i > 0):
                    a(f"v_mfma_f32_16x16x32_bf16 {vr(acc2(tt,j),4)}, {vr(wr(i,j),4)}, {vr(HR+(i%NH)*16+4*tt,4)}, {c}")
                mi += 1
                if fill and fill[0][0] <= mi:
                    play(a, fill.pop(0)[1])
                elif wfill and wfill[0][0] <= mi:
                    play(a, wfill.pop(0)[1])
                elif lfill and lfill[0][0] <= mi:
                    play(a, lfill.pop(0)[1])
                elif pw and pw[0][0] <= mi:
                    play(a, pw.pop(0)[1])
            if i == 11:
                for j in range(5):
                    t = tt * 5 + j
                    v, off = self.wl_addr(t, VLX, VLW)
                    pw.append((mi + 3, [("ds", f"ds_write_b128 v{v}, {vr(ACC2+4*t,4)} offset:{off}", "p")]))
        assert not fill and not lfill
        self.stamp(6)
        self.stamp(13, "3")
        for _, g in pw:
            play(a, g)
        a.lg.drain()
        a("s_barrier")
        self.stamp(7)
        self.dump_stamps("A")
        a("s_endpgm")

    def wl_addr(self, f, vx, vw):
        sl, n = (1, 2, 0)[f // 10], f % 10
        return (vx, XS + sl * 16384 + n * 1024) if n < 4 else (vw, sl * 24576 + (n - 4) * 1024)

    def g2_scalars(self, sRot, sWb):
        a = self.a
        a(f"""
        s_mul_i32 s{sT0}, s{sCB2}, 3
        s_lshr_b32 s{sT0}, s{sT0}, 1
        s_and_b32 s{sT1}, s{sI}, 3
        s_mul_i32 s{sT1}, s{sT1}, 3
        s_add_u32 s{sT0}, s{sT0}, s{sT1}
        s_sub_u32 s{sT1}, s{sT0}, 12
        """)
        a.begin()
        a(f"s_cmp_ge_u32 s{sT0}, 12\ns_cselect_b32 s{sRot}, s{sT1}, s{sT0}")
        a.end()
        rot2 = self.o.get("rot2", "x")
        if rot2 == "0":
            a(f"s_mov_b32 s{sRot}, 0")
        elif rot2 == "x":
            a(f"s_mul_i32 s{sRot}, s{sXCD}, 3\ns_lshr_b32 s{sRot}, s{sRot}, 1")
        a(f"""
        s_mul_i32 s{sT0}, s{sB}, 12
        s_mul_i32 s{sT1}, s{sCB2}, {BS}
        s_add_u32 s{sT1}, s{sT1}, s{sT0}
        s_mul_i32 s{sWb}, s{sT1}, 5120
        s_add_u32 s{sWb}, s{sWb}, {WDT}
        """)

    def step_off(self, i, so, sb, sRot, mul):
        a = self.a
        a.begin()
        a(f"""
        s_add_u32 s{so}, s{sRot}, {i}
        s_sub_u32 s{sT3}, s{so}, 12
        s_cmp_ge_u32 s{so}, 12
        s_cselect_b32 s{so}, s{sT3}, s{so}
        s_mul_i32 s{so}, s{so}, {mul}
        s_add_u32 s{so}, s{so}, s{sb}
        """)
        a.end()

    def b_common_setup(self):
        a = self.a
        VX, VG, VU, T = 1, 5, 8, 20
        self.VX, self.VG, self.VU = VX, VG, VU
        self.sXL, self.sWL, self.sXO, self.sWO = sA, sA + 1, sA + 2, sA + 3
        a("L_roleB:\nv_and_b32 v0, 63, v0")
        a(f"s_setprio {self.o.get('bprio', 1)}")
        rot = self.o.get("rot", "1")
        if rot == "0":
            a(f"s_mov_b32 s{sKS}, 0")
        elif rot == "1":
            a(f"""
            s_mul_i32 s{sT0}, s{sCB1}, 3
            s_add_u32 s{sT0}, s{sT0}, s{sRB1}
            s_mul_i32 s{sT1}, s{sT0}, 26
            s_lshr_b32 s{sT1}, s{sT1}, 8
            s_mul_i32 s{sT1}, s{sT1}, 10
            s_sub_u32 s{sKS}, s{sT0}, s{sT1}
            """)
        elif rot == "2":
            a(f"s_add_u32 s{sT0}, s{sRB1}, s{sCB1}\ns_and_b32 s{sT0}, s{sT0}, 1\ns_mul_i32 s{sKS}, s{sT0}, 5")
        elif rot == "4":
            a(f"s_add_u32 s{sT0}, s{sRB1}, s{sCB1}\ns_and_b32 s{sT0}, s{sT0}, 3\ns_mul_i32 s{sT0}, s{sT0}, 5\ns_lshr_b32 s{sKS}, s{sT0}, 1")
        a(f"""
        v_lshrrev_b32 v{T}, 3, v0
        v_mul_u32_u24 v{T}, 1280, v{T}
        s_lshl2_add_u32 s{sT0}, s{sRB1}, s{sB}
        s_mul_i32 s{sT0}, s{sT0}, 40960
        v_add_u32 v{T}, s{sT0}, v{T}
        v_and_b32 v{T+1}, 7, v0
        v_lshrrev_b32 v{T+2}, 4, v0
        v_xor_b32 v{T+1}, v{T+1}, v{T+2}
        v_lshl_add_u32 v{VX}, v{T+1}, 4, v{T}
        v_xor_b32 v{VX+1}, 64, v{VX}
        v_add_u32 v{VX+1}, 10240, v{VX+1}
        v_add_u32 v{VX+2}, 20480, v{VX}
        v_add_u32 v{VX+3}, 20480, v{VX+1}
        s_lshl_b32 s{self.sXL}, s{sB}, 12
        s_mul_i32 s{self.sWL}, s{sB}, 6144
        s_add_u32 s{self.sWL}, s{self.sWL}, {WS_}
        v_bfe_u32 v{T}, v0, 2, 2
        v_mul_u32_u24 v{T}, 3072, v{T}
        v_and_b32 v{T+1}, 3, v0
        v_lshl_add_u32 v{T}, v{T+1}, 4, v{T}
        s_mul_i32 s{sT0}, s{sB}, 49152
        s_mul_i32 s{sT1}, s{sCB1}, {384 if self.o.get("x_noover") else 192}
        s_add_u32 s{sT0}, s{sT0}, s{sT1}
        v_add_u32 v{T}, s{sT0}, v{T}
        """)
        if self.o.get("x_noover"):
            a(f"v_bfe_u32 v{T+1}, v0, 2, 1\nv_mul_u32_u24 v{T+1}, {3072-192}, v{T+1}\nv_sub_u32 v{T}, v{T}, v{T+1}")
        self.srd_words((SQ, SWG, SWU))
        s0 = self.rec(self.stage_issue, 0)
        a("s_waitcnt lgkmcnt(0)")
        for g in s0[:4]:
            play(a, g)
        for srd, off, _ in self.SRDS:
            if srd not in (SQ, SWG, SWU, SWS, SDBG):
                a(f"s_load_dwordx2 {sr(srd,2)}, s[0:1], {off}")
        for i in range(3):
            a(f"""
            v_add_u32 v{T+1}, {4*i}, v{T+2}
            v_mul_u32_u24 v{T+3}, 11, v{T+1}
            v_lshrrev_b32 v{T+3}, 5, v{T+3}
            v_mul_u32_u24 v{T+4}, {12288-192}, v{T+3}
            v_lshl_add_u32 v{T+4}, v{T+1}, 6, v{T+4}
            v_add_u32 v{VG+i}, v{T+4}, v{T}
            v_xor_b32 v{VU+i}, 32, v{VG+i}
            """)
            play(a, s0[4 + i])
        for g in s0[7:]:
            play(a, g)
        self.decode_rest()
        self.srd_words([srd for srd, _, _ in self.SRDS if srd not in (SQ, SWG, SWU)])
        a("s_waitcnt lgkmcnt(0)")
        self.ws_shift()

    def stage_issue(self, s):
        a = self.a
        sl = s % 3
        fl = self.o.get("g1flags", "")
        for i in range(4):
            a.begin()
            if i == 0:
                a(f"""
                s_lshl_b32 s{self.sXO}, s{sKS}, 7
                s_mul_i32 s{self.sWO}, s{sKS}, 196608
                s_add_u32 s{sKS}, s{sKS}, 1
                s_cmp_eq_u32 s{sKS}, 10
                s_cselect_b32 s{sKS}, 0, s{sKS}
                """)
            a(f"s_add_u32 m0, s{self.sXL}, {XS+sl*16384+i*1024}")
            a.vmem(f"buffer_load_dwordx4 v{self.VX+i}, {sr(SQ,4)}, s{self.sXO} offen {fl} lds", f"S{s}" if i else f"F{s}")
            a.end()
        for up in range(2):
            for i in range(3):
                a.begin()
                a(f"s_add_u32 m0, s{self.sWL}, {sl*24576+up*3072+i*1024}")
                a.vmem(f"buffer_load_dwordx4 v{(self.VU if up else self.VG)+i}, {sr(SWU if up else SWG,4)}, s{self.sWO} offen {fl} lds", f"S{s}")
                a.end()

    def touch_pages(self):
        a = self.a
        T = 110
        items = [(sRB2, 0, BS * 4096, HH - 128), (sRB2, 0, BS * 4096, HH + (BS - 1) * 4096),
                 (sRB1, 1, BS * 4096, HH + (BS - 1) * 4096), (sCB2, 0, BS * 5120, WDT - 128),
                 (sCB2, 0, BS * 5120, WDT + (BS - 1) * 5120), (sXCD, 0, 80 * self.row, UT + 4096),
                 (sXCD, 0, 80 * self.row, UT + 79 * self.row + 4096), (sXCD, 0, 80 * self.row, YY + 4096),
                 (sXCD, 0, 80 * self.row, YY + 79 * self.row + 4096), (sCB2, 0, 80 * self.row, YY + 4096),
                 (sCB2, 0, 80 * self.row, YY + 79 * self.row + 4096)]
        for lane, (src, sh, mul, base) in enumerate(items):
            a(f"s_mul_i32 s{sT0}, s{src}, {mul << sh}\ns_add_u32 s{sT0}, s{sT0}, {base}\nv_writelane_b32 v{T}, s{sT0}, {lane}")
        a(f"s_mov_b64 exec, {(1 << len(items)) - 1}")
        a.vmem(f"buffer_load_dword v{T+1}, v{T}, {sr(SWS,4)}, 0 offen", "pf")
        a("s_mov_b64 exec, -1")

    def stats_load(self):
        a = self.a
        T, X = 156, 24
        a(f"""
        v_lshrrev_b32 v{T}, 5, v0
        s_lshl2_add_u32 s{sT0}, s{sWS}, s{sB}
        s_lshl_b32 s{sT0}, s{sT0}, 1
        v_add_u32 v{T}, s{sT0}, v{T}
        v_lshlrev_b32 v19, 3, v{T}
        v_mul_u32_u24 v{T}, 1280, v{T}
        v_and_b32 v{T+1}, 31, v0
        v_lshl_add_u32 v{T}, v{T+1}, 3, v{T}
        """)
        for j in range(5):
            a.vmem(f"buffer_load_dwordx2 {vr(X+2*j,2)}, v{T}, {sr(SQ,4)}, 0 offen offset:{j*256}", "stat")

    def reduce32(self, v, t):
        a = self.a
        for n in (8, 4, 2, 1):
            a(f"v_add_f32_dpp v{v}, v{v}, v{v} row_ror:{n} row_mask:0xf bank_mask:0xf")
        a(f"v_mov_b32 v{t}, v{v}\nv_permlane16_swap_b32 v{v}, v{t}\nv_add_f32 v{v}, v{v}, v{t}")

    def stats_compute(self, announce):
        a = self.a
        X, U, T = 24, 34, 20
        a.vm.wait("stat")
        if announce:
            a(f"""
        s_cmp_lg_u32 s{sA+8}, 0
        s_cbranch_scc1 {announce}
        v_mov_b32 v{T}, 1
        s_mov_b64 exec, 1
        buffer_store_dword v{T}, off, {sr(SDBG,4)}, 0 sc1
        s_mov_b64 exec, -1
        {announce}:
        """)
        for j in range(10):
            a(f"v_lshlrev_b32 v{U+2*j}, 16, v{X+j}\nv_and_b32 v{U+2*j+1}, 0xffff0000, v{X+j}")
        a(f"v_add_f32 v{T}, v{U}, v{U+1}\nv_add_f32 v{T+1}, v{U+2}, v{U+3}")
        for j in range(4, 20):
            a(f"v_add_f32 v{T+(j&1)}, v{T+(j&1)}, v{U+j}")
        a(f"v_add_f32 v{T}, v{T}, v{T+1}")
        self.reduce32(T, T + 1)
        a(f"v_mul_f32 v{T}, {hex(f2u(1.0/640))}, v{T}")
        for j in range(20):
            a(f"v_sub_f32 v{U+j}, v{U+j}, v{T}")
        a(f"v_mul_f32 v{T+1}, v{U}, v{U}\nv_mul_f32 v{T+2}, v{U+1}, v{U+1}")
        for j in range(2, 20):
            a(f"v_fmac_f32 v{T+1+(j&1)}, v{U+j}, v{U+j}")
        a(f"v_add_f32 v{T+1}, v{T+1}, v{T+2}")
        self.reduce32(T + 1, T + 2)
        a(f"""
        v_mul_f32 v{T+1}, {hex(f2u(1.0/640))}, v{T+1}
        v_cvt_pk_bf16_f32 v{T+2}, v{T}, v{T+1}
        v_lshlrev_b32 v{T}, 16, v{T+2}
        v_and_b32 v{T+1}, 0xffff0000, v{T+2}
        v_add_f32 v{T+1}, {hex(f2u(1e-5))}, v{T+1}
        v_cvt_pk_bf16_f32 v{T+1}, v{T+1}, v{T+1}
        v_and_b32 v{T+1}, 0xffff0000, v{T+1}
        v_sqrt_f32 v{T+1}, v{T+1}
        v_cvt_pk_bf16_f32 v{T+1}, v{T+1}, v{T+1}
        v_and_b32 v{T+1}, 0xffff0000, v{T+1}
        s_mov_b32 s{sT0}, {ST}
        """)
        a.begin()
        a("s_mov_b32 exec_lo, 1\ns_mov_b32 exec_hi, 1")
        a.vmem(f"buffer_store_dwordx2 {vr(T,2)}, v19, {sr(SWS,4)}, s{sT0} offen sc1", "stst")
        a("s_mov_b64 exec, -1")
        a.end()

    def colsum_partial(self):
        a = self.a
        T, F = 12, 60
        a(f"""
        v_bfe_u32 v{T+2}, v0, 4, 1
        v_mul_u32_u24 v{T+3}, 3072, v{T+2}
        v_lshrrev_b32 v{T+4}, 5, v0
        v_mul_u32_u24 v{T+4}, 1536, v{T+4}
        v_bfe_u32 v{T+5}, v0, 2, 2
        v_lshl_add_u32 v{T+3}, v{T+5}, 6, v{T+3}
        v_and_b32 v{T+5}, 1, v0
        v_lshl_add_u32 v{T+3}, v{T+5}, 4, v{T+3}
        v_bfe_u32 v{T+5}, v0, 1, 1
        v_lshl_add_u32 v{T+3}, v{T+5}, 3, v{T+3}
        v_lshl_add_u32 v{T+3}, v{T+2}, 5, v{T+3}
        s_min_u32 s{sT1}, s{sB}, 2
        s_lshl_b32 s{sT1}, s{sT1}, 8
        s_add_u32 s{sT0}, s{sT1}, {WS_}
        v_add3_u32 v{T}, v{T+3}, v{T+4}, s{sT0}
        v_xor_b32 v{T+1}, 32, v{T}
        s_lshl4_add_u32 s{sT0}, s{sCB1}, s{sRB1}
        s_mul_i32 s{sT0}, s{sT0}, 768
        s_add_u32 s{sT0}, s{sT0}, s{sT1}
        s_add_u32 s{sT0}, s{sT0}, {CS}
        s_mov_b32 s{sT1}, 0x3f803f80
        v_lshlrev_b32 v147, 2, v0
        """)
        for h in range(2):
            for n in range(8):
                a.ds(f"ds_read_b64_tr_b16 {vr(F+16*h+2*n,2)}, v{T+h} offset:{(n>>1)*6144+(n&1)*768}", f"cs{h}")
        for r in range(4):
            a(f"v_mov_b32 v{T+2+r}, 0")
        for h in range(2):
            a.lg.wait(f"cs{h}")
            for n in range(16):
                a(f"v_dot2c_f32_bf16 v{T+2+2*h+(n&1)}, s{sT1}, v{F+16*h+n}")
        a(f"v_add_f32 v{T+2}, v{T+2}, v{T+3}\nv_add_f32 v{T+4}, v{T+4}, v{T+5}")
        a(f"v_permlane32_swap_b32 v{T+2}, v{T+4}\nv_add_f32 v{T+2}, v{T+2}, v{T+4}")
        a(f"v_mov_b32 v148, v{T+2}\nv_add_u32 v149, s{sT0}, v147")

    def colsum_a_issue(self):
        a = self.a
        T = 158
        sL = sA + 9
        a(f"""
        s_min_u32 s{sT1}, s{sB}, 2
        s_mul_i32 s{sL}, s{sB}, 6144
        s_add_u32 s{sL}, s{sL}, {WS_+2*24576}
        v_lshrrev_b32 v{T}, 2, v0
        v_mul_u32_u24 v{T}, 3072, v{T}
        v_and_b32 v{T+1}, 3, v0
        v_lshl_add_u32 v{T}, v{T+1}, 4, v{T}
        s_mul_i32 s{sT0}, s{sRB1}, 122880
        s_mul_i32 s{sT2}, s{sCB1}, 192
        s_add_u32 s{sT0}, s{sT0}, s{sT2}
        s_lshl_b32 s{sT1}, s{sT1}, 6
        s_add_u32 s{sT0}, s{sT0}, s{sT1}
        v_xor_b32 v{T+1}, 32, v{T}
        """)
        for up in range(2):
            for i in range(3):
                a(f"s_add_u32 m0, s{sL}, {up*3072+i*1024}\ns_add_u32 s{sT1}, s{sT0}, {i*49152}")
                if i == 2:
                    a("s_mov_b32 exec_hi, 0")
                a.vmem(f"buffer_load_dwordx4 v{T+up}, {sr(SWU if up else SWG,4)}, s{sT1} offen lds", "cs")
                if i == 2:
                    a("s_mov_b32 exec_hi, -1")

    def colsum_a(self):
        a = self.a
        T, F = 12, 60
        sL = sA + 9
        a(f"""
        v_bfe_u32 v{T+2}, v0, 4, 1
        v_mul_u32_u24 v{T+3}, 3072, v{T+2}
        v_lshrrev_b32 v{T+4}, 5, v0
        v_lshl_add_u32 v{T+3}, v{T+4}, 8, v{T+3}
        v_bfe_u32 v{T+5}, v0, 2, 2
        v_lshl_add_u32 v{T+3}, v{T+5}, 6, v{T+3}
        v_and_b32 v{T+5}, 1, v0
        v_lshl_add_u32 v{T+3}, v{T+5}, 4, v{T+3}
        v_bfe_u32 v{T+5}, v0, 1, 1
        v_lshl_add_u32 v{T+3}, v{T+5}, 3, v{T+3}
        v_lshl_add_u32 v{T+3}, v{T+2}, 5, v{T+3}
        v_add_u32 v{T}, s{sL}, v{T+3}
        v_xor_b32 v{T+1}, 32, v{T}
        s_min_u32 s{sT1}, s{sB}, 2
        s_lshl_b32 s{sT1}, s{sT1}, 8
        s_lshl4_add_u32 s{sT0}, s{sCB1}, s{sRB1}
        s_mul_i32 s{sT0}, s{sT0}, 768
        s_add_u32 s{sT0}, s{sT0}, s{sT1}
        s_add_u32 s{sT0}, s{sT0}, {CS}
        s_mov_b32 s{sT1}, 0x3f803f80
        v_lshlrev_b32 v{T+6}, 2, v0
        """)
        a.vm.wait("cs")
        for h in range(2):
            for n in range(5):
                a.ds(f"ds_read_b64_tr_b16 {vr(F+10*h+2*n,2)}, v{T+h} offset:{n*512}", f"cs{h}")
        for r in range(4):
            a(f"v_mov_b32 v{T+2+r}, 0")
        for h in range(2):
            a.lg.wait(f"cs{h}")
            for n in range(10):
                a(f"v_dot2c_f32_bf16 v{T+2+2*h+(n&1)}, s{sT1}, v{F+10*h+n}")
        a(f"v_add_f32 v{T+2}, v{T+2}, v{T+3}\nv_add_f32 v{T+4}, v{T+4}, v{T+5}")
        a(f"v_permlane32_swap_b32 v{T+2}, v{T+4}\nv_add_f32 v{T+2}, v{T+2}, v{T+4}")
        a.vmem(f"buffer_store_dword v{T+2}, v{T+6}, {sr(SWS,4)}, s{sT0} offen sc1", "csst")

    def colsum_l_setup(self):
        a = self.a
        T, A0 = 12, 180
        a(f"""
        v_bfe_u32 v{T+2}, v0, 4, 1
        v_mul_u32_u24 v{T+3}, 3072, v{T+2}
        v_lshrrev_b32 v{T+4}, 5, v0
        v_mul_u32_u24 v{T+4}, 1536, v{T+4}
        v_bfe_u32 v{T+5}, v0, 2, 2
        v_lshl_add_u32 v{T+3}, v{T+5}, 6, v{T+3}
        v_and_b32 v{T+5}, 1, v0
        v_lshl_add_u32 v{T+3}, v{T+5}, 4, v{T+3}
        v_bfe_u32 v{T+5}, v0, 1, 1
        v_lshl_add_u32 v{T+3}, v{T+5}, 3, v{T+3}
        v_lshl_add_u32 v{T+3}, v{T+2}, 5, v{T+3}
        v_add3_u32 v{A0}, v{T+3}, v{T+4}, s{self.sWL}
        v_xor_b32 v{A0+1}, 32, v{A0}
        v_add_u32 v{A0+2}, 49152, v{A0}
        v_add_u32 v{A0+3}, 49152, v{A0+1}
        v_mov_b32 v{A0+4}, 0x3f803f80
        """)
        for J in range(6):
            a(f"v_mov_b32 v{A0+6+J}, 0")

    def colsum_l_stage(self, st):
        a = self.a
        A0, F = 180, 192
        sl = st % 3
        for J in range(6):
            for q in range(2):
                a.ds(f"ds_read_b64_tr_b16 {vr(F+4*J+2*q,2)}, v{A0+(J&1)+(2 if sl == 2 else 0)} offset:{(sl%2)*24576+(J>>1)*256+q*768}", "cl")
        a.begin()
        a.lg.wait("cl")
        for r in range(4):
            for J in range(6):
                a(f"v_dot2c_f32_bf16 v{A0+6+J}, v{A0+4}, v{F+4*J+r}")
        a.end()

    def colsum_l_finish(self):
        a = self.a
        A0 = 180
        a(f"s_lshl_b32 s{sT0}, s{sB}, 2\ns_add_u32 s{sT0}, s{sT0}, {CSF}\nv_lshl_add_u32 v{A0}, v0, 4, s{sT0}")
        for p in range(3):
            a(f"v_permlane32_swap_b32 v{A0+6+2*p}, v{A0+7+2*p}")
        for p in range(3):
            a(f"v_add_f32 v{A0+6+2*p}, v{A0+6+2*p}, v{A0+7+2*p}")
            a.ds(f"ds_write_b32 v{A0}, v{A0+6+2*p} offset:{p*1024}", "gw")

    def colsum_r_setup(self):
        a = self.a
        T, A0, sJ = 12, 180, sA + 13
        r2 = self.o.get("rot", "1") == "2"
        a(f"""
        v_bfe_u32 v{T+2}, v0, 4, 1
        v_mul_u32_u24 v{T+3}, 3072, v{T+2}
        v_lshrrev_b32 v{T+4}, 5, v0
        v_mul_u32_u24 v{T+4}, 1536, v{T+4}
        v_bfe_u32 v{T+5}, v0, 2, 2
        v_lshl_add_u32 v{T+3}, v{T+5}, 6, v{T+3}
        v_and_b32 v{T+5}, 1, v0
        v_lshl_add_u32 v{T+3}, v{T+5}, 4, v{T+3}
        v_bfe_u32 v{T+5}, v0, 1, 1
        v_lshl_add_u32 v{T+3}, v{T+5}, 3, v{T+3}
        v_lshl_add_u32 v{T+3}, v{T+2}, 5, v{T+3}
        s_lshr_b32 s{sJ}, s{sRB1}, {1 if r2 else 2}
        s_mul_i32 s{sT0}, s{sJ}, 11
        s_lshr_b32 s{sT0}, s{sT0}, 5
        s_mul_i32 s{sT0}, s{sT0}, 3
        s_sub_u32 s{sT0}, s{sJ}, s{sT0}
        s_mul_i32 s{sT0}, s{sT0}, 24576
        s_min_u32 s{sT1}, s{sB}, 2
        s_lshl_b32 s{sT1}, s{sT1}, 8
        s_add_u32 s{sT0}, s{sT0}, s{sT1}
        s_add_u32 s{sT0}, s{sT0}, {WS_}
        v_add3_u32 v{A0}, v{T+3}, v{T+4}, s{sT0}
        v_xor_b32 v{A0+1}, 32, v{A0}
        s_add_u32 s{sT2}, s{sRB1}, s{sCB1}
        s_and_b32 s{sT2}, s{sT2}, {1 if r2 else 3}
        s_mul_i32 s{sT0}, s{sT2}, 5
        s_lshr_b32 s{sT0}, s{sT0}, {0 if r2 else 1}
        s_add_u32 s{sT0}, s{sT0}, s{sJ}
        s_lshl4_add_u32 s{sT0}, s{sCB1}, s{sT0}
        s_mul_i32 s{sT0}, s{sT0}, 768
        s_add_u32 s{sT0}, s{sT0}, s{sT1}
        s_add_u32 s{sT0}, s{sT0}, {CS}
        v_lshl_add_u32 v{A0+2}, v0, 2, s{sT0}
        v_mov_b32 v{A0+3}, 0x3f803f80
        """)
        if not r2:
            a.begin()
            a(f"s_and_b32 s{sT2}, s{sT2}, 1\ns_add_u32 s{sT2}, s{sT2}, 2\ns_cmp_lt_u32 s{sJ}, s{sT2}\ns_cselect_b32 s{sJ}, s{sJ}, 15")
            a.end()
        for r in range(4):
            a(f"v_mov_b32 v{A0+4+r}, 0")

    def colsum_r_call(self, j, part):
        a = self.a
        lab = a.label("csr")
        a.begin()
        a(f"s_cmp_lg_u32 s{sA+13}, {j}\ns_cbranch_scc1 {lab}\ns_call_b64 s[{sTM}:{sTM+1}], L_colsum{part}\n{lab}:")
        a.end()

    def colsum_r_body(self):
        a = self.a
        A0, F = 180, 192
        for h in range(2):
            a(f"L_colsum{h}:")
            for n in range(8):
                a(f"ds_read_b64_tr_b16 {vr(F+16*h+2*n,2)}, v{A0+h} offset:{(n>>1)*6144+(n&1)*768}")
            a(f"s_setpc_b64 s[{sTM}:{sTM+1}]")
        for h in range(2):
            a(f"L_colsum{2+h}:")
            a(f"s_waitcnt lgkmcnt(0)")
            for n in range(16):
                a(f"v_dot2c_f32_bf16 v{A0+4+2*h+(n&1)}, v{A0+3}, v{F+16*h+n}")
            if h == 0:
                a(f"s_setpc_b64 s[{sTM}:{sTM+1}]")
        a(f"v_add_f32 v{A0+4}, v{A0+4}, v{A0+5}\nv_add_f32 v{A0+6}, v{A0+6}, v{A0+7}")
        a(f"v_permlane32_swap_b32 v{A0+4}, v{A0+6}\nv_add_f32 v{A0+4}, v{A0+4}, v{A0+6}")
        a(f"buffer_store_dword v{A0+4}, v{A0+2}, {sr(SWS,4)}, 0 offen sc1")
        a(f"s_setpc_b64 s[{sTM}:{sTM+1}]")

    def colsum_store(self):
        self.a.vmem(f"buffer_store_dword v148, v149, {sr(SWS,4)}, 0 offen sc1", "csst")

    def ncs(self):
        return {"A": 16, "B": 10, "L": 0, "R": 10}[self.o.get("cs", "B")]

    def gather_issue(self):
        a = self.a
        T, G = 14, 24
        a(f"""
        v_and_b32 v{T}, 31, v0
        s_lshl2_add_u32 s{sT0}, s{sRB1}, s{sB}
        s_lshl_b32 s{sT0}, s{sT0}, 8
        s_add_u32 s{sT0}, s{sT0}, {ST}
        v_lshlrev_b32 v{T}, 3, v{T}
        s_mul_i32 s{sT1}, s{sCB1}, 12288
        s_mul_i32 s{sT2}, s{sB}, 192
        s_add_u32 s{sT1}, s{sT1}, s{sT2}
        s_add_u32 s{sT1}, s{sT1}, {CS}
        v_lshlrev_b32 v{T+1}, 2, v0
        """)
        a.vmem(f"buffer_load_dwordx2 {vr(G,2)}, v{T}, {sr(SWS,4)}, s{sT0} offen sc1", "gat")
        for p in range(self.ncs()):
            if p and p % 5 == 0:
                a(f"s_add_u32 s{sT1}, s{sT1}, 3840")
            a.vmem(f"buffer_load_dword v{G+2+p}, v{T+1}, {sr(SWS,4)}, s{sT1} offen offset:{(p%5)*768} sc1", "gat")

    def gather_finish(self):
        a = self.a
        T, G = 14, 24
        a.vm.wait("gat")
        a(f"s_lshl_b32 s{sT0}, s{sB}, 8\ns_add_u32 s{sT0}, s{sT0}, {STL}\nv_add_u32 v{T}, s{sT0}, v{T}")
        a.ds(f"ds_write_b64 v{T}, {vr(G,2)}", "gw")
        if self.ncs() == 0:
            self.colsum_l_stage(9)
            self.colsum_l_finish()
        else:
            c = G + 2
            n = self.ncs()
            while n > 1:
                h = n // 2
                for p in range(h):
                    a(f"v_add_f32 v{c+p}, v{c+p}, v{c+n-h+p}")
                n -= h
            a(f"""
            v_cvt_pk_bf16_f32 v{c+1}, v{c}, v{c}
            v_and_b32 v{c+1}, 0xffff0000, v{c+1}
            v_sub_f32 v{c+1}, v{c}, v{c+1}
            v_cvt_pk_bf16_f32 v{c+2}, v{c}, v{c+1}
            v_and_b32 v{c+4}, 0xffff0000, v{c+2}
            v_sub_f32 v{c+1}, v{c+1}, v{c+4}
            v_cvt_pk_bf16_f32 v{c+3}, v{c+1}, 0
            s_mul_i32 s{sT0}, s{sB}, 384
            s_add_u32 s{sT0}, s{sT0}, {CSF}
            v_lshl_add_u32 v{T+1}, v0, 3, s{sT0}
            """)
            a.begin()
            a("s_mov_b32 exec_hi, 0xffff")
            a.ds(f"ds_write_b64 v{T+1}, {vr(c+2,2)}", "gw")
            a("s_mov_b32 exec_hi, -1")
            a.end()
        a(f"v_mov_b32 v{T}, {GCNT}\nv_mov_b32 v{T+1}, 1\ns_mov_b64 exec, 1")
        a.ds(f"ds_add_u32 v{T}, v{T+1}", "gw")
        a("s_mov_b64 exec, -1")

    def stage_base(self, sR):
        if self.o.get("p0", "B") == "B":
            return f"s_mul_i32 s{sR}, s{sB}, 8704\ns_add_u32 s{sR}, s{sR}, {AUX}"
        tab = (32768, 98304, 107008, 41472)
        o = f"s_mov_b32 s{sR}, {tab[0]}"
        for b in range(1, 4):
            o += f"\ns_cmp_eq_u32 s{sB}, {b}\ns_cselect_b32 s{sR}, {tab[b]}, s{sR}"
        return o

    def task_index(self, K, CV):
        b = self.a
        bal = self.o.get("bal", "0") == "1"
        b(f"s_and_b32 s{sT0}, s{sI}, 1\ns_lshr_b32 s{sT1}, s{sI}, 1")
        if CV:
            b(f"""
            s_mul_i32 s{sT2}, s{sT0}, 3
            s_mul_i32 s{sT3}, s{sT1}, 5
            s_add_u32 s{sT2}, s{sT2}, s{sT3}
            s_mul_i32 s{sT3}, s{sXCD}, 80
            s_add_u32 s{sT2}, s{sT2}, s{sT3}
            s_add_u32 s{self.sCH}, s{sT2}, s{sB}
            """)
        if K:
            b(f"""
            s_mul_i32 s{sT0}, s{sT0}, {2 if bal else 3}
            s_mul_i32 s{sT1}, s{sT1}, 5
            s_mul_i32 s{sT2}, s{sXCD}, 80
            s_add_u32 s{sT0}, s{sT0}, s{sB}
            """)
        elif bal:
            b(f"""
            s_add_u32 s{sT0}, s{sT0}, s{sB}
            s_sub_u32 s{sT0}, s{sT0}, 2
            s_mul_i32 s{sT1}, s{sT1}, 3
            s_mul_i32 s{sT2}, s{sXCD}, 48
            """)
        else:
            b(f"""
            s_sub_u32 s{sT2}, s{sB}, 1
            s_mul_i32 s{sT0}, s{sT0}, s{sT2}
            s_mul_i32 s{sT1}, s{sT1}, 3
            s_mul_i32 s{sT2}, s{sXCD}, 48
            """)
        b(f"s_add_u32 s{sT0}, s{sT0}, s{sT1}\ns_add_u32 s{sC}, s{sT0}, s{sT2}")

    def kv_issue(self):
        a = self.a
        T = 150
        fl = self.o.get("p0flags", "nt")
        sR, sT0K, sCG = sA + 5, sA + 6, sA + 7
        a(f"""
        s_and_b32 s{sT0K}, s{sC}, 63
        s_lshl_b32 s{sT0K}, s{sT0K}, 5
        s_lshr_b32 s{sCG}, s{sC}, 6
        {self.stage_base(sR)}
        v_lshrrev_b32 v{T}, 3, v0
        v_mul_u32_u24 v{T}, 1280, v{T}
        v_and_b32 v{T+1}, 7, v0
        v_lshl_add_u32 v{T}, v{T+1}, 4, v{T}
        s_mul_i32 s{sT0}, s{sT0K}, 1280
        s_lshl_b32 s{sT1}, s{sCG}, 7
        s_add_u32 s{sT0}, s{sT0}, s{sT1}
        v_add_u32 v{T+2}, s{sT0}, v{T}
        v_subrev_u32 v{T}, 5120, v{T+2}
        v_add_u32 v{T+1}, 5120, v{T+2}
        s_lshl_b32 s{sT1}, s{sCG}, 9
        v_lshl_add_u32 v{T+3}, v0, 3, s{sT1}
        """)
        a.begin()
        a(f"s_mov_b32 m0, s{sR}")
        a.vmem(f"buffer_load_dwordx4 v{T}, {sr(SK,4)}, 0 offen {fl} lds", "K0")
        a.end()
        for i in range(1, 5):
            a.begin()
            a(f"s_add_u32 m0, s{sR}, {i*1024}\ns_mov_b32 s{sT0}, {(i-1)*10240}")
            if i == 4:
                a("s_mov_b32 exec_hi, 0")
            a.vmem(f"buffer_load_dwordx4 v{T+1}, {sr(SK,4)}, s{sT0} offen {fl} lds", f"K{i}")
            if i == 4:
                a("s_mov_b32 exec_hi, -1")
            a.end()
        for i in range(4):
            a.begin()
            a(f"s_add_u32 m0, s{sR}, {4608+i*1024}\ns_mov_b32 s{sT0}, {i*10240}")
            a.vmem(f"buffer_load_dwordx4 v{T+2}, {sr(SV,4)}, s{sT0} offen {fl} lds", f"V{i}")
            a.end()
        a.vmem(f"buffer_load_dwordx2 v[54:55], v{T+3}, {sr(SSH,4)}, 0 offen", "SH")

    def kv_setup(self):
        a = self.a
        T = 20
        sR, sT0K, sCG = sA + 5, sA + 6, sA + 7
        a(f"""
        v_bfe_u32 v{T}, v0, 2, 2
        v_lshrrev_b32 v{T+1}, 4, v0
        v_lshlrev_b32 v{T+1}, 5, v{T+1}
        v_lshl_add_u32 v{T}, v{T}, 7, v{T+1}
        v_and_b32 v{T+1}, 3, v0
        v_lshl_add_u32 v{T}, v{T+1}, 3, v{T}
        v_add_u32 v154, s{sR}, v{T}
        v_lshrrev_b32 v{T+2}, 2, v0
        v_mul_u32_u24 v{T+2}, {4*self.row}, v{T+2}
        v_lshl_add_u32 v157, v{T+1}, 4, v{T+2}
        s_mul_i32 s{sA+8}, s{sCG}, {64*self.row}
        s_lshl1_add_u32 s{sA+8}, s{sT0K}, s{sA+8}
        s_add_u32 s{sA+8}, s{sA+8}, {UT}
        """)

    def kv_block(self, n):
        a = self.a
        T, K, Vv, W, KF, O = 20, 60, 78, 14, 96, 132
        a.vm.wait(f"K{n}", f"K{n+1}", f"V{n}", "SH")
        for i in ([0, 1, 2] if n == 0 else [2 * n + 1, 2 * n + 2]):
            a.ds(f"ds_read_b64_tr_b16 {vr(K+2*i,2)}, v154 offset:{i*512}", f"k{i}")
        for i in (2 * n, 2 * n + 1):
            a.ds(f"ds_read_b64_tr_b16 {vr(Vv+2*i,2)}, v154 offset:{4608+i*512}", f"v{i}")
        if n == 0:
            a(f"""
            v_lshlrev_b32 v{W}, 16, v54
            v_and_b32 v{W+1}, 0xffff0000, v54
            v_lshlrev_b32 v{W+2}, 16, v55
            v_and_b32 v{W+3}, 0xffff0000, v55
            """)
        nk = 0 if n == 0 else 4 * n + 2
        for p in range(4 * n, 4 * n + 4):
            while nk < p + 3:
                a.lg.wait(f"k{nk>>1}")
                a(f"v_lshlrev_b32 v{KF+2*nk}, 16, v{K+nk}\nv_and_b32 v{KF+2*nk+1}, 0xffff0000, v{K+nk}")
                nk += 1
            for e in range(2):
                a(f"v_mul_f32 v{T+e}, v{W+3}, v{KF+2*p+e+1}")
            for d in (2, 1, 0):
                for e in range(2):
                    a(f"v_fmac_f32 v{T+e}, v{W+d}, v{KF+2*p+e+4-d}")
            a.lg.wait(f"v{p>>1}")
            a(f"v_lshlrev_b32 v{T+2}, 16, v{Vv+p}\nv_and_b32 v{T+3}, 0xffff0000, v{Vv+p}")
            a(f"v_mul_f32 v{T}, v{T}, v{T+2}\nv_mul_f32 v{T+1}, v{T+1}, v{T+3}")
            a(f"v_cvt_pk_bf16_f32 v{O+p}, v{T}, v{T+1}")

    def kv_bounce(self):
        a = self.a
        KF, O = 96, 132
        for src, dst, bit, perm in ((O, KF, 1, "[1,0,3,2]"), (KF, O, 2, "[2,3,0,1]")):
            low = 0x55555555 if bit == 1 else 0x33333333
            for mask, js in ((low, [j for j in range(4) if not j & bit]), (low ^ 0xffffffff, [j for j in range(4) if j & bit])):
                for j in js:
                    a.begin()
                    a(f"s_mov_b32 vcc_lo, {hex(mask)}\ns_mov_b32 vcc_hi, {hex(mask)}")
                    for r in range(4):
                        a(f"v_cndmask_b32_dpp v{dst+4*j+r}, v{src+4*(j^bit)+r}, v{src+4*j+r}, vcc quad_perm:{perm} row_mask:0xf bank_mask:0xf")
                    a.end()

    def kv_stores(self):
        a = self.a
        O = 132
        for j in range(4):
            a.begin()
            a.vmem(f"buffer_store_dwordx4 {vr(O+4*j,4)}, v157, {sr(SWS,4)}, s{sA+8} offen sc1", "utst")
            if j < 3:
                a(f"s_add_u32 s{sA+8}, s{sA+8}, {self.row}")
            a.end()

    def wd_issue(self):
        a = self.a
        T = 150
        fl = self.o.get("p0flags", "nt")
        sR = sA + 5
        a(f"""
        s_lshr_b32 s{sA+6}, s{sC}, 3
        s_and_b32 s{sT1}, s{sC}, 3
        s_lshl2_add_u32 s{sA+6}, s{sA+6}, s{sT1}
        s_mul_i32 s{sA+6}, s{sA+6}, 10240
        s_bfe_u32 s{sT1}, s{sC}, 0x10002
        s_mul_i32 s{sT1}, s{sT1}, 640
        s_add_u32 s{sA+6}, s{sA+6}, s{sT1}
        {self.stage_base(sR)}
        """)
        for i in range(5):
            a(f"""
            v_add_u32 v{T+1}, {64*i}, v0
            v_mul_u32_u24 v{T+2}, 1639, v{T+1}
            v_lshrrev_b32 v{T+2}, 16, v{T+2}
            v_mul_u32_u24 v{T+2}, 640, v{T+2}
            v_lshl_add_u32 v{T+2}, v{T+1}, 4, v{T+2}
            """)
            a.begin()
            a(f"s_add_u32 m0, s{sR}, {i*1024}")
            a.vmem(f"buffer_load_dwordx4 v{T+2}, {sr(SWD,4)}, s{sA+6} offen {fl} lds", "kv")
            a.end()

    def wd_work(self):
        a = self.a
        T, F, VA = 20, 60, 150
        sR = sA + 5
        a(f"""
        v_bfe_u32 v{T}, v0, 2, 2
        v_mul_u32_u24 v{T}, 640, v{T}
        v_lshrrev_b32 v{T+2}, 4, v0
        v_lshl_add_u32 v{T}, v{T+2}, 5, v{T}
        v_and_b32 v{T+1}, 3, v0
        v_lshl_add_u32 v{T}, v{T+1}, 3, v{T}
        v_add_u32 v{T}, s{sR}, v{T}
        s_bfe_u32 s{sA+8}, s{sC}, 0x10002
        s_mul_i32 s{sA+8}, s{sA+8}, {4*BS}
        s_lshr_b32 s{sT1}, s{sC}, 3
        s_add_u32 s{sA+8}, s{sA+8}, s{sT1}
        s_mul_i32 s{sA+8}, s{sA+8}, 5120
        s_and_b32 s{sT1}, s{sC}, 3
        s_lshl_b32 s{sT1}, s{sT1}, 8
        s_add_u32 s{sA+8}, s{sA+8}, s{sT1}
        s_add_u32 s{sA+8}, s{sA+8}, {WDT}
        v_and_b32 v{T+1}, 15, v0
        v_lshlrev_b32 v{T+1}, 4, v{T+1}
        """)
        for n in range(5):
            a(f"""
            v_add_u32 v{T+3}, {4*n}, v{T+2}
            v_mul_u32_u24 v{VA+n}, 13, v{T+3}
            v_lshrrev_b32 v{VA+n}, 6, v{VA+n}
            v_mul_u32_u24 v{VA+n}, {(BS-1)*5120}, v{VA+n}
            v_lshl_add_u32 v{VA+n}, v{T+3}, 10, v{VA+n}
            v_add_u32 v{VA+n}, v{VA+n}, v{T+1}
            """)
        a.vm.wait("kv")
        for n in range(5):
            for q in range(2):
                a.ds(f"ds_read_b64_tr_b16 {vr(F+4*n+2*q,2)}, v{T} offset:{q*2560+n*128}", f"wt{n}")
        for n in range(5):
            a.lg.wait(f"wt{n}")
            a.vmem(f"buffer_store_dwordx4 {vr(F+4*n,4)}, v{VA+n}, {sr(SWS,4)}, s{sA+8} offen sc1", "utst")

    def conv_issue(self):
        a = self.a
        fl = self.o.get("p0flags", "nt")
        regs = self.o.get("p0mode", "burst") == "burst"
        a(f"""
        s_lshl_b32 s{sT0}, s{self.sCH}, 12
        v_lshl_add_u32 v176, v0, 4, s{sT0}
        s_lshl_b32 s{sT0}, s{self.sCH}, 1
        v_mov_b32 v19, s{sT0}
        """)
        a.vmem(f"buffer_load_ushort v19, v19, {sr(SSD,4)}, 0 offen", "hk")
        for i in range(4):
            if regs:
                a.vmem(f"buffer_load_dwordx4 {vr(160+4*i,4)}, v176, {sr(SSK,4)}, 0 offen offset:{i*1024} {fl}", "hk")
                continue
            a.begin()
            a(f"s_add_u32 m0, s{self.sR}, 96")
            a.vmem(f"buffer_load_dwordx4 v176, {sr(SSK,4)}, 0 offen offset:{i*1024} {fl} lds", "hk")
            a.end()

    def conv_fold(self):
        a = self.a
        if self.o.get("p0mode", "burst") == "burst":
            a.vm.wait("hk")
            a(f"""
            v_add_u32 v176, s{self.sR}, v18
            s_mov_b64 exec, 1
            v_lshlrev_b32 v177, 16, v160
            v_lshlrev_b32 v19, 16, v19
            v_add_f32 v177, v177, v19
            v_and_b32 v160, 0xffff0000, v160
            v_cvt_pk_bf16_f32 v160, v177, v160
            s_mov_b64 exec, -1
            """)
            for i in range(4):
                a.ds(f"ds_write_b128 v176, {vr(160+4*i,4)} offset:{96+i*1024}", "hw")
            return
        a(f"v_mov_b32 v176, s{self.sR}")
        a.vm.wait("hk")
        a.ds("ds_read_u16 v177, v176 offset:96", "h0")
        a("v_lshlrev_b32 v19, 16, v19")
        a.lg.wait("h0")
        a("v_lshlrev_b32 v177, 16, v177\nv_add_f32 v177, v177, v19\nv_cvt_pk_bf16_f32 v177, v177, v177")
        a.ds("ds_write_b16 v176, v177 offset:96", "h0")

    def conv_u_issue(self):
        a = self.a
        a(f"s_mul_i32 s{sT0}, s{self.sCH}, {self.row}\ns_add_u32 m0, s{self.sR}, 4352\ns_add_u32 s{sT0}, s{sT0}, {UT}")
        for i in range(4):
            a.vmem(f"buffer_load_dwordx4 v18, {sr(SWS,4)}, s{sT0} offen offset:{i*1024} sc1 lds", f"u{i}")

    def conv_setup(self):
        a = self.a
        T = 4
        a(f"""
        v_lshlrev_b32 v{T}, 2, v0
        v_add_u32 v{T}, s{self.sR}, v{T}
        v_mov_b32 v{T+1}, 0
        s_mov_b32 exec_hi, 0
        s_mov_b32 exec_lo, 0xffffff
        """)
        a.ds(f"ds_write_b32 v{T}, v{T+1}", "z")
        a("s_mov_b32 exec_lo, -1\ns_mov_b32 exec_hi, 0xff")
        a.ds(f"ds_write_b32 v{T}, v{T+1} offset:4192", "z")
        a("s_mov_b64 exec, -1")
        a(f"""
        v_and_b32 v{T}, 3, v0
        v_lshrrev_b32 v{T+1}, 4, v0
        v_bfe_u32 v{T+2}, v0, 2, 2
        v_lshlrev_b32 v{T+3}, 6, v{T+1}
        v_lshl_add_u32 v{T+3}, v{T+2}, 3, v{T+3}
        v_lshl_add_u32 v1, v{T}, 5, v{T+3}
        v_add_u32 v1, s{self.sR}, v1
        v_lshlrev_b32 v{T}, 3, v{T}
        v_sub_u32 v2, v{T}, v{T+3}
        s_add_u32 s{sT0}, s{self.sR}, {4352+64}
        v_add_u32 v2, s{sT0}, v2
        v_lshl_add_u32 v3, v0, 1, s{self.sR}
        v_mov_b32 v10, 0
        v_mov_b32 v11, 0
        v_lshl_add_u32 v12, v0, 4, s{self.sR}
        s_mul_i32 s{self.sY}, s{self.sCH}, {self.row}
        s_add_u32 s{self.sY}, s{self.sY}, {YY}
        """)

    def xt_issue(self, wave3=False):
        a = self.a
        T = 20
        sX = sA + 7
        a(f"""
        s_mul_i32 s{sX}, s{sRB2}, 81920
        s_mul_i32 s{sT2}, s{sCB2}, 160
        s_add_u32 s{sX}, s{sX}, s{sT2}
        """)
        for p in range(10):
            a.begin()
            lab = a.label("xt")
            if wave3:
                a(f"s_cmp_lg_u32 s{sB}, 3\ns_cbranch_scc1 {lab}")
            a(f"""
            v_add_u32 v{T}, {64*p}, v0
            v_mul_u32_u24 v{T+1}, 6554, v{T}
            v_lshrrev_b32 v{T+1}, 16, v{T+1}
            v_mul_u32_u24 v{T+1}, 1120, v{T+1}
            v_lshl_add_u32 v{T+1}, v{T}, 4, v{T+1}
            s_mov_b32 m0, {XT+p*1024}
            """)
            a(f"buffer_load_dwordx4 v{T+1}, {sr(SQ,4)}, s{sX} offen lds")
            a(f"{lab}:")
            a.end()

    def loader(self, steps, finish):
        a = self.a
        T = 20
        sO2 = sA + 10
        depth = int(self.o.get("ldepth", 0))
        late_xt = self.o.get("xtpos", "7") == "L"
        for st in steps:
            if st == 4:
                if late_xt:
                    self.xt_issue()
                go = a.label("ringfree")
                a(f"v_mov_b32 v{T}, {ACNT}")
                self.lds_flag_wait(T, T + 1, go, 4)
                a(f"{go}:")
            self.step_off(6 + st, self.sWo, self.sWb, self.sRot, 5120)
            for q in range(0 if self.o.get("x_nowd") else 4):
                prev = None
                for j in range(5):
                    isw, off = self.wl_addr(5 * st + j, 0, 1)
                    lds = off + (WS_ + q * 6144 if isw else q * 4096)
                    if prev is not None and lds == prev[0] + (j - prev[1]) * 1024 and j - prev[1] < 4:
                        imm = (j - prev[1]) * 1024
                    else:
                        prev, imm = (lds, j), 0
                        a(f"s_mov_b32 m0, {lds}")
                        a(f"s_add_u32 s{sO2}, s{self.sWo}, {q*61440+j*1024}")
                    a.vmem(f"buffer_load_dwordx4 v18, {sr(SWS,4)}, s{sO2} offen offset:{imm} sc1 lds", "wl")
                    if depth:
                        a(f"s_waitcnt vmcnt({depth})")
        if not finish:
            return
        a(f"v_mov_b32 v{T}, {WFLG}\nv_mov_b32 v{T+1}, 1")
        a.vm.drain()
        a.ds(f"ds_write_b32 v{T}, v{T+1}", "wf")

    def conv_main(self):
        a = self.a
        AF, BF, CA = 24, 88, 216
        NACC = 10
        Z2, Z1, YV, UR, RB = 4, 6, 8, 10, 248
        ca = lambda n: CA + 4 * (n % NACC)
        dpp = "row_mask:0xf bank_mask:0xf"

        def bread(i):
            g = [[("ds", f"ds_read_b64_tr_b16 {vr(BF+4*i+2*q,2)}, v2 offset:{128*i+32*(1-q)}", f"b{i}")] for q in range(2)]
            g[0].insert(0, ("vmwait", (f"u{i >> 3}",)))
            return g

        def uread(n):
            return [("ds", f"ds_read_u16_d16_hi v{UR+(n&1)}, v3 offset:{4352+128*n}", f"ur{n}")]

        yb = self.o.get("yburst", "1") == "1"
        rb = (lambda k: AF + 4 * k) if yb else (lambda k: RB + 4 * (k & 1))

        def yread(k):
            return [("ds", f"ds_read_b128 {vr(rb(k),4)}, v12 offset:{1024*k}", f"yr{k}")]

        def ystore(k):
            return [("lgwait", (f"yr{k}",)),
                    ("vmem", f"buffer_store_dwordx4 {vr(rb(k),4)}, v18, {sr(SWS,4)}, s{self.sY} offen offset:{1024*k} sc1", "yst")]

        fold = self.o.get("foldd", "1") == "1"

        def epi(n):
            c, pc = ca(n), ca(n - 1)
            z2, pz2, z1, pz1 = Z2 + (n & 1), Z2 + 1 - (n & 1), Z1 + (n & 1), Z1 + 1 - (n & 1)
            y, u = YV + (n & 1), UR + (n & 1)
            o = []
            if n < 31 and not fold:
                o.append(uread(n + 1))
            if n & 7 == 0 and n and not yb:
                o.append(yread((n >> 3) - 1))
            if n & 7 == 1 and n > 1 and not yb:
                o.append(ystore((n >> 3) - 1))
            for dst, cur, prev, add in ((z2, c + 3, pc + 3, c + 2), (z1, z2, pz2, c + 1), (y, z1, pz1, c)):
                if n == 0:
                    o.append([("i", f"v_add_f32_dpp v{dst}, v{cur}, v{add} wave_shr:1 {dpp} bound_ctrl:0")])
                else:
                    o.append([("i", f"v_add_f32_dpp v{dst}, v{prev}, v{add} wave_ror:1 {dpp}")])
                    o.append([("i", f"v_add_f32_dpp v{dst}, v{cur}, v{add} wave_shr:1 {dpp}")])
            if not fold:
                o.append([("lgwait", (f"ur{n}",)), ("i", f"v_fmac_f32 v{y}, s{self.sD}, v{u}")])
            if n & 1:
                o.append([("i", f"v_cvt_pk_bf16_f32 v{UR}, v{YV}, v{YV+1}")] if fold else
                         [("i", f"v_cvt_pk_bf16_f32 v{y}, v{YV}, v{YV+1}")])
                w = UR if fold else y
                o.append([("ds", f"ds_write_b16 v3, v{w} offset:{128*(n-1)}", f"yw{n}")])
                o.append([("ds", f"ds_write_b16_d16_hi v3, v{w} offset:{128*n}", f"yw{n}")])
            return o

        if not fold:
            a(f"v_lshlrev_b32 v19, 16, v19")
            a(f"v_readfirstlane_b32 s{self.sD}, v19")
        assert yb and fold

        def aread(m):
            return [[("ds", f"ds_read_b64_tr_b16 {vr(AF+4*m+2*q,2)}, v1 offset:{256*m+32*q}", f"a{m}")] for q in range(2)]

        PRE_A, PRE_B = int(self.o.get("prea", 16)), int(self.o.get("preb", 8))
        for m in range(PRE_A):
            for g in aread(m):
                play(a, g)
        for i in range(PRE_B):
            for g in bread(i):
                play(a, g)
        if self.o.get("hold", "0") == "1":
            go = a.label("hold")
            a(f"v_mov_b32 v20, {ECNT}")
            a.lg.drain()
            self.lds_flag_wait(20, 21, go, 4)
            a(f"{go}:")
        na, nb = PRE_A, PRE_B
        fill = []
        mi = 0
        self.stamp(1, "3")
        for n in range(32):
            if n in (8, 16, 24):
                self.stamp({8: 2, 16: 3, 24: 5}[n], "3")
            while fill and any(f[1] is not None and f[1] <= n - NACC + 1 for f in fill):
                play(a, fill.pop(0)[2])
            pend = []
            while nb < 32 and nb <= n + 3:
                pend += bread(nb); nb += 1
            while na < 16 and na <= (n + 3) // 2:
                pend += aread(na); na += 1
            fill = [f for f in fill if f[1] is None] + [(0, None, g) for g in pend] + [f for f in fill if f[1] is not None]
            ms = list(range(n // 2, -1, -1))
            for k, m in enumerate(ms):
                i = n - 2 * m
                while any(op[0] == "ds" and op[2] in (f"b{i}", f"a{m}") for f in fill for op in f[2]):
                    play(a, fill.pop(0)[2])
                a.lg.wait(f"b{i}", f"a{m}")
                c = "0" if k == 0 else vr(ca(n), 4)
                a(f"v_mfma_f32_16x16x32_bf16 {vr(ca(n),4)}, {vr(AF+4*m,4)}, {vr(BF+4*i,4)}, {c}")
                mi += 1
                slots = 2
                while slots and fill and fill[0][0] <= mi:
                    play(a, fill.pop(0)[2]); slots -= 1
            fill += [(mi + 8, n, g) for g in epi(n)]
        while fill:
            play(a, fill.pop(0)[2])
        for k in (range(4) if yb else [3]):
            play(a, yread(k))
        for k in (range(4) if yb else [3]):
            play(a, ystore(k))

    def final_prepare(self):
        a = self.a
        self.VO, T = 13, 20
        a(f"""
        s_lshl2_add_u32 s{sT0}, s{sRB2}, s{sB}
        s_mul_i32 s{sT1}, s{sT0}, 20480
        s_mul_i32 s{sT2}, s{sCB2}, 160
        s_add_u32 s{sT1}, s{sT1}, s{sT2}
        """)
        for p in range(3):
            a(f"""
            v_add_u32 v{T}, {64*p}, v0
            v_mul_u32_u24 v{T+1}, 205, v{T}
            v_lshrrev_b32 v{T+1}, 11, v{T+1}
            v_mul_u32_u24 v{T+1}, 1120, v{T+1}
            v_lshl_add_u32 v{T+1}, v{T}, 4, v{T+1}
            v_add_u32 v{self.VO+p}, s{sT1}, v{T+1}
            """)
        a(f"""
        s_lshl_b32 s{sT0}, s{sT0}, 7
        s_add_u32 s{sT0}, s{sT0}, {ST}
        v_and_b32 v{T}, 15, v0
        v_lshlrev_b32 v{T}, 3, v{T}
        """)
        a.vmem(f"buffer_load_dwordx2 v[16:17], v{T}, {sr(SWS,4)}, s{sT0} offen sc1", "xt")

    def final_xn(self):
        a = self.a
        T, X, XF, XN = 20, 24, 40, 60
        a(f"""
        v_and_b32 v{T}, 15, v0
        v_mul_u32_u24 v{T}, 160, v{T}
        v_lshrrev_b32 v{T+1}, 4, v0
        v_lshl_add_u32 v{T}, v{T+1}, 3, v{T}
        s_mul_i32 s{sT1}, s{sB}, 2560
        s_add_u32 s{sT1}, s{sT1}, {XT}
        v_add_u32 v1, s{sT1}, v{T}
        v_lshl_add_u32 v2, v0, 4, s{sT1}
        v_mov_b32 v{T}, {WFLG}
        """)
        if self.o.get("xtpos", "7") == "L":
            go = a.label("xgo")
            a.lg.drain()
            self.lds_flag_wait(T, T + 1, go)
            a(f"{go}:")
        a.vm.drain()
        for j in range(5):
            a.ds(f"ds_read_b64 {vr(X+2*j,2)}, v1 offset:{j*32}", "xr")
        a("v_rcp_f32 v17, v17")
        a.lg.drain()
        for p in range(10):
            x, n = XF + 2 * p, XN + 2 * p
            a(f"""
            v_lshlrev_b32 v{x}, 16, v{X+p}
            v_and_b32 v{x+1}, 0xffff0000, v{X+p}
            v_sub_f32 v{n}, v{x}, v16
            v_sub_f32 v{n+1}, v{x+1}, v16
            v_cvt_pk_bf16_f32 v{n+1}, v{n}, v{n+1}
            v_lshlrev_b32 v{n}, 16, v{n+1}
            v_and_b32 v{n+1}, 0xffff0000, v{n+1}
            v_mul_f32 v{n}, v{n}, v17
            v_mul_f32 v{n+1}, v{n+1}, v17
            v_cvt_pk_bf16_f32 v{n+1}, v{n}, v{n+1}
            v_lshlrev_b32 v{n}, 16, v{n+1}
            v_and_b32 v{n+1}, 0xffff0000, v{n+1}
            """)

    def final_rest(self):
        a = self.a
        T, Y, XF, XN, P = 20, 24, 40, 60, 80
        YT = AUX
        sPo, sPv = sA + 9, sA + 13
        other, go = a.label("ywait"), a.label("ygo")
        a("v_lshlrev_b32 v3, 4, v0")
        for j in range(5):
            offs = []
            for b in range(4):
                v, off = self.wl_addr(5 * b + j, 0, 1)
                offs.append((off + (WS_ if v else 0), 6144 if v else 4096))
            a(f"s_mov_b32 s{sT0}, {offs[0][0]}\ns_mov_b32 s{sT1}, {offs[0][1]}")
            for b in range(1, 4):
                a(f"s_cmp_eq_u32 s{sB}, {b}\ns_cselect_b32 s{sT0}, {offs[b][0]}, s{sT0}\ns_cselect_b32 s{sT1}, {offs[b][1]}, s{sT1}")
            a(f"v_add_u32 v{160+4*j}, s{sT0}, v3")
            for q in range(1, 4):
                a(f"v_add_u32 v{160+4*j+q}, s{sT1}, v{160+4*j+q-1}")
        a(f"""
        v_lshrrev_b32 v{T}, 2, v0
        v_and_b32 v{T+1}, 3, v0
        v_lshlrev_b32 v{T+1}, 3, v{T+1}
        v_lshl_add_u32 v{T}, v{T}, 7, v{T+1}
        s_lshl_b32 s{sT0}, s{sB}, 5
        s_add_u32 s{sT0}, s{sT0}, {YT}
        v_add_u32 v{T}, s{sT0}, v{T}
        v_mov_b32 v{T+1}, {YFLG}
        s_cmp_lg_u32 s{sB}, 3
        s_cbranch_scc1 {other}
        """)
        a(f"s_and_b32 s{sT0}, s{sXCD}, 3\ns_lshl2_add_u32 s{sT0}, s{sCB2}, s{sT0}")
        self.cnt_off(sPo, cY, sT0)
        items = [(sPv, sPo, 0 if self.o.get("x_noy") else 32)]
        self.poll_issue(items, atomic=True)
        a(f"""
        v_lshrrev_b32 v{T+2}, 3, v0
        v_and_b32 v{T+3}, 7, v0
        v_mul_u32_u24 v{T+2}, {self.row}, v{T+2}
        v_lshl_add_u32 v{T+2}, v{T+3}, 4, v{T+2}
        """)
        self.poll_check(items, atomic=True, sleep=int(self.o.get("ysleep", 4)))
        ok = a.label("convdone")
        a(f"v_mov_b32 v6, {YCNT}")
        self.lds_flag_wait(6, 7, ok, f"s{self.sNC}")
        a(f"{ok}:")
        self.stamp(11)
        a(f"""
        s_mul_i32 s{sT0}, s{sCB2}, {80*self.row}
        s_lshl_b32 s{sT1}, s{sRB2}, 7
        s_add_u32 s{sT0}, s{sT0}, s{sT1}
        s_add_u32 s{sT0}, s{sT0}, {YY}
        """)
        for p in range(10):
            a(f"s_mov_b32 m0, {YT + p * 1024}")
            a(f"buffer_load_dwordx4 v{T+2}, {sr(SWS,4)}, s{sT0} offen sc1 lds")
            a(f"s_add_u32 s{sT0}, s{sT0}, {8*self.row}")
        a(f"""
        v_mov_b32 v{T+2}, 1
        s_waitcnt vmcnt(0)
        ds_write_b32 v{T+1}, v{T+2}
        s_branch {go}
        {other}:
        """)
        self.lds_flag_wait(T + 1, T + 3, go)
        a(f"{go}:")
        for j in range(5):
            a.ds(f"ds_read_b64_tr_b16 {vr(Y+2*j,2)}, v{T} offset:{j*2048}", "yr")
        a.lg.drain()
        for p in range(10):
            a(f"""
            v_lshlrev_b32 v{T}, 16, v{Y+p}
            v_and_b32 v{T+1}, 0xffff0000, v{Y+p}
            v_fmac_f32 v{XF+2*p}, v{XN+2*p}, v{T}
            v_fmac_f32 v{XF+2*p+1}, v{XN+2*p+1}, v{T+1}
            """)
        self.stamp(12)
        a("s_barrier")
        self.stamp(13)
        for j in range(5):
            for q in range(4):
                a.ds(f"ds_read_b128 {vr(P+16*j+4*q,4)}, v{160+4*j+q}", f"p{j}")
        for j in range(5):
            a.lg.wait(f"p{j}")
            p = P + 16 * j
            if self.o.get("pkadd", "1") == "1":
                for d, x, y in ((p, p, p + 4), (p + 8, p + 8, p + 12), (p, p, XF + 4 * j), (p, p, p + 8)):
                    for r in (0, 2):
                        a(f"v_pk_add_f32 {vr(d+r,2)}, {vr(x+r,2)}, {vr(y+r,2)}")
            else:
                for r in range(4):
                    a(f"v_add_f32 v{p+r}, v{p+r}, v{p+4+r}")
                for r in range(4):
                    a(f"v_add_f32 v{p+8+r}, v{p+8+r}, v{p+12+r}")
                for r in range(4):
                    a(f"v_add_f32 v{p+r}, v{p+r}, v{XF+4*j+r}")
                for r in range(4):
                    a(f"v_add_f32 v{p+r}, v{p+r}, v{p+8+r}")
            a(f"v_cvt_pk_bf16_f32 v{p}, v{p}, v{p+1}\nv_cvt_pk_bf16_f32 v{p+1}, v{p+2}, v{p+3}")
            a.ds(f"ds_write_b64 v1, {vr(p,2)} offset:{j*32}", "ow")
        for p in range(3):
            a.ds(f"ds_read_b128 {vr(24+4*p,4)}, v2 offset:{p*1024}", f"or{p}")
        of = self.o.get("outflags", "nt")
        for p in range(3):
            a.lg.wait(f"or{p}")
            if p == 2:
                a("s_mov_b32 exec_hi, 0")
            a.vmem(f"buffer_store_dwordx4 {vr(24+4*p,4)}, v{self.VO+p}, {sr(SOUT,4)}, 0 offen {of}", "out")
        self.stamp(14)
        self.dump_stamps("B")
        a("s_endpgm")

    def role_b(self, K, CV, first_conv=False):
        a = self.a
        a.vm.q = ["F0"] + ["S0"] * 9; a.lg.q = []
        sPo = [sA + 9, sA + 15, sA + 10, sA + 11]
        sPv = [sA + 12, sA + 14]
        self.sY, self.sR, self.sCH, self.sD = sA + 5, sA + 6, 3, sA + 8
        LD = not K and not CV
        self.sRot, self.sWb, self.sWo = sA + 14, sA + 15, 3
        LAG = int(self.o.get("lag", 10))
        LAG0 = int(self.o.get("lag0", 7))
        assert LAG0 <= 10
        seq, last = [], {}
        for s_ in range(10):
            seq += [(s_, g) for g in self.rec(self.stage_issue, s_)]
            last[s_] = len(seq)
        cut = []
        for s_ in range(10):
            c = min(last[s_] + (LAG0 if s_ == 0 else LAG), len(seq))
            while any(k is not None and k >= s_ + 2 + (1 if s_ == 0 else 0) for k, _ in seq[:c]) and s_ < 9:
                c -= 1
            cut.append(max(c, cut[-1] if cut else 0))

        def zero_lds():
            b = self.a
            b(f"v_mov_b32 v56, {BCNT}\nv_mov_b32 v58, 0\nv_mov_b32 v59, 0")
            for k in range(4):
                b.ds(f"ds_write_b64 v56, v[58:59] offset:{8*k}", "z")
            b.lg.drain()

        def sig_stats():
            b = self.a
            b(f"s_lshr_b32 s{sT0}, s{sWS}, 4")
            self.cnt_off(sPo[0], cS, sT0)
            self.cnt_off(sPo[1], cC, sCB1)
            self.signal(sPo[:2] if self.o.get("cs", "B") in "AB" else sPo[:1], sPv[0])

        def sig_cs():
            self.cnt_off(sA + 13, cC, sCB1)
            self.signal([sA + 13], sA + 11)

        def sig_p0():
            b = self.a
            if K:
                b(f"s_lshr_b32 s{sT0}, s{sC}, 6")
                self.cnt_off(sPo[2], cU, sT0)
            else:
                b(f"""
                s_lshr_b32 s{sT0}, s{sC}, 3
                s_mul_i32 s{sT0}, s{sT0}, 43
                s_lshr_b32 s{sT0}, s{sT0}, 9
                s_and_b32 s{sT1}, s{sC}, 4
                s_lshl2_add_u32 s{sT0}, s{sT1}, s{sT0}
                """)
                self.cnt_off(sT0, cW, sT0)
                b.begin()
                b(f"s_mov_b32 s{sPv[1]}, 1\ns_add_u32 s{sPo[2]}, s{SWS}, s{sT0}\ns_addc_u32 s{sPo[3]}, s{SWS+1}, 0")
                for k in range(4):
                    b(f"s_atomic_add s{sPv[1]}, s[{sPo[2]}:{sPo[3]}], {k*512}")
                b.end()
                return
            self.signal([sPo[2]], sPv[1])

        def b_scalars():
            b = self.a
            b(f"""
            s_mul_i32 s{self.sR}, s{sB}, {CVR}
            s_add_u32 s{self.sR}, s{self.sR}, {AUX}
            v_lshlrev_b32 v18, 4, v0
            """)

        def g2s():
            b = self.a
            b.lg.drain()
            self.g2_scalars(self.sRot, self.sWb)
            b(f"s_mul_i32 s{sT0}, s{sB}, 61440\ns_sub_u32 s{self.sWb}, s{self.sWb}, s{sT0}")

        early = [(sA + 12, sA + 9, 16), (sA + 14, sA + 10, {"A": 16, "B": 16, "L": 0, "R": 64}[self.o.get("cs", "B")]), (sA + 15, sA + 11, 16)]

        def poll_early():
            b = self.a
            b.lg.drain()
            for (_, off, _), (base, src, sh) in zip(early, [(cS, sRB1, 0), (cC, sCB1, 0), (cS, sRB2, 1)]):
                b(f"s_lshr_b32 s{sT0}, s{src}, {sh}")
                self.cnt_off(off, base, sT0)
            self.poll_issue(early)

        def wave3(groups):
            lab = a.label("w3")
            return [[("i", f"s_cmp_lg_u32 s{sB}, 3"), ("i", f"s_cbranch_scc1 {lab}")] + sum(groups, []) + [("i", f"{lab}:")]]

        def poll_late():
            b = self.a
            b(f"s_lshr_b32 s{sT0}, s{self.sCH}, 6")
            self.cnt_off(sT0, cU, sT0)
            b(f"v_mov_b32 v22, s{sT0}")
            b.begin()
            b(f"s_mov_b64 exec, 1")
            b.vmem(f"buffer_load_dword v23, v22, {sr(SWS,4)}, 0 offen sc1", "late")
            b("s_mov_b64 exec, -1")
            b.end()

        def poll_w_ops():
            return "\n".join(f"s_load_dword s{sA+12+k}, s[{sA+10}:{sA+11}], {k*128} glc" for k in range(4))

        def poll_w():
            b = self.a
            b.lg.drain()
            b(f"s_lshl_b32 s{sT0}, s{sXCD}, 2")
            self.cnt_off(sT0, cW, sT0)
            b(f"s_add_u32 s{sA+10}, s{SWS}, s{sT0}\ns_addc_u32 s{sA+11}, s{SWS+1}, 0")
            b(poll_w_ops())

        def check_w():
            b = self.a
            lo, again, ok = b.label("cw"), b.label("cwa"), b.label("cwok")
            b.lg.drain()
            b(f"s_mov_b32 s{sCNT}, 0\n{lo}:")
            for k in range(4):
                b(f"s_cmp_ge_u32 s{sA+12+k}, 48")
                b(f"s_cbranch_scc1 {ok}" if k == 3 else f"s_cbranch_scc0 {again}")
            b(f"{again}:\ns_sleep 4\n{poll_w_ops()}")
            b(f"s_add_u32 s{sCNT}, s{sCNT}, 1\ns_cmp_lt_u32 s{sCNT}, {POLL_LIMIT}\ns_waitcnt lgkmcnt(0)\ns_cbranch_scc1 {lo}\n{ok}:")

        R = self.rec
        tasks = {k: [] for k in range(10)}
        heads = {k: [] for k in range(10)}
        tails = {k: [] for k in range(10)}
        extra = {k: [] for k in range(10)}
        after = {k: [] for k in range(10)}
        mids = {k: [] for k in range(10)}
        first0 = R(self.task_index, K, CV)
        tasks[0] += R(zero_lds)
        csa = self.o.get("cs", "B") == "A"
        csl = self.o.get("cs", "B") == "L"
        if csl:
            tasks[0] += R(self.colsum_l_setup)
            for st in range(9):
                tasks[st + 1] += R(self.colsum_l_stage, st)
            csa = True
        csr = self.o.get("cs", "B") == "R"
        if csr:
            assert self.o.get("rot", "1") in "24"
            njs = 5 if self.o.get("rot", "1") == "2" else 3
            tasks[0] += R(self.colsum_r_setup)
            assert LAG == 10
            extra[njs + 1] += [f"F{njs+2}"]
            after[njs + 1] += R(sig_cs)
            csa = True
        if not csa:
            tasks[1] = R(self.colsum_partial) + tasks[1]
            tails[1] += R(self.colsum_store)
            extra[2] += ["csst"]
        pk = int(self.o.get("kpos", 0))
        nk = int(self.o.get("kspread", 3))
        if LD:
            heads[1] += R(self.vcheck_issue, 58, 59, SDBG, 1, 3)
            after[1] += R(self.vcheck, 58, 59, "1", SDBG, 1, 3)
        def by_tag(groups):
            pre, out, cur = None, {}, []
            for g in groups:
                cur = cur + g
                tags = [op[2] for op in g if op[0] == "vmem"]
                if tags:
                    out.setdefault(tags[0], []).append(cur); cur = []
            return out

        def mix(x, y):
            out, i, j = [], 0, 0
            while i < len(x) or j < len(y):
                if j >= len(y) or (i < len(x) and i * len(y) <= j * len(x)):
                    out.append(x[i]); i += 1
                else:
                    out.append(y[j]); j += 1
            return out

        k0 = 0
        late_hk = []
        burst = self.o.get("p0mode", "burst") == "burst"
        if K:
            ld = by_tag(R(self.kv_issue))
            hk = by_tag(R(self.conv_issue))["hk"] if CV else []
            if burst:
                allld = sum([ld[t] for t in ("K0", "K1", "V0", "SH", "K2", "V1", "K3", "V2", "K4", "V3")], []) + hk
                (mids if pk == 0 else heads)[pk] += allld
                tails[pk] += R(self.kv_setup)
                blocks = sum([R(self.kv_block, n) for n in range(4)], [])
                nk = int(self.o.get("nk", 4 - pk))
                for n in range(nk):
                    tasks[pk + 1 + n] += blocks[len(blocks) * n // nk:len(blocks) * (n + 1) // nk]
                hk = []
            else:
                mids[k0] += ld["K0"] + ld["K1"] + ld["V0"] + ld["SH"]
                tails[k0] += R(self.kv_setup)
                for n in range(4):
                    nxt = ld[f"K{n+2}"] + ld[f"V{n+1}"] if n < 3 else []
                    tasks[k0 + 1 + n] += nxt + R(self.kv_block, n)
            ps = pk + 1 + nk if burst else k0 + 5
            tasks[ps - 1] += R(self.kv_bounce)
            {"t": tasks, "h": heads}[self.o.get("stpos", "t")][ps] += R(self.kv_stores)
            tasks[ps + 1] += R(b_scalars)
            hp = int(self.o.get("hpos", 9))
            if hp < 9:
                tasks[hp] += hk[:3]
                tasks[hp + 1] += hk[3:]
            else:
                late_hk = hk
        else:
            ld = by_tag(R(self.wd_issue))["kv"]
            if burst:
                (mids if pk == 0 else heads)[pk] += ld + (by_tag(R(self.conv_issue))["hk"] if CV else [])
            else:
                mids[k0] += ld[:2]
                tasks[k0 + 1] += ld[2:4]
                tasks[k0 + 2] += ld[4:]
            work = R(self.wd_work)
            nst = min(k for k, g in enumerate(work) if any(op[0] == "vmem" for op in g))
            while work[nst - 1][0][0] == "lgwait":
                nst -= 1
            st = [g for g in work[nst:] if g[0][0] != "lgwait"]
            if self.o.get("wsame"):
                ps = pk + 1 + int(self.o.get("nk", 4 - pk))
                tasks[ps - 1] += work[:nst] + [[("lgdrain",)]]
                {"t": tasks, "h": heads}[self.o.get("stpos", "t")][ps] += st
            else:
                tasks[k0 + 3] += work[:nst] + [[("lgdrain",)]] + st[:2]
                tasks[k0 + 4] += st[2:]
                ps = k0 + 4
            tasks[ps + 2] += R(b_scalars)
            if self.o.get("xtpos", "7") != "L" and LD:
                xt = R(self.xt_issue, True)
                tasks[5] += xt[:3]
                rest = xt[3:]
                for n, st_ in enumerate((5, 6, 7, 8)):
                    tasks[st_] += rest[len(rest) * n // 4:len(rest) * (n + 1) // 4]
        extra[ps + 1] += ["utst"]
        after[ps + 1] += R(sig_p0)
        if LD:
            heads[3] += wave3(R(sig_stats))
            (heads if self.o.get("pe", "h") == "h" else tails)[8] += wave3(R(poll_early))
            after[8] += wave3(R(self.poll_check, early))
        tails[9] += R(self.gather_issue) + (R(poll_late) if CV else [])
        if LD:
            assert self.o.get("g2map", "84") == "84"
            heads[9] += wave3(R(poll_w))
            after[9] += wave3(R(check_w)) + R(g2s)
        if CV:
            tails[9] += late_hk + R(self.conv_setup)
        if csr:
            for j in range(njs):
                calls = [R(self.colsum_r_call, j, part)[0] for part in range(4)]
                pad = [[] for _ in range(max(0, 8 - len(tasks[j + 1])))]
                tasks[j + 1] = mix(calls, tasks[j + 1] + pad)
        drop = self.o.get("x_drop", "")

        def keep(op):
            if op[0] == "vmem":
                t = op[2]
                if "l" in drop and (t[0] in "KV" or t in ("SH", "kv", "hk")): return False
                if "s" in drop and t == "utst": return False
            if op[0] == "i" and "x" in drop and op[1].startswith("buffer_load_dwordx4 v21"): return False
            if op[0] == "i" and "v" in drop and op[1].startswith(("v_fmac_f32", "v_mul_f32", "v_cvt_pk", "v_and_b32 v9", "v_and_b32 v1", "v_lshlrev_b32 v9", "v_lshlrev_b32 v1")) and "v0" not in op[1]: return False
            return True

        if drop:
            for d in (tasks, heads, tails, mids):
                for k in range(9):
                    d[k] = [[op for op in g if keep(op)] for g in d[k]]
        pos = 10
        for s_ in range(10):
            for g in heads[s_]:
                play(a, g)
            main = [g for _, g in seq[pos:cut[s_]]]
            if s_ == 0:
                for g in first0 + mids[0]:
                    play(a, g)
                interleave(a, main, tasks[0])
            else:
                interleave(a, main, tasks[s_])
            pos = cut[s_]
            for g in tails[s_]:
                play(a, g)
            a.vm.wait(f"S{s_}", *extra[s_])
            for g in after[s_]:
                play(a, g)
            a("s_barrier")
            if s_ in (0, 3, 6, 8, 9):
                self.stamp({0: 1, 3: 2, 6: 3, 8: 5, 9: 6}[s_])
            self.stamp(s_ + 1, "2")
        assert pos == len(seq)
        if CV and not first_conv:
            assert a.vm.q == self.conv_q, (a.vm.q, self.conv_q)
            a("s_branch L_conv")
            return
        if CV:
            self.conv_q = list(a.vm.q)
            a("L_conv:")
        self.gather_finish()
        a.vm.wait("late")
        if CV:
            self.vcheck(23, 22, "64", SWS, 1, None)
            self.conv_u_issue()
            self.final_prepare()
            self.conv_fold()
            self.stamp(7)
            self.stamp(9, "3")
            if not self.o.get("x_noconv"):
                self.conv_main()
            self.stamp(8)
            self.stamp(7, "3")
            skip = a.label("ysig")
            a(f"v_mov_b32 v20, {YCNT}\nv_mov_b32 v21, 1")
            a(f"s_lshl_b32 s{sT0}, s{sXCD}, 2")
            self.cnt_off(sPo[0], cY, sT0)
            a.vm.drain()
            a("s_mov_b64 exec, 1")
            a.ds("ds_add_rtn_u32 v21, v20, v21", "yc")
            a.lg.drain()
            a(f"""
            v_readfirstlane_b32 s{sT0}, v21
            s_mov_b64 exec, -1
            s_add_u32 s{sT0}, s{sT0}, 1
            s_cmp_lg_u32 s{sT0}, s{self.sNC}
            s_cbranch_scc1 {skip}
            s_mov_b32 s{sPv[0]}, 1
            s_add_u32 s{sPo[2]}, s{SWS}, s{sPo[0]}
            s_addc_u32 s{sPo[3]}, s{SWS+1}, 0
            """)
            for k in range(4):
                a(f"s_atomic_add s{sPv[0]}, s[{sPo[2]}:{sPo[3]}], {k*128}")
            a(f"{skip}:")
            self.stamp(9)
            a("s_branch L_bjoin")
        elif K:
            self.final_prepare()
            a("s_branch L_bjoin")
        else:
            self.final_prepare()
            a(f"s_setprio {self.o.get('lprio', 1)}\ns_cmp_lg_u32 s{sB}, 3\ns_cbranch_scc1 L_bjoin")
            self.loader(range(6), True)
            self.stamp(8)

    def build(self):
        a = self.a
        self.prologue()
        self.b_common_setup()
        self.sNC = sA + 4
        self.stamp(0)
        a(f"s_and_b32 s{sT0}, s{sI}, 1\ns_sub_u32 s{self.sNC}, 3, s{sT0}")
        if self.o.get("bal", "0") == "1":
            a(f"""
            s_cmp_eq_u32 s{sB}, 3
            s_cbranch_scc1 L_pathW
            s_cmp_lt_u32 s{sB}, 2
            s_cbranch_scc1 L_pathKC
            s_cmp_eq_u32 s{self.sNC}, 3
            s_cbranch_scc1 L_pathWC
            """)
            self.role_b(True, False)
            a("L_pathKC:")
            self.role_b(True, True, True)
            a("L_pathWC:")
            self.role_b(False, True)
        else:
            a(f"s_cmp_ge_u32 s{sB}, s{self.sNC}\ns_cbranch_scc1 L_pathW")
            self.role_b(True, True, True)
        a("L_pathW:")
        self.role_b(False, False)
        a("L_bjoin:")
        a.vm.q = ["any"]; a.lg.q = ["any"]
        self.final_xn()
        self.stamp(10)
        self.final_rest()
        if self.o.get("cs", "B") == "R":
            self.colsum_r_body()
        a.vm.q = []; a.lg.q = []
        self.role_a()
        a("L_end:\ns_endpgm")
        return a.text()


def align_runs(body, minrun):
    import subprocess, tempfile, os, re
    d = tempfile.mkdtemp()
    open(d + "/a.s", "w").write('.amdgcn_target "amdgcn-amd-amdhsa--gfx950"\n.text\n' + body)
    subprocess.run(["clang", "-x", "assembler", "-target", "amdgcn-amd-amdhsa", "-mcpu=gfx950", "-c",
                    d + "/a.s", "-o", d + "/a.o"], check=True)
    dis = subprocess.run(["llvm-objdump", "-d", "--mcpu=gfx950", d + "/a.o"], capture_output=True, text=True).stdout
    sizes = [4 * len(m.group(1).split()) for m in re.finditer(r"// [0-9A-F]{12}: ([0-9A-F ]+?)(?: <.*)?$", dis, re.M)]
    lines = body.rstrip("\n").split("\n")
    idx = [k for k, l in enumerate(lines) if not l.endswith(":")]
    assert len(idx) == len(sizes), (len(idx), len(sizes))
    size = dict(zip(idx, sizes))
    out, addr = [], 0
    for k, l in enumerate(lines):
        if k in size and size[k] == 8 and addr % 8 == 4:
            run, q = 0, k
            while q < len(lines) and (q not in size or size[q] == 8):
                run += q in size
                q += 1
            if run >= minrun:
                out.append("s_nop 0"); addr += 4
        out.append(l)
        addr += size.get(k, 0)
    return "\n".join(out) + "\n"


def kernel_file(opt):
    ref = open("parallel_sum__ssm_conv_h3__swiglu_ffn__prompt.s.ref").read()
    head = [l for l in ref.split("\n") if l.startswith(";") and "@launch" not in l]
    head = head[:head.index([l for l in head if "d_ws" in l][0]) + 1]
    body = Gen(opt).build()
    if opt.get("stscope"):
        body = "\n".join(l.replace(" sc1", " " + opt["stscope"].replace("_", " ")) if l.startswith("buffer_store") else l for l in body.split("\n"))
    if opt.get("ldscope"):
        body = "\n".join(l.replace(" sc1", " " + opt["ldscope"].replace("_", " ")) if l.startswith("buffer_load") else l for l in body.split("\n"))
    if int(opt.get("align", 0)):
        body = align_runs(body, int(opt["align"]))
    return "\n".join(head) + f"""
; @launch grid=(256,1,1) block=(512,1,1) lds={LDS_BYTES}
;
; One persistent launch: 256 workgroups (one per CU) of 8 waves; workgroups past 255 exit at once.
;   waves 0-3: row statistics of 8 rows, gate/up GEMM tile (128 tokens x 96 features, LayerNorm applied
;              algebraically after the K loop), SwiGLU, down GEMM tile (64 tokens x 80 channels, K split over waves)
;   waves 4-7: LDS-DMA loader of the gate/up GEMM, k*v shift convolution with transposition or w_down re-layout,
;              long causal convolution as a Toeplitz MFMA product (one channel per wave), final combination
; Hand-offs between workgroups go through d_ws with write-through stores and counters that workgroup 0 zeroes
; first (announced in d_debug[0]); every wait is bounded.
.amdgcn_target "amdgcn-amd-amdhsa--gfx950"
.text
.globl {KNAME}
.p2align 8
.type {KNAME},@function
{KNAME}:
{body}.section .rodata,"a"
.p2align 6
.amdhsa_kernel {KNAME}
  .amdhsa_next_free_vgpr 256
  .amdhsa_next_free_sgpr 102
  .amdhsa_accum_offset 256
  .amdhsa_group_segment_fixed_size 0
  .amdhsa_kernarg_size 104
  .amdhsa_user_sgpr_count 2
  .amdhsa_user_sgpr_kernarg_segment_ptr 1
  .amdhsa_system_sgpr_workgroup_id_x 1
  .amdhsa_float_denorm_mode_32 3
.end_amdhsa_kernel
"""


if __name__ == "__main__":
    out = sys.argv[1]
    opt = {}
    for kv in sys.argv[2:]:
        k, _, v = kv.partition("=")
        opt[k] = v if v else True
    open(out, "w").write(kernel_file(opt))
```
